```python
import torch

def _softmax(x, axis=-1):
    return torch.softmax(x, dim=axis)
def _gelu(x):
    return torch.nn.functional.gelu(x, approximate="tanh")
def _silu(x):
    return torch.nn.functional.silu(x)
def _sigmoid(x):
    return torch.sigmoid(x)
def _layernorm(x, axis=-1, eps=1e-5):
    m = x.mean(dim=axis, keepdim=True)
    v = x.var(dim=axis, keepdim=True, unbiased=False)
    return (x - m) / torch.sqrt(v + eps)
def _scatter_add(tgt, idx, src, axis=0):
    return tgt.clone().index_add_(axis, idx, src)
def _segment_sum(src, seg, n):
    out = torch.zeros((n,) + src.shape[1:], dtype=src.dtype)
    return out.index_add_(0, seg, src)
def _pad(x, pw):
    flat = tuple(v for pair in reversed(pw) for v in pair)
    return torch.nn.functional.pad(x, flat)

kernel_name = 'standalone__mixer_token_mlp__prompt'

def setup_inputs():

    _w = (lambda a: (lambda t: t.to(torch.bfloat16) if t.is_floating_point() else t)(torch.as_tensor(a)))
    B, S, D, F = 1, 2048, 640, 1536
    return {
        "x": _w((lambda *s: torch.randn(*s, dtype=torch.bfloat16) * 0.05)(B, S, D)),
        "w1": _w((lambda *s: torch.randn(*s, dtype=torch.bfloat16) * 0.2)(S, F) * (S ** -0.5)),
        "b1": _w((lambda *s: torch.randn(*s, dtype=torch.bfloat16) * 1.6)(F) * 0.02),
        "w2": _w((lambda *s: torch.randn(*s, dtype=torch.bfloat16) * 0.05)(F, S) * (F ** -0.5)),
        "b2": _w((lambda *s: torch.randn(*s, dtype=torch.bfloat16) * 0.05)(S) * 0.02),
    }

def reference(x, w1, b1, w2, b2):
    B, S, D = x.shape
    h = _layernorm(x, axis=-1)
    u = torch.einsum("bsd,sf->bdf", h, w1) + b1
    u = _gelu(u)
    y = torch.einsum("bdf,fs->bds", u, w2) + b2
    return (lambda x, *d: x.permute(*d))(y, 0, 2, 1)
```

```python
import sys, struct, math

def f32(x):
    return "0x%08x" % struct.unpack("<I", struct.pack("<f", x))[0]

S, D, F = 2048, 640, 1536
H_OFF = 0
U_OFF = 4 << 20
WS_BYTES = 268435456

class A:
    def __init__(self):
        self.L = []
    def __call__(self, s):
        for line in s.strip("\n").split("\n"):
            self.L.append(line)
    def text(self):
        return "\n".join(self.L) + "\n"

def srd(a, d, b, nbytes):
    a(f"s_mov_b32 s{d}, s{b}")
    a(f"s_mov_b32 s{d+1}, s{b+1}")
    a(f"s_mov_b32 s{d+2}, {nbytes}")
    a(f"s_mov_b32 s{d+3}, 0x00020000")

def kd(a, name, vgpr, accum, sgpr=96):
    a(f""".section .rodata,"a"
.p2align 6
.amdhsa_kernel {name}
  .amdhsa_next_free_vgpr {vgpr}
  .amdhsa_next_free_sgpr {sgpr}
  .amdhsa_accum_offset {accum}
  .amdhsa_group_segment_fixed_size 0
  .amdhsa_kernarg_size 64
  .amdhsa_user_sgpr_count 2
  .amdhsa_user_sgpr_kernarg_segment_ptr 1
  .amdhsa_system_sgpr_workgroup_id_x 1
  .amdhsa_float_denorm_mode_32 3
.end_amdhsa_kernel
.text""")

def head(a, name):
    a(f".globl {name}\n.p2align 8\n.type {name},@function\n{name}:")

def code_prefetch(a, nbytes, vtmp, vdst, stmp):
    a(f"s_getpc_b64 s[{stmp}:{stmp+1}]")
    a(f"v_and_b32 v{vtmp}, 63, v0")
    a(f"v_lshlrev_b32 v{vtmp}, 7, v{vtmp}")
    a(f"v_min_u32 v{vtmp}, {nbytes}, v{vtmp}")
    a(f"global_load_dword v{vdst}, v{vtmp}, s[{stmp}:{stmp+1}]")

def wave_sum(a, v, sdst):
    for r in (8, 4, 2, 1):
        a("s_nop 1")
        a(f"v_add_f32_dpp v{v}, v{v}, v{v} row_ror:{r} row_mask:0xf bank_mask:0xf")
    a("s_nop 1")
    a(f"v_add_f32_dpp v{v}, v{v}, v{v} row_bcast:15 row_mask:0xa bank_mask:0xf")
    a("s_nop 1")
    a(f"v_add_f32_dpp v{v}, v{v}, v{v} row_bcast:31 row_mask:0xc bank_mask:0xf")
    a("s_nop 0")
    a(f"v_readlane_b32 s{sdst}, v{v}, 63")

def gen_ln(a):
    name = "mix_ln_kernel"
    head(a, name)
    a("s_cmp_ge_u32 s2, 256\ns_cbranch_scc1 L_ln_end")
    a("s_load_dwordx2 s[4:5], s[0:1], 0")
    a("s_load_dwordx2 s[6:7], s[0:1], 56")
    a("v_lshrrev_b32 v1, 6, v0")
    a("v_and_b32 v2, 63, v0               ; lane")
    a("s_mul_i32 s3, s2, 10240            ; 8 rows * 1280")
    a("v_mul_u32_u24 v3, 1280, v1")
    a("v_lshl_add_u32 v3, v2, 2, v3")
    a("s_waitcnt lgkmcnt(0)")
    srd(a, 8, 4, S * D * 2)
    for i in range(5):
        a(f"buffer_load_dword v{10+i}, v3, s[8:11], s3 offen offset:{256*i}")
    srd(a, 12, 6, S * D * 2)
    a("v_mul_u32_u24 v4, 1344, v1")
    a("v_lshl_add_u32 v4, v2, 2, v4")
    a("v_bfe_u32 v5, v2, 2, 2             ; r")
    a("v_mul_u32_u24 v5, 1344, v5")
    a("v_lshrrev_b32 v6, 4, v2            ; q")
    a("v_lshl_add_u32 v5, v6, 5, v5")
    a("v_and_b32 v6, 3, v2")
    a("v_lshl_add_u32 v5, v6, 3, v5")
    a("v_lshl_add_u32 v5, v1, 8, v5       ; + group 2w * 128 B")
    a("v_lshrrev_b32 v6, 5, v2")
    a("v_lshlrev_b32 v6, 10, v6")
    a("v_and_b32 v7, 31, v2")
    a("v_lshl_add_u32 v6, v7, 4, v6")
    a("v_lshl_add_u32 v6, v1, 19, v6")
    a("v_add_u32 v7, 0x40000, v6")
    a("s_lshr_b32 s16, s2, 1")
    a("s_lshl_b32 s16, s16, 11")
    a("s_and_b32 s17, s2, 1")
    a("s_lshl_b32 s17, s17, 9")
    a("s_add_u32 s16, s16, s17")
    a("v_readfirstlane_b32 s18, v1")
    for i in range(5):
        a(f"s_waitcnt vmcnt({4-i})")
        a(f"v_lshlrev_b32 v{20+2*i}, 16, v{10+i}")
        a(f"v_and_b32 v{21+2*i}, 0xffff0000, v{10+i}")
        if i == 0:
            a("v_add_f32 v8, v20, v21")
        else:
            a(f"v_add_f32 v9, v{20+2*i}, v{21+2*i}")
            a("v_add_f32 v8, v8, v9")
    wave_sum(a, 8, 20)
    a("s_nop 1")
    a(f"v_mov_b32 v9, {f32(1.0/D)}")
    a("v_mul_f32 v9, s20, v9              ; mean")
    for i in range(10):
        a(f"v_sub_f32 v{30+i}, v{20+i}, v9")
    a("v_mul_f32 v8, v30, v30")
    for i in range(1, 10):
        a(f"v_fmac_f32 v8, v{30+i}, v{30+i}")
    wave_sum(a, 8, 21)
    a("s_nop 1")
    a(f"v_mov_b32 v8, {f32(1.0/D)}")
    a(f"v_mov_b32 v15, {f32(1e-5)}")
    a("v_fma_f32 v8, s21, v8, v15")
    a("v_rsq_f32 v8, v8")
    a("s_nop 0")
    for i in range(10):
        a(f"v_mul_f32 v{30+i}, v{30+i}, v8")
    for i in range(5):
        a(f"v_cvt_pk_bf16_f32 v{10+i}, v{30+2*i}, v{31+2*i}")
    for i in range(5):
        a(f"ds_write_b32 v4, v{10+i} offset:{256*i}")
    a("s_waitcnt lgkmcnt(0)")
    a("s_barrier")
    a("s_cmp_ge_u32 s18, 5\ns_cbranch_scc1 L_ln_end")
    a(f"ds_read_b64_tr_b16 v[20:21], v5")
    a(f"ds_read_b64_tr_b16 v[22:23], v5 offset:{4*1344}")
    a(f"ds_read_b64_tr_b16 v[24:25], v5 offset:128")
    a(f"ds_read_b64_tr_b16 v[26:27], v5 offset:{4*1344+128}")
    a("s_waitcnt lgkmcnt(2)")
    a("buffer_store_dwordx4 v[20:23], v6, s[12:15], s16 offen")
    a("s_waitcnt lgkmcnt(0)")
    a("buffer_store_dwordx4 v[24:27], v7, s[12:15], s16 offen")
    a("L_ln_end:\ns_endpgm")
    kd(a, name, 48, 48)

def gen_g1(a, depth=7):
    name = "mix_g1_kernel"
    NS = 16
    head(a, name)
    a("s_cmp_ge_u32 s2, 240\ns_cbranch_scc1 L_g1_end")
    a("s_load_dwordx4 s[4:7], s[0:1], 8      ; w1, b1")
    a("s_load_dwordx2 s[20:21], s[0:1], 56   ; ws")
    code_prefetch(a, "(L_g1_end-mix_g1_kernel-64)", 1, 127, 22)
    a("v_lshrrev_b32 v1, 6, v0")
    a("v_and_b32 v2, 63, v0                  ; lane")
    a("v_readfirstlane_b32 s24, v1           ; wave")
    a("s_and_b32 s25, s2, 7                  ; xcd")
    a("s_lshr_b32 s26, s2, 3                 ; idx 0..29")
    a("s_mul_i32 s27, s26, 205")
    a("s_lshr_b32 s27, s27, 10               ; idx/5")
    a("s_mul_i32 s28, s27, 5")
    a("s_sub_u32 s28, s26, s28               ; idx%5")
    a("s_and_b32 s29, s25, 1")
    a("s_mul_i32 s29, s29, 5")
    a("s_add_u32 s28, s28, s29               ; dtile")
    a("s_lshr_b32 s29, s25, 1")
    a("s_mul_i32 s29, s29, 6")
    a("s_add_u32 s27, s27, s29               ; ftile")
    a("v_lshrrev_b32 v3, 3, v2               ; rr")
    a("v_mul_u32_u24 v4, 3072, v3")
    a("v_lshlrev_b32 v3, 1, v3")
    a("v_and_b32 v3, 4, v3")
    a("v_and_b32 v8, 7, v2")
    a("v_xor_b32 v3, v3, v8")
    a("v_lshl_add_u32 v4, v3, 4, v4")
    for j in range(1, 4):
        a(f"v_add_u32 v{4+j}, {j*(8*3072-1024)}, v4")
    a("s_and_b32 s30, s24, 1                 ; wb")
    a("s_lshr_b32 s31, s24, 1                ; wa")
    a("s_lshl_b32 s32, s30, 10")
    a("v_lshlrev_b32 v8, 4, v2")
    a("v_add_u32 v8, s32, v8")
    a("v_xor_b32 v9, 1024, v8")
    a(f"s_mul_i32 s33, s24, {512*3072}")
    a("s_lshl_b32 s34, s27, 7")
    a("s_add_u32 s33, s33, s34               ; w1 soffset")
    a("s_lshl_b32 s34, s28, 18")
    a("s_lshl_b32 s35, s24, 16")
    a("s_add_u32 s34, s34, s35               ; h soffset")
    a("s_lshl_b32 s35, s24, 15")
    a("v_lshrrev_b32 v10, 5, v2")
    a("v_lshlrev_b32 v10, 3, v10")
    a("s_lshl_b32 s36, s27, 7")
    a("s_lshl_b32 s37, s31, 6")
    a("s_add_u32 s36, s36, s37")
    a("s_waitcnt lgkmcnt(0)")
    srd(a, 8, 4, S * F * 2)
    srd(a, 12, 20, S * D * 2)
    srd(a, 16, 6, F * 2)
    for i in range(4):
        a(f"buffer_load_dwordx2 v[{112+2*i}:{113+2*i}], v10, s[16:19], s36 offen offset:{16*i}")
    a("s_mov_b32 m0, s35")
    a("s_nop 0")
    def issue(i):
        slot = i % 8
        for j in range(4):
            a(f"buffer_load_dwordx4 v{4+j}, s[8:11], s33 offen offset:{1024*j} lds")
        for hs in range(2):
            for b in range(2):
                r = 16 * i + 8 * hs + 4 * b
                a(f"buffer_load_dwordx4 a[{r}:{r+3}], v{8+b}, s[12:15], s34 offen offset:{2048*hs}")
        a(f"s_add_u32 s33, s33, {32*3072}")
        a("s_add_u32 s34, s34, 4096")
        if (i + 1) % 8 == 0:
            a("s_mov_b32 m0, s35")
        else:
            a("s_add_u32 m0, m0, 4096")
        a("s_nop 0")
    for i in range(depth):
        issue(i)
    a("v_bfe_u32 v13, v2, 2, 2               ; r")
    a("v_lshrrev_b32 v14, 5, v2              ; kg")
    a("v_lshl_add_u32 v14, v14, 3, v13")
    a("v_lshlrev_b32 v11, 7, v14             ; row*128")
    a("v_bfe_u32 v14, v2, 4, 1")
    a("v_lshlrev_b32 v14, 1, v14")
    a("v_bfe_u32 v15, v2, 1, 1")
    a("v_or_b32 v14, v14, v15                ; 2*(q&1) + (c>>1)")
    a("v_lshrrev_b32 v13, 1, v13")
    a("v_xor_b32 v13, s31, v13")
    a("v_lshl_or_b32 v14, v13, 2, v14")
    a("v_lshl_add_u32 v11, v14, 4, v11")
    a("v_and_b32 v14, 1, v2")
    a("v_lshl_add_u32 v11, v14, 3, v11")
    a("v_add_u32 v11, s35, v11")
    a("v_xor_b32 v12, 64, v11")
    a("v_and_b32 v13, 31, v2")
    a("s_lshl_b32 s36, s28, 6")
    a("s_lshl_b32 s37, s30, 5")
    a("s_add_u32 s36, s36, s37")
    a("v_add_u32 v13, s36, v13               ; d")
    a("v_mul_u32_u24 v14, 3277, v13")
    a("v_lshrrev_b32 v14, 18, v14            ; j = d/80")
    a("v_mul_u32_u24 v15, 80, v14")
    a("v_sub_u32 v13, v13, v15               ; dloc")
    a("v_lshrrev_b32 v15, 5, v13")
    a("v_lshlrev_b32 v15, 1, v15")
    a("v_bfe_u32 v16, v13, 2, 1              ; e")
    a("v_add_u32 v16, v16, v15")
    a("v_bfe_u32 v17, v13, 3, 2")
    a("v_and_b32 v18, 3, v13")
    a("v_lshl_add_u32 v17, v17, 2, v18")
    a("v_and_b32 v18, 15, v13")
    a("v_cmp_gt_u32 vcc, 64, v13")
    a("s_lshl_b32 s36, s27, 1")
    a("s_add_u32 s36, s36, s31               ; ks")
    a("v_cndmask_b32 v16, v15, v16, vcc")
    a("v_cndmask_b32 v17, v18, v17, vcc")
    a("v_mul_u32_u24 v14, 240, v14")
    a("v_add_u32 v14, v14, v16")
    a("v_lshlrev_b32 v13, 10, v14")
    a("v_lshl_add_u32 v13, v17, 4, v13")
    a("v_lshrrev_b32 v14, 5, v2")
    a("v_lshl_add_u32 v13, v14, 8, v13")
    a("s_mul_i32 s36, s36, 5120")
    a("v_lshlrev_b32 v14, 4, v2")
    a("v_add_u32 v14, s35, v14")
    for k in range(1, 4):
        a(f"v_xor_b32 v{14+k}, {k << 15}, v14")
    ACC = 32
    AB = [96, 128]
    a(f"s_waitcnt vmcnt({8*depth})")
    for i in range(4):
        for k in range(2):
            a(f"v_lshlrev_b32 v{ACC+4*i+2*k}, 16, v{112+2*i+k}")
            a(f"v_and_b32 v{ACC+4*i+2*k+1}, 0xffff0000, v{112+2*i+k}")
    def reads(i):
        slot = i % 8
        for hs in range(2):
            for t in range(2):
                for e in range(2):
                    r = AB[i & 1] + 8 * hs + 4 * t + 2 * e
                    a(f"ds_read_b64_tr_b16 v[{r}:{r+1}], v{11+t} offset:{slot*4096+hs*2048+e*512}")
    def mfmas(i, lo, hi):
        k = 0
        for hs in range(2):
            for t in range(2):
                for b in range(2):
                    if lo <= k < hi:
                        ra = AB[i & 1] + 8 * hs + 4 * t
                        rb = 16 * i + 8 * hs + 4 * b
                        c = ACC + 16 * (2 * t + b)
                        src = f"v[{c}:{c+15}]"
                        if i == 0 and hs == 0 and (t or b):
                            src = "0"
                        a(f"v_mfma_f32_32x32x16_bf16 v[{c}:{c+15}], v[{ra}:{ra+3}], a[{rb}:{rb+3}], {src}")
                    k += 1
    issued = depth
    a(f"s_waitcnt vmcnt({8*(issued-1)})")
    reads(0)
    for i in range(NS):
        a("s_waitcnt lgkmcnt(0)")
        if issued < NS:
            mfmas(i, 0, 1)
            issue(issued)
            issued += 1
            mfmas(i, 1, 5)
        else:
            mfmas(i, 0, 5)
        if i + 1 < NS:
            a(f"s_waitcnt vmcnt({8*(issued-i-2)})")
            reads(i + 1)
        mfmas(i, 5, 8)
    a("s_nop 7\ns_nop 3")
    for k in range(1, 4):
        for q in range(4):
            c = ACC + 16 * k + 4 * q
            a(f"ds_write_b128 v14, v[{c}:{c+3}] offset:{(k-1)*4096+q*1024}")
    a("s_waitcnt lgkmcnt(0)")
    a("s_barrier")
    for k in range(1, 4):
        for q in range(4):
            c = ACC + 16 * k + 4 * q
            a(f"ds_read_b128 v[{c}:{c+3}], v{14+k} offset:{(k-1)*4096+q*1024}")
    c1 = -2.0 * math.log2(math.e) * math.sqrt(2.0 / math.pi)
    a(f"s_mov_b32 s40, {f32(c1*0.044715)}")
    a(f"v_mov_b32 v20, {f32(c1)}")
    srd(a, 12, 20, U_OFF + D * F * 2)
    a(f"s_add_u32 s36, s36, {U_OFF}")
    for k in range(1, 4):
        for q in range(4):
            a(f"s_waitcnt lgkmcnt({11-(4*(k-1)+q)})")
            for r in range(0, 4, 2):
                c = ACC + 4 * q + r
                a(f"v_pk_add_f32 v[{c}:{c+1}], v[{c}:{c+1}], v[{c+16*k}:{c+16*k+1}]")
    T = 48
    for r in range(16):
        a(f"v_mul_f32 v{T+r}, v{ACC+r}, v{ACC+r}")
    for r in range(16):
        a(f"v_fma_f32 v{T+r}, v{T+r}, s40, v20")
    for r in range(16):
        a(f"v_mul_f32 v{T+r}, v{T+r}, v{ACC+r}")
    for r in range(16):
        a(f"v_exp_f32 v{T+r}, v{T+r}")
    for r in range(16):
        a(f"v_add_f32 v{T+r}, 1.0, v{T+r}")
    for r in range(16):
        a(f"v_rcp_f32 v{T+r}, v{T+r}")
    for r in range(16):
        a(f"v_mul_f32 v{T+r}, v{T+r}, v{ACC+r}")
    for r in range(8):
        a(f"v_cvt_pk_bf16_f32 v{64+r}, v{T+2*r}, v{T+2*r+1}")
    a("buffer_store_dwordx4 v[64:67], v13, s[12:15], s36 offen")
    a("buffer_store_dwordx4 v[68:71], v13, s[12:15], s36 offen offset:512")
    a("L_g1_end:\ns_endpgm")
    kd(a, name, 144 + 256, 144)

def gen_g2(a, depth=7):
    name = "mix_g2_kernel"
    NS = 12
    head(a, name)
    a("s_cmp_ge_u32 s2, 256\ns_cbranch_scc1 L_g2_end")
    a("s_load_dwordx4 s[4:7], s[0:1], 24     ; w2, b2")
    a("s_load_dwordx2 s[20:21], s[0:1], 56   ; ws")
    a("s_load_dwordx2 s[38:39], s[0:1], 40   ; out")
    code_prefetch(a, "(L_g2_end-mix_g2_kernel-64)", 1, 160, 22)
    a("v_lshrrev_b32 v1, 6, v0")
    a("v_and_b32 v2, 63, v0                  ; lane")
    a("v_readfirstlane_b32 s24, v1           ; wave")
    a("s_and_b32 s25, s2, 1")
    a("s_lshl_b32 s25, s25, 2")
    a("s_bfe_u32 s26, s2, 0x20003")
    a("s_add_u32 s28, s25, s26")
    a("s_bfe_u32 s25, s2, 0x20001")
    a("s_lshl_b32 s25, s25, 3")
    a("s_lshr_b32 s26, s2, 5")
    a("s_add_u32 s27, s25, s26               ; stile")
    a("v_lshrrev_b32 v3, 3, v2               ; rr")
    a("v_lshlrev_b32 v4, 12, v3")
    a("v_and_b32 v3, 6, v3")
    a("v_and_b32 v8, 7, v2")
    a("v_xor_b32 v3, v3, v8")
    a("v_lshl_add_u32 v4, v3, 4, v4")
    for j in range(1, 4):
        a(f"v_add_u32 v{4+j}, {j*(8*4096-1024)}, v4")
    a("v_lshlrev_b32 v8, 4, v2")
    a("v_add_u32 v9, 4096, v8")
    a(f"s_mul_i32 s33, s24, {12*32*4096}")
    a("s_lshl_b32 s34, s27, 7")
    a("s_add_u32 s33, s33, s34               ; w2 soffset")
    a("s_mul_i32 s34, s28, 48")
    a("s_mul_i32 s35, s24, 12")
    a("s_add_u32 s34, s34, s35")
    a("s_mul_i32 s34, s34, 5120")
    a(f"s_add_u32 s34, s34, {U_OFF}          ; u soffset")
    a("s_lshl_b32 s35, s24, 15")
    a("v_and_b32 v10, 15, v2")
    a("s_lshl_b32 s36, s27, 6")
    a("s_lshl_b32 s37, s24, 4")
    a("s_add_u32 s36, s36, s37")
    a("v_add_u32 v10, s36, v10               ; s")
    a("v_lshlrev_b32 v11, 1, v10")
    a("s_waitcnt lgkmcnt(0)")
    srd(a, 8, 4, S * F * 2)
    srd(a, 12, 20, U_OFF + D * F * 2)
    srd(a, 16, 6, S * 2)
    a("buffer_load_ushort v31, v11, s[16:19], 0 offen")
    a("s_mov_b32 m0, s35")
    a("s_nop 0")
    def issue(i):
        for j in range(4):
            a(f"buffer_load_dwordx4 v{4+j}, s[8:11], s33 offen offset:{1024*j} lds")
        for t in range(5):
            r = 20 * i + 4 * t
            if t < 4:
                a(f"buffer_load_dwordx4 a[{r}:{r+3}], v8, s[12:15], s34 offen offset:{1024*t}")
            else:
                a(f"buffer_load_dwordx4 a[{r}:{r+3}], v9, s[12:15], s34 offen")
        a(f"s_add_u32 s33, s33, {32*4096}")
        a("s_add_u32 s34, s34, 5120")
        if (i + 1) % 8 == 0:
            a("s_mov_b32 m0, s35")
        else:
            a("s_add_u32 m0, m0, 4096")
        a("s_nop 0")
    first = depth - 1
    for i in range(first):
        issue(i)
    a("v_bfe_u32 v16, v2, 2, 2               ; r")
    a("v_bfe_u32 v17, v2, 4, 1               ; h'")
    a("v_lshl_add_u32 v16, v17, 2, v16       ; 4h'+r")
    a("v_lshrrev_b32 v17, 5, v2              ; c'")
    a("v_lshl_add_u32 v17, v17, 4, v16       ; row")
    a("v_lshlrev_b32 v12, 7, v17")
    a("v_lshrrev_b32 v16, 1, v16")
    a("v_xor_b32 v16, s24, v16")
    a("v_lshl_add_u32 v12, v16, 5, v12")
    a("v_and_b32 v16, 3, v2")
    a("v_lshl_add_u32 v12, v16, 3, v12")
    a("v_add_u32 v12, s35, v12")
    for b in range(1, 4):
        a(f"v_xor_b32 v{12+b}, {b*32}, v12")
    a("v_mul_u32_u24 v16, 1280, v10")
    a("v_lshrrev_b32 v18, 4, v2")
    a("v_lshl_add_u32 v17, v18, 3, v16")
    a("v_lshl_add_u32 v16, v18, 4, v16")
    a("s_mul_i32 s36, s28, 160")
    a("v_add_u32 v18, s35, v8")
    for k in range(1, 4):
        a(f"v_xor_b32 v{18+k}, {k << 15}, v18")
    ACC = 32
    BB = [112, 128]
    a(f"s_waitcnt vmcnt({9*first})")
    a("v_lshlrev_b32 v31, 16, v31")
    for r in range(20):
        a(f"v_mov_b32 v{ACC+r}, v31")
    issue(first)
    def reads(i):
        slot = i % 8
        for b in range(4):
            for e in range(2):
                r = BB[i & 1] + 4 * b + 2 * e
                a(f"ds_read_b64_tr_b16 v[{r}:{r+1}], v{12+b} offset:{slot*4096+e*1024}")
    def mfmas(i, lo, hi):
        k = 0
        for b in range(4):
            for t in range(5):
                if lo <= k < hi:
                    ra = 20 * i + 4 * t
                    rb = BB[i & 1] + 4 * b
                    c = ACC + 20 * b + 4 * t
                    src = f"v[{c}:{c+3}]"
                    if i == 0 and b:
                        src = "0"
                    a(f"v_mfma_f32_16x16x32_bf16 v[{c}:{c+3}], a[{ra}:{ra+3}], v[{rb}:{rb+3}], {src}")
                k += 1
    issued = depth
    a(f"s_waitcnt vmcnt({9*(issued-1)})")
    reads(0)
    for i in range(NS):
        a("s_waitcnt lgkmcnt(0)")
        if issued < NS:
            mfmas(i, 0, 2)
            issue(issued)
            issued += 1
            mfmas(i, 2, 13)
        else:
            mfmas(i, 0, 13)
        if i + 1 < NS:
            a(f"s_waitcnt vmcnt({9*(issued-i-2)})")
            reads(i + 1)
        mfmas(i, 13, 20)
    a("s_nop 7")
    for k in range(1, 4):
        for t in range(5):
            c = ACC + 20 * k + 4 * t
            a(f"ds_write_b128 v18, v[{c}:{c+3}] offset:{(k-1)*5120+t*1024}")
    a("s_waitcnt lgkmcnt(0)")
    a("s_barrier")
    for k in range(1, 4):
        for t in range(5):
            c = ACC + 20 * k + 4 * t
            a(f"ds_read_b128 v[{c}:{c+3}], v{18+k} offset:{(k-1)*5120+t*1024}")
    srd(a, 12, 38, S * D * 2)
    for k in range(1, 4):
        for t in range(5):
            a(f"s_waitcnt lgkmcnt({14-(5*(k-1)+t)})")
            for r in range(0, 4, 2):
                c = ACC + 4 * t + r
                a(f"v_pk_add_f32 v[{c}:{c+1}], v[{c}:{c+1}], v[{c+20*k}:{c+20*k+1}]")
    for r in range(10):
        a(f"v_cvt_pk_bf16_f32 v{112+r}, v{ACC+2*r}, v{ACC+2*r+1}")
    a("buffer_store_dwordx4 v[112:115], v16, s[12:15], s36 offen")
    a("buffer_store_dwordx4 v[116:119], v16, s[12:15], s36 offen offset:64")
    a("buffer_store_dwordx2 v[120:121], v17, s[12:15], s36 offen offset:128")
    a("L_g2_end:\ns_endpgm")
    kd(a, name, 164 + 240, 164)

HEADER = """; MLP-Mixer token mixing: LayerNorm -> GEMM1 + bias + GELU -> GEMM2 + bias (transposed out)
"""

def main(out, extra_empty=0):
    a = A()
    a(HEADER)
    a("; @launch kernel=mix_ln_kernel grid=(256,1,1) block=(512,1,1) lds=10752")
    a("; @launch kernel=mix_g1_kernel grid=(240,1,1) block=(256,1,1) lds=131072")
    a("; @launch kernel=mix_g2_kernel grid=(256,1,1) block=(256,1,1) lds=131072")
    for i in range(extra_empty):
        a("; @launch kernel=mix_nop_kernel grid=(256,1,1) block=(256,1,1) lds=0")
    a('.amdgcn_target "amdgcn-amd-amdhsa--gfx950"')
    a(".text")
    gen_ln(a)
    gen_g1(a)
    gen_g2(a)
    if extra_empty:
        head(a, "mix_nop_kernel")
        a("s_endpgm")
        kd(a, "mix_nop_kernel", 8, 8)
    open(out, "w").write(a.text())

if __name__ == "__main__":
    main(sys.argv[1], int(sys.argv[2]) if len(sys.argv) > 2 else 0)
```

```python
import sys, struct, math

def f32(x):
    return "0x%08x" % struct.unpack("<I", struct.pack("<f", x))[0]

S, D, F = 2048, 640, 1536
H_OFF = 0
U_OFF = 4 << 20
WS_BYTES = 268435456

STAMP = False
ROT = True
ST_OFF = 16 << 20
def stamp(a, idx):
    if STAMP:
        a(f"s_memrealtime s[{64+2*idx}:{65+2*idx}]")
def stamp_out(a, kidx, n, wsreg):
    if not STAMP:
        return
    a("s_waitcnt vmcnt(0)")
    stamp(a, n - 1)
    a("v_lshrrev_b32 v1, 6, v0")
    a("v_lshlrev_b32 v1, 6, v1")
    a("s_lshl_b32 s3, s2, 9")
    a(f"s_add_u32 s3, s3, {ST_OFF + kidx*(256<<10)}")
    a("v_add_u32 v1, s3, v1")
    a("s_waitcnt lgkmcnt(0)")
    for i in range(n):
        a(f"v_mov_b32 v2, s{64+2*i}")
        a(f"global_store_dword v1, v2, s[{wsreg}:{wsreg+1}] offset:{4*i}")

class A:
    def __init__(self):
        self.L = []
    def __call__(self, s):
        for line in s.strip("\n").split("\n"):
            self.L.append(line)
    def text(self):
        return "\n".join(self.L) + "\n"

def srd(a, d, b, nbytes):
    a(f"s_mov_b32 s{d}, s{b}")
    a(f"s_mov_b32 s{d+1}, s{b+1}")
    a(f"s_mov_b32 s{d+2}, {nbytes}")
    a(f"s_mov_b32 s{d+3}, 0x00020000")

def kd(a, name, vgpr, accum, sgpr=96):
    a(f""".section .rodata,"a"
.p2align 6
.amdhsa_kernel {name}
  .amdhsa_next_free_vgpr {vgpr}
  .amdhsa_next_free_sgpr {sgpr}
  .amdhsa_accum_offset {accum}
  .amdhsa_group_segment_fixed_size 0
  .amdhsa_kernarg_size 64
  .amdhsa_user_sgpr_count 2
  .amdhsa_user_sgpr_kernarg_segment_ptr 1
  .amdhsa_system_sgpr_workgroup_id_x 1
  .amdhsa_float_denorm_mode_32 3
.end_amdhsa_kernel
.text""")

def head(a, name):
    a(f".globl {name}\n.p2align 8\n.type {name},@function\n{name}:")

def code_prefetch(a, nbytes, vtmp, vdst, stmp):
    a(f"s_getpc_b64 s[{stmp}:{stmp+1}]")
    a(f"v_and_b32 v{vtmp}, 63, v0")
    a(f"v_lshlrev_b32 v{vtmp}, 7, v{vtmp}")
    a(f"v_min_u32 v{vtmp}, {nbytes}, v{vtmp}")
    a(f"global_load_dword v{vdst}, v{vtmp}, s[{stmp}:{stmp+1}]")

def wave_sum(a, v, sdst):
    for r in (8, 4, 2, 1):
        a("s_nop 1")
        a(f"v_add_f32_dpp v{v}, v{v}, v{v} row_ror:{r} row_mask:0xf bank_mask:0xf")
    a("s_nop 1")
    a(f"v_add_f32_dpp v{v}, v{v}, v{v} row_bcast:15 row_mask:0xa bank_mask:0xf")
    a("s_nop 1")
    a(f"v_add_f32_dpp v{v}, v{v}, v{v} row_bcast:31 row_mask:0xc bank_mask:0xf")
    a("s_nop 0")
    a(f"v_readlane_b32 s{sdst}, v{v}, 63")

def gen_ln(a):
    name = "mix_ln_kernel"
    head(a, name)
    a("s_cmp_ge_u32 s2, 256\ns_cbranch_scc1 L_ln_end")
    stamp(a, 0)
    a("s_load_dwordx2 s[4:5], s[0:1], 0")
    a("s_load_dwordx2 s[6:7], s[0:1], 56")
    a("v_lshrrev_b32 v1, 6, v0")
    a("v_and_b32 v2, 63, v0               ; lane")
    a("s_mul_i32 s3, s2, 10240            ; 8 rows * 1280")
    a("v_mul_u32_u24 v3, 1280, v1")
    a("v_lshl_add_u32 v3, v2, 2, v3")
    a("s_waitcnt lgkmcnt(0)")
    srd(a, 8, 4, S * D * 2)
    for i in range(5):
        a(f"buffer_load_dword v{10+i}, v3, s[8:11], s3 offen offset:{256*i}")
    srd(a, 12, 6, S * D * 2)
    a("v_mul_u32_u24 v4, 1344, v1")
    a("v_lshl_add_u32 v4, v2, 2, v4")
    a("v_bfe_u32 v5, v2, 2, 2             ; r")
    a("v_mul_u32_u24 v5, 1344, v5")
    a("v_lshrrev_b32 v6, 4, v2            ; q")
    a("v_lshl_add_u32 v5, v6, 5, v5")
    a("v_and_b32 v6, 3, v2")
    a("v_lshl_add_u32 v5, v6, 3, v5")
    a("v_lshl_add_u32 v5, v1, 8, v5       ; + group 2w * 128 B")
    a("v_lshrrev_b32 v6, 5, v2")
    a("v_lshlrev_b32 v6, 10, v6")
    a("v_and_b32 v7, 31, v2")
    a("v_lshl_add_u32 v6, v7, 4, v6")
    a("v_lshl_add_u32 v6, v1, 19, v6")
    a("v_add_u32 v7, 0x40000, v6")
    a("s_lshr_b32 s16, s2, 1")
    a("s_lshl_b32 s16, s16, 11")
    a("s_and_b32 s17, s2, 1")
    a("s_lshl_b32 s17, s17, 9")
    a("s_add_u32 s16, s16, s17")
    a("v_readfirstlane_b32 s18, v1")
    for i in range(5):
        a(f"s_waitcnt vmcnt({4-i})")
        a(f"v_lshlrev_b32 v{20+2*i}, 16, v{10+i}")
        a(f"v_and_b32 v{21+2*i}, 0xffff0000, v{10+i}")
        if i == 0:
            a("v_add_f32 v8, v20, v21")
        else:
            a(f"v_add_f32 v9, v{20+2*i}, v{21+2*i}")
            a("v_add_f32 v8, v8, v9")
    stamp(a, 1)
    wave_sum(a, 8, 20)
    a("s_nop 1")
    a(f"v_mov_b32 v9, {f32(1.0/D)}")
    a("v_mul_f32 v9, s20, v9              ; mean")
    for i in range(10):
        a(f"v_sub_f32 v{30+i}, v{20+i}, v9")
    a("v_mul_f32 v8, v30, v30")
    for i in range(1, 10):
        a(f"v_fmac_f32 v8, v{30+i}, v{30+i}")
    wave_sum(a, 8, 21)
    a("s_nop 1")
    a(f"v_mov_b32 v8, {f32(1.0/D)}")
    a(f"v_mov_b32 v15, {f32(1e-5)}")
    a("v_fma_f32 v8, s21, v8, v15")
    a("v_rsq_f32 v8, v8")
    a("s_nop 0")
    for i in range(10):
        a(f"v_mul_f32 v{30+i}, v{30+i}, v8")
    for i in range(5):
        a(f"v_cvt_pk_bf16_f32 v{10+i}, v{30+2*i}, v{31+2*i}")
    for i in range(5):
        a(f"ds_write_b32 v4, v{10+i} offset:{256*i}")
    a("s_waitcnt lgkmcnt(0)")
    a("s_barrier")
    stamp(a, 2)
    if STAMP: a("s_waitcnt lgkmcnt(0)")
    a("s_cmp_ge_u32 s18, 5\ns_cbranch_scc1 L_ln_end")
    a(f"ds_read_b64_tr_b16 v[20:21], v5")
    a(f"ds_read_b64_tr_b16 v[22:23], v5 offset:{4*1344}")
    a(f"ds_read_b64_tr_b16 v[24:25], v5 offset:128")
    a(f"ds_read_b64_tr_b16 v[26:27], v5 offset:{4*1344+128}")
    a("s_waitcnt lgkmcnt(2)")
    a("buffer_store_dwordx4 v[20:23], v6, s[12:15], s16 offen")
    a("s_waitcnt lgkmcnt(0)")
    a("buffer_store_dwordx4 v[24:27], v7, s[12:15], s16 offen")
    stamp_out(a, 0, 4, 6)
    a("L_ln_end:\ns_endpgm")
    kd(a, name, 48, 48)

def gen_g1(a, depth=7):
    name = "mix_g1_kernel"
    NS = 16
    head(a, name)
    a("s_cmp_ge_u32 s2, 240\ns_cbranch_scc1 L_g1_end")
    stamp(a, 0)
    a("s_load_dwordx4 s[4:7], s[0:1], 8      ; w1, b1")
    a("s_load_dwordx2 s[20:21], s[0:1], 56   ; ws")
    code_prefetch(a, "(L_g1_end-mix_g1_kernel-64)", 1, 127, 22)
    a("v_lshrrev_b32 v1, 6, v0")
    a("v_and_b32 v2, 63, v0                  ; lane")
    a("v_readfirstlane_b32 s24, v1           ; wave")
    a("s_and_b32 s25, s2, 7                  ; xcd")
    a("s_lshr_b32 s26, s2, 3                 ; idx 0..29")
    a("s_mul_i32 s27, s26, 205")
    a("s_lshr_b32 s27, s27, 10               ; idx/5")
    a("s_mul_i32 s28, s27, 5")
    a("s_sub_u32 s28, s26, s28               ; idx%5")
    a("s_and_b32 s29, s25, 1")
    a("s_mul_i32 s29, s29, 5")
    a("s_add_u32 s28, s28, s29               ; dtile")
    a("s_lshr_b32 s29, s25, 1")
    a("s_mul_i32 s29, s29, 6")
    a("s_add_u32 s27, s27, s29               ; ftile")
    a("v_lshrrev_b32 v3, 3, v2               ; rr")
    a("v_mul_u32_u24 v4, 3072, v3")
    a("v_lshlrev_b32 v3, 1, v3")
    a("v_and_b32 v3, 4, v3")
    a("v_and_b32 v8, 7, v2")
    a("v_xor_b32 v3, v3, v8")
    a("v_lshl_add_u32 v4, v3, 4, v4")
    for j in range(1, 4):
        a(f"v_add_u32 v{4+j}, {j*(8*3072-1024)}, v4")
    a("s_and_b32 s30, s24, 1                 ; wb")
    a("s_lshr_b32 s31, s24, 1                ; wa")
    a("s_lshl_b32 s32, s30, 10")
    a("v_lshlrev_b32 v8, 4, v2")
    a("v_add_u32 v8, s32, v8")
    a("v_xor_b32 v9, 1024, v8")
    a(f"s_mul_i32 s33, s24, {512*3072}")
    a("s_lshl_b32 s34, s27, 7")
    a("s_add_u32 s33, s33, s34               ; w1 soffset")
    a("s_lshl_b32 s34, s28, 18")
    a("s_lshl_b32 s35, s24, 16")
    a("s_add_u32 s34, s34, s35               ; h soffset")
    if ROT:
        a("s_mul_i32 s41, s26, 205")
        a("s_lshr_b32 s41, s41, 10")
        a("s_mul_i32 s42, s41, 4")
        a("s_sub_u32 s41, s26, s42")
        a("s_cmp_ge_u32 s41, 6")
        a("s_cselect_b32 s42, 6, 0")
        a("s_sub_u32 s41, s41, s42")
        a("s_mul_i32 s41, s41, 43")
        a("s_lshr_b32 s41, s41, 4             ; rot (0,2,5,8,10,13)")
        a("s_mov_b32 s43, s33")
        a("s_mov_b32 s44, s34")
        a(f"s_mul_i32 s42, s41, {32*3072}")
        a("s_add_u32 s33, s33, s42")
        a("s_lshl_b32 s42, s41, 12")
        a("s_add_u32 s34, s34, s42")
        a("s_add_u32 s45, s44, 65536")
    a("s_lshl_b32 s35, s24, 15")
    a("v_lshrrev_b32 v10, 5, v2")
    a("v_lshlrev_b32 v10, 3, v10")
    a("s_lshl_b32 s36, s27, 7")
    a("s_lshl_b32 s37, s31, 6")
    a("s_add_u32 s36, s36, s37")
    a("s_waitcnt lgkmcnt(0)")
    srd(a, 8, 4, S * F * 2)
    srd(a, 12, 20, S * D * 2)
    srd(a, 16, 6, F * 2)
    for i in range(4):
        a(f"buffer_load_dwordx2 v[{112+2*i}:{113+2*i}], v10, s[16:19], s36 offen offset:{16*i}")
    a("s_mov_b32 m0, s35")
    a("s_nop 0")
    def issue(i):
        slot = i % 8
        for j in range(4):
            a(f"buffer_load_dwordx4 v{4+j}, s[8:11], s33 offen offset:{1024*j} lds")
        for hs in range(2):
            for b in range(2):
                r = 16 * i + 8 * hs + 4 * b
                a(f"buffer_load_dwordx4 a[{r}:{r+3}], v{8+b}, s[12:15], s34 offen offset:{2048*hs}")
        a(f"s_add_u32 s33, s33, {32*3072}")
        a("s_add_u32 s34, s34, 4096")
        if ROT:
            a("s_cmp_eq_u32 s34, s45")
            a("s_cselect_b32 s33, s43, s33")
            a("s_cselect_b32 s34, s44, s34")
        if (i + 1) % 8 == 0:
            a("s_mov_b32 m0, s35")
        else:
            a("s_add_u32 m0, m0, 4096")
        a("s_nop 0")
    for i in range(depth):
        issue(i)
    stamp(a, 1)
    a("v_bfe_u32 v13, v2, 2, 2               ; r")
    a("v_lshrrev_b32 v14, 5, v2              ; kg")
    a("v_lshl_add_u32 v14, v14, 3, v13")
    a("v_lshlrev_b32 v11, 7, v14             ; row*128")
    a("v_bfe_u32 v14, v2, 4, 1")
    a("v_lshlrev_b32 v14, 1, v14")
    a("v_bfe_u32 v15, v2, 1, 1")
    a("v_or_b32 v14, v14, v15                ; 2*(q&1) + (c>>1)")
    a("v_lshrrev_b32 v13, 1, v13")
    a("v_xor_b32 v13, s31, v13")
    a("v_lshl_or_b32 v14, v13, 2, v14")
    a("v_lshl_add_u32 v11, v14, 4, v11")
    a("v_and_b32 v14, 1, v2")
    a("v_lshl_add_u32 v11, v14, 3, v11")
    a("v_add_u32 v11, s35, v11")
    a("v_xor_b32 v12, 64, v11")
    a("v_and_b32 v13, 31, v2")
    a("s_lshl_b32 s36, s28, 6")
    a("s_lshl_b32 s37, s30, 5")
    a("s_add_u32 s36, s36, s37")
    a("v_add_u32 v13, s36, v13               ; d")
    a("v_mul_u32_u24 v14, 3277, v13")
    a("v_lshrrev_b32 v14, 18, v14            ; j = d/80")
    a("v_mul_u32_u24 v15, 80, v14")
    a("v_sub_u32 v13, v13, v15               ; dloc")
    a("v_lshrrev_b32 v15, 5, v13")
    a("v_lshlrev_b32 v15, 1, v15")
    a("v_bfe_u32 v16, v13, 2, 1              ; e")
    a("v_add_u32 v16, v16, v15")
    a("v_bfe_u32 v17, v13, 3, 2")
    a("v_and_b32 v18, 3, v13")
    a("v_lshl_add_u32 v17, v17, 2, v18")
    a("v_and_b32 v18, 15, v13")
    a("v_cmp_gt_u32 vcc, 64, v13")
    a("s_lshl_b32 s36, s27, 1")
    a("s_add_u32 s36, s36, s31               ; ks")
    a("v_cndmask_b32 v16, v15, v16, vcc")
    a("v_cndmask_b32 v17, v18, v17, vcc")
    a("v_mul_u32_u24 v14, 240, v14")
    a("v_add_u32 v14, v14, v16")
    a("v_lshlrev_b32 v13, 10, v14")
    a("v_lshl_add_u32 v13, v17, 4, v13")
    a("v_lshrrev_b32 v14, 5, v2")
    a("v_lshl_add_u32 v13, v14, 8, v13")
    a("s_mul_i32 s36, s36, 5120")
    a("v_lshlrev_b32 v14, 4, v2")
    a("v_add_u32 v14, s35, v14")
    for k in range(1, 4):
        a(f"v_xor_b32 v{14+k}, {k << 15}, v14")
    ACC = 32
    AB = [96, 128]
    a(f"s_waitcnt vmcnt({8*depth})")
    for i in range(4):
        for k in range(2):
            a(f"v_lshlrev_b32 v{ACC+4*i+2*k}, 16, v{112+2*i+k}")
            a(f"v_and_b32 v{ACC+4*i+2*k+1}, 0xffff0000, v{112+2*i+k}")
    def reads(i):
        slot = i % 8
        for hs in range(2):
            for t in range(2):
                for e in range(2):
                    r = AB[i & 1] + 8 * hs + 4 * t + 2 * e
                    a(f"ds_read_b64_tr_b16 v[{r}:{r+1}], v{11+t} offset:{slot*4096+hs*2048+e*512}")
    def mfmas(i, lo, hi):
        k = 0
        for hs in range(2):
            for t in range(2):
                for b in range(2):
                    if lo <= k < hi:
                        ra = AB[i & 1] + 8 * hs + 4 * t
                        rb = 16 * i + 8 * hs + 4 * b
                        c = ACC + 16 * (2 * t + b)
                        src = f"v[{c}:{c+15}]"
                        if i == 0 and hs == 0 and (t or b):
                            src = "0"
                        a(f"v_mfma_f32_32x32x16_bf16 v[{c}:{c+15}], v[{ra}:{ra+3}], a[{rb}:{rb+3}], {src}")
                    k += 1
    issued = depth
    a(f"s_waitcnt vmcnt({8*(issued-1)})")
    stamp(a, 2)
    reads(0)
    for i in range(NS):
        if i in (NS//4, NS//2, 3*NS//4): stamp(a, 2 + i // (NS//4))
        a("s_waitcnt lgkmcnt(0)")
        if issued < NS:
            mfmas(i, 0, 1)
            issue(issued)
            issued += 1
            mfmas(i, 1, 5)
        else:
            mfmas(i, 0, 5)
        if i + 1 < NS:
            a(f"s_waitcnt vmcnt({8*(issued-i-2)})")
            reads(i + 1)
        mfmas(i, 5, 8)
    stamp(a, 6)
    a("s_nop 7\ns_nop 3")
    for k in range(1, 4):
        for q in range(4):
            c = ACC + 16 * k + 4 * q
            a(f"ds_write_b128 v14, v[{c}:{c+3}] offset:{(k-1)*4096+q*1024}")
    a("s_waitcnt lgkmcnt(0)")
    a("s_barrier")
    for k in range(1, 4):
        for q in range(4):
            c = ACC + 16 * k + 4 * q
            a(f"ds_read_b128 v[{c}:{c+3}], v{14+k} offset:{(k-1)*4096+q*1024}")
    c1 = -2.0 * math.log2(math.e) * math.sqrt(2.0 / math.pi)
    a(f"s_mov_b32 s40, {f32(c1*0.044715)}")
    a(f"v_mov_b32 v20, {f32(c1)}")
    srd(a, 12, 20, U_OFF + D * F * 2)
    a(f"s_add_u32 s36, s36, {U_OFF}")
    for k in range(1, 4):
        for q in range(4):
            a(f"s_waitcnt lgkmcnt({11-(4*(k-1)+q)})")
            for r in range(0, 4, 2):
                c = ACC + 4 * q + r
                a(f"v_pk_add_f32 v[{c}:{c+1}], v[{c}:{c+1}], v[{c+16*k}:{c+16*k+1}]")
    T = 48
    for r in range(16):
        a(f"v_mul_f32 v{T+r}, v{ACC+r}, v{ACC+r}")
    for r in range(16):
        a(f"v_fma_f32 v{T+r}, v{T+r}, s40, v20")
    for r in range(16):
        a(f"v_mul_f32 v{T+r}, v{T+r}, v{ACC+r}")
    for r in range(16):
        a(f"v_exp_f32 v{T+r}, v{T+r}")
    for r in range(16):
        a(f"v_add_f32 v{T+r}, 1.0, v{T+r}")
    for r in range(16):
        a(f"v_rcp_f32 v{T+r}, v{T+r}")
    for r in range(16):
        a(f"v_mul_f32 v{T+r}, v{T+r}, v{ACC+r}")
    for r in range(8):
        a(f"v_cvt_pk_bf16_f32 v{64+r}, v{T+2*r}, v{T+2*r+1}")
    stamp(a, 7)
    a("buffer_store_dwordx4 v[64:67], v13, s[12:15], s36 offen")
    a("buffer_store_dwordx4 v[68:71], v13, s[12:15], s36 offen offset:512")
    stamp_out(a, 1, 9, 20)
    a("L_g1_end:\ns_endpgm")
    kd(a, name, 144 + 256, 144)

def gen_g2(a, depth=7):
    name = "mix_g2_kernel"
    NS = 12
    head(a, name)
    a("s_cmp_ge_u32 s2, 256\ns_cbranch_scc1 L_g2_end")
    stamp(a, 0)
    a("s_load_dwordx4 s[4:7], s[0:1], 24     ; w2, b2")
    a("s_load_dwordx2 s[20:21], s[0:1], 56   ; ws")
    a("s_load_dwordx2 s[38:39], s[0:1], 40   ; out")
    code_prefetch(a, "(L_g2_end-mix_g2_kernel-64)", 1, 160, 22)
    a("v_lshrrev_b32 v1, 6, v0")
    a("v_and_b32 v2, 63, v0                  ; lane")
    a("v_readfirstlane_b32 s24, v1           ; wave")
    a("s_and_b32 s25, s2, 1")
    a("s_lshl_b32 s25, s25, 2")
    a("s_bfe_u32 s26, s2, 0x20003")
    a("s_add_u32 s28, s25, s26")
    a("s_bfe_u32 s25, s2, 0x20001")
    a("s_lshl_b32 s25, s25, 3")
    a("s_lshr_b32 s26, s2, 5")
    a("s_add_u32 s27, s25, s26               ; stile")
    a("v_lshrrev_b32 v3, 3, v2               ; rr")
    a("v_lshlrev_b32 v4, 12, v3")
    a("v_and_b32 v3, 6, v3")
    a("v_and_b32 v8, 7, v2")
    a("v_xor_b32 v3, v3, v8")
    a("v_lshl_add_u32 v4, v3, 4, v4")
    for j in range(1, 4):
        a(f"v_add_u32 v{4+j}, {j*(8*4096-1024)}, v4")
    a("v_lshlrev_b32 v8, 4, v2")
    a("v_add_u32 v9, 4096, v8")
    a(f"s_mul_i32 s33, s24, {12*32*4096}")
    a("s_lshl_b32 s34, s27, 7")
    a("s_add_u32 s33, s33, s34               ; w2 soffset")
    a("s_mul_i32 s34, s28, 48")
    a("s_mul_i32 s35, s24, 12")
    a("s_add_u32 s34, s34, s35")
    a("s_mul_i32 s34, s34, 5120")
    a(f"s_add_u32 s34, s34, {U_OFF}          ; u soffset")
    if ROT:
        a("s_bfe_u32 s41, s2, 0x20003")
        a("s_lshl_b32 s41, s41, 1")
        a("s_lshr_b32 s42, s2, 5")
        a("s_add_u32 s41, s41, s42")
        a("s_and_b32 s41, s41, 7")
        a("s_mul_i32 s41, s41, 3")
        a("s_lshr_b32 s41, s41, 1             ; rot")
        a("s_mov_b32 s43, s33")
        a("s_mov_b32 s44, s34")
        a(f"s_mul_i32 s42, s41, {32*4096}")
        a("s_add_u32 s33, s33, s42")
        a("s_mul_i32 s42, s41, 5120")
        a("s_add_u32 s34, s34, s42")
        a(f"s_add_u32 s45, s44, {12*5120}")
    a("s_lshl_b32 s35, s24, 15")
    a("v_and_b32 v10, 15, v2")
    a("s_lshl_b32 s36, s27, 6")
    a("s_lshl_b32 s37, s24, 4")
    a("s_add_u32 s36, s36, s37")
    a("v_add_u32 v10, s36, v10               ; s")
    a("v_lshlrev_b32 v11, 1, v10")
    a("s_waitcnt lgkmcnt(0)")
    srd(a, 8, 4, S * F * 2)
    srd(a, 12, 20, U_OFF + D * F * 2)
    srd(a, 16, 6, S * 2)
    a("buffer_load_ushort v31, v11, s[16:19], 0 offen")
    a("s_mov_b32 m0, s35")
    a("s_nop 0")
    def issue(i):
        for j in range(4):
            a(f"buffer_load_dwordx4 v{4+j}, s[8:11], s33 offen offset:{1024*j} lds")
        for t in range(5):
            r = 20 * i + 4 * t
            if t < 4:
                a(f"buffer_load_dwordx4 a[{r}:{r+3}], v8, s[12:15], s34 offen offset:{1024*t}")
            else:
                a(f"buffer_load_dwordx4 a[{r}:{r+3}], v9, s[12:15], s34 offen")
        a(f"s_add_u32 s33, s33, {32*4096}")
        a("s_add_u32 s34, s34, 5120")
        if ROT:
            a("s_cmp_eq_u32 s34, s45")
            a("s_cselect_b32 s33, s43, s33")
            a("s_cselect_b32 s34, s44, s34")
        if (i + 1) % 8 == 0:
            a("s_mov_b32 m0, s35")
        else:
            a("s_add_u32 m0, m0, 4096")
        a("s_nop 0")
    first = depth - 1
    for i in range(first):
        issue(i)
    stamp(a, 1)
    a("v_bfe_u32 v16, v2, 2, 2               ; r")
    a("v_bfe_u32 v17, v2, 4, 1               ; h'")
    a("v_lshl_add_u32 v16, v17, 2, v16       ; 4h'+r")
    a("v_lshrrev_b32 v17, 5, v2              ; c'")
    a("v_lshl_add_u32 v17, v17, 4, v16       ; row")
    a("v_lshlrev_b32 v12, 7, v17")
    a("v_lshrrev_b32 v16, 1, v16")
    a("v_xor_b32 v16, s24, v16")
    a("v_lshl_add_u32 v12, v16, 5, v12")
    a("v_and_b32 v16, 3, v2")
    a("v_lshl_add_u32 v12, v16, 3, v12")
    a("v_add_u32 v12, s35, v12")
    for b in range(1, 4):
        a(f"v_xor_b32 v{12+b}, {b*32}, v12")
    a("v_mul_u32_u24 v16, 1280, v10")
    a("v_lshrrev_b32 v18, 4, v2")
    a("v_lshl_add_u32 v17, v18, 3, v16")
    a("v_lshl_add_u32 v16, v18, 4, v16")
    a("s_mul_i32 s36, s28, 160")
    a("v_add_u32 v18, s35, v8")
    for k in range(1, 4):
        a(f"v_xor_b32 v{18+k}, {k << 15}, v18")
    ACC = 32
    BB = [112, 128]
    a(f"s_waitcnt vmcnt({9*first})")
    a("v_lshlrev_b32 v31, 16, v31")
    for r in range(20):
        a(f"v_mov_b32 v{ACC+r}, v31")
    issue(first)
    def reads(i):
        slot = i % 8
        for b in range(4):
            for e in range(2):
                r = BB[i & 1] + 4 * b + 2 * e
                a(f"ds_read_b64_tr_b16 v[{r}:{r+1}], v{12+b} offset:{slot*4096+e*1024}")
    def mfmas(i, lo, hi):
        k = 0
        for b in range(4):
            for t in range(5):
                if lo <= k < hi:
                    ra = 20 * i + 4 * t
                    rb = BB[i & 1] + 4 * b
                    c = ACC + 20 * b + 4 * t
                    src = f"v[{c}:{c+3}]"
                    if i == 0 and b:
                        src = "0"
                    a(f"v_mfma_f32_16x16x32_bf16 v[{c}:{c+3}], a[{ra}:{ra+3}], v[{rb}:{rb+3}], {src}")
                k += 1
    issued = depth
    a(f"s_waitcnt vmcnt({9*(issued-1)})")
    stamp(a, 2)
    reads(0)
    for i in range(NS):
        if i in (NS//4, NS//2, 3*NS//4): stamp(a, 2 + i // (NS//4))
        a("s_waitcnt lgkmcnt(0)")
        if issued < NS:
            mfmas(i, 0, 2)
            issue(issued)
            issued += 1
            mfmas(i, 2, 13)
        else:
            mfmas(i, 0, 13)
        if i + 1 < NS:
            a(f"s_waitcnt vmcnt({9*(issued-i-2)})")
            reads(i + 1)
        mfmas(i, 13, 20)
    stamp(a, 6)
    a("s_nop 7")
    for k in range(1, 4):
        for t in range(5):
            c = ACC + 20 * k + 4 * t
            a(f"ds_write_b128 v18, v[{c}:{c+3}] offset:{(k-1)*5120+t*1024}")
    a("s_waitcnt lgkmcnt(0)")
    a("s_barrier")
    for k in range(1, 4):
        for t in range(5):
            c = ACC + 20 * k + 4 * t
            a(f"ds_read_b128 v[{c}:{c+3}], v{18+k} offset:{(k-1)*5120+t*1024}")
    srd(a, 12, 38, S * D * 2)
    for k in range(1, 4):
        for t in range(5):
            a(f"s_waitcnt lgkmcnt({14-(5*(k-1)+t)})")
            for r in range(0, 4, 2):
                c = ACC + 4 * t + r
                a(f"v_pk_add_f32 v[{c}:{c+1}], v[{c}:{c+1}], v[{c+20*k}:{c+20*k+1}]")
    for r in range(10):
        a(f"v_cvt_pk_bf16_f32 v{112+r}, v{ACC+2*r}, v{ACC+2*r+1}")
    stamp(a, 7)
    a("buffer_store_dwordx4 v[112:115], v16, s[12:15], s36 offen")
    a("buffer_store_dwordx4 v[116:119], v16, s[12:15], s36 offen offset:64")
    a("buffer_store_dwordx2 v[120:121], v17, s[12:15], s36 offen offset:128")
    stamp_out(a, 2, 9, 20)
    a("L_g2_end:\ns_endpgm")
    kd(a, name, 164 + 240, 164)

HEADER = """; MLP-Mixer token mixing: LayerNorm -> GEMM1 + bias + GELU -> GEMM2 + bias (transposed out)
"""

def main(out, extra_empty=0):
    a = A()
    a(HEADER)
    a("; @launch kernel=mix_ln_kernel grid=(256,1,1) block=(512,1,1) lds=10752")
    a("; @launch kernel=mix_g1_kernel grid=(240,1,1) block=(256,1,1) lds=131072")
    a("; @launch kernel=mix_g2_kernel grid=(256,1,1) block=(256,1,1) lds=131072")
    for i in range(extra_empty):
        a("; @launch kernel=mix_nop_kernel grid=(256,1,1) block=(256,1,1) lds=0")
    a('.amdgcn_target "amdgcn-amd-amdhsa--gfx950"')
    a(".text")
    gen_ln(a)
    gen_g1(a)
    gen_g2(a)
    if extra_empty:
        head(a, "mix_nop_kernel")
        a("s_endpgm")
        kd(a, "mix_nop_kernel", 8, 8)
    open(out, "w").write(a.text())

if __name__ == "__main__":
    if "--stamp" in sys.argv:
        STAMP = True
        sys.argv.remove("--stamp")
    main(sys.argv[1], int(sys.argv[2]) if len(sys.argv) > 2 else 0)
```

```python
import sys, struct, math

def f32(x):
    return "0x%08x" % struct.unpack("<I", struct.pack("<f", x))[0]

S, D, F = 2048, 640, 1536
H_OFF = 0
U_OFF = 4 << 20
WS_BYTES = 268435456

STAMP = False
ROT = True
ST_OFF = 16 << 20
def stamp(a, idx):
    if STAMP:
        a(f"s_memrealtime s[{64+2*idx}:{65+2*idx}]")
def stamp_out(a, kidx, n, wsreg):
    if not STAMP:
        return
    a("s_waitcnt vmcnt(0)")
    stamp(a, n - 1)
    a("v_lshrrev_b32 v1, 6, v0")
    a("v_lshlrev_b32 v1, 6, v1")
    a("s_lshl_b32 s3, s2, 9")
    a(f"s_add_u32 s3, s3, {ST_OFF + kidx*(256<<10)}")
    a("v_add_u32 v1, s3, v1")
    a("s_waitcnt lgkmcnt(0)")
    for i in range(n):
        a(f"v_mov_b32 v2, s{64+2*i}")
        a(f"global_store_dword v1, v2, s[{wsreg}:{wsreg+1}] offset:{4*i}")

class A:
    def __init__(self):
        self.L = []
    def __call__(self, s):
        for line in s.strip("\n").split("\n"):
            self.L.append(line)
    def text(self):
        return "\n".join(self.L) + "\n"

def srd(a, d, b, nbytes):
    a(f"s_mov_b32 s{d}, s{b}")
    a(f"s_mov_b32 s{d+1}, s{b+1}")
    a(f"s_mov_b32 s{d+2}, {nbytes}")
    a(f"s_mov_b32 s{d+3}, 0x00020000")

def kd(a, name, vgpr, accum, sgpr=96):
    a(f""".section .rodata,"a"
.p2align 6
.amdhsa_kernel {name}
  .amdhsa_next_free_vgpr {vgpr}
  .amdhsa_next_free_sgpr {sgpr}
  .amdhsa_accum_offset {accum}
  .amdhsa_group_segment_fixed_size 0
  .amdhsa_kernarg_size 64
  .amdhsa_user_sgpr_count 2
  .amdhsa_user_sgpr_kernarg_segment_ptr 1
  .amdhsa_system_sgpr_workgroup_id_x 1
  .amdhsa_float_denorm_mode_32 3
.end_amdhsa_kernel
.text""")

def head(a, name):
    a(f".globl {name}\n.p2align 8\n.type {name},@function\n{name}:")

def code_prefetch(a, nbytes, vtmp, vdst, stmp):
    a(f"s_getpc_b64 s[{stmp}:{stmp+1}]")
    a(f"v_and_b32 v{vtmp}, 63, v0")
    a(f"v_lshlrev_b32 v{vtmp}, 7, v{vtmp}")
    a(f"v_min_u32 v{vtmp}, {nbytes}, v{vtmp}")
    a(f"global_load_dword v{vdst}, v{vtmp}, s[{stmp}:{stmp+1}]")

def wave_sum(a, v, sdst):
    for r in (8, 4, 2, 1):
        a("s_nop 1")
        a(f"v_add_f32_dpp v{v}, v{v}, v{v} row_ror:{r} row_mask:0xf bank_mask:0xf")
    a("s_nop 1")
    a(f"v_add_f32_dpp v{v}, v{v}, v{v} row_bcast:15 row_mask:0xa bank_mask:0xf")
    a("s_nop 1")
    a(f"v_add_f32_dpp v{v}, v{v}, v{v} row_bcast:31 row_mask:0xc bank_mask:0xf")
    a("s_nop 0")
    a(f"v_readlane_b32 s{sdst}, v{v}, 63")

def gen_ln(a):
    name = "mix_ln_kernel"
    head(a, name)
    a("s_cmp_ge_u32 s2, 256\ns_cbranch_scc1 L_ln_end")
    stamp(a, 0)
    a("s_load_dwordx2 s[4:5], s[0:1], 0")
    a("s_load_dwordx2 s[6:7], s[0:1], 56")
    a("v_lshrrev_b32 v1, 6, v0")
    a("v_and_b32 v2, 63, v0               ; lane")
    a("s_mul_i32 s3, s2, 10240            ; 8 rows * 1280")
    a("v_mul_u32_u24 v3, 1280, v1")
    a("v_lshl_add_u32 v3, v2, 2, v3")
    a("s_waitcnt lgkmcnt(0)")
    srd(a, 8, 4, S * D * 2)
    for i in range(5):
        a(f"buffer_load_dword v{10+i}, v3, s[8:11], s3 offen offset:{256*i}")
    srd(a, 12, 6, S * D * 2)
    a("v_mul_u32_u24 v4, 1344, v1")
    a("v_lshl_add_u32 v4, v2, 2, v4")
    a("v_bfe_u32 v5, v2, 2, 2             ; r")
    a("v_mul_u32_u24 v5, 1344, v5")
    a("v_lshrrev_b32 v6, 4, v2            ; q")
    a("v_lshl_add_u32 v5, v6, 5, v5")
    a("v_and_b32 v6, 3, v2")
    a("v_lshl_add_u32 v5, v6, 3, v5")
    a("v_lshl_add_u32 v5, v1, 8, v5       ; + group 2w * 128 B")
    a("v_lshrrev_b32 v6, 5, v2")
    a("v_lshlrev_b32 v6, 10, v6")
    a("v_and_b32 v7, 31, v2")
    a("v_lshl_add_u32 v6, v7, 4, v6")
    a("v_lshl_add_u32 v6, v1, 19, v6")
    a("v_add_u32 v7, 0x40000, v6")
    a("s_lshr_b32 s16, s2, 1")
    a("s_lshl_b32 s16, s16, 11")
    a("s_and_b32 s17, s2, 1")
    a("s_lshl_b32 s17, s17, 9")
    a("s_add_u32 s16, s16, s17")
    a("v_readfirstlane_b32 s18, v1")
    for i in range(5):
        a(f"s_waitcnt vmcnt({4-i})")
        a(f"v_lshlrev_b32 v{20+2*i}, 16, v{10+i}")
        a(f"v_and_b32 v{21+2*i}, 0xffff0000, v{10+i}")
        if i == 0:
            a("v_add_f32 v8, v20, v21")
        else:
            a(f"v_add_f32 v9, v{20+2*i}, v{21+2*i}")
            a("v_add_f32 v8, v8, v9")
    stamp(a, 1)
    wave_sum(a, 8, 20)
    a("s_nop 1")
    a(f"v_mov_b32 v9, {f32(1.0/D)}")
    a("v_mul_f32 v9, s20, v9              ; mean")
    for i in range(10):
        a(f"v_sub_f32 v{30+i}, v{20+i}, v9")
    a("v_mul_f32 v8, v30, v30")
    for i in range(1, 10):
        a(f"v_fmac_f32 v8, v{30+i}, v{30+i}")
    wave_sum(a, 8, 21)
    a("s_nop 1")
    a(f"v_mov_b32 v8, {f32(1.0/D)}")
    a(f"v_mov_b32 v15, {f32(1e-5)}")
    a("v_fma_f32 v8, s21, v8, v15")
    a("v_rsq_f32 v8, v8")
    a("s_nop 0")
    for i in range(10):
        a(f"v_mul_f32 v{30+i}, v{30+i}, v8")
    for i in range(5):
        a(f"v_cvt_pk_bf16_f32 v{10+i}, v{30+2*i}, v{31+2*i}")
    for i in range(5):
        a(f"ds_write_b32 v4, v{10+i} offset:{256*i}")
    a("s_waitcnt lgkmcnt(0)")
    a("s_barrier")
    stamp(a, 2)
    if STAMP: a("s_waitcnt lgkmcnt(0)")
    a("s_cmp_ge_u32 s18, 5\ns_cbranch_scc1 L_ln_end")
    a(f"ds_read_b64_tr_b16 v[20:21], v5")
    a(f"ds_read_b64_tr_b16 v[22:23], v5 offset:{4*1344}")
    a(f"ds_read_b64_tr_b16 v[24:25], v5 offset:128")
    a(f"ds_read_b64_tr_b16 v[26:27], v5 offset:{4*1344+128}")
    a("s_waitcnt lgkmcnt(2)")
    a("buffer_store_dwordx4 v[20:23], v6, s[12:15], s16 offen")
    a("s_waitcnt lgkmcnt(0)")
    a("buffer_store_dwordx4 v[24:27], v7, s[12:15], s16 offen")
    stamp_out(a, 0, 4, 6)
    a("L_ln_end:\ns_endpgm")
    kd(a, name, 48, 48)

def gen_g1(a, depth=7):
    name = "mix_g1_kernel"
    NS = 16
    head(a, name)
    a("s_cmp_ge_u32 s2, 240\ns_cbranch_scc1 L_g1_end")
    stamp(a, 0)
    a("s_load_dwordx4 s[4:7], s[0:1], 8      ; w1, b1")
    a("s_load_dwordx2 s[20:21], s[0:1], 56   ; ws")
    code_prefetch(a, "(L_g1_end-mix_g1_kernel-64)", 1, 127, 22)
    a("v_lshrrev_b32 v1, 6, v0")
    a("v_and_b32 v2, 63, v0                  ; lane")
    a("v_readfirstlane_b32 s24, v1           ; wave")
    a("s_and_b32 s25, s2, 7                  ; xcd")
    a("s_lshr_b32 s26, s2, 3                 ; idx 0..29")
    a("s_mul_i32 s27, s26, 205")
    a("s_lshr_b32 s27, s27, 10               ; idx/5")
    a("s_mul_i32 s28, s27, 5")
    a("s_sub_u32 s28, s26, s28               ; idx%5")
    a("s_and_b32 s29, s25, 1")
    a("s_mul_i32 s29, s29, 5")
    a("s_add_u32 s28, s28, s29               ; dtile")
    a("s_lshr_b32 s29, s25, 1")
    a("s_mul_i32 s29, s29, 6")
    a("s_add_u32 s27, s27, s29               ; ftile")
    a("v_lshrrev_b32 v3, 3, v2               ; rr")
    a("v_mul_u32_u24 v4, 3072, v3")
    a("v_lshlrev_b32 v3, 1, v3")
    a("v_and_b32 v3, 4, v3")
    a("v_and_b32 v8, 7, v2")
    a("v_xor_b32 v3, v3, v8")
    a("v_lshl_add_u32 v4, v3, 4, v4")
    for j in range(1, 4):
        a(f"v_add_u32 v{4+j}, {j*(8*3072-1024)}, v4")
    a("s_and_b32 s30, s24, 1                 ; wb")
    a("s_lshr_b32 s31, s24, 1                ; wa")
    a("s_lshl_b32 s32, s30, 10")
    a("v_lshlrev_b32 v8, 4, v2")
    a("v_add_u32 v8, s32, v8")
    a("v_xor_b32 v9, 1024, v8")
    a(f"s_mul_i32 s33, s24, {512*3072}")
    a("s_lshl_b32 s34, s27, 7")
    a("s_add_u32 s33, s33, s34               ; w1 soffset")
    a("s_lshl_b32 s34, s28, 18")
    a("s_lshl_b32 s35, s24, 16")
    a("s_add_u32 s34, s34, s35               ; h soffset")
    if ROT:
        a("s_mul_i32 s41, s26, 205")
        a("s_lshr_b32 s41, s41, 10")
        a("s_mul_i32 s42, s41, 4")
        a("s_sub_u32 s41, s26, s42")
        a("s_cmp_ge_u32 s41, 6")
        a("s_cselect_b32 s42, 6, 0")
        a("s_sub_u32 s41, s41, s42")
        a("s_mul_i32 s41, s41, 43")
        a("s_lshr_b32 s41, s41, 4             ; rot (0,2,5,8,10,13)")
        a("s_mov_b32 s43, s33")
        a("s_mov_b32 s44, s34")
        a(f"s_mul_i32 s42, s41, {32*3072}")
        a("s_add_u32 s33, s33, s42")
        a("s_lshl_b32 s42, s41, 12")
        a("s_add_u32 s34, s34, s42")
        a("s_add_u32 s45, s44, 65536")
    a("s_lshl_b32 s35, s24, 15")
    a("v_lshrrev_b32 v10, 5, v2")
    a("v_lshlrev_b32 v10, 3, v10")
    a("s_lshl_b32 s36, s27, 7")
    a("s_lshl_b32 s37, s31, 6")
    a("s_add_u32 s36, s36, s37")
    a("s_waitcnt lgkmcnt(0)")
    srd(a, 8, 4, S * F * 2)
    srd(a, 12, 20, S * D * 2)
    srd(a, 16, 6, F * 2)
    for i in range(4):
        a(f"buffer_load_dwordx2 v[{112+2*i}:{113+2*i}], v10, s[16:19], s36 offen offset:{16*i}")
    a("s_mov_b32 m0, s35")
    a("s_nop 0")
    def issue(i):
        slot = i % 8
        for j in range(4):
            a(f"buffer_load_dwordx4 v{4+j}, s[8:11], s33 offen offset:{1024*j} lds")
        for hs in range(2):
            for b in range(2):
                r = 16 * i + 8 * hs + 4 * b
                a(f"buffer_load_dwordx4 a[{r}:{r+3}], v{8+b}, s[12:15], s34 offen offset:{2048*hs}")
        a(f"s_add_u32 s33, s33, {32*3072}")
        a("s_add_u32 s34, s34, 4096")
        if ROT:
            a("s_cmp_eq_u32 s34, s45")
            a("s_cselect_b32 s33, s43, s33")
            a("s_cselect_b32 s34, s44, s34")
        if (i + 1) % 8 == 0:
            a("s_mov_b32 m0, s35")
        else:
            a("s_add_u32 m0, m0, 4096")
        a("s_nop 0")
    for i in range(depth):
        issue(i)
    stamp(a, 1)
    a("v_bfe_u32 v13, v2, 2, 2               ; r")
    a("v_lshrrev_b32 v14, 5, v2              ; kg")
    a("v_lshl_add_u32 v14, v14, 3, v13")
    a("v_lshlrev_b32 v11, 7, v14             ; row*128")
    a("v_bfe_u32 v14, v2, 4, 1")
    a("v_lshlrev_b32 v14, 1, v14")
    a("v_bfe_u32 v15, v2, 1, 1")
    a("v_or_b32 v14, v14, v15                ; 2*(q&1) + (c>>1)")
    a("v_lshrrev_b32 v13, 1, v13")
    a("v_xor_b32 v13, s31, v13")
    a("v_lshl_or_b32 v14, v13, 2, v14")
    a("v_lshl_add_u32 v11, v14, 4, v11")
    a("v_and_b32 v14, 1, v2")
    a("v_lshl_add_u32 v11, v14, 3, v11")
    a("v_add_u32 v11, s35, v11")
    a("v_xor_b32 v12, 64, v11")
    a("v_and_b32 v13, 31, v2")
    a("s_lshl_b32 s36, s28, 6")
    a("s_lshl_b32 s37, s30, 5")
    a("s_add_u32 s36, s36, s37")
    a("v_add_u32 v13, s36, v13               ; d")
    a("v_mul_u32_u24 v14, 3277, v13")
    a("v_lshrrev_b32 v14, 18, v14            ; j = d/80")
    a("v_mul_u32_u24 v15, 80, v14")
    a("v_sub_u32 v13, v13, v15               ; dloc")
    a("v_lshrrev_b32 v15, 5, v13")
    a("v_lshlrev_b32 v15, 1, v15")
    a("v_bfe_u32 v16, v13, 2, 1              ; e")
    a("v_add_u32 v16, v16, v15")
    a("v_bfe_u32 v17, v13, 3, 2")
    a("v_and_b32 v18, 3, v13")
    a("v_lshl_add_u32 v17, v17, 2, v18")
    a("v_and_b32 v18, 15, v13")
    a("v_cmp_gt_u32 vcc, 64, v13")
    a("s_lshl_b32 s36, s27, 1")
    a("s_add_u32 s36, s36, s31               ; ks")
    a("v_cndmask_b32 v16, v15, v16, vcc")
    a("v_cndmask_b32 v17, v18, v17, vcc")
    a("v_mul_u32_u24 v14, 240, v14")
    a("v_add_u32 v14, v14, v16")
    a("v_lshlrev_b32 v13, 10, v14")
    a("v_lshl_add_u32 v13, v17, 4, v13")
    a("v_lshrrev_b32 v14, 5, v2")
    a("v_lshl_add_u32 v13, v14, 8, v13")
    a("s_mul_i32 s36, s36, 5120")
    a("v_lshlrev_b32 v14, 4, v2")
    a("v_add_u32 v14, s35, v14")
    for k in range(1, 4):
        a(f"v_xor_b32 v{14+k}, {k << 15}, v14")
    ACC = 32
    AB = [96, 128]
    a(f"s_waitcnt vmcnt({8*depth})")
    for i in range(4):
        for k in range(2):
            a(f"v_lshlrev_b32 v{ACC+4*i+2*k}, 16, v{112+2*i+k}")
            a(f"v_and_b32 v{ACC+4*i+2*k+1}, 0xffff0000, v{112+2*i+k}")
    def reads(i):
        slot = i % 8
        for hs in range(2):
            for t in range(2):
                for e in range(2):
                    r = AB[i & 1] + 8 * hs + 4 * t + 2 * e
                    a(f"ds_read_b64_tr_b16 v[{r}:{r+1}], v{11+t} offset:{slot*4096+hs*2048+e*512}")
    def mfmas(i, lo, hi):
        k = 0
        for hs in range(2):
            for t in range(2):
                for b in range(2):
                    if lo <= k < hi:
                        ra = AB[i & 1] + 8 * hs + 4 * t
                        rb = 16 * i + 8 * hs + 4 * b
                        c = ACC + 16 * (2 * t + b)
                        src = f"v[{c}:{c+15}]"
                        if i == 0 and hs == 0 and (t or b):
                            src = "0"
                        a(f"v_mfma_f32_32x32x16_bf16 v[{c}:{c+15}], v[{ra}:{ra+3}], a[{rb}:{rb+3}], {src}")
                    k += 1
    issued = depth
    a(f"s_waitcnt vmcnt({8*(issued-1)})")
    stamp(a, 2)
    reads(0)
    for i in range(NS):
        if i in (NS//4, NS//2, 3*NS//4): stamp(a, 2 + i // (NS//4))
        a("s_waitcnt lgkmcnt(0)")
        if issued < NS:
            mfmas(i, 0, 1)
            issue(issued)
            issued += 1
            mfmas(i, 1, 5)
        else:
            mfmas(i, 0, 5)
        if i + 1 < NS:
            a(f"s_waitcnt vmcnt({8*(issued-i-2)})")
            reads(i + 1)
        mfmas(i, 5, 8)
    stamp(a, 6)
    a("s_nop 7\ns_nop 3")
    for k in range(1, 4):
        for q in range(4):
            c = ACC + 16 * k + 4 * q
            a(f"ds_write_b128 v14, v[{c}:{c+3}] offset:{(k-1)*4096+q*1024}")
    a("s_waitcnt lgkmcnt(0)")
    a("s_barrier")
    for k in range(1, 4):
        for q in range(4):
            c = ACC + 16 * k + 4 * q
            a(f"ds_read_b128 v[{c}:{c+3}], v{14+k} offset:{(k-1)*4096+q*1024}")
    c1 = -2.0 * math.log2(math.e) * math.sqrt(2.0 / math.pi)
    a(f"s_mov_b32 s40, {f32(c1*0.044715)}")
    a(f"v_mov_b32 v20, {f32(c1)}")
    srd(a, 12, 20, U_OFF + D * F * 2)
    a(f"s_add_u32 s36, s36, {U_OFF}")
    for k in range(1, 4):
        for q in range(4):
            a(f"s_waitcnt lgkmcnt({11-(4*(k-1)+q)})")
            for r in range(0, 4, 2):
                c = ACC + 4 * q + r
                a(f"v_pk_add_f32 v[{c}:{c+1}], v[{c}:{c+1}], v[{c+16*k}:{c+16*k+1}]")
    T = 48
    for r in range(16):
        a(f"v_mul_f32 v{T+r}, v{ACC+r}, v{ACC+r}")
    for r in range(16):
        a(f"v_fma_f32 v{T+r}, v{T+r}, s40, v20")
    for r in range(16):
        a(f"v_mul_f32 v{T+r}, v{T+r}, v{ACC+r}")
    for r in range(16):
        a(f"v_exp_f32 v{T+r}, v{T+r}")
    for r in range(16):
        a(f"v_add_f32 v{T+r}, 1.0, v{T+r}")
    for r in range(16):
        a(f"v_rcp_f32 v{T+r}, v{T+r}")
    for r in range(16):
        a(f"v_mul_f32 v{T+r}, v{T+r}, v{ACC+r}")
    for r in range(8):
        a(f"v_cvt_pk_bf16_f32 v{64+r}, v{T+2*r}, v{T+2*r+1}")
    stamp(a, 7)
    a("buffer_store_dwordx4 v[64:67], v13, s[12:15], s36 offen")
    a("buffer_store_dwordx4 v[68:71], v13, s[12:15], s36 offen offset:512")
    stamp_out(a, 1, 9, 20)
    a("L_g1_end:\ns_endpgm")
    kd(a, name, 144 + 256, 144)

def gen_g2(a, depth=7):
    name = "mix_g2_kernel"
    NS = 12
    head(a, name)
    a("s_cmp_ge_u32 s2, 256\ns_cbranch_scc1 L_g2_end")
    stamp(a, 0)
    a("s_load_dwordx4 s[4:7], s[0:1], 24     ; w2, b2")
    a("s_load_dwordx2 s[20:21], s[0:1], 56   ; ws")
    a("s_load_dwordx2 s[38:39], s[0:1], 40   ; out")
    code_prefetch(a, "(L_g2_end-mix_g2_kernel-64)", 1, 160, 22)
    a("v_lshrrev_b32 v1, 6, v0")
    a("v_and_b32 v2, 63, v0                  ; lane")
    a("v_readfirstlane_b32 s24, v1           ; wave")
    a("s_and_b32 s25, s2, 1")
    a("s_lshl_b32 s25, s25, 2")
    a("s_bfe_u32 s26, s2, 0x20003")
    a("s_add_u32 s28, s25, s26")
    a("s_bfe_u32 s25, s2, 0x20001")
    a("s_lshl_b32 s25, s25, 3")
    a("s_lshr_b32 s26, s2, 5")
    a("s_add_u32 s27, s25, s26               ; stile")
    a("v_lshrrev_b32 v3, 3, v2               ; rr")
    a("v_lshlrev_b32 v4, 12, v3")
    a("v_and_b32 v3, 6, v3")
    a("v_and_b32 v8, 7, v2")
    a("v_xor_b32 v3, v3, v8")
    a("v_lshl_add_u32 v4, v3, 4, v4")
    for j in range(1, 4):
        a(f"v_add_u32 v{4+j}, {j*(8*4096-1024)}, v4")
    a("v_lshlrev_b32 v8, 4, v2")
    a("v_add_u32 v9, 4096, v8")
    a(f"s_mul_i32 s33, s24, {12*32*4096}")
    a("s_lshl_b32 s34, s27, 7")
    a("s_add_u32 s33, s33, s34               ; w2 soffset")
    a("s_mul_i32 s34, s28, 48")
    a("s_mul_i32 s35, s24, 12")
    a("s_add_u32 s34, s34, s35")
    a("s_mul_i32 s34, s34, 5120")
    a(f"s_add_u32 s34, s34, {U_OFF}          ; u soffset")
    if ROT:
        a("s_bfe_u32 s41, s2, 0x20003")
        a("s_lshl_b32 s41, s41, 1")
        a("s_lshr_b32 s42, s2, 5")
        a("s_add_u32 s41, s41, s42")
        a("s_and_b32 s41, s41, 7")
        a("s_mul_i32 s41, s41, 3")
        a("s_lshr_b32 s41, s41, 1             ; rot")
        a("s_mov_b32 s43, s33")
        a("s_mov_b32 s44, s34")
        a(f"s_mul_i32 s42, s41, {32*4096}")
        a("s_add_u32 s33, s33, s42")
        a("s_mul_i32 s42, s41, 5120")
        a("s_add_u32 s34, s34, s42")
        a(f"s_add_u32 s45, s44, {12*5120}")
    a("s_lshl_b32 s35, s24, 15")
    a("v_and_b32 v10, 15, v2")
    a("s_lshl_b32 s36, s27, 6")
    a("s_lshl_b32 s37, s24, 4")
    a("s_add_u32 s36, s36, s37")
    a("v_add_u32 v10, s36, v10               ; s")
    a("v_lshlrev_b32 v11, 1, v10")
    a("s_waitcnt lgkmcnt(0)")
    srd(a, 8, 4, S * F * 2)
    srd(a, 12, 20, U_OFF + D * F * 2)
    srd(a, 16, 6, S * 2)
    a("buffer_load_ushort v31, v11, s[16:19], 0 offen")
    a("s_mov_b32 m0, s35")
    a("s_nop 0")
    def issue(i):
        for j in range(4):
            a(f"buffer_load_dwordx4 v{4+j}, s[8:11], s33 offen offset:{1024*j} lds")
        for t in range(5):
            r = 20 * i + 4 * t
            if t < 4:
                a(f"buffer_load_dwordx4 a[{r}:{r+3}], v8, s[12:15], s34 offen offset:{1024*t}")
            else:
                a(f"buffer_load_dwordx4 a[{r}:{r+3}], v9, s[12:15], s34 offen")
        a(f"s_add_u32 s33, s33, {32*4096}")
        a("s_add_u32 s34, s34, 5120")
        if ROT:
            a("s_cmp_eq_u32 s34, s45")
            a("s_cselect_b32 s33, s43, s33")
            a("s_cselect_b32 s34, s44, s34")
        if (i + 1) % 8 == 0:
            a("s_mov_b32 m0, s35")
        else:
            a("s_add_u32 m0, m0, 4096")
        a("s_nop 0")
    first = depth - 1
    for i in range(first):
        issue(i)
    stamp(a, 1)
    a("v_bfe_u32 v16, v2, 2, 2               ; r")
    a("v_bfe_u32 v17, v2, 4, 1               ; h'")
    a("v_lshl_add_u32 v16, v17, 2, v16       ; 4h'+r")
    a("v_lshrrev_b32 v17, 5, v2              ; c'")
    a("v_lshl_add_u32 v17, v17, 4, v16       ; row")
    a("v_lshlrev_b32 v12, 7, v17")
    a("v_lshrrev_b32 v16, 1, v16")
    a("v_xor_b32 v16, s24, v16")
    a("v_lshl_add_u32 v12, v16, 5, v12")
    a("v_and_b32 v16, 3, v2")
    a("v_lshl_add_u32 v12, v16, 3, v12")
    a("v_add_u32 v12, s35, v12")
    for b in range(1, 4):
        a(f"v_xor_b32 v{12+b}, {b*32}, v12")
    a("v_mul_u32_u24 v16, 1280, v10")
    a("v_lshrrev_b32 v18, 4, v2")
    a("v_lshl_add_u32 v17, v18, 3, v16")
    a("v_lshl_add_u32 v16, v18, 4, v16")
    a("s_mul_i32 s36, s28, 160")
    a("v_add_u32 v18, s35, v8")
    for k in range(1, 4):
        a(f"v_xor_b32 v{18+k}, {k << 15}, v18")
    ACC = 32
    BB = [112, 128]
    a(f"s_waitcnt vmcnt({9*first})")
    a("v_lshlrev_b32 v31, 16, v31")
    for r in range(20):
        a(f"v_mov_b32 v{ACC+r}, v31")
    issue(first)
    def reads(i):
        slot = i % 8
        for b in range(4):
            for e in range(2):
                r = BB[i & 1] + 4 * b + 2 * e
                a(f"ds_read_b64_tr_b16 v[{r}:{r+1}], v{12+b} offset:{slot*4096+e*1024}")
    def mfmas(i, lo, hi):
        k = 0
        for b in range(4):
            for t in range(5):
                if lo <= k < hi:
                    ra = 20 * i + 4 * t
                    rb = BB[i & 1] + 4 * b
                    c = ACC + 20 * b + 4 * t
                    src = f"v[{c}:{c+3}]"
                    if i == 0 and b:
                        src = "0"
                    a(f"v_mfma_f32_16x16x32_bf16 v[{c}:{c+3}], a[{ra}:{ra+3}], v[{rb}:{rb+3}], {src}")
                k += 1
    issued = depth
    a(f"s_waitcnt vmcnt({9*(issued-1)})")
    stamp(a, 2)
    reads(0)
    for i in range(NS):
        if i in (NS//4, NS//2, 3*NS//4): stamp(a, 2 + i // (NS//4))
        a("s_waitcnt lgkmcnt(0)")
        if issued < NS:
            mfmas(i, 0, 2)
            issue(issued)
            issued += 1
            mfmas(i, 2, 13)
        else:
            mfmas(i, 0, 13)
        if i + 1 < NS:
            a(f"s_waitcnt vmcnt({9*(issued-i-2)})")
            reads(i + 1)
        mfmas(i, 13, 20)
    stamp(a, 6)
    a("s_nop 7")
    for k in range(1, 4):
        for t in range(5):
            c = ACC + 20 * k + 4 * t
            a(f"ds_write_b128 v18, v[{c}:{c+3}] offset:{(k-1)*5120+t*1024}")
    a("s_waitcnt lgkmcnt(0)")
    a("s_barrier")
    for k in range(1, 4):
        for t in range(5):
            c = ACC + 20 * k + 4 * t
            a(f"ds_read_b128 v[{c}:{c+3}], v{18+k} offset:{(k-1)*5120+t*1024}")
    srd(a, 12, 38, S * D * 2)
    for k in range(1, 4):
        for t in range(5):
            a(f"s_waitcnt lgkmcnt({14-(5*(k-1)+t)})")
            for r in range(0, 4, 2):
                c = ACC + 4 * t + r
                a(f"v_pk_add_f32 v[{c}:{c+1}], v[{c}:{c+1}], v[{c+20*k}:{c+20*k+1}]")
    for r in range(10):
        a(f"v_cvt_pk_bf16_f32 v{112+r}, v{ACC+2*r}, v{ACC+2*r+1}")
    stamp(a, 7)
    a("buffer_store_dwordx4 v[112:115], v16, s[12:15], s36 offen")
    a("buffer_store_dwordx4 v[116:119], v16, s[12:15], s36 offen offset:64")
    a("buffer_store_dwordx2 v[120:121], v17, s[12:15], s36 offen offset:128")
    stamp_out(a, 2, 9, 20)
    a("L_g2_end:\ns_endpgm")
    kd(a, name, 164 + 240, 164)

def gen_probe(a, kq, iq, nwg, op, mult):
    name = "mix_probe_kernel"
    head(a, name)
    a("s_cmp_ge_u32 s2, 1\ns_cbranch_scc1 L_pr_end")
    a("s_load_dwordx2 s[4:5], s[0:1], 56")
    a("s_waitcnt lgkmcnt(0)")
    def red(k, i, n, op, sdst):
        for j in range(4):
            a(f"v_add_u32 v1, {64*j}, v0")
            a(f"v_min_u32 v1, {n-1}, v1")
            a("v_lshlrev_b32 v1, 9, v1")
            a(f"v_add_u32 v1, {ST_OFF + k*(256<<10) + 4*i}, v1")
            a(f"global_load_dword v{4+j}, v1, s[4:5]")
        a("s_waitcnt vmcnt(0)")
        a(f"v_{op}_u32 v4, v4, v5\nv_{op}_u32 v6, v6, v7\nv_{op}_u32 v4, v4, v6")
        for r in (8, 4, 2, 1):
            a(f"s_nop 1\nv_{op}_u32_dpp v4, v4, v4 row_ror:{r} row_mask:0xf bank_mask:0xf")
        a(f"s_nop 1\nv_{op}_u32_dpp v4, v4, v4 row_bcast:15 row_mask:0xa bank_mask:0xf")
        a(f"s_nop 1\nv_{op}_u32_dpp v4, v4, v4 row_bcast:31 row_mask:0xc bank_mask:0xf")
        a(f"s_nop 1\nv_readlane_b32 s{sdst}, v4, 63")
    red(0, 0, 256, "min", 10)
    red(kq, iq, nwg, op, 11)
    a("s_nop 3")
    a("s_sub_u32 s11, s11, s10")
    a("s_min_u32 s11, s11, 10000")
    a(f"s_mul_i32 s11, s11, {mult}")
    a("s_add_u32 s11, s11, 10000")
    a("s_mov_b32 s14, 0")
    a("L_pr_spin:")
    a("s_memrealtime s[12:13]")
    a("s_waitcnt lgkmcnt(0)")
    a("s_add_u32 s14, s14, 1")
    a("s_cmp_ge_u32 s14, 200000\ns_cbranch_scc1 L_pr_end")
    a("s_sub_u32 s12, s12, s10")
    a("s_cmp_lt_u32 s12, s11\ns_cbranch_scc1 L_pr_spin")
    a("L_pr_end:\ns_endpgm")
    kd(a, name, 16, 16)

PROBE = None
HEADER = """; MLP-Mixer token mixing: LayerNorm -> GEMM1 + bias + GELU -> GEMM2 + bias (transposed out)
"""

def main(out, extra_empty=0):
    a = A()
    a(HEADER)
    a("; @launch kernel=mix_ln_kernel grid=(256,1,1) block=(512,1,1) lds=10752")
    a("; @launch kernel=mix_g1_kernel grid=(240,1,1) block=(256,1,1) lds=131072")
    a("; @launch kernel=mix_g2_kernel grid=(256,1,1) block=(256,1,1) lds=131072")
    for i in range(extra_empty):
        a("; @launch kernel=mix_nop_kernel grid=(256,1,1) block=(256,1,1) lds=0")
    if PROBE:
        a("; @launch kernel=mix_probe_kernel grid=(1,1,1) block=(64,1,1) lds=0")
    a('.amdgcn_target "amdgcn-amd-amdhsa--gfx950"')
    a(".text")
    gen_ln(a)
    gen_g1(a)
    gen_g2(a)
    if PROBE:
        gen_probe(a, *PROBE)
    if extra_empty:
        head(a, "mix_nop_kernel")
        a("s_endpgm")
        kd(a, "mix_nop_kernel", 8, 8)
    open(out, "w").write(a.text())

if __name__ == "__main__":
    if "--stamp" in sys.argv:
        STAMP = True
        sys.argv.remove("--stamp")
    for x in list(sys.argv):
        if x.startswith("--probe="):
            p = x[8:].split(",")
            PROBE = (int(p[0]), int(p[1]), int(p[2]), p[3], int(p[4]))
            STAMP = True
            sys.argv.remove(x)
    main(sys.argv[1], int(sys.argv[2]) if len(sys.argv) > 2 else 0)
```

```python
import sys, struct, math

def f32(x):
    return "0x%08x" % struct.unpack("<I", struct.pack("<f", x))[0]

S, D, F = 2048, 640, 1536
H_OFF = 0
U_OFF = 4 << 20
FH_OFF = 8 << 20
FU_OFF = FH_OFF + (64 << 10)
WS_USED = FU_OFF + (64 << 10)
ST_OFF = 16 << 20
NAME = "standalone__mixer_token_mlp__prompt_kernel"
SPIN_CAP = 400000

class Cfg:
    stamp = False
    probe = None
    w1_pre = 2
    w1_mid = 1
    w_depth = 2
    h_depth = 2
    u_depth = 2
    w2_pre = 2
    w2_mid = 1
    rot1 = 5
    rot2 = 4
    poll_early = 2

class A:
    def __init__(self):
        self.L = []
        self.q = []
    def __call__(self, s):
        for line in s.strip("\n").split("\n"):
            self.L.append(line)
    def vm(self, s, tag=None):
        self(s)
        self.q.append(tag)
    def wait(self, tag):
        idx = max(i for i, t in enumerate(self.q) if t == tag)
        n = len(self.q) - 1 - idx
        assert n <= 63
        self(f"s_waitcnt vmcnt({n})")
        self.q = self.q[idx + 1:]
    def pending(self, tag):
        return tag in self.q
    def text(self):
        return "\n".join(self.L) + "\n"

def srd(a, d, b, nbytes):
    a(f"s_mov_b32 s{d}, s{b}")
    a(f"s_mov_b32 s{d+1}, s{b+1}")
    a(f"s_mov_b32 s{d+2}, {nbytes}")
    a(f"s_mov_b32 s{d+3}, 0x00020000")

def gen(c):
    a = A()
    nst = [0]
    def stamp():
        if c.stamp:
            a(f"s_memrealtime s[{64+2*nst[0]}:{65+2*nst[0]}]")
        nst[0] += 1
    if c.probe:
        a(f"; @launch kernel={NAME} grid=(256,1,1) block=(256,1,1) lds=163840")
        a("; @launch kernel=mix_probe_kernel grid=(1,1,1) block=(64,1,1) lds=0")
    else:
        a("; @launch grid=(256,1,1) block=(256,1,1) lds=163840")
    a('.amdgcn_target "amdgcn-amd-amdhsa--gfx950"')
    a(f".text\n.globl {NAME}\n.p2align 8\n.type {NAME},@function\n{NAME}:")
    X, W1, B1, W2, B2, OUT, DBG, WS = 4, 6, 8, 10, 12, 14, 16, 18
    RW1, RW2, RWS, ROUT = 24, 28, 32, 36
    sW, sLDS = 40, 41
    sDT, sFT, sWA, sWB = 42, 43, 44, 45
    sJ, sST = 46, 47
    sWO, sWO0, sWOE = 48, 49, 50
    sAO, sAO0, sAOE = 51, 52, 53
    sUS, sT0, sT1, sT2, sCNT = 54, 55, 56, 57, 58
    sROT1, sROT2 = 59, 60
    vL = 1
    vD1 = 4
    vD2 = 8
    vH = 12
    vU = 14
    vT1 = 16
    vT2 = 18
    vUS = 22
    vR = 23
    vO = 27
    vFH, vFU, vFO = 29, 30, 31
    vB1 = 32
    vB2 = 40
    vP = 41
    vONE = 42
    vZ = 44
    t0, t1, t2, t3, t4, t5 = 48, 49, 50, 51, 52, 53
    ACC = 64
    RING = 144
    RED = 114688
    WSLOT = 7

    a("s_cmp_ge_u32 s2, 256\ns_cbranch_scc1 L_end")
    stamp()
    a("s_load_dwordx16 s[4:19], s[0:1], 0")
    a(f"v_lshrrev_b32 v{t0}, 6, v0")
    a(f"v_and_b32 v{vL}, 63, v0")
    a(f"v_readfirstlane_b32 s{sW}, v{t0}")
    a(f"v_lshrrev_b32 v{t0}, 5, v0")
    a(f"v_and_b32 v{t1}, 31, v0")
    a(f"v_mul_u32_u24 v2, 1280, v{t0}")
    a(f"v_lshl_add_u32 v2, v{t1}, 3, v2          ; x offset")
    a(f"v_mul_u32_u24 v3, 1344, v{t0}")
    a(f"v_lshl_add_u32 v3, v{t1}, 3, v3")
    a(f"v_add_u32 v3, {RED}, v3")
    a(f"s_lshr_b32 s{sT0}, s2, 3                 ; idx")
    a(f"s_mul_i32 s{sFT}, s{sT0}, 205")
    a(f"s_lshr_b32 s{sFT}, s{sFT}, 10            ; idx/5")
    a(f"s_mul_i32 s{sT1}, s{sFT}, 5")
    a(f"s_sub_u32 s{sDT}, s{sT0}, s{sT1}         ; idx%5")
    if c.rot1 == 5:
        a(f"s_mul_i32 s{sROT1}, s{sDT}, 13")
        a(f"s_lshr_b32 s{sROT1}, s{sROT1}, 2     ; 0,3,6,9,13")
    elif c.rot1 == 3:
        a(f"s_lshr_b32 s{sROT1}, s{sDT}, 1")
        a(f"s_mul_i32 s{sROT1}, s{sROT1}, 5      ; 0,0,5,5,10")
    elif c.rot1 == 2:
        a(f"s_and_b32 s{sROT1}, s{sDT}, 1")
        a(f"s_lshl_b32 s{sROT1}, s{sROT1}, 3")
    else:
        a(f"s_mov_b32 s{sROT1}, 0")
    a(f"s_and_b32 s{sT1}, s2, 1")
    a(f"s_mul_i32 s{sT1}, s{sT1}, 5")
    a(f"s_add_u32 s{sDT}, s{sDT}, s{sT1}         ; dtile")
    a(f"s_bfe_u32 s{sT1}, s2, 0x20001")
    a(f"s_mul_i32 s{sT1}, s{sT1}, 6")
    a(f"s_add_u32 s{sFT}, s{sFT}, s{sT1}         ; ftile")
    a(f"v_lshrrev_b32 v{t0}, 3, v{vL}            ; rr")
    a(f"v_mul_u32_u24 v{vD1}, 3072, v{t0}")
    a(f"v_lshlrev_b32 v{t1}, 1, v{t0}")
    a(f"v_and_b32 v{t1}, 4, v{t1}")
    a(f"v_and_b32 v{t2}, 7, v{vL}")
    a(f"v_xor_b32 v{t1}, v{t1}, v{t2}")
    a(f"v_lshl_add_u32 v{vD1}, v{t1}, 4, v{vD1}")
    for j in range(1, 4):
        a(f"v_add_u32 v{vD1+j}, {j*(8*3072-1024)}, v{vD1}")
    a(f"s_mul_i32 s{sWO0}, s{sW}, {512*3072}")
    a(f"s_lshl_b32 s{sT0}, s{sFT}, 7")
    a(f"s_add_u32 s{sWO0}, s{sWO0}, s{sT0}")
    a(f"s_add_u32 s{sWOE}, s{sWO0}, {512*3072}")
    a(f"s_mul_i32 s{sT0}, s{sROT1}, {32*3072}")
    a(f"s_add_u32 s{sWO}, s{sWO0}, s{sT0}")
    a(f"s_mul_i32 s{sLDS}, s{sW}, {WSLOT*4096}")
    a(f"s_mov_b32 m0, s{sLDS}")
    a(f"s_mul_i32 s{sT0}, s2, 10240")
    for i in range(4):
        a(f"v_mov_b32 v{vZ+i}, 0")
    a(f"s_lshl_b32 s{sT1}, s2, 2")
    a(f"s_add_u32 s{sT1}, s{sT1}, s{sW}")
    a(f"s_lshl_b32 s{sT1}, s{sT1}, 6")
    a(f"s_add_u32 s{sT1}, s{sT1}, {FU_OFF}")
    a(f"v_lshlrev_b32 v{vU}, 4, v{vL}            ; lane*16")
    a(f"v_add_u32 v{vFO}, s{sT1}, v{vU}")
    a(f"s_or_b32 s{sT2}, s2, s{sW}")
    a("s_waitcnt lgkmcnt(0)")
    a(f"s_add_u32 s{X}, s{X}, s{sT0}")
    a(f"s_addc_u32 s{X+1}, s{X+1}, 0")
    srd(a, RWS, WS, WS_USED)
    a(f"s_cmp_lg_u32 s{sT2}, 0")
    a("s_cbranch_scc1 L_noclear")
    a(f"s_mov_b32 s{sT0}, {FH_OFF}")
    for i in range(16):
        a(f"buffer_store_dwordx4 v[{vZ}:{vZ+3}], v{vU}, s[{RWS}:{RWS+3}], s{sT0} offen offset:{1024*(i%4)} sc1")
        if i % 4 == 3 and i < 15:
            a(f"s_add_u32 s{sT0}, s{sT0}, 4096")
    a("L_noclear:")
    XR = RING
    for i in range(5):
        a.vm(f"global_load_dwordx2 v[{XR+2*i}:{XR+2*i+1}], v2, s[{X}:{X+1}] offset:{256*i}", f"x{i}")
    srd(a, RW1, W1, S * F * 2)
    a("s_cmp_ge_u32 s2, 240")
    a(f"s_cselect_b32 s{RW1+2}, 0, s{RW1+2}")
    a("s_mov_b64 exec, 15")
    a.vm(f"buffer_store_dwordx4 v[{vZ}:{vZ+3}], v{vFO}, s[{RWS}:{RWS+3}], 0 offen sc1", "uclr")
    a("s_mov_b64 exec, -1")
    wslot = [0]
    def wissue(kind, i):
        vd, r, step = (vD1, RW1, 32 * 3072) if kind == 1 else (vD2, RW2, 32 * 4096)
        for j in range(4):
            a.vm(f"buffer_load_dwordx4 v{vd+j}, s[{r}:{r+3}], s{sWO} offen offset:{1024*j} lds", f"w{kind}_{i}")
        if (i + 1) % WSLOT == 0:
            a(f"s_mov_b32 m0, s{sLDS}")
        else:
            a("s_add_u32 m0, m0, 4096")
        a(f"s_add_u32 s{sWO}, s{sWO}, {step}")
        a(f"s_cmp_eq_u32 s{sWO}, s{sWOE}")
        a(f"s_cselect_b32 s{sWO}, s{sWO0}, s{sWO}")
    for i in range(c.w1_pre):
        wissue(1, i)
    w1_issued = c.w1_pre
    a("s_getpc_b64 s[20:21]")
    a("L_pc:")
    a(f"s_lshr_b32 s{sT0}, s2, 3")
    a(f"s_lshl_b32 s{sT0}, s{sT0}, 2")
    a(f"s_add_u32 s{sT0}, s{sT0}, s{sW}")
    a(f"s_lshl_b32 s{sT0}, s{sT0}, 7")
    a(f"s_min_u32 s{sT0}, s{sT0}, (L_end-L_pc-72)")
    a(f"s_add_u32 s20, s20, s{sT0}")
    a("s_addc_u32 s21, s21, 0")
    a("s_load_dword s22, s[20:21], 0")
    a("s_load_dword s23, s[20:21], 64")
    a(f"s_and_b32 s{sWB}, s{sW}, 1")
    a(f"s_lshr_b32 s{sWA}, s{sW}, 1")
    a(f"v_bfe_u32 v{t0}, v{vL}, 2, 2             ; r")
    a(f"v_mul_u32_u24 v{t3}, 1344, v{t0}")
    a(f"v_lshrrev_b32 v{t1}, 4, v{vL}")
    a(f"v_lshl_add_u32 v{t3}, v{t1}, 5, v{t3}")
    a(f"v_and_b32 v{t1}, 3, v{vL}")
    a(f"v_lshl_add_u32 v{t3}, v{t1}, 3, v{t3}")
    a(f"s_lshl_b32 s{sT0}, s{sW}, 7")
    a(f"s_add_u32 s{sT0}, s{sT0}, {RED}")
    a(f"v_add_u32 v{t3}, s{sT0}, v{t3}")
    a(f"v_lshrrev_b32 v{t1}, 5, v{vL}")
    a(f"v_and_b32 v{t2}, 31, v{vL}")
    a(f"v_lshlrev_b32 v{t4}, 10, v{t1}")
    a(f"v_lshl_add_u32 v{t4}, v{t2}, 4, v{t4}")
    a(f"s_lshr_b32 s{sUS}, s2, 1")
    a(f"s_lshl_b32 s{sUS}, s{sUS}, 11")
    a(f"s_and_b32 s{sT0}, s2, 1")
    a(f"s_lshl_b32 s{sT0}, s{sT0}, 9")
    a(f"s_add_u32 s{sUS}, s{sUS}, s{sT0}")
    a(f"s_lshl_b32 s{sT0}, s{sW}, 18")
    a(f"s_add_u32 s{sUS}, s{sUS}, s{sT0}")
    a(f"v_lshl_add_u32 v{t1}, v{t1}, 3, v{t0}    ; 8*kg + r")
    a(f"v_lshlrev_b32 v{vT1}, 7, v{t1}")
    a(f"v_bfe_u32 v{t1}, v{vL}, 4, 1")
    a(f"v_lshlrev_b32 v{t1}, 1, v{t1}")
    a(f"v_bfe_u32 v{t2}, v{vL}, 1, 1")
    a(f"v_or_b32 v{t1}, v{t1}, v{t2}")
    a(f"v_lshrrev_b32 v{t0}, 1, v{t0}")
    a(f"v_xor_b32 v{t0}, s{sWA}, v{t0}")
    a(f"v_lshl_or_b32 v{t1}, v{t0}, 2, v{t1}")
    a(f"v_lshl_add_u32 v{vT1}, v{t1}, 4, v{vT1}")
    a(f"v_and_b32 v{t1}, 1, v{vL}")
    a(f"v_lshl_add_u32 v{vT1}, v{t1}, 3, v{vT1}")
    a(f"v_xor_b32 v{vT1+1}, 64, v{vT1}")
    a(f"v_add_u32 v{vT1}, s{sLDS}, v{vT1}")
    a(f"v_add_u32 v{vT1+1}, s{sLDS}, v{vT1+1}")
    a(f"v_mov_b32 v{vONE}, 1")
    XF = RING + 12
    for i in range(5):
        a.wait(f"x{i}")
        if i == 0:
            stamp()
            a(f"s_cmp_lg_u32 s{sT2}, 0")
            a("s_cbranch_scc1 L_nodbg")
            a("s_mov_b64 exec, 1")
            a(f"global_store_dword v{vZ}, v{vONE}, s[{DBG}:{DBG+1}] sc1")
            a("s_mov_b64 exec, -1")
            a("L_nodbg:")
        for k in range(2):
            a(f"v_lshlrev_b32 v{XF+4*i+2*k}, 16, v{XR+2*i+k}")
            a(f"v_and_b32 v{XF+4*i+2*k+1}, 0xffff0000, v{XR+2*i+k}")
        if i == 0:
            a(f"v_pk_add_f32 v[{t0}:{t0+1}], v[{XF}:{XF+1}], v[{XF+2}:{XF+3}]")
        else:
            a(f"v_pk_add_f32 v[{t0}:{t0+1}], v[{t0}:{t0+1}], v[{XF+4*i}:{XF+4*i+1}]")
            a(f"v_pk_add_f32 v[{t0}:{t0+1}], v[{t0}:{t0+1}], v[{XF+4*i+2}:{XF+4*i+3}]")
    def half_sum():
        a(f"v_add_f32 v{t0}, v{t0}, v{t0+1}")
        for r in (8, 4, 2, 1):
            a("s_nop 1")
            a(f"v_add_f32_dpp v{t0}, v{t0}, v{t0} row_ror:{r} row_mask:0xf bank_mask:0xf")
        a(f"v_mov_b32 v{t0+1}, v{t0}")
        a("s_nop 1")
        a(f"v_permlane16_swap_b32 v{t0+1}, v{t0}")
        a(f"v_add_f32 v{t0}, v{t0}, v{t0+1}")
    half_sum()
    a(f"v_mul_f32 v{t0}, {f32(-1.0/D)}, v{t0}    ; -mean")
    a(f"v_mov_b32 v{t0+1}, v{t0}")
    for i in range(10):
        a(f"v_pk_add_f32 v[{XF+2*i}:{XF+2*i+1}], v[{XF+2*i}:{XF+2*i+1}], v[{t0}:{t0+1}]")
    a(f"v_pk_mul_f32 v[{t0}:{t0+1}], v[{XF}:{XF+1}], v[{XF}:{XF+1}]")
    for i in range(1, 10):
        a(f"v_pk_fma_f32 v[{t0}:{t0+1}], v[{XF+2*i}:{XF+2*i+1}], v[{XF+2*i}:{XF+2*i+1}], v[{t0}:{t0+1}]")
    half_sum()
    a(f"v_mov_b32 v{t0+1}, {f32(1e-5)}")
    a(f"v_fmac_f32 v{t0+1}, {f32(1.0/D)}, v{t0}")
    a(f"v_rsq_f32 v{t0}, v{t0+1}")
    a("s_nop 0")
    a(f"v_mov_b32 v{t0+1}, v{t0}")
    for i in range(10):
        a(f"v_pk_mul_f32 v[{XF+2*i}:{XF+2*i+1}], v[{XF+2*i}:{XF+2*i+1}], v[{t0}:{t0+1}]")
    for i in range(5):
        a(f"v_cvt_pk_bf16_f32 v{XR+2*i}, v{XF+4*i}, v{XF+4*i+1}")
        a(f"v_cvt_pk_bf16_f32 v{XR+2*i+1}, v{XF+4*i+2}, v{XF+4*i+3}")
        a(f"ds_write_b64 v3, v[{XR+2*i}:{XR+2*i+1}] offset:{256*i}")
    a.vm(f"global_load_dword v{vP}, v{vZ}, s[{DBG}:{DBG+1}] sc1", "dbg")
    a("s_waitcnt lgkmcnt(0)")
    a("s_barrier")
    stamp()
    HT = RING + 12
    for m in range(3):
        a(f"ds_read_b64_tr_b16 v[{HT+4*m}:{HT+4*m+1}], v{t3} offset:{512*m}")
        a(f"ds_read_b64_tr_b16 v[{HT+4*m+2}:{HT+4*m+3}], v{t3} offset:{512*m+4*1344}")
    a(f"s_add_u32 s{sT0}, s{sUS}, {1<<20}")
    a(f"s_add_u32 s{sT1}, s{sUS}, {2<<20}")
    if c.stamp:
        a("s_waitcnt lgkmcnt(0)")
    a(f"s_cmp_ge_u32 s{sW}, 2")
    a("s_cbranch_scc1 L_two")
    a("s_waitcnt lgkmcnt(0)")
    a(f"buffer_store_dwordx4 v[{HT+8}:{HT+11}], v{t4}, s[{RWS}:{RWS+3}], s{sT1} offen sc1")
    a("L_two:")
    a("s_waitcnt lgkmcnt(2)")
    a.vm(f"buffer_store_dwordx4 v[{HT}:{HT+3}], v{t4}, s[{RWS}:{RWS+3}], s{sUS} offen sc1", "hst")
    a.vm(f"buffer_store_dwordx4 v[{HT+4}:{HT+7}], v{t4}, s[{RWS}:{RWS+3}], s{sT0} offen sc1", "hst")
    for i in range(c.w1_mid):
        wissue(1, w1_issued); w1_issued += 1
    a(f"s_lshl_b32 s{sT0}, s{sWB}, 10")
    a(f"v_add_u32 v{vH}, s{sT0}, v{vU}")
    a(f"v_xor_b32 v{vH+1}, 1024, v{vH}")
    a(f"v_add_u32 v{vU+1}, 4096, v{vU}")
    a(f"s_lshl_b32 s{sAO0}, s{sDT}, 18")
    a(f"s_lshl_b32 s{sT0}, s{sW}, 16")
    a(f"s_add_u32 s{sAO0}, s{sAO0}, s{sT0}")
    a(f"s_add_u32 s{sAOE}, s{sAO0}, 65536")
    a(f"s_lshl_b32 s{sT0}, s{sROT1}, 12")
    a(f"s_add_u32 s{sAO}, s{sAO0}, s{sT0}")
    a(f"v_lshlrev_b32 v{vFH}, 6, v0")
    a(f"v_add_u32 v{vFH}, {FH_OFF}, v{vFH}")
    a(f"s_and_b32 s{sT0}, s2, 1")
    a(f"s_lshl_b32 s{sT0}, s{sT0}, 2")
    a(f"s_bfe_u32 s{sT1}, s2, 0x20003")
    a(f"s_add_u32 s{sJ}, s{sT0}, s{sT1}")
    if c.rot2 == 4:
        a(f"s_mul_i32 s{sROT2}, s{sT1}, 3")
    elif c.rot2 == 2:
        a(f"s_and_b32 s{sROT2}, s{sT1}, 1")
        a(f"s_mul_i32 s{sROT2}, s{sROT2}, 6")
    else:
        a(f"s_mov_b32 s{sROT2}, 0")
    a(f"s_bfe_u32 s{sT0}, s2, 0x20001")
    a(f"s_lshl_b32 s{sT0}, s{sT0}, 3")
    a(f"s_lshr_b32 s{sST}, s2, 5")
    a(f"s_add_u32 s{sST}, s{sST}, s{sT0}")
    a(f"v_lshrrev_b32 v{t0}, 3, v{vL}")
    a(f"v_min_u32 v{t0}, 5, v{t0}")
    a(f"v_mul_u32_u24 v{t0}, 5, v{t0}")
    a(f"v_bfe_u32 v{t1}, v{vL}, 2, 1")
    a(f"v_add3_u32 v{t0}, v{t0}, v{t1}, s{sT1}")
    a(f"s_lshl_b32 s{sT0}, s{sW}, 1")
    a(f"s_and_b32 s{sT1}, s2, 1")
    a(f"s_add_u32 s{sT0}, s{sT0}, s{sT1}")
    a(f"v_lshl_add_u32 v{t0}, v{t0}, 3, s{sT0}")
    a(f"v_and_b32 v{t1}, 3, v{vL}")
    a(f"v_lshl_add_u32 v{t0}, v{t0}, 2, v{t1}")
    a(f"v_lshlrev_b32 v{vFU}, 6, v{t0}")
    a(f"v_add_u32 v{vFU}, {FU_OFF}, v{vFU}")
    a(f"s_lshl_b32 s{sT0}, s2, 6")
    a(f"s_add_u32 s{sT0}, s{sT0}, {FH_OFF}")
    a(f"v_mov_b32 v{t5}, s{sT0}")
    a.wait("hst")
    stamp()
    a(f"v_cmp_ne_u32 vcc, 1, v{vP}")
    a("s_cbranch_vccnz L_dbg_spin")
    a("L_dbg_ok:")
    a("s_barrier")
    a(f"s_cmp_lg_u32 s{sW}, 0")
    a("s_cbranch_scc1 L_noflag")
    a("s_mov_b64 exec, 1")
    a(f"global_store_dword v{t5}, v{vONE}, s[{WS}:{WS+1}] sc1")
    a("s_mov_b64 exec, -1")
    a("L_noflag:")
    a(f"v_lshrrev_b32 v{t0}, 5, v{vL}")
    a(f"v_lshlrev_b32 v{t0}, 3, v{t0}")
    a(f"s_min_u32 s{sT0}, s{sFT}, 23")
    a(f"s_lshl_b32 s{sT0}, s{sT0}, 7")
    a(f"s_lshl_b32 s{sT1}, s{sWA}, 6")
    a(f"s_add_u32 s{sT0}, s{sT0}, s{sT1}")
    a(f"v_add_u32 v{t0}, s{sT0}, v{t0}")
    a(f"v_and_b32 v{t1}, 15, v{vL}")
    a(f"s_lshl_b32 s{sT0}, s{sST}, 6")
    a(f"s_lshl_b32 s{sT1}, s{sW}, 4")
    a(f"s_add_u32 s{sT0}, s{sT0}, s{sT1}")
    a(f"v_add_u32 v{t1}, s{sT0}, v{t1}           ; s")
    a(f"v_lshlrev_b32 v{t2}, 1, v{t1}")
    def w1reads(i):
        slot = i % WSLOT
        for hs in range(2):
            for t in range(2):
                for e in range(2):
                    r = 16 * i + 8 * hs + 4 * t + 2 * e
                    a(f"ds_read_b64_tr_b16 a[{r}:{r+1}], v{vT1+t} offset:{slot*4096+hs*2048+e*512}")
    def setup2():
        a(f"v_mul_u32_u24 v{vO}, 1280, v{t1}")
        a(f"v_lshrrev_b32 v{t0}, 4, v{vL}")
        a(f"v_lshl_add_u32 v{vO+1}, v{t0}, 3, v{vO}")
        a(f"v_lshl_add_u32 v{vO}, v{t0}, 4, v{vO}")
        a(f"v_lshrrev_b32 v{t0}, 3, v{vL}            ; rr")
        a(f"v_lshlrev_b32 v{vD2}, 12, v{t0}")
        a(f"v_and_b32 v{t0}, 6, v{t0}")
        a(f"v_and_b32 v{t1}, 7, v{vL}")
        a(f"v_xor_b32 v{t0}, v{t0}, v{t1}")
        a(f"v_lshl_add_u32 v{vD2}, v{t0}, 4, v{vD2}")
        for j in range(1, 4):
            a(f"v_add_u32 v{vD2+j}, {j*(8*4096-1024)}, v{vD2}")
        a(f"v_bfe_u32 v{t0}, v{vL}, 2, 2")
        a(f"v_bfe_u32 v{t1}, v{vL}, 4, 1")
        a(f"v_lshl_add_u32 v{t0}, v{t1}, 2, v{t0}    ; 4h'+r")
        a(f"v_lshrrev_b32 v{t1}, 5, v{vL}")
        a(f"v_lshl_add_u32 v{t1}, v{t1}, 4, v{t0}    ; row")
        a(f"v_lshlrev_b32 v{vT2}, 7, v{t1}")
        a(f"v_lshrrev_b32 v{t0}, 1, v{t0}")
        a(f"v_xor_b32 v{t0}, s{sW}, v{t0}")
        a(f"v_lshl_add_u32 v{vT2}, v{t0}, 5, v{vT2}")
        a(f"v_and_b32 v{t0}, 3, v{vL}")
        a(f"v_lshl_add_u32 v{vT2}, v{t0}, 3, v{vT2}")
        a(f"v_add_u32 v{vT2}, s{sLDS}, v{vT2}")
        for b in range(1, 4):
            a(f"v_xor_b32 v{vT2+b}, {b*32}, v{vT2}")
        a(f"v_and_b32 v{t0}, 31, v{vL}")
        a(f"s_lshl_b32 s{sT0}, s{sDT}, 6")
        a(f"s_lshl_b32 s{sT1}, s{sWB}, 5")
        a(f"s_add_u32 s{sT0}, s{sT0}, s{sT1}")
        a(f"v_add_u32 v{t0}, s{sT0}, v{t0}           ; d")
        a(f"v_mul_u32_u24 v{t1}, 3277, v{t0}")
        a(f"v_lshrrev_b32 v{t1}, 18, v{t1}           ; j = d/80")
        a(f"v_mul_u32_u24 v{t2}, 80, v{t1}")
        a(f"v_sub_u32 v{t0}, v{t0}, v{t2}            ; dloc")
        a(f"v_lshrrev_b32 v{t2}, 5, v{t0}")
        a(f"v_lshlrev_b32 v{t2}, 1, v{t2}")
        a(f"v_bfe_u32 v{t3}, v{t0}, 2, 1")
        a(f"v_add_u32 v{t3}, v{t3}, v{t2}")
        a(f"v_bfe_u32 v{t4}, v{t0}, 3, 2")
        a(f"v_and_b32 v{t5}, 3, v{t0}")
        a(f"v_lshl_add_u32 v{t4}, v{t4}, 2, v{t5}")
        a(f"v_and_b32 v{t5}, 15, v{t0}")
        a(f"v_cmp_gt_u32 vcc, 64, v{t0}")
        a(f"s_lshl_b32 s{sUS}, s{sFT}, 1")
        a(f"s_add_u32 s{sUS}, s{sUS}, s{sWA}")
        a(f"v_cndmask_b32 v{t3}, v{t2}, v{t3}, vcc")
        a(f"v_cndmask_b32 v{t4}, v{t5}, v{t4}, vcc")
        a(f"v_mul_u32_u24 v{t1}, 240, v{t1}")
        a(f"v_add_u32 v{t1}, v{t1}, v{t3}")
        a(f"v_lshlrev_b32 v{vUS}, 10, v{t1}")
        a(f"v_lshl_add_u32 v{vUS}, v{t4}, 4, v{vUS}")
        a(f"v_lshrrev_b32 v{t1}, 5, v{vL}")
        a(f"v_lshl_add_u32 v{vUS}, v{t1}, 8, v{vUS}")
        a(f"s_mul_i32 s{sUS}, s{sUS}, 5120")
        a(f"s_add_u32 s{sUS}, s{sUS}, {U_OFF}")
        for k in range(4):
            a(f"s_xor_b32 s{sT0}, s{sW}, {k}")
            a(f"s_mul_i32 s{sT0}, s{sT0}, 12288")
            a(f"s_add_u32 s{sT0}, s{sT0}, {RED}")
            a(f"v_add_u32 v{vR+k}, s{sT0}, v{vU}")
        srd(a, RW2, W2, S * F * 2)
        srd(a, ROUT, OUT, S * D * 2)
    NS1 = 16
    polled = False
    for i in range(NS1):
        while w1_issued < NS1 and w1_issued <= i + c.w_depth:
            assert w1_issued - WSLOT < i
            if w1_issued - WSLOT == i - 1:
                a("s_waitcnt lgkmcnt(0)")
            wissue(1, w1_issued); w1_issued += 1
            if w1_issued == NS1 - c.poll_early + 0 and not polled and c.poll_early > 0:
                a.vm(f"global_load_dword v{vP}, v{vFH}, s[{WS}:{WS+1}] sc1", "hpoll"); polled = True
        if i == 0:
            for k in range(4):
                a.vm(f"global_load_dwordx2 v[{vB1+2*k}:{vB1+2*k+1}], v{t0}, s[{B1}:{B1+1}] offset:{16*k}", "b1")
            a.vm(f"global_load_ushort v{vB2}, v{t2}, s[{B2}:{B2+1}]", "b2")
            setup2()
        if w1_issued == NS1 and not polled:
            a.vm(f"global_load_dword v{vP}, v{vFH}, s[{WS}:{WS+1}] sc1", "hpoll"); polled = True
        if polled and a.pending("hpoll") and w1_issued == NS1:
            break
        if a.pending(f"w1_{i}"):
            a.wait(f"w1_{i}")
        if i > 0:
            a("s_waitcnt lgkmcnt(7)")
        w1reads(i)
    w1_read = i
    a.wait("hpoll")
    stamp()
    a(f"v_cmp_ne_u32 vcc, 1, v{vP}")
    a("s_cbranch_vccnz L_h_spin")
    a("L_h_ok:")
    stamp()
    a("s_cmp_ge_u32 s2, 240")
    a("s_cbranch_scc1 L_idle")
    HSLOT = 5
    def hissue(i):
        for hs in range(2):
            for b in range(2):
                r = RING + 16 * (i % HSLOT) + 8 * hs + 4 * b
                a.vm(f"buffer_load_dwordx4 v[{r}:{r+3}], v{vH+b}, s[{RWS}:{RWS+3}], s{sAO} offen offset:{2048*hs} sc1", f"h{i}_{hs}")
        a(f"s_add_u32 s{sAO}, s{sAO}, 4096")
        a(f"s_cmp_eq_u32 s{sAO}, s{sAOE}")
        a(f"s_cselect_b32 s{sAO}, s{sAO0}, s{sAO}")
    h_issued = 0
    for i in range(c.h_depth):
        hissue(i); h_issued += 1
    for i in range(w1_read, NS1):
        if a.pending(f"w1_{i}"):
            a.wait(f"w1_{i}")
        a("s_waitcnt lgkmcnt(7)")
        w1reads(i)
    for i in range(4):
        for k in range(2):
            a(f"v_lshlrev_b32 v{ACC+4*i+2*k}, 16, v{vB1+2*i+k}")
            a(f"v_and_b32 v{ACC+4*i+2*k+1}, 0xffff0000, v{vB1+2*i+k}")
    def w2setup():
        a(f"s_mul_i32 s{sWO0}, s{sW}, {12*32*4096}")
        a(f"s_lshl_b32 s{sT0}, s{sST}, 7")
        a(f"s_add_u32 s{sWO0}, s{sWO0}, s{sT0}")
        a(f"s_add_u32 s{sWOE}, s{sWO0}, {12*32*4096}")
        a(f"s_mul_i32 s{sT0}, s{sROT2}, {32*4096}")
        a(f"s_add_u32 s{sWO}, s{sWO0}, s{sT0}")
        a(f"s_mov_b32 m0, s{sLDS}")
    w2setup()
    a("s_waitcnt lgkmcnt(0)")
    w2_issued = 0
    def mfma1(i, hs, t, b):
        ra = 16 * i + 8 * hs + 4 * t
        rb = RING + 16 * (i % HSLOT) + 8 * hs + 4 * b
        cc = ACC + 16 * (2 * t + b)
        src = "0" if (i == 0 and hs == 0 and (t or b)) else f"v[{cc}:{cc+15}]"
        a(f"v_mfma_f32_32x32x16_bf16 v[{cc}:{cc+15}], a[{ra}:{ra+3}], v[{rb}:{rb+3}], {src}")
    for i in range(NS1):
        if h_issued < NS1:
            hissue(h_issued); h_issued += 1
        elif w2_issued < c.w2_pre:
            wissue(2, w2_issued); w2_issued += 1
        if i == NS1 // 2:
            stamp()
        if i < NS1 - 1:
            for hs in range(2):
                a.wait(f"h{i}_{hs}")
                for t in range(2):
                    for b in range(2):
                        mfma1(i, hs, t, b)
        else:
            a.wait(f"h{i}_1")
            for (t, b) in ((0, 1), (1, 0), (1, 1), (0, 0)):
                for hs in range(2):
                    mfma1(i, hs, t, b)
    while w2_issued < c.w2_pre:
        wissue(2, w2_issued); w2_issued += 1
    stamp()
    a("s_nop 5")
    for k in range(1, 4):
        if k == 3:
            a("s_nop 1")
        for q in range(4):
            cc = ACC + 16 * k + 4 * q
            a(f"ds_write_b128 v{vR}, v[{cc}:{cc+3}] offset:{(k-1)*4096+q*1024}")
    c1 = -2.0 * math.log2(math.e) * math.sqrt(2.0 / math.pi)
    a(f"v_mov_b32 v{t0}, {f32(c1*0.044715)}")
    a(f"v_mov_b32 v{t0+1}, {f32(c1*0.044715)}")
    a(f"v_mov_b32 v{t2}, {f32(c1)}")
    a(f"v_mov_b32 v{t2+1}, {f32(c1)}")
    a("s_waitcnt lgkmcnt(0)")
    a("s_barrier")
    for q in range(4):
        for k in range(1, 4):
            cc = ACC + 16 * k + 4 * q
            a(f"ds_read_b128 v[{cc}:{cc+3}], v{vR+k} offset:{(k-1)*4096+q*1024}")
    T = RING
    for q in range(4):
        a(f"s_waitcnt lgkmcnt({9-3*q})")
        for r in (0, 2):
            cc = ACC + 4 * q + r
            a(f"v_pk_add_f32 v[{cc}:{cc+1}], v[{cc}:{cc+1}], v[{cc+16}:{cc+17}]")
            a(f"v_pk_add_f32 v[{cc+32}:{cc+33}], v[{cc+32}:{cc+33}], v[{cc+48}:{cc+49}]")
        for r in (0, 2):
            cc = ACC + 4 * q + r
            a(f"v_pk_add_f32 v[{cc}:{cc+1}], v[{cc}:{cc+1}], v[{cc+32}:{cc+33}]")
        for r in (0, 2):
            cc = ACC + 4 * q + r; tt = T + 4 * q + r
            a(f"v_pk_mul_f32 v[{tt}:{tt+1}], v[{cc}:{cc+1}], v[{cc}:{cc+1}]")
        for r in (0, 2):
            tt = T + 4 * q + r
            a(f"v_pk_fma_f32 v[{tt}:{tt+1}], v[{tt}:{tt+1}], v[{t0}:{t0+1}], v[{t2}:{t2+1}]")
        for r in (0, 2):
            cc = ACC + 4 * q + r; tt = T + 4 * q + r
            a(f"v_pk_mul_f32 v[{tt}:{tt+1}], v[{tt}:{tt+1}], v[{cc}:{cc+1}]")
        for r in range(4):
            a(f"v_exp_f32 v{T+4*q+r}, v{T+4*q+r}")
        for r in range(4):
            a(f"v_add_f32 v{T+4*q+r}, 1.0, v{T+4*q+r}")
        for r in range(4):
            a(f"v_rcp_f32 v{T+4*q+r}, v{T+4*q+r}")
        for r in range(4):
            a(f"v_mul_f32 v{T+4*q+r}, v{T+4*q+r}, v{ACC+4*q+r}")
        for r in (0, 2):
            a(f"v_cvt_pk_bf16_f32 v{T+16+2*q+r//2}, v{T+4*q+r}, v{T+4*q+r+1}")
        if q % 2 == 1:
            cq = q // 2
            a.vm(f"buffer_store_dwordx4 v[{T+16+4*cq}:{T+19+4*cq}], v{vUS}, s[{RWS}:{RWS+3}], s{sUS} offen offset:{512*cq} sc1", "ust")
    stamp()
    for i in range(c.w2_mid):
        wissue(2, w2_issued); w2_issued += 1
    a.wait("ust")
    a("s_mov_b64 exec, 1")
    a(f"global_store_dword v{vFO}, v{vONE}, s[{WS}:{WS+1}] sc1")
    a("s_mov_b64 exec, -1")
    a("L_join:")
    stamp()
    a(f"s_mul_i32 s{sAO0}, s{sJ}, 48")
    a(f"s_mul_i32 s{sT0}, s{sW}, 12")
    a(f"s_add_u32 s{sAO0}, s{sAO0}, s{sT0}")
    a(f"s_mul_i32 s{sAO0}, s{sAO0}, 5120")
    a(f"s_add_u32 s{sAO0}, s{sAO0}, {U_OFF}")
    a(f"s_add_u32 s{sAOE}, s{sAO0}, {12*5120}")
    a(f"s_mul_i32 s{sT0}, s{sROT2}, 5120")
    a(f"s_add_u32 s{sAO}, s{sAO0}, s{sT0}")
    def w2reads(i):
        slot = i % WSLOT
        for b in range(4):
            for e in range(2):
                r = 16 * i + 4 * b + 2 * e
                a(f"ds_read_b64_tr_b16 a[{r}:{r+1}], v{vT2+b} offset:{slot*4096+e*1024}")
    NS2 = 12
    polled = False
    for i in range(NS2):
        while w2_issued < NS2 and w2_issued <= i + c.w_depth:
            assert w2_issued - WSLOT < i
            if w2_issued - WSLOT == i - 1:
                a("s_waitcnt lgkmcnt(0)")
            wissue(2, w2_issued); w2_issued += 1
            if w2_issued == NS2 - c.poll_early and not polled and c.poll_early > 0:
                a.vm(f"global_load_dword v{vP}, v{vFU}, s[{WS}:{WS+1}] sc1", "upoll"); polled = True
        if w2_issued == NS2 and not polled:
            a.vm(f"global_load_dword v{vP}, v{vFU}, s[{WS}:{WS+1}] sc1", "upoll"); polled = True
        if polled and a.pending("upoll") and w2_issued == NS2:
            break
        if a.pending(f"w2_{i}"):
            a.wait(f"w2_{i}")
        if i > 0:
            a("s_waitcnt lgkmcnt(7)")
        w2reads(i)
    w2_read = i
    a.wait("upoll")
    stamp()
    a(f"v_cmp_ne_u32 vcc, 1, v{vP}")
    a("s_cbranch_vccnz L_u_spin")
    a("L_u_ok:")
    stamp()
    USLOT = 4
    def uissue(i):
        for t in range(5):
            r = RING + 20 * (i % USLOT) + 4 * t
            if t < 4:
                a.vm(f"buffer_load_dwordx4 v[{r}:{r+3}], v{vU}, s[{RWS}:{RWS+3}], s{sAO} offen offset:{1024*t} sc1", f"u{i}_{t}")
            else:
                a.vm(f"buffer_load_dwordx4 v[{r}:{r+3}], v{vU+1}, s[{RWS}:{RWS+3}], s{sAO} offen sc1", f"u{i}_{t}")
        a(f"s_add_u32 s{sAO}, s{sAO}, 5120")
        a(f"s_cmp_eq_u32 s{sAO}, s{sAOE}")
        a(f"s_cselect_b32 s{sAO}, s{sAO0}, s{sAO}")
    u_issued = 0
    for i in range(c.u_depth):
        uissue(i); u_issued += 1
    for i in range(w2_read, NS2):
        if a.pending(f"w2_{i}"):
            a.wait(f"w2_{i}")
        a("s_waitcnt lgkmcnt(7)")
        w2reads(i)
    a(f"v_lshlrev_b32 v{vB2}, 16, v{vB2}")
    for r in range(20):
        a(f"v_mov_b32 v{ACC+r}, v{vB2}")
    for k in range(4):
        a(f"s_xor_b32 s{sT0}, s{sW}, {k}")
        a(f"s_mul_i32 s{sT0}, s{sT0}, {WSLOT*4096}")
        a(f"v_add_u32 v{vR+k}, s{sT0}, v{vU}")
    a(f"s_mul_i32 s{sUS}, s{sJ}, 160")
    a("s_waitcnt lgkmcnt(0)")
    def mfma2(i, t, b):
        ra = RING + 20 * (i % USLOT) + 4 * t
        rb = 16 * i + 4 * b
        cc = ACC + 20 * b + 4 * t
        src = "0" if (i == 0 and b) else f"v[{cc}:{cc+3}]"
        a(f"v_mfma_f32_16x16x32_bf16 v[{cc}:{cc+3}], v[{ra}:{ra+3}], a[{rb}:{rb+3}], {src}")
    for i in range(NS2):
        if u_issued < NS2:
            uissue(u_issued); u_issued += 1
        if i == NS2 // 2:
            stamp()
        for t in range(5):
            a.wait(f"u{i}_{t}")
            for b in (1, 2, 3, 0):
                mfma2(i, t, b)
    stamp()
    for t in range(5):
        if t == 4:
            pass
        for k in range(1, 4):
            cc = ACC + 20 * k + 4 * t
            a(f"ds_write_b128 v{vR}, v[{cc}:{cc+3}] offset:{(k-1)*5120+t*1024}")
    a("s_waitcnt lgkmcnt(0)")
    a("s_barrier")
    for t in range(5):
        for k in range(1, 4):
            cc = ACC + 20 * k + 4 * t
            a(f"ds_read_b128 v[{cc}:{cc+3}], v{vR+k} offset:{(k-1)*5120+t*1024}")
    for t in range(5):
        a(f"s_waitcnt lgkmcnt({12-3*t})")
        for r in (0, 2):
            cc = ACC + 4 * t + r
            a(f"v_pk_add_f32 v[{cc}:{cc+1}], v[{cc}:{cc+1}], v[{cc+20}:{cc+21}]")
            a(f"v_pk_add_f32 v[{cc+40}:{cc+41}], v[{cc+40}:{cc+41}], v[{cc+60}:{cc+61}]")
        for r in (0, 2):
            cc = ACC + 4 * t + r
            a(f"v_pk_add_f32 v[{cc}:{cc+1}], v[{cc}:{cc+1}], v[{cc+40}:{cc+41}]")
        for r in (0, 2):
            cc = ACC + 4 * t + r
            a(f"v_cvt_pk_bf16_f32 v{T+2*t+r//2}, v{cc}, v{cc+1}")
        if t in (1, 3):
            p = t // 2
            a(f"buffer_store_dwordx4 v[{T+4*p}:{T+4*p+3}], v{vO}, s[{ROUT}:{ROUT+3}], s{sUS} offen offset:{64*p}")
        if t == 4:
            a(f"buffer_store_dwordx2 v[{T+8}:{T+9}], v{vO+1}, s[{ROUT}:{ROUT+3}], s{sUS} offen offset:128")
    if c.stamp:
        stamp()
        a("s_waitcnt vmcnt(0)")
        stamp()
        a(f"s_lshl_b32 s{sT0}, s2, 3")
        a(f"s_add_u32 s{sT0}, s{sT0}, s{sW}")
        a(f"s_lshl_b32 s{sT0}, s{sT0}, 6")
        a(f"s_add_u32 s{sT0}, s{sT0}, {ST_OFF}")
        a(f"v_mov_b32 v{t0}, s{sT0}")
        a("s_waitcnt lgkmcnt(0)")
        for i in range(16):
            a(f"v_mov_b32 v{t1}, s{64+2*i}")
            a(f"global_store_dword v{t0}, v{t1}, s[{WS}:{WS+1}] offset:{4*i}")
    a("s_endpgm")
    def spin(label, back, vaddr, base):
        a(f"{label}:")
        a(f"s_mov_b32 s{sCNT}, 0")
        a(f"{label}_l:")
        a(f"global_load_dword v{vP}, v{vaddr}, s[{base}:{base+1}] sc1")
        a(f"s_add_u32 s{sCNT}, s{sCNT}, 1")
        a(f"s_cmp_ge_u32 s{sCNT}, {SPIN_CAP}")
        a(f"s_cbranch_scc1 {back}")
        a("s_waitcnt vmcnt(0)")
        a(f"v_cmp_ne_u32 vcc, 1, v{vP}")
        a(f"s_cbranch_vccnz {label}_l")
        a(f"s_branch {back}")
    spin("L_dbg_spin", "L_dbg_ok", vZ, DBG)
    spin("L_h_spin", "L_h_ok", vFH, WS)
    spin("L_u_spin", "L_u_ok", vFU, WS)
    a("L_idle:")
    a("s_waitcnt vmcnt(0) lgkmcnt(0)")
    a("s_barrier")
    if c.stamp:
        for i in (6, 7, 8):
            a(f"s_memrealtime s[{64+2*i}:{65+2*i}]")
    w2setup()
    a("s_nop 0")
    qsave = a.q
    for i in range(c.w2_pre + c.w2_mid):
        wissue(2, i)
    a.q = qsave
    a("s_waitcnt vmcnt(0)")
    a("s_branch L_join")
    a("L_end:\ns_endpgm")
    a(f""".section .rodata,"a"
.p2align 6
.amdhsa_kernel {NAME}
  .amdhsa_next_free_vgpr 512
  .amdhsa_next_free_sgpr 96
  .amdhsa_accum_offset 256
  .amdhsa_group_segment_fixed_size 0
  .amdhsa_kernarg_size 64
  .amdhsa_user_sgpr_count 2
  .amdhsa_user_sgpr_kernarg_segment_ptr 1
  .amdhsa_system_sgpr_workgroup_id_x 1
  .amdhsa_float_denorm_mode_32 3
.end_amdhsa_kernel""")
    return a.text()

if __name__ == "__main__":
    c = Cfg()
    out = sys.argv[1]
    for x in sys.argv[2:]:
        k, v = x.split("=")
        setattr(c, k, int(v))
    open(out, "w").write(gen(c))
```

```python
import sys, struct, math

def f32(x):
    return "0x%08x" % struct.unpack("<I", struct.pack("<f", x))[0]

S, D, F = 2048, 640, 1536
H_OFF = 0
U_OFF = 4 << 20
FH_OFF = 8 << 20
FU_OFF = FH_OFF + (64 << 10)
EP_OFF = FH_OFF + (32 << 10)
WS_USED = FU_OFF + (64 << 10)
ST_OFF = 16 << 20
NAME = "standalone__mixer_token_mlp__prompt_kernel"
SPIN_CAP = 400000

class Cfg:
    stamp = 0
    sset = 0
    pad = 0
    mult = 0
    w1_pre = 1
    w1_x = 1
    w1_mid = 1
    w_depth = 2
    h_depth = 8
    u_depth = 8
    w2_pre = 1
    w2_epi = 0
    w2_mid = 1
    rot1 = 10
    rot2 = 8
    poll_early = 2
    bar1 = 6
    bar2 = 3
    out_sc1 = 0
    map1 = 1
    map2 = 1
    cpf = 1
    cpo = 256
    xbar = 1

class A:
    def __init__(self):
        self.L = []
        self.q = []
    def __call__(self, s):
        for line in s.strip("\n").split("\n"):
            self.L.append(line)
    def vm(self, s, tag=None):
        self(s)
        self.q.append(tag)
    def wait(self, tag):
        if tag not in self.q:
            return
        idx = max(i for i, t in enumerate(self.q) if t == tag)
        n = len(self.q) - 1 - idx
        assert n <= 63
        self(f"s_waitcnt vmcnt({n})")
        self.q = self.q[idx + 1:]
    def pending(self, tag):
        return tag in self.q
    def text(self):
        return "\n".join(self.L) + "\n"

def srd(a, d, b, nbytes):
    a(f"s_mov_b32 s{d}, s{b}")
    a(f"s_mov_b32 s{d+1}, s{b+1}")
    a(f"s_mov_b32 s{d+2}, {nbytes}")
    a(f"s_mov_b32 s{d+3}, 0x00020000")

def gen(c):
    a = A()
    STB = 76
    SETS = {
        0: [0, 1, 2, 3, 4, 5, 6, 7, 8, 9, 10, 11, 12],
        1: [0, "ka", "iss", 1, "x4", 2, "hsto", 3, "bar", "w1_4", "w1_8", 4, 5],
        2: [0, 5, "g1s", "g1_16", "g1_32", "g1_48", 6, 7, 8, "w2_3", "w2_6", 9, 10],
        3: [0, 9, 10, "g2s", "g2_12", "g2_24", "g2_36", "g2_48", 11, "e1", "e2", "e3", 12],
    }
    def stamp(name):
        if c.stamp and name in SETS[c.sset]:
            i = SETS[c.sset].index(name)
            a(f"{'s_memtime' if c.stamp == 2 else 's_memrealtime'} s[{STB+2*i}:{STB+2*i+1}]")
    a("; @launch grid=(256,1,1) block=(256,1,1) lds=163840")
    a('.amdgcn_target "amdgcn-amd-amdhsa--gfx950"')
    a(f".text\n.globl {NAME}\n.p2align 8\n.type {NAME},@function\n{NAME}:")
    X, W1, B1, W2, B2, OUT, DBG, WS = 4, 6, 8, 10, 12, 14, 16, 18
    RW1, RW2, RWS, ROUT = 24, 28, 32, 36
    sW, sLDS, sDT, sFT, sJ, sST = 40, 41, 42, 43, 44, 45
    sWO, sWO0, sWOE, sUS = 46, 47, 48, 49
    sT0, sT1, sT2, sCNT, sROT1, sROT2, sT3, sTAG = 50, 51, 52, 53, 54, 55, 56, 57
    sK = 60
    vL = 1
    vD1, vD2, vH, vU, vT1, vT2, vR, vO = 4, 8, 12, 16, 21, 25, 29, 33
    vFH, vFU, vFO, vP, vONE, vB1, vB2, vHS, vLT = 35, 36, 37, 38, 39, 40, 48, 49, 50
    t0, t1, t2, t3, t4, t5 = 54, 55, 56, 57, 58, 59
    vZ = 60
    ACC, RING, RD = 64, 144, 208
    RED = 114688
    WSLOT = 7
    NRING = 16

    def spin(label, vaddr, base, want=f"s{sTAG}"):
        a(f"v_cmp_ne_u32 vcc, {want}, v{vP}")
        a(f"s_cbranch_vccz {label}_ok")
        a(f"s_mov_b32 s{sCNT}, 0")
        a(f"{label}_l:")
        a(f"global_load_dword v{vP}, v{vaddr}, s[{base}:{base+1}] sc1")
        a(f"s_add_u32 s{sCNT}, s{sCNT}, 1")
        a(f"s_cmp_ge_u32 s{sCNT}, {SPIN_CAP}")
        a(f"s_cbranch_scc1 {label}_ok")
        a("s_waitcnt vmcnt(0)")
        a(f"v_cmp_ne_u32 vcc, {want}, v{vP}")
        a(f"s_cbranch_vccnz {label}_l")
        a(f"{label}_ok:")
    a("s_cmp_ge_u32 s2, 256\ns_cbranch_scc1 L_end")
    stamp(0)
    if c.pad:
        a("s_memrealtime s[58:59]")
    a("s_load_dwordx16 s[4:19], s[0:1], 0")
    a(f"v_lshrrev_b32 v{t0}, 6, v0")
    if c.cpf:
        a("s_getpc_b64 s[22:23]")
        a("L_pc:")
        a(f"s_lshr_b32 s{sT0}, s2, 3")
        a(f"s_lshl_b32 s{sT0}, s{sT0}, 9")
        a(f"v_lshl_add_u32 v{t1}, v{t0}, 7, s{sT0}")
        a(f"v_min_u32 v{t1}, (L_end-L_pc-{c.cpo}-4), v{t1}")
        a.vm(f"global_load_dword v{vP}, v{t1}, s[22:23] offset:{c.cpo}", "cpf")
    a(f"v_and_b32 v{vL}, 63, v0")
    a(f"v_readfirstlane_b32 s{sW}, v{t0}")
    a(f"v_lshrrev_b32 v{t0}, 5, v0")
    a(f"v_and_b32 v{t1}, 31, v0")
    a(f"v_lshrrev_b32 v{t2}, 7, v0")
    a(f"v_mul_u32_u24 v{t2}, 12, v{t2}")
    a(f"v_add_u32 v{t2}, v{t2}, v{t0}")
    a(f"v_mul_u32_u24 v2, 1280, v{t2}")
    a(f"v_lshl_add_u32 v2, v{t1}, 3, v2          ; x offset")
    a(f"v_mul_u32_u24 v3, 1344, v{t0}")
    a(f"v_lshl_add_u32 v3, v{t1}, 3, v3")
    a(f"v_add_u32 v3, {RED}, v3")
    a(f"s_lshr_b32 s{sT0}, s2, 3                 ; idx")
    if c.map1 == 0:
        a(f"s_mul_i32 s{sFT}, s{sT0}, 205")
        a(f"s_lshr_b32 s{sFT}, s{sFT}, 10            ; idx/5")
        a(f"s_mul_i32 s{sT1}, s{sFT}, 5")
        a(f"s_sub_u32 s{sDT}, s{sT0}, s{sT1}         ; idx%5")
        if c.rot1 == 5:
            a(f"s_mul_i32 s{sROT1}, s{sDT}, 13")
            a(f"s_lshr_b32 s{sROT1}, s{sROT1}, 2     ; 0,3,6,9,13")
        elif c.rot1 == 3:
            a(f"s_lshr_b32 s{sROT1}, s{sDT}, 1")
            a(f"s_mul_i32 s{sROT1}, s{sROT1}, 6      ; 0,0,6,6,12")
        elif c.rot1 == 2:
            a(f"s_and_b32 s{sROT1}, s{sDT}, 1")
            a(f"s_lshl_b32 s{sROT1}, s{sROT1}, 3")
        else:
            a(f"s_mov_b32 s{sROT1}, 0")
        a(f"s_and_b32 s{sT1}, s2, 1")
        a(f"s_mul_i32 s{sT1}, s{sT1}, 5")
        a(f"s_add_u32 s{sDT}, s{sDT}, s{sT1}         ; dtile")
        a(f"s_bfe_u32 s{sT1}, s2, 0x20001")
        a(f"s_mul_i32 s{sT1}, s{sT1}, 6")
        a(f"s_add_u32 s{sFT}, s{sFT}, s{sT1}         ; ftile")
    else:
        a(f"s_mul_i32 s{sFT}, s{sT0}, 205")
        a(f"s_lshr_b32 s{sFT}, s{sFT}, 11            ; idx/10")
        a(f"s_mul_i32 s{sT1}, s{sFT}, 10")
        a(f"s_sub_u32 s{sDT}, s{sT0}, s{sT1}         ; dtile")
        if c.rot1 == 10:
            a(f"s_mul_i32 s{sROT1}, s{sDT}, 13")
            a(f"s_lshr_b32 s{sROT1}, s{sROT1}, 3")
        elif c.rot1 == 5:
            a(f"s_lshr_b32 s{sROT1}, s{sDT}, 1")
            a(f"s_mul_i32 s{sROT1}, s{sROT1}, 13")
            a(f"s_lshr_b32 s{sROT1}, s{sROT1}, 2")
        elif c.rot1 == 8:
            a(f"s_and_b32 s{sROT1}, s{sDT}, 7")
            a(f"s_lshl_b32 s{sROT1}, s{sROT1}, 1")
        else:
            a(f"s_mov_b32 s{sROT1}, 0")
        a(f"s_and_b32 s{sT1}, s2, 7")
        a(f"s_mul_i32 s{sT1}, s{sT1}, 3")
        a(f"s_add_u32 s{sFT}, s{sFT}, s{sT1}         ; ftile")
    a(f"v_lshrrev_b32 v{t0}, 3, v{vL}            ; rr")
    a(f"v_and_b32 v{t1}, 6, v{t0}")
    a(f"v_and_b32 v{t2}, 7, v{vL}")
    a(f"v_xor_b32 v{t1}, v{t1}, v{t2}")
    a(f"v_lshlrev_b32 v{t1}, 4, v{t1}")
    a(f"v_mul_u32_u24 v{vD1}, 3072, v{t0}")
    a(f"v_add_u32 v{vD1}, v{vD1}, v{t1}")
    a(f"v_lshl_add_u32 v{vD2}, v{t0}, 12, v{t1}")
    for j in range(1, 4):
        a(f"v_add_u32 v{vD1+j}, {j*(8*3072-1024)}, v{vD1}")
    a(f"s_mul_i32 s{sWO0}, s{sW}, {512*3072}")
    a(f"s_lshl_b32 s{sT0}, s{sFT}, 7")
    a(f"s_add_u32 s{sWO0}, s{sWO0}, s{sT0}")
    a(f"s_add_u32 s{sWOE}, s{sWO0}, {512*3072}")
    a(f"s_mul_i32 s{sT0}, s{sROT1}, {32*3072}")
    a(f"s_add_u32 s{sWO}, s{sWO0}, s{sT0}")
    a(f"s_mul_i32 s{sLDS}, s{sW}, {WSLOT*4096}")
    a(f"s_mov_b32 m0, s{sLDS}")
    a(f"s_lshr_b32 s{sT0}, s2, 2")
    a(f"s_lshl_b32 s{sT0}, s{sT0}, 3")
    a(f"s_and_b32 s{sT1}, s2, 3")
    a(f"s_add_u32 s{sT0}, s{sT0}, s{sT1}")
    a(f"s_mul_i32 s{sT0}, s{sT0}, 5120")
    a(f"v_lshlrev_b32 v{vU}, 4, v{vL}            ; lane*16")
    a(f"s_or_b32 s{sT2}, s2, s{sW}")
    a("s_waitcnt lgkmcnt(0)")
    stamp("ka")
    a(f"s_add_u32 s{X}, s{X}, s{sT0}")
    a(f"s_addc_u32 s{X+1}, s{X+1}, 0")
    XR = RING
    for i in range(5):
        a.vm(f"global_load_dwordx2 v[{XR+2*i}:{XR+2*i+1}], v2, s[{X}:{X+1}] offset:{256*i}", f"x{i}")
    a(f"s_add_u32 s20, s{WS}, {EP_OFF}")
    a(f"s_addc_u32 s21, s{WS+1}, 0")
    a(f"s_load_dword s{sTAG}, s[20:21], 0")
    srd(a, RW1, W1, S * F * 2)
    if c.xbar:
        a("s_barrier")
    a("s_cmp_ge_u32 s2, 240")
    a(f"s_cselect_b32 s{RW1+2}, 0, s{RW1+2}")
    def wissue(kind, i):
        vd, r, step = (vD1, RW1, 32 * 3072) if kind == 1 else (vD2, RW2, 32 * 4096)
        for j in range(4):
            a.vm(f"buffer_load_dwordx4 v{vd+j}, s[{r}:{r+3}], s{sWO} offen offset:{1024*j} lds", f"w{kind}_{i}")
        if (i + 1) % WSLOT == 0:
            a(f"s_mov_b32 m0, s{sLDS}")
        else:
            a("s_add_u32 m0, m0, 4096")
        a(f"s_add_u32 s{sWO}, s{sWO}, {step}")
        a(f"s_cmp_eq_u32 s{sWO}, s{sWOE}")
        a(f"s_cselect_b32 s{sWO}, s{sWO0}, s{sWO}")
    w1_issued = 0
    for i in range(c.w1_pre):
        wissue(1, w1_issued); w1_issued += 1
    stamp("iss")
    srd(a, RWS, WS, WS_USED)
    a(f"s_lshl_b32 s{sUS}, s{sDT}, 2")
    a(f"s_add_u32 s{sUS}, s{sUS}, s{sW}          ; own T")
    a(f"s_mul_i32 s{sT0}, s{sUS}, 24")
    a(f"s_add_u32 s{sT0}, s{sT0}, s{sFT}")
    a(f"s_lshl_b32 s{sT0}, s{sT0}, 6")
    a(f"s_add_u32 s{sT0}, s{sT0}, {FU_OFF}")
    a(f"v_add_u32 v{vFO}, s{sT0}, v{vU}")
    if c.map2 == 0:
        a(f"s_and_b32 s{sT0}, s2, 1")
        a(f"s_lshl_b32 s{sT0}, s{sT0}, 2")
        a(f"s_bfe_u32 s{sT1}, s2, 0x20003")
        a(f"s_add_u32 s{sJ}, s{sT0}, s{sT1}")
        if c.rot2 == 4:
            a(f"s_mul_i32 s{sROT2}, s{sT1}, 3")
        elif c.rot2 == 2:
            a(f"s_and_b32 s{sROT2}, s{sT1}, 1")
            a(f"s_mul_i32 s{sROT2}, s{sROT2}, 6")
        else:
            a(f"s_mov_b32 s{sROT2}, 0")
        a(f"s_bfe_u32 s{sT0}, s2, 0x20001")
        a(f"s_lshl_b32 s{sT0}, s{sT0}, 3")
        a(f"s_lshr_b32 s{sST}, s2, 5")
        a(f"s_add_u32 s{sST}, s{sST}, s{sT0}")
    else:
        a(f"s_bfe_u32 s{sJ}, s2, 0x30003")
        if c.rot2 == 8:
            a(f"s_mul_i32 s{sROT2}, s{sJ}, 3")
            a(f"s_lshr_b32 s{sROT2}, s{sROT2}, 1")
        elif c.rot2 == 4:
            a(f"s_lshr_b32 s{sROT2}, s{sJ}, 1")
            a(f"s_mul_i32 s{sROT2}, s{sROT2}, 3")
        elif c.rot2 == 6:
            a(f"s_min_u32 s{sROT2}, s{sJ}, 5")
            a(f"s_lshl_b32 s{sROT2}, s{sROT2}, 1")
        else:
            a(f"s_mov_b32 s{sROT2}, 0")
        a(f"s_and_b32 s{sT0}, s2, 7")
        a(f"s_lshl_b32 s{sT0}, s{sT0}, 2")
        a(f"s_lshr_b32 s{sST}, s2, 6")
        a(f"s_add_u32 s{sST}, s{sST}, s{sT0}")
    a(f"v_lshrrev_b32 v{t3}, 4, v{vL}            ; g")
    a(f"s_min_u32 s{sT0}, s{sFT}, 23")
    a(f"s_lshl_b32 s{sT0}, s{sT0}, 7")
    a(f"v_lshl_add_u32 v{t0}, v{t3}, 3, s{sT0}")
    a(f"v_and_b32 v{t4}, 15, v{vL}")
    a(f"s_lshl_b32 s{sT0}, s{sST}, 6")
    a(f"s_lshl_b32 s{sT1}, s{sW}, 4")
    a(f"s_add_u32 s{sT0}, s{sT0}, s{sT1}")
    a(f"v_add_u32 v{t1}, s{sT0}, v{t4}           ; s")
    a(f"v_lshlrev_b32 v{t2}, 1, v{t1}")
    for k in range(4):
        a.vm(f"global_load_dwordx2 v[{vB1+2*k}:{vB1+2*k+1}], v{t0}, s[{B1}:{B1+1}] offset:{32*k}", "b1")
    a.vm(f"global_load_ushort v{vB2}, v{t2}, s[{B2}:{B2+1}]", "b2")
    a(f"v_mul_u32_u24 v{vO}, 1280, v{t1}")
    a(f"v_lshl_add_u32 v{vO+1}, v{t3}, 3, v{vO}")
    a(f"v_lshl_add_u32 v{vO}, v{t3}, 4, v{vO}")
    a(f"v_lshlrev_b32 v{vHS}, 16, v{t3}")
    a(f"v_lshl_add_u32 v{vHS}, v{t4}, 4, v{vHS}")
    a(f"v_bfe_u32 v{t0}, v{vL}, 2, 2             ; r")
    a(f"v_mul_u32_u24 v{t0}, 1344, v{t0}")
    a(f"v_add_u32 v{t0}, {RED}, v{t0}")
    a(f"v_and_b32 v{t1}, 3, v{vL}                ; c")
    a(f"s_lshl_b32 s{sT0}, s{sW}, 2")
    a(f"v_add_u32 v{t3}, s{sT0}, v{t3}           ; T for m=0")
    for m in range(3):
        a(f"v_mul_u32_u24 v{t2}, 205, v{t3}")
        a(f"v_lshrrev_b32 v{t2}, 10, v{t2}       ; j")
        a(f"v_mul_u32_u24 v{t4}, 5, v{t2}")
        a(f"v_sub_u32 v{t4}, v{t3}, v{t4}        ; t")
        a(f"v_mul_u32_u24 v{t2}, 160, v{t2}")
        a(f"v_add_u32 v{t2}, v{t2}, v{t0}")
        a(f"v_lshrrev_b32 v{t5}, 1, v{t4}")
        a(f"v_lshl_add_u32 v{t2}, v{t5}, 6, v{t2}")
        a(f"v_and_b32 v{t5}, 1, v{t4}")
        a(f"v_lshl_add_u32 v{t2}, v{t5}, 3, v{t2}")
        a(f"v_lshrrev_b32 v{t4}, 2, v{t4}")
        a(f"v_sub_u32 v{t4}, 4, v{t4}")
        a(f"v_lshlrev_b32 v{t4}, v{t4}, v{t1}")
        a(f"v_add_u32 v{vLT+m}, v{t2}, v{t4}")
        if m < 2:
            a(f"v_add_u32 v{t3}, 16, v{t3}")
    a(f"s_lshl_b32 s{sT3}, s2, 8")
    a(f"s_lshl_b32 s{sT0}, s{sW}, 18")
    a(f"s_add_u32 s{sT3}, s{sT3}, s{sT0}")
    XF = RING + 12
    for i in range(5):
        a.wait(f"x{i}")
        if i == 0:
            stamp(1)
        if i == 4:
            stamp("x4")
            for _ in range(c.w1_x):
                wissue(1, w1_issued); w1_issued += 1
        for k in range(2):
            a(f"v_lshlrev_b32 v{XF+4*i+2*k}, 16, v{XR+2*i+k}")
            a(f"v_and_b32 v{XF+4*i+2*k+1}, 0xffff0000, v{XR+2*i+k}")
        if i == 0:
            a(f"v_pk_add_f32 v[{t0}:{t0+1}], v[{XF}:{XF+1}], v[{XF+2}:{XF+3}]")
        else:
            a(f"v_pk_add_f32 v[{t0}:{t0+1}], v[{t0}:{t0+1}], v[{XF+4*i}:{XF+4*i+1}]")
            a(f"v_pk_add_f32 v[{t0}:{t0+1}], v[{t0}:{t0+1}], v[{XF+4*i+2}:{XF+4*i+3}]")
    def half_sum():
        a(f"v_add_f32 v{t0}, v{t0}, v{t0+1}")
        for r in (8, 4, 2, 1):
            a("s_nop 1")
            a(f"v_add_f32_dpp v{t0}, v{t0}, v{t0} row_ror:{r} row_mask:0xf bank_mask:0xf")
        a(f"v_mov_b32 v{t0+1}, v{t0}")
        a("s_nop 1")
        a(f"v_permlane16_swap_b32 v{t0+1}, v{t0}")
        a(f"v_add_f32 v{t0}, v{t0}, v{t0+1}")
    half_sum()
    a(f"v_mul_f32 v{t0}, {f32(-1.0/D)}, v{t0}    ; -mean")
    a(f"v_mov_b32 v{t0+1}, v{t0}")
    for i in range(10):
        a(f"v_pk_add_f32 v[{XF+2*i}:{XF+2*i+1}], v[{XF+2*i}:{XF+2*i+1}], v[{t0}:{t0+1}]")
    a(f"v_pk_mul_f32 v[{t0}:{t0+1}], v[{XF}:{XF+1}], v[{XF}:{XF+1}]")
    for i in range(1, 10):
        a(f"v_pk_fma_f32 v[{t0}:{t0+1}], v[{XF+2*i}:{XF+2*i+1}], v[{XF+2*i}:{XF+2*i+1}], v[{t0}:{t0+1}]")
    half_sum()
    a(f"v_mov_b32 v{t0+1}, {f32(1e-5)}")
    a(f"v_fmac_f32 v{t0+1}, {f32(1.0/D)}, v{t0}")
    a(f"v_rsq_f32 v{t0}, v{t0+1}")
    a("s_nop 0")
    a(f"v_mov_b32 v{t0+1}, v{t0}")
    for i in range(10):
        a(f"v_pk_mul_f32 v[{XF+2*i}:{XF+2*i+1}], v[{XF+2*i}:{XF+2*i+1}], v[{t0}:{t0+1}]")
    for i in range(5):
        a(f"v_cvt_pk_bf16_f32 v{XR+2*i}, v{XF+4*i}, v{XF+4*i+1}")
        a(f"v_cvt_pk_bf16_f32 v{XR+2*i+1}, v{XF+4*i+2}, v{XF+4*i+3}")
        a(f"ds_write_b64 v3, v[{XR+2*i}:{XR+2*i+1}] offset:{256*i}")
    a("s_waitcnt lgkmcnt(0)")
    a("s_barrier")
    stamp(2)
    HT = RING + 12
    for m in range(3):
        a(f"ds_read_b64_tr_b16 v[{HT+4*m}:{HT+4*m+1}], v{vLT+m}")
        a(f"ds_read_b64_tr_b16 v[{HT+4*m+2}:{HT+4*m+3}], v{vLT+m} offset:{4*1344}")
    a(f"s_add_u32 s{sT0}, s{sT3}, {1<<20}")
    a(f"s_add_u32 s{sT1}, s{sT3}, {2<<20}")
    if c.stamp:
        a("s_waitcnt lgkmcnt(0)")
    a("s_waitcnt lgkmcnt(4)")
    a(f"buffer_store_dwordx4 v[{HT}:{HT+3}], v{vHS}, s[{RWS}:{RWS+3}], s{sT3} offen sc1")
    a(f"s_cmp_ge_u32 s{sW}, 2")
    a("s_cbranch_scc1 L_two")
    a("s_waitcnt lgkmcnt(0)")
    a(f"buffer_store_dwordx4 v[{HT+8}:{HT+11}], v{vHS}, s[{RWS}:{RWS+3}], s{sT1} offen sc1")
    a("L_two:")
    a("s_waitcnt lgkmcnt(2)")
    a.vm(f"buffer_store_dwordx4 v[{HT+4}:{HT+7}], v{vHS}, s[{RWS}:{RWS+3}], s{sT0} offen sc1", "hst")
    stamp("hsto")
    for _ in range(c.w1_mid):
        wissue(1, w1_issued); w1_issued += 1
    NS1, NS2 = 16, 12
    def extra1():
        srd(a, RW2, W2, S * F * 2)
        srd(a, ROUT, OUT, S * D * 2)
        a(f"s_lshl_b32 s{sT0}, s{sDT}, 18")
        a(f"s_lshl_b32 s{sT1}, s{sW}, 14")
        a(f"s_add_u32 s{sT0}, s{sT0}, s{sT1}")
        for i in range(NS1):
            a(f"s_add_u32 s{sT1}, s{sROT1}, {i}")
            a(f"s_and_b32 s{sT1}, s{sT1}, 15")
            a(f"s_lshl_b32 s{sT1}, s{sT1}, 10")
            a(f"s_add_u32 s{sK+i}, s{sT1}, s{sT0}")
        a(f"s_mul_i32 s{sUS}, s{sUS}, 49152")
        a(f"s_lshl_b32 s{sT0}, s{sFT}, 11")
        a(f"s_add_u32 s{sUS}, s{sUS}, s{sT0}")
        a(f"s_add_u32 s{sUS}, s{sUS}, {U_OFF}")
    def extra1b():
        OWN = ACC + 48
        for k in range(8):
            a(f"v_lshlrev_b32 v{OWN+2*k}, 16, v{vB1+k}")
            a(f"v_and_b32 v{OWN+2*k+1}, 0xffff0000, v{vB1+k}")
    a(f"v_lshrrev_b32 v{t0}, 2, v{vL}            ; row = 4g + r")
    a(f"v_lshlrev_b32 v{vT1}, 7, v{t0}")
    a(f"v_bfe_u32 v{t0}, v{vL}, 3, 2")
    a(f"v_lshl_add_u32 v{vT1}, v{t0}, 5, v{vT1}")
    a(f"v_and_b32 v{t0}, 3, v{vL}")
    a(f"v_lshl_add_u32 v{vT1}, v{t0}, 3, v{vT1}")
    a(f"v_add_u32 v{vT1}, s{sLDS}, v{vT1}")
    a(f"s_lshl_b32 s{sT0}, s{sW}, 5")
    a(f"v_xor_b32 v{vT2}, s{sT0}, v{vT1}")
    for b in range(1, 4):
        a(f"v_xor_b32 v{vT1+b}, {b*32}, v{vT1}")
        a(f"v_xor_b32 v{vT2+b}, {b*32}, v{vT2}")
    for j in range(1, 4):
        a(f"v_add_u32 v{vD2+j}, {j*(8*4096-1024)}, v{vD2}")
    for p in range(4):
        a(f"s_xor_b32 s{sT0}, s{sW}, {(p+1)&3}")
        a(f"s_lshl_b32 s{sT0}, s{sT0}, 16")
        a(f"v_add_u32 v{vH+p}, s{sT0}, v{vU}")
    for t in range(1, 5):
        a(f"v_add_u32 v{vU+t}, {t*49152}, v{vU}")
    a(f"v_lshlrev_b32 v{vFH}, 6, v0")
    a(f"v_add_u32 v{vFH}, {FH_OFF}, v{vFH}")
    a(f"v_min_u32 v{t0}, 29, v{vL}")
    a(f"v_mul_u32_u24 v{t1}, 43, v{t0}")
    a(f"v_lshrrev_b32 v{t1}, 8, v{t1}            ; l/6")
    a(f"v_mul_u32_u24 v{t1}, 18, v{t1}")
    a(f"s_mul_i32 s{sT0}, s{sJ}, 120")
    a(f"s_mul_i32 s{sT1}, s{sW}, 6")
    a(f"s_add_u32 s{sT0}, s{sT0}, s{sT1}")
    a(f"v_add3_u32 v{t0}, v{t0}, v{t1}, s{sT0}")
    a(f"v_lshlrev_b32 v{vFU}, 6, v{t0}")
    a(f"v_add_u32 v{vFU}, {FU_OFF}, v{vFU}")
    for k in range(4):
        a(f"s_xor_b32 s{sT0}, s{sW}, {k}")
        a(f"s_mul_i32 s{sT0}, s{sT0}, 12288")
        a(f"s_add_u32 s{sT0}, s{sT0}, {RED}")
        a(f"v_add_u32 v{vR+k}, s{sT0}, v{vU}")
    a(f"s_mul_i32 s{sTAG}, s{sTAG}, 1664525")
    a(f"s_add_u32 s{sTAG}, s{sTAG}, 1013904223")
    a(f"v_mov_b32 v{vONE}, s{sTAG}")
    extra1()
    a(f"s_lshl_b32 s{sT0}, s2, 6")
    a(f"s_add_u32 s{sT0}, s{sT0}, {FH_OFF}")
    a(f"v_mov_b32 v{t5}, s{sT0}")
    a.wait("hst")
    stamp(3)
    a("s_barrier")
    stamp("bar")
    a(f"s_cmp_lg_u32 s{sW}, 0")
    a("s_cbranch_scc1 L_noflag")
    a("s_mov_b64 exec, 1")
    a(f"global_store_dword v{t5}, v{vONE}, s[{WS}:{WS+1}] sc1")
    a("s_mov_b64 exec, -1")
    a("L_noflag:")
    a("s_cmp_ge_u32 s2, 240")
    a("s_cbranch_scc1 L_idle")
    for k in range(8):
        a(f"v_lshlrev_b32 v{ACC+48+2*k}, 16, v{vB1+k}") if False else None
    def wreads(kind, i):
        slot = i % WSLOT
        vt = vT1 if kind == 1 else vT2
        for b in range(4):
            for e in range(2):
                r = 16 * i + 4 * b + 2 * e
                a(f"ds_read_b64_tr_b16 a[{r}:{r+1}], v{vt+b} offset:{slot*4096+e*2048}")
    def wstream(kind, ns, issued, vpoll, tag, extra, WS=WS):
        polled = False
        first = issued
        for i in range(ns):
            while issued < ns and (issued <= i + c.w_depth or (i == 0 and issued == first)):
                assert issued - WSLOT < i
                if issued - WSLOT >= i - 2 and issued >= WSLOT:
                    a("s_waitcnt lgkmcnt(0)")
                wissue(kind, issued); issued += 1
                if issued == ns - c.poll_early and not polled and c.poll_early > 0:
                    a.vm(f"global_load_dword v{vP}, v{vpoll}, s[{WS}:{WS+1}] sc1", tag); polled = True
            if i == 0:
                extra()
            if issued == ns and not polled:
                a.vm(f"global_load_dword v{vP}, v{vpoll}, s[{WS}:{WS+1}] sc1", tag); polled = True
            if issued == ns:
                return i
            a.wait(f"w{kind}_{i}")
            stamp(f"w{kind}_{i}")
            if i > 0:
                a("s_waitcnt lgkmcnt(7)")
            wreads(kind, i)
    w1_read = wstream(1, NS1, w1_issued, vFH, "hpoll", extra1b)
    a.wait("hpoll")
    stamp(4)
    spin("L_h", vFH, WS)
    stamp(5)
    N1 = 64
    def hissue(n):
        r = RING + 4 * (n % NRING)
        a.vm(f"buffer_load_dwordx4 v[{r}:{r+3}], v{vH+n//16}, s[{RWS}:{RWS+3}], s{sK+n%16} offen sc1", f"h{n}")
    for n in range(c.h_depth):
        hissue(n)
    for i in range(w1_read, NS1):
        a.wait(f"w1_{i}")
        a("s_waitcnt lgkmcnt(7)")
        wreads(1, i)
    def w2setup():
        a(f"s_mul_i32 s{sWO0}, s{sW}, {12*32*4096}")
        a(f"s_lshl_b32 s{sT0}, s{sST}, 7")
        a(f"s_add_u32 s{sWO0}, s{sWO0}, s{sT0}")
        a(f"s_add_u32 s{sWOE}, s{sWO0}, {12*32*4096}")
        a(f"s_mul_i32 s{sT0}, s{sROT2}, {32*4096}")
        a(f"s_add_u32 s{sWO}, s{sWO0}, s{sT0}")
        a(f"s_mov_b32 m0, s{sLDS}")
    w2setup()
    c1 = -2.0 * math.log2(math.e) * math.sqrt(2.0 / math.pi)
    a(f"v_mov_b32 v{t0}, {f32(c1*0.044715)}")
    a(f"v_mov_b32 v{t0+1}, {f32(c1*0.044715)}")
    a(f"v_mov_b32 v{t2}, {f32(c1)}")
    a(f"v_mov_b32 v{t2+1}, {f32(c1)}")
    a("s_waitcnt lgkmcnt(0)")
    w2_issued = 0
    stamp("g1s")
    for n in range(N1):
        p, i = n // 16, n % 16
        stamp(f"g1_{n}")
        if n + c.h_depth < N1:
            hissue(n + c.h_depth)
        elif w2_issued < c.w2_pre and (n + c.h_depth - N1) % 4 == 0:
            wissue(2, w2_issued); w2_issued += 1
        a.wait(f"h{n}")
        rb = RING + 4 * (n % NRING)
        for t in range(4):
            cc = ACC + 16 * p + 4 * t
            src = "0" if (i == 0 and p < 3) else f"v[{cc}:{cc+3}]"
            a(f"v_mfma_f32_16x16x32_bf16 v[{cc}:{cc+3}], a[{16*i+4*t}:{16*i+4*t+3}], v[{rb}:{rb+3}], {src}")
            if p >= 1 and i in (2, 3) and t in (0, 2):
                q = 2 * (i - 2) + t // 2
                cw = ACC + 16 * (p - 1) + 4 * q
                a(f"ds_write_b128 v{vR}, v[{cw}:{cw+3}] offset:{(p-1)*4096+q*1024}")
            if p == 3 and c.bar1 < i <= c.bar1 + 3:
                k = i - c.bar1
                cr = ACC + 16 * (k - 1) + 4 * t
                a(f"ds_read_b128 v[{cr}:{cr+3}], v{vR+k} offset:{(k-1)*4096+t*1024}")
            if p == 3 and i == c.bar1 + 5:
                if t == 0:
                    a("s_waitcnt lgkmcnt(0)")
                for r in (0, 2):
                    cc2 = ACC + 4 * t + r
                    a(f"v_pk_add_f32 v[{cc2}:{cc2+1}], v[{cc2}:{cc2+1}], v[{cc2+16}:{cc2+17}]")
            if p == 3 and i == c.bar1 + 6:
                for r in (0, 2):
                    cc2 = ACC + 4 * t + r
                    a(f"v_pk_add_f32 v[{cc2}:{cc2+1}], v[{cc2}:{cc2+1}], v[{cc2+32}:{cc2+33}]")
        if p == 3 and i == c.bar1:
            a("s_waitcnt lgkmcnt(0)")
            a("s_barrier")
    while w2_issued < c.w2_pre + c.w2_epi:
        wissue(2, w2_issued); w2_issued += 1
    stamp(6)
    a("s_nop 4")
    T = RD
    for q in range(4):
        for r in (0, 2):
            cc = ACC + 4 * q + r
            a(f"v_pk_add_f32 v[{cc}:{cc+1}], v[{cc}:{cc+1}], v[{cc+48}:{cc+49}]")
        for r in (0, 2):
            cc = ACC + 4 * q + r; tt = T + 4 * q + r
            a(f"v_pk_mul_f32 v[{tt}:{tt+1}], v[{cc}:{cc+1}], v[{cc}:{cc+1}]")
        for r in (0, 2):
            tt = T + 4 * q + r
            a(f"v_pk_fma_f32 v[{tt}:{tt+1}], v[{tt}:{tt+1}], v[{t0}:{t0+1}], v[{t2}:{t2+1}]")
        for r in (0, 2):
            cc = ACC + 4 * q + r; tt = T + 4 * q + r
            a(f"v_pk_mul_f32 v[{tt}:{tt+1}], v[{tt}:{tt+1}], v[{cc}:{cc+1}]")
        for r in range(4):
            a(f"v_exp_f32 v{T+4*q+r}, v{T+4*q+r}")
        for r in range(4):
            a(f"v_add_f32 v{T+4*q+r}, 1.0, v{T+4*q+r}")
        for r in range(4):
            a(f"v_rcp_f32 v{T+4*q+r}, v{T+4*q+r}")
        for r in range(4):
            a(f"v_mul_f32 v{T+4*q+r}, v{T+4*q+r}, v{ACC+4*q+r}")
        for r in (0, 2):
            a(f"v_cvt_pk_bf16_f32 v{T+16+2*q+r//2}, v{T+4*q+r}, v{T+4*q+r+1}")
        if q % 2 == 1:
            cq = q // 2
            a.vm(f"buffer_store_dwordx4 v[{T+16+4*cq}:{T+19+4*cq}], v{vU}, s[{RWS}:{RWS+3}], s{sUS} offen offset:{1024*cq} sc1", "ust")
    stamp(7)
    for _ in range(c.w2_mid):
        wissue(2, w2_issued); w2_issued += 1
    a.wait("ust")
    a("s_mov_b64 exec, 1")
    a(f"global_store_dword v{vFO}, v{vONE}, s[{WS}:{WS+1}] sc1")
    a("s_mov_b64 exec, -1")
    a(f"s_cmp_lg_u32 s{sT2}, 0")
    a("s_cbranch_scc1 L_join")
    a(f"v_mov_b32 v{t5}, {EP_OFF}")
    a("s_mov_b64 exec, 1")
    a(f"global_store_dword v{t5}, v{vONE}, s[{WS}:{WS+1}]")
    a("s_mov_b64 exec, -1")
    a("L_join:")
    stamp(8)
    def extra2():
        a(f"s_mul_i32 s{sT0}, s{sJ}, {5*49152}")
        a(f"s_mul_i32 s{sT1}, s{sW}, 12288")
        a(f"s_add_u32 s{sT0}, s{sT0}, s{sT1}")
        a(f"s_add_u32 s{sT0}, s{sT0}, {U_OFF}")
        a(f"s_add_u32 s{sT1}, s{sT0}, 12288")
        a(f"s_lshl_b32 s{sK}, s{sROT2}, 10")
        a(f"s_add_u32 s{sK}, s{sK}, s{sT0}")
        for i in range(1, NS2):
            a(f"s_add_u32 s{sK+i}, s{sK+i-1}, 1024")
            a(f"s_cmp_eq_u32 s{sK+i}, s{sT1}")
            a(f"s_cselect_b32 s{sK+i}, s{sT0}, s{sK+i}")
        a(f"v_lshlrev_b32 v{vB2}, 16, v{vB2}")
        for t in range(5):
            for r in range(4):
                a(f"v_mov_b32 v{ACC+16*t+r}, v{vB2}")
        for k in range(4):
            a(f"s_xor_b32 s{sT0}, s{sW}, {k}")
            a(f"s_mul_i32 s{sT0}, s{sT0}, {WSLOT*4096}")
            a(f"v_add_u32 v{vR+k}, s{sT0}, v{vU}")
        a(f"s_mul_i32 s{sUS}, s{sJ}, 160")
    w2_read = wstream(2, NS2, w2_issued, vFU, "upoll", extra2)
    a.wait("upoll")
    stamp(9)
    spin("L_u", vFU, WS)
    stamp(10)
    N2 = 60
    def uissue(n):
        r = RING + 4 * (n % NRING)
        a.vm(f"buffer_load_dwordx4 v[{r}:{r+3}], v{vU+n//12}, s[{RWS}:{RWS+3}], s{sK+n%12} offen sc1", f"u{n}")
    for n in range(c.u_depth):
        uissue(n)
    for i in range(w2_read, NS2):
        a.wait(f"w2_{i}")
        a("s_waitcnt lgkmcnt(7)")
        wreads(2, i)
    a("s_waitcnt lgkmcnt(0)")
    osc = " sc1" if c.out_sc1 == 1 else (" nt" if c.out_sc1 == 2 else (" sc0 sc1" if c.out_sc1 == 3 else ""))
    def fin(t):
        for r in (0, 2):
            cc = ACC + 16 * t + r
            a(f"v_pk_add_f32 v[{cc}:{cc+1}], v[{cc}:{cc+1}], v[{cc+4}:{cc+5}]")
            a(f"v_pk_add_f32 v[{cc+8}:{cc+9}], v[{cc+8}:{cc+9}], v[{cc+12}:{cc+13}]")
        for r in (0, 2):
            cc = ACC + 16 * t + r
            a(f"v_pk_add_f32 v[{cc}:{cc+1}], v[{cc}:{cc+1}], v[{cc+8}:{cc+9}]")
        for r in (0, 2):
            cc = ACC + 16 * t + r
            a(f"v_cvt_pk_bf16_f32 v{RD+2*t+r//2}, v{cc}, v{cc+1}")
    stamp("g2s")
    for n in range(N2):
        t, i = n // 12, n % 12
        stamp(f"g2_{n}")
        if n + c.u_depth < N2:
            uissue(n + c.u_depth)
        a.wait(f"u{n}")
        ra = RING + 4 * (n % NRING)
        for bi, b in enumerate((1, 2, 3, 0)):
            cc = ACC + 16 * t + 4 * b
            src = "0" if (i == 0 and b) else f"v[{cc}:{cc+3}]"
            a(f"v_mfma_f32_16x16x32_bf16 v[{cc}:{cc+3}], v[{ra}:{ra+3}], a[{16*i+4*b}:{16*i+4*b+3}], {src}")
            if t >= 1 and i == 2 and b:
                cw = ACC + 16 * (t - 1) + 4 * b
                a(f"ds_write_b128 v{vR}, v[{cw}:{cw+3}] offset:{(b-1)*5120+(t-1)*1024}")
            if t == 4 and c.bar2 < i <= c.bar2 + 3:
                k = i - c.bar2
                cr = ACC + 16 * bi + 4 * k
                a(f"ds_read_b128 v[{cr}:{cr+3}], v{vR+k} offset:{(k-1)*5120+bi*1024}")
            if t == 4 and i >= c.bar2 + 5 and bi == 0:
                tt = i - (c.bar2 + 5)
                if tt == 0:
                    a("s_waitcnt lgkmcnt(0)")
                if tt < 4:
                    fin(tt)
                    if tt % 2 == 1:
                        pp = tt // 2
                        assert n + c.u_depth >= N2
                        a.vm(f"buffer_store_dwordx4 v[{RD+4*pp}:{RD+4*pp+3}], v{vO}, s[{ROUT}:{ROUT+3}], s{sUS} offen offset:{64*pp}{osc}", "o")
        if t == 4 and i == c.bar2:
            a("s_waitcnt lgkmcnt(0)")
            a("s_barrier")
    assert c.bar2 + 5 + 3 <= 11
    stamp(11)
    a("s_nop 4")
    for b in range(1, 4):
        cw = ACC + 64 + 4 * b
        a(f"ds_write_b128 v{vR}, v[{cw}:{cw+3}] offset:{(b-1)*5120+4096}")
    a("s_waitcnt lgkmcnt(0)")
    stamp("e1")
    a("s_barrier")
    stamp("e2")
    for k in range(1, 4):
        cr = ACC + 64 + 4 * k
        a(f"ds_read_b128 v[{cr}:{cr+3}], v{vR+k} offset:{(k-1)*5120+4096}")
    a("s_waitcnt lgkmcnt(0)")
    fin(4)
    a(f"buffer_store_dwordx2 v[{RD+8}:{RD+9}], v{vO+1}, s[{ROUT}:{ROUT+3}], s{sUS} offen offset:128{osc}")
    if c.stamp:
        stamp("e3")
        a("s_waitcnt vmcnt(0)")
        stamp(12)
        a(f"s_lshl_b32 s{sT0}, s2, 3")
        a(f"s_add_u32 s{sT0}, s{sT0}, s{sW}")
        a(f"s_lshl_b32 s{sT0}, s{sT0}, 6")
        a(f"s_add_u32 s{sT0}, s{sT0}, {ST_OFF}")
        a(f"v_mov_b32 v{t0}, s{sT0}")
        a("s_waitcnt lgkmcnt(0)")
        for i in range(13):
            a(f"v_mov_b32 v{t1}, s{STB+2*i}")
            a(f"global_store_dword v{t0}, v{t1}, s[{WS}:{WS+1}] offset:{4*i}")
    if c.pad:
        a("s_waitcnt vmcnt(0)")
        a("s_memrealtime s[64:65]")
        a("s_waitcnt lgkmcnt(0)")
        a("s_sub_u32 s64, s64, s58")
        a(f"s_mul_i32 s64, s64, {c.mult}")
        a("s_add_u32 s64, s64, 10000")
        a(f"s_mov_b32 s{sCNT}, 0")
        a("L_pad:")
        a("s_memrealtime s[66:67]")
        a("s_waitcnt lgkmcnt(0)")
        a(f"s_add_u32 s{sCNT}, s{sCNT}, 1")
        a(f"s_cmp_ge_u32 s{sCNT}, 200000\ns_cbranch_scc1 L_end")
        a("s_sub_u32 s66, s66, s58")
        a("s_cmp_lt_u32 s66, s64\ns_cbranch_scc1 L_pad")
    a("s_endpgm")
    a("L_idle:")
    a("s_waitcnt vmcnt(0) lgkmcnt(0)")
    for nm in ("w1_4", "w1_8", 4, 5, "g1s", "g1_16", "g1_32", "g1_48", 6, 7):
        stamp(nm)
    w2setup()
    a("s_nop 0")
    for i in range(c.w2_pre + c.w2_epi + c.w2_mid):
        wissue(2, i)
    a("s_waitcnt vmcnt(0)")
    a("s_branch L_join")
    a("L_end:\ns_endpgm")
    a(f""".section .rodata,"a"
.p2align 6
.amdhsa_kernel {NAME}
  .amdhsa_next_free_vgpr 512
  .amdhsa_next_free_sgpr 102
  .amdhsa_accum_offset 256
  .amdhsa_group_segment_fixed_size 0
  .amdhsa_kernarg_size 64
  .amdhsa_user_sgpr_count 2
  .amdhsa_user_sgpr_kernarg_segment_ptr 1
  .amdhsa_system_sgpr_workgroup_id_x 1
  .amdhsa_float_denorm_mode_32 3
.end_amdhsa_kernel""")
    return a.text()

if __name__ == "__main__":
    c = Cfg()
    out = sys.argv[1]
    for x in sys.argv[2:]:
        k, v = x.split("=")
        assert hasattr(c, k), k
        setattr(c, k, int(v))
    open(out, "w").write(gen(c))
```

```python
import sys, struct, math

def f32(x):
    return "0x%08x" % struct.unpack("<I", struct.pack("<f", x))[0]

S, D, F = 2048, 640, 1536
H_OFF = 0x1000
U_OFF = 0x282000
FH_OFF = 0x464000
EP_OFF = FH_OFF + (16 << 10)
FU_OFF = FH_OFF + (32 << 10)
WS_USED = FU_OFF + (64 << 10)
ST_OFF = 16 << 20
NAME = "standalone__mixer_token_mlp__prompt_kernel"
SPIN_CAP = 400000

class Cfg:
    stamp = 0
    sset = 0
    pad = 0
    mult = 0
    map1 = 1
    map2 = 1
    rot1 = 10
    rot2 = 8
    cpo = 256
    w1_pre = 0
    w1_x = 2
    w1_ln = 2
    w1_mid = 6
    wd = 7
    hd = 10
    ud = 8
    pe1 = 6
    pe2 = 6
    g1bar = 18
    g1fill = 9
    w2_tail = 1
    w2_mid = 7
    w2_un = 4
    pbl = 8
    helper = 0
    serp = 0
    fillk = 8
    osc = 0
    w2e = 0
    egrp = 4
    e0 = 20
    estep = 8
    esh = 3
    tlbw = 0
    w1_first = 4
    xbar = 1
    fhs = 5
    fus = 6
    slowl = 16
    fe_pos = 4

class A:
    def __init__(self):
        self.L = []
        self.q = []
        self.lq = []
    def __call__(self, s):
        for line in s.strip("\n").split("\n"):
            self.L.append(line)
    def vm(self, s, tag=None):
        self(s)
        self.q.append(tag)
    def recent_slow_before(self, tag, window):
        if tag not in self.q:
            return False
        idx = self.q.index(tag)
        return any(t in ("hst", "hfl", "ust0", "ust1", "ufl0", "ufl1", "b1", "b2") and len(self.q) - 1 - i < window
                   for i, t in enumerate(self.q[:idx]))
    def wait(self, tag):
        if tag not in self.q:
            return
        idx = max(i for i, t in enumerate(self.q) if t == tag)
        n = len(self.q) - 1 - idx
        assert n <= 63
        self(f"s_waitcnt vmcnt({n})")
        self.q = self.q[idx + 1:]
    def pending(self, tag):
        return tag in self.q
    def ds(self, s, tag=None):
        if len(self.lq) >= 13:
            self("s_waitcnt lgkmcnt(7)")
            self.lq = self.lq[-7:]
        self(s)
        self.lq.append(tag)
    def dwait(self, tag=None):
        if tag is None:
            self("s_waitcnt lgkmcnt(0)")
            self.lq = []
            return
        if tag not in self.lq:
            return
        idx = max(i for i, t in enumerate(self.lq) if t == tag)
        self(f"s_waitcnt lgkmcnt({len(self.lq)-1-idx})")
        self.lq = self.lq[idx + 1:]
    def text(self):
        return "\n".join(self.L) + "\n"

class Fill:
    def __init__(self, a):
        self.a = a
        self.g = []
    def __call__(self, s):
        self.g.append(s)
    def emit(self, k):
        while k > 0 and self.g:
            x = self.g.pop(0)
            if callable(x):
                x(); k -= 1
            else:
                self.a(x); k -= x.count("\n") + 1
    def flush(self):
        self.emit(1 << 30)

def srd(a, d, b, nbytes):
    a(f"s_mov_b32 s{d}, s{b}")
    a(f"s_mov_b32 s{d+1}, s{b+1}")
    a(f"s_mov_b32 s{d+2}, {nbytes}")
    a(f"s_mov_b32 s{d+3}, 0x00020000")

def gen(c):
    a = A()
    STB = 76
    SETS = {
        0: [0, 1, 2, 3, 4, 5, "t0", 6, 8, 9, 10, 11, 12],
        1: [0, "ka", "iss", 1, "x4", 2, "hsto", 3, "w1_24", "w1_40", 4, 5, "g1s"],
        2: [0, 5, "g1s", "g1_8", "g1_16", "g1_24", "t0", 6, "fe", 7, 8, 9, 10],
        3: [0, 9, 10, "g2s", "g2_6", "pb", "g2_12", "g2_18", "g2_24", 11, "e2", "e3", 12],
    }
    def stamp(name):
        if c.stamp and name in SETS[c.sset]:
            i = SETS[c.sset].index(name)
            a(f"{'s_memtime' if c.stamp == 2 else 's_memrealtime'} s[{STB+2*i}:{STB+2*i+1}]")
    a("; kernarg: x(0) w1(8) b1(16) w2(24) b2(32) out(40) debug(48) ws(56)")
    a("; @launch grid=(256,1,1) block=(256,1,1) lds=163840")
    a('.amdgcn_target "amdgcn-amd-amdhsa--gfx950"')
    a(f".text\n.globl {NAME}\n.p2align 8\n.type {NAME},@function\n{NAME}:")
    X, W1, B1, W2, B2, OUT, DBG, WS = 4, 6, 8, 10, 12, 14, 16, 18
    sMA, sMB = 20, 22
    RW1, RW2, RWS, ROUT = 24, 28, 32, 36
    sW, sLDS, sDT, sFT, sJ, sST = 40, 41, 42, 43, 44, 45
    sWO, sWO0, sWOE, sUS0 = 46, 47, 48, 49
    sT0, sT1, sUS1, sCNT, sROT1, sROT2, sT3, sTAG = 50, 51, 52, 53, 54, 55, 56, 57
    sS = 3
    FB = 4
    sFO = (16, 17, 58)
    sFD = (0, 1, 59)
    sK = 60
    vL = 1
    vD1, vD2, vH, vU, vT1, vT2, vR, vO = 4, 8, 12, 16, 21, 25, 29, 33
    vFH, vFU, vFO, vTAG, vB1, vB2, vHS, vLT, vFHO, vC1 = 35, 36, 37, 39, 40, 44, 45, 46, 49, 50
    t0, t1, t2, t3, t4, t5 = 54, 55, 56, 57, 58, 59
    vP = 60
    ACC, RING, RD = 64, 144, 208
    RED = 114688
    WSLOT = 7
    NRING = 16
    NS1, NS2 = 16, 12

    def poll_load(kind):
        if kind == "h":
            return f"global_load_dwordx4 v[{vP}:{vP+3}], v{vFH}, s[{WS}:{WS+1}] sc1"
        m = sMA if kind == "a" else sMB
        return f"s_mov_b64 exec, s[{m}:{m+1}]\nglobal_load_dword v{vP}, v{vFU}, s[{WS}:{WS+1}] sc1\ns_mov_b64 exec, -1"
    def poll_test(kind):
        if kind == "h":
            a(f"v_bitop3_b32 v{vP}, v{vP}, v{vP+1}, v{vTAG} bitop3:0x7e")
            a(f"v_bitop3_b32 v{vP+2}, v{vP+2}, v{vP+3}, v{vTAG} bitop3:0x7e")
            a(f"v_or_b32 v{vP}, v{vP}, v{vP+2}")
            a(f"v_cmp_ne_u32 vcc, 0, v{vP}")
            a("s_and_b64 vcc, vcc, exec")
        else:
            m = sMA if kind == "a" else sMB
            a(f"v_cmp_ne_u32 vcc, s{sTAG}, v{vP}")
            a(f"s_and_b64 vcc, vcc, s[{m}:{m+1}]")
    def spin(kind):
        label = "L_p" + kind
        poll_test(kind)
        a(f"s_cbranch_scc0 {label}_ok")
        a(f"s_mov_b32 s{sCNT}, 0")
        a(f"{label}_l:")
        a(poll_load(kind))
        a(f"s_add_u32 s{sCNT}, s{sCNT}, 1")
        a(f"s_cmp_ge_u32 s{sCNT}, {SPIN_CAP}")
        a(f"s_cbranch_scc1 {label}_ok")
        a("s_waitcnt vmcnt(0)")
        poll_test(kind)
        a(f"s_cbranch_scc1 {label}_l")
        a(f"{label}_ok:")
    def flag_add(k):
        a(f"s_atomic_add s{sFD[k]}, s[{FB}:{FB+1}], s{sFO[k]}")
    def flag_store(vaddr, tag, sc=" sc1"):
        a("s_mov_b64 exec, 1")
        s_ = f"global_store_dword v{vaddr}, v{vTAG}, s[{WS}:{WS+1}]{sc}"
        if tag:
            a.vm(s_, tag)
        else:
            a(s_)
        a("s_mov_b64 exec, -1")

    class W:
        def __init__(self, kind):
            self.kind = kind
            self.ns = NS1 if kind == 1 else NS2
            self.n = 0
            self.rd = 0
            self.can_read = True
        def left(self):
            return 4 * self.ns - self.n
        def tag(self, n):
            return f"w{self.kind}_{n}"
        def nslot(self):
            return WSLOT - c.w2e if self.kind == 1 else WSLOT
        def slot(self, i):
            return i % self.nslot() if self.kind == 1 else (i + WSLOT - c.w2e) % WSLOT
        def issue(self):
            i, j = self.n >> 2, self.n & 3
            vd, r, step = (vD1, RW1, 32 * 3072) if self.kind == 1 else (vD2, RW2, 32 * 4096)
            if i >= self.nslot() and j == 0:
                old = i - self.nslot()
                if self.rd < 8 * (old + 1):
                    assert self.can_read
                    a.wait(self.tag(4 * old + 3))
                    self.reads(8 * (old + 1) - self.rd)
                a.dwait(f"r{self.kind}_{old}")
            a.vm(f"buffer_load_dwordx4 v{vd+j}, s[{r}:{r+3}], s{sWO} offen offset:{1024*j} lds", self.tag(self.n))
            self.n += 1
            if j == 3 and i + 1 < self.ns:
                if self.slot(i + 1) == 0:
                    a(f"s_mov_b32 m0, s{sLDS}")
                else:
                    a("s_add_u32 m0, m0, 4096")
                a(f"s_add_u32 s{sWO}, s{sWO}, {step}")
                a(f"s_cmp_eq_u32 s{sWO}, s{sWOE}")
                a(f"s_cselect_b32 s{sWO}, s{sWO0}, s{sWO}")
        def landed_steps(self):
            k = 0
            while 4 * k + 3 < self.n and not a.pending(self.tag(4 * k + 3)):
                k += 1
            return k
        def reads(self, k):
            vt = vT1 if self.kind == 1 else vT2
            lim = 8 * self.landed_steps() if self.can_read else 0
            while k > 0 and self.rd < lim:
                i, x = self.rd >> 3, self.rd & 7
                b, e = x >> 1, x & 1
                r = 16 * i + 4 * b + 2 * e
                a.ds(f"ds_read_b64_tr_b16 a[{r}:{r+1}], v{vt+b} offset:{self.slot(i)*4096+e*2048}", f"r{self.kind}_{i}")
                self.rd += 1
                k -= 1
        def step(self, fill=None, throttle=True, older_than=None):
            if throttle and self.n >= c.wd:
                tg = self.tag(self.n - c.wd)
                if older_than is not None and a.pending(older_than) and a.pending(tg) and a.q.index(tg) > a.q.index(older_than):
                    pass
                elif not a.recent_slow_before(tg, c.slowl):
                    a.wait(tg)
            stamp(f"w{self.kind}_{self.n}")
            self.issue()
            backlog = 8 * self.landed_steps() - self.rd
            self.reads(4 if backlog > 8 else 2)
            if fill is not None:
                fill.emit(c.fillk)
        def drain(self):
            for i in range(self.rd >> 3, self.ns):
                a.wait(self.tag(4 * i + 3))
                self.reads(8)

    def tile2(f):
        if c.map2 == 0:
            f(f"s_and_b32 s{sT0}, s2, 1\ns_lshl_b32 s{sT0}, s{sT0}, 2\ns_bfe_u32 s{sT1}, s2, 0x20003\ns_add_u32 s{sJ}, s{sT0}, s{sT1}\ns_mul_i32 s{sROT2}, s{sT1}, 3")
            if c.rot2 == 42:
                f(f"s_bfe_u32 s{sT1}, s2, 0x10005\ns_mul_i32 s{sT1}, s{sT1}, 6\ns_add_u32 s{sROT2}, s{sROT2}, s{sT1}\ns_cmp_ge_u32 s{sROT2}, 12\ns_cselect_b32 s{sT1}, 12, 0\ns_sub_u32 s{sROT2}, s{sROT2}, s{sT1}")
            f(f"s_bfe_u32 s{sT0}, s2, 0x20001\ns_lshl_b32 s{sT0}, s{sT0}, 3\ns_lshr_b32 s{sST}, s2, 5\ns_add_u32 s{sST}, s{sST}, s{sT0}")
        else:
            f(f"s_bfe_u32 s{sJ}, s2, 0x30003")
            if c.rot2 == 8:
                f(f"s_mul_i32 s{sROT2}, s{sJ}, 3\ns_lshr_b32 s{sROT2}, s{sROT2}, 1")
            elif c.rot2 == 4:
                f(f"s_lshr_b32 s{sROT2}, s{sJ}, 1\ns_mul_i32 s{sROT2}, s{sROT2}, 3")
            else:
                f(f"s_mov_b32 s{sROT2}, 0")
            f(f"s_and_b32 s{sT0}, s2, 7\ns_lshl_b32 s{sT0}, s{sT0}, 2\ns_lshr_b32 s{sST}, s2, 6\ns_add_u32 s{sST}, s{sST}, s{sT0}")
    a("s_cmp_ge_u32 s2, 256\ns_cbranch_scc1 L_end")
    stamp(0)
    if c.pad:
        a("s_memrealtime s[100:101]")
    a("s_load_dwordx16 s[4:19], s[0:1], 0")
    a(f"v_lshrrev_b32 v{t0}, 6, v0")
    a("s_getpc_b64 s[22:23]")
    a("L_pc:")
    a(f"s_lshr_b32 s{sT0}, s2, 3                 ; idx")
    a(f"s_lshl_b32 s{sT1}, s{sT0}, 9")
    a(f"v_lshl_add_u32 v{t1}, v{t0}, 7, s{sT1}")
    a(f"v_min_u32 v{t1}, (L_end-L_pc-{c.cpo}-4), v{t1}")
    a.vm(f"global_load_dword v{vP}, v{t1}, s[22:23] offset:{c.cpo}", "cpf")
    a(f"v_and_b32 v{vL}, 63, v0")
    a(f"v_readfirstlane_b32 s{sW}, v{t0}")
    a(f"v_lshrrev_b32 v{t0}, 5, v0")
    a(f"v_and_b32 v{t1}, 31, v0")
    a(f"v_lshrrev_b32 v{t2}, 7, v0")
    a(f"v_mul_u32_u24 v{t2}, 12, v{t2}")
    a(f"v_add_u32 v{t2}, v{t2}, v{t0}")
    a(f"v_mul_u32_u24 v2, 1280, v{t2}")
    a(f"v_lshl_add_u32 v2, v{t1}, 3, v2          ; x offset")
    a(f"v_mul_u32_u24 v3, 1344, v{t0}")
    a(f"v_lshl_add_u32 v3, v{t1}, 3, v3")
    a(f"v_add_u32 v3, {RED}, v3")
    if c.map1 == 0:
        a(f"s_mul_i32 s{sFT}, s{sT0}, 205")
        a(f"s_lshr_b32 s{sFT}, s{sFT}, 10            ; idx/5")
        a(f"s_mul_i32 s{sT1}, s{sFT}, 5")
        a(f"s_sub_u32 s{sDT}, s{sT0}, s{sT1}         ; idx%5")
        a(f"s_and_b32 s{sS}, s{sDT}, 3")
        a(f"s_mul_i32 s{sROT1}, s{sDT}, 13")
        a(f"s_lshr_b32 s{sROT1}, s{sROT1}, 2     ; 0,3,6,9,13")
        if c.rot1 == 52:
            a(f"s_and_b32 s{sT1}, s{sFT}, 1")
            a(f"s_lshl_b32 s{sT1}, s{sT1}, 3")
            a(f"s_add_u32 s{sROT1}, s{sROT1}, s{sT1}")
            a(f"s_and_b32 s{sROT1}, s{sROT1}, 15")
        a(f"s_and_b32 s{sT1}, s2, 1")
        a(f"s_mul_i32 s{sT1}, s{sT1}, 5")
        a(f"s_add_u32 s{sDT}, s{sDT}, s{sT1}         ; dtile")
        a(f"s_bfe_u32 s{sT1}, s2, 0x20001")
        a(f"s_mul_i32 s{sT1}, s{sT1}, 6")
        a(f"s_add_u32 s{sFT}, s{sFT}, s{sT1}         ; ftile")
    else:
        a(f"s_mul_i32 s{sFT}, s{sT0}, 205")
        a(f"s_lshr_b32 s{sFT}, s{sFT}, 11            ; idx/10")
        a(f"s_mul_i32 s{sT1}, s{sFT}, 10")
        a(f"s_sub_u32 s{sDT}, s{sT0}, s{sT1}         ; dtile")
        a(f"s_cmp_ge_u32 s{sDT}, 5")
        a(f"s_cselect_b32 s{sS}, 5, 0")
        a(f"s_sub_u32 s{sS}, s{sDT}, s{sS}")
        a(f"s_and_b32 s{sS}, s{sS}, 3")
        if c.rot1 == 10:
            a(f"s_mul_i32 s{sROT1}, s{sDT}, 13")
            a(f"s_lshr_b32 s{sROT1}, s{sROT1}, 3")
        elif c.rot1 == 5:
            a(f"s_lshr_b32 s{sROT1}, s{sDT}, 1")
            a(f"s_mul_i32 s{sROT1}, s{sROT1}, 13")
            a(f"s_lshr_b32 s{sROT1}, s{sROT1}, 2")
        else:
            a(f"s_mov_b32 s{sROT1}, 0")
        a(f"s_and_b32 s{sT1}, s2, 7")
        a(f"s_mul_i32 s{sT1}, s{sT1}, 3")
        a(f"s_add_u32 s{sFT}, s{sFT}, s{sT1}         ; ftile")
    a(f"v_lshrrev_b32 v{t0}, 3, v{vL}            ; rr")
    a(f"v_and_b32 v{t1}, 6, v{t0}")
    a(f"v_and_b32 v{t2}, 7, v{vL}")
    a(f"v_xor_b32 v{t1}, v{t1}, v{t2}")
    a(f"v_lshlrev_b32 v{t1}, 4, v{t1}")
    a(f"v_mul_u32_u24 v{vD1}, 3072, v{t0}")
    a(f"v_add_u32 v{vD1}, v{vD1}, v{t1}")
    a(f"v_lshl_add_u32 v{vD2}, v{t0}, 12, v{t1}")
    for j in range(1, 4):
        a(f"v_add_u32 v{vD1+j}, {j*(8*3072-1024)}, v{vD1}")
    a(f"s_mul_i32 s{sWO0}, s{sW}, {512*3072}")
    a(f"s_lshl_b32 s{sT0}, s{sFT}, 7")
    a(f"s_add_u32 s{sWO0}, s{sWO0}, s{sT0}")
    a(f"s_add_u32 s{sWOE}, s{sWO0}, {512*3072}")
    a(f"s_mul_i32 s{sT0}, s{sROT1}, {32*3072}")
    a(f"s_add_u32 s{sWO}, s{sWO0}, s{sT0}")
    a(f"s_mul_i32 s{sLDS}, s{sW}, {WSLOT*4096}")
    a(f"s_mov_b32 m0, s{sLDS}")
    a(f"s_lshr_b32 s{sT0}, s2, 2")
    a(f"s_lshl_b32 s{sT0}, s{sT0}, 3")
    a(f"s_and_b32 s{sT1}, s2, 3")
    a(f"s_add_u32 s{sT0}, s{sT0}, s{sT1}")
    a(f"s_mul_i32 s{sT0}, s{sT0}, 5120")
    a(f"v_lshlrev_b32 v{vU}, 4, v{vL}            ; lane*16")
    a("s_waitcnt lgkmcnt(0)")
    stamp("ka")
    a(f"s_add_u32 s{X}, s{X}, s{sT0}")
    a(f"s_addc_u32 s{X+1}, s{X+1}, 0")
    XR = RING
    for i in range(5):
        a.vm(f"global_load_dwordx2 v[{XR+2*i}:{XR+2*i+1}], v2, s[{X}:{X+1}] offset:{256*i}", f"x{i}")
    srd(a, RW1, W1, S * F * 2)
    a("s_cmp_ge_u32 s2, 240")
    a(f"s_cselect_b32 s{RW1+2}, 0, s{RW1+2}")
    w1 = W(1)
    w1.can_read = False
    if c.xbar:
        a("s_barrier")
    for _ in range(c.w1_first):
        w1.issue()
    a(f"s_add_u32 s{FB}, s{WS}, {FH_OFF}")
    a(f"s_addc_u32 s{FB+1}, s{WS+1}, 0")
    a(f"s_load_dword s{sTAG}, s[{FB}:{FB+1}], {EP_OFF-FH_OFF}")
    if c.tlbw:
        a(f"v_and_b32 v{t0}, 1, v{vL}")
        a(f"v_mul_u32_u24 v{t1}, 0x281000, v{t0}")
        a(f"v_lshlrev_b32 v{t0}, 21, v{t0}")
        a.vm(f"global_load_dword v{vP+1}, v{t1}, s[{WS}:{WS+1}]", "tl")
        if c.tlbw >= 2:
            a.vm(f"global_load_dword v{vP+2}, v{t0}, s[{OUT}:{OUT+1}]", "tl")
            a(f"v_min_u32 v{t0}, 2, v{vL}")
            a(f"v_lshlrev_b32 v{t0}, 21, v{t0}")
            a.vm(f"global_load_dword v{vP+3}, v{t0}, s[{W2}:{W2+1}]", "tl")
    tile2(a)
    a(f"v_lshrrev_b32 v{t3}, 4, v{vL}            ; g")
    a(f"s_min_u32 s{sT0}, s{sFT}, 23\ns_lshl_b32 s{sT0}, s{sT0}, 1\ns_and_b32 s{sT1}, s{sW}, 1\ns_add_u32 s{sT0}, s{sT0}, s{sT1}\ns_lshl_b32 s{sT0}, s{sT0}, 6\nv_lshl_add_u32 v{t5}, v{t3}, 3, s{sT0}")
    for k in range(2):
        a.vm(f"global_load_dwordx2 v[{vB1+2*k}:{vB1+2*k+1}], v{t5}, s[{B1}:{B1+1}] offset:{32*k}", "b1")
    a(f"v_and_b32 v{t4}, 15, v{vL}")
    a(f"s_lshl_b32 s{sT0}, s{sST}, 6\ns_lshl_b32 s{sT1}, s{sW}, 4\ns_add_u32 s{sT0}, s{sT0}, s{sT1}\nv_add_u32 v{vO}, s{sT0}, v{t4}           ; s")
    a(f"v_lshlrev_b32 v{t2}, 1, v{vO}")
    a.vm(f"global_load_ushort v{vB2}, v{t2}, s[{B2}:{B2+1}]", "b2")
    a(f"s_lshl_b32 s{sT0}, s2, {c.fhs-2}\ns_add_u32 s{sT0}, s{sT0}, s{sW}\ns_lshl_b32 s{sFO[0]}, s{sT0}, 2")
    a(f"s_load_dword s{sFD[0]}, s[{FB}:{FB+1}], s{sFO[0]}")
    for h, su in enumerate((sUS0, sUS1)):
        a(f"s_lshr_b32 s{sT0}, s{sW}, 1\ns_add_u32 s{sT0}, s{sT0}, s{sS}\ns_add_u32 s{sT0}, s{sT0}, {2*h}\ns_and_b32 s{sT0}, s{sT0}, 3\ns_lshl_b32 s{sT1}, s{sDT}, 2\ns_add_u32 s{su}, s{sT0}, s{sT1}")
        a(f"s_mul_i32 s{sT0}, s{su}, 24\ns_add_u32 s{sT0}, s{sT0}, s{sFT}\ns_lshl_b32 s{sT0}, s{sT0}, {c.fus-2}\ns_and_b32 s{sT1}, s{sW}, 1\ns_add_u32 s{sT0}, s{sT0}, s{sT1}\ns_lshl_b32 s{sT0}, s{sT0}, 2\ns_add_u32 s{sFO[1+h]}, s{sT0}, {FU_OFF-FH_OFF}")
        a(f"s_load_dword s{sFD[1+h]}, s[{FB}:{FB+1}], s{sFO[1+h]}")
    srd(a, RWS, WS, WS_USED)
    a(f"v_lshrrev_b32 v{t3}, 4, v{vL}            ; g")
    a(f"v_and_b32 v{t4}, 15, v{vL}")
    a(f"v_lshlrev_b32 v{vHS}, 16, v{t3}")
    a(f"v_lshl_add_u32 v{vHS}, v{t4}, 4, v{vHS}")
    a(f"v_bfe_u32 v{t0}, v{vL}, 2, 2             ; r")
    a(f"v_mul_u32_u24 v{t0}, 1344, v{t0}")
    a(f"v_add_u32 v{t0}, {RED}, v{t0}")
    a(f"v_and_b32 v{t1}, 3, v{vL}                ; c")
    a(f"s_lshl_b32 s{sT0}, s{sW}, 2")
    a(f"v_add_u32 v{t3}, s{sT0}, v{t3}           ; T for m=0")
    for m in range(3):
        a(f"v_mul_u32_u24 v{t2}, 205, v{t3}")
        a(f"v_lshrrev_b32 v{t2}, 10, v{t2}       ; j")
        a(f"v_mul_u32_u24 v{t4}, 5, v{t2}")
        a(f"v_sub_u32 v{t4}, v{t3}, v{t4}        ; t")
        a(f"v_mul_u32_u24 v{t2}, 160, v{t2}")
        a(f"v_add_u32 v{t2}, v{t2}, v{t0}")
        a(f"v_lshrrev_b32 v{t5}, 1, v{t4}")
        a(f"v_lshl_add_u32 v{t2}, v{t5}, 6, v{t2}")
        a(f"v_and_b32 v{t5}, 1, v{t4}")
        a(f"v_lshl_add_u32 v{t2}, v{t5}, 3, v{t2}")
        a(f"v_lshrrev_b32 v{t4}, 2, v{t4}")
        a(f"v_sub_u32 v{t4}, 4, v{t4}")
        a(f"v_lshlrev_b32 v{t4}, v{t4}, v{t1}")
        a(f"v_add_u32 v{vLT+m}, v{t2}, v{t4}")
        if m < 2:
            a(f"v_add_u32 v{t3}, 16, v{t3}")
    a(f"s_lshl_b32 s{sT3}, s2, 8")
    a(f"s_lshl_b32 s{sT0}, s{sW}, 18")
    a(f"s_add_u32 s{sT3}, s{sT3}, s{sT0}")
    a(f"s_add_u32 s{sT3}, s{sT3}, {H_OFF}")
    for _ in range(c.w1_pre):
        w1.issue()
    stamp("iss")
    XF = RING + 12
    for i in range(5):
        a.wait(f"x{i}")
        if i == 0:
            stamp(1)
        if i == 4:
            stamp("x4")
            for _ in range(c.w1_x):
                w1.issue()
        for k in range(2):
            a(f"v_lshlrev_b32 v{XF+4*i+2*k}, 16, v{XR+2*i+k}")
            a(f"v_and_b32 v{XF+4*i+2*k+1}, 0xffff0000, v{XR+2*i+k}")
        if i == 0:
            a(f"v_pk_add_f32 v[{t0}:{t0+1}], v[{XF}:{XF+1}], v[{XF+2}:{XF+3}]")
        else:
            a(f"v_pk_add_f32 v[{t0}:{t0+1}], v[{t0}:{t0+1}], v[{XF+4*i}:{XF+4*i+1}]")
            a(f"v_pk_add_f32 v[{t0}:{t0+1}], v[{t0}:{t0+1}], v[{XF+4*i+2}:{XF+4*i+3}]")
    def half_sum():
        a(f"v_add_f32 v{t0}, v{t0}, v{t0+1}")
        for r in (8, 4, 2, 1):
            a("s_nop 1")
            a(f"v_add_f32_dpp v{t0}, v{t0}, v{t0} row_ror:{r} row_mask:0xf bank_mask:0xf")
        a(f"v_mov_b32 v{t0+1}, v{t0}")
        a("s_nop 1")
        a(f"v_permlane16_swap_b32 v{t0+1}, v{t0}")
        a(f"v_add_f32 v{t0}, v{t0}, v{t0+1}")
    half_sum()
    a(f"v_mul_f32 v{t0}, {f32(-1.0/D)}, v{t0}    ; -mean")
    a(f"v_mov_b32 v{t0+1}, v{t0}")
    for i in range(10):
        a(f"v_pk_add_f32 v[{XF+2*i}:{XF+2*i+1}], v[{XF+2*i}:{XF+2*i+1}], v[{t0}:{t0+1}]")
    a(f"v_pk_mul_f32 v[{t0}:{t0+1}], v[{XF}:{XF+1}], v[{XF}:{XF+1}]")
    for i in range(1, 10):
        a(f"v_pk_fma_f32 v[{t0}:{t0+1}], v[{XF+2*i}:{XF+2*i+1}], v[{XF+2*i}:{XF+2*i+1}], v[{t0}:{t0+1}]")
    half_sum()
    a(f"v_mov_b32 v{t0+1}, {f32(1e-5)}")
    a(f"v_fmac_f32 v{t0+1}, {f32(1.0/D)}, v{t0}")
    a(f"v_rsq_f32 v{t0}, v{t0+1}")
    a("s_nop 0")
    a(f"v_mov_b32 v{t0+1}, v{t0}")
    for i in range(10):
        a(f"v_pk_mul_f32 v[{XF+2*i}:{XF+2*i+1}], v[{XF+2*i}:{XF+2*i+1}], v[{t0}:{t0+1}]")
    for i in range(5):
        a(f"v_cvt_pk_bf16_f32 v{XR+2*i}, v{XF+4*i}, v{XF+4*i+1}")
        a(f"v_cvt_pk_bf16_f32 v{XR+2*i+1}, v{XF+4*i+2}, v{XF+4*i+3}")
        a(f"ds_write_b64 v3, v[{XR+2*i}:{XR+2*i+1}] offset:{256*i}")
    for _ in range(c.w1_ln):
        w1.issue()
    a("s_waitcnt lgkmcnt(0)")
    a("s_barrier")
    stamp(2)
    HT = RING + 12
    for m in range(3):
        a(f"ds_read_b64_tr_b16 v[{HT+4*m}:{HT+4*m+1}], v{vLT+m}")
        a(f"ds_read_b64_tr_b16 v[{HT+4*m+2}:{HT+4*m+3}], v{vLT+m} offset:{4*1344}")
    a(f"s_add_u32 s{sT0}, s{sT3}, {1<<20}")
    a(f"s_add_u32 s{sT1}, s{sT3}, {2<<20}")
    a(f"s_cmp_ge_u32 s{sW}, 2")
    a(f"s_cselect_b32 s{sT1}, 0x40000000, s{sT1}")
    if c.stamp:
        a("s_waitcnt lgkmcnt(0)")
    for m, so in enumerate((sT3, sT0, sT1)):
        a(f"s_waitcnt lgkmcnt({4-2*m})")
        a.vm(f"buffer_store_dwordx4 v[{HT+4*m}:{HT+4*m+3}], v{vHS}, s[{RWS}:{RWS+3}], s{so} offen sc1", "hst")
    stamp("hsto")
    def setup_common(f):
        f(f"s_mul_i32 s{sTAG}, s{sTAG}, 1664525")
        f(f"s_add_u32 s{sTAG}, s{sTAG}, 1013904223")
        f(f"v_mov_b32 v{vTAG}, s{sTAG}")
        for k in range(3):
            f(f"s_sub_u32 s{sFD[k]}, s{sTAG}, s{sFD[k]}")
        f(f"v_lshrrev_b32 v{t0}, 2, v{vL}            ; row = 4g + r")
        f(f"v_lshlrev_b32 v{vT1}, 7, v{t0}")
        f(f"v_bfe_u32 v{t0}, v{vL}, 3, 2")
        f(f"v_lshl_add_u32 v{vT1}, v{t0}, 5, v{vT1}")
        f(f"v_and_b32 v{t0}, 3, v{vL}")
        f(f"v_lshl_add_u32 v{vT1}, v{t0}, 3, v{vT1}")
        f(f"v_add_u32 v{vT1}, s{sLDS}, v{vT1}")
        f(f"s_lshl_b32 s{sT0}, s{sW}, 5\nv_xor_b32 v{vT2}, s{sT0}, v{vT1}")
        f(f"s_and_b32 s{sT0}, s{sW}, 1\ns_lshl_b32 s{sT0}, s{sT0}, 6\nv_xor_b32 v{vT1}, s{sT0}, v{vT1}")
        for b in range(1, 4):
            f(f"v_xor_b32 v{vT1+b}, {b*32}, v{vT1}")
    def setup_g2(f):
        f(f"v_lshrrev_b32 v{t3}, 4, v{vL}")
        f(f"v_mul_u32_u24 v{vO}, 1280, v{vO}")
        f(f"v_lshl_add_u32 v{vO+1}, v{t3}, 3, v{vO}")
        f(f"v_lshl_add_u32 v{vO}, v{t3}, 4, v{vO}")
        for b in range(1, 4):
            f(f"v_xor_b32 v{vT2+b}, {b*32}, v{vT2}")
        for j in range(1, 4):
            f(f"v_add_u32 v{vD2+j}, {j*(8*4096-1024)}, v{vD2}")
        for t in range(1, 5):
            f(f"v_add_u32 v{vU+t}, {t*49152}, v{vU}")
        f(f"v_min_u32 v{t0}, 59, v{vL}")
        f(f"v_mul_u32_u24 v{t1}, 43, v{t0}")
        f(f"v_lshrrev_b32 v{t1}, 9, v{t1}            ; l/12")
        f(f"v_mul_u32_u24 v{t1}, 18, v{t1}")
        f(f"v_lshrrev_b32 v{t2}, 1, v{t0}")
        f(f"s_mul_i32 s{sT0}, s{sJ}, 120\ns_mul_i32 s{sT1}, s{sW}, 6\ns_add_u32 s{sT0}, s{sT0}, s{sT1}\nv_add3_u32 v{t1}, v{t1}, v{t2}, s{sT0}")
        f(f"v_and_b32 v{t0}, 1, v{t0}")
        f(f"v_lshlrev_b32 v{t0}, 2, v{t0}")
        f(f"v_lshl_add_u32 v{vFU}, v{t1}, {c.fus}, v{t0}")
        f(f"v_add_u32 v{vFU}, {FU_OFF}, v{vFU}")
        f(f"s_mov_b32 s{sMA}, 0x00ffffff\ns_mov_b32 s{sMA+1}, 0")
        f(f"s_mov_b32 s{sMB}, 0xff000000\ns_mov_b32 s{sMB+1}, 0x0fffffff")
        srd(f, RW2, W2, S * F * 2)
        srd(f, ROUT, OUT, S * D * 2)
    def setup_g1(f):
        f(f"v_lshlrev_b32 v{vFH}, {c.fhs}, v0")
        f(f"v_add_u32 v{vFH}, {FH_OFF}, v{vFH}")
        for p in range(4):
            f(f"s_lshr_b32 s{sT0}, s{sW}, 1\ns_xor_b32 s{sT0}, s{sT0}, {(p&1)^1}\ns_add_u32 s{sT0}, s{sT0}, s{sS}\ns_add_u32 s{sT0}, s{sT0}, {p&2}\ns_and_b32 s{sT0}, s{sT0}, 3\ns_lshl_b32 s{sT1}, s{sT0}, 16\nv_add_u32 v{vH+p}, s{sT1}, v{vU}")
        for h, su in enumerate((sUS0, sUS1)):
            f(f"s_mul_i32 s{su}, s{su}, 48\ns_lshl_b32 s{sT0}, s{sFT}, 1\ns_add_u32 s{su}, s{su}, s{sT0}\ns_and_b32 s{sT1}, s{sW}, 1\ns_add_u32 s{su}, s{su}, s{sT1}\ns_lshl_b32 s{su}, s{su}, 10\ns_add_u32 s{su}, s{su}, {U_OFF}")
        f(f"s_lshl_b32 s{sT3}, s{sDT}, 18\ns_lshl_b32 s{sT1}, s{sW}, 14\ns_add_u32 s{sT3}, s{sT3}, s{sT1}\ns_add_u32 s{sT3}, s{sT3}, {H_OFF}")
        for i in range(NS1):
            f(f"s_add_u32 s{sT1}, s{sROT1}, {i}\ns_and_b32 s{sT1}, s{sT1}, 15\ns_lshl_b32 s{sT1}, s{sT1}, 10\ns_add_u32 s{sK+i}, s{sT1}, s{sT3}")
        for k in range(4):
            f(f"s_xor_b32 s{sT0}, s{sW}, {k}\ns_mul_i32 s{sT0}, s{sT0}, 12288\ns_add_u32 s{sT0}, s{sT0}, {RED}\nv_add_u32 v{vR+k}, s{sT0}, v{vU}")
        c1 = -2.0 * math.log2(math.e) * math.sqrt(2.0 / math.pi)
        f(f"v_mov_b32 v{vC1}, {f32(c1)}")
        f(f"v_mov_b32 v{vC1+1}, {f32(c1*0.044715)}")
        f(lambda: a.wait("b1"))
        for p in (1, 3):
            for k in range(4):
                f(f"v_lshlrev_b32 v{ACC+16*p+2*k}, 16, v{vB1+k}")
                f(f"v_and_b32 v{ACC+16*p+2*k+1}, 0xffff0000, v{vB1+k}")
    fl = Fill(a)
    setup_common(fl)
    fl(lambda: setattr(w1, "can_read", True))
    setup_g2(fl)
    for _ in range(c.w1_mid):
        w1.step(fl, older_than="hst")
    fl.flush()
    a.wait("hst")
    stamp(3)
    flag_add(0)
    a("s_cmp_ge_u32 s2, 240")
    a("s_cbranch_scc1 L_idle")
    setup_g1(fl)
    fl.emit(2)
    sE, sGRP, sM0 = 6, 9, 12
    def w2offs(f):
        f(f"s_mul_i32 s{sT0}, s{sW}, {12*32*4096}\ns_lshl_b32 s{sT1}, s{sST}, 7\ns_add_u32 s{sT0}, s{sT0}, s{sT1}\ns_add_u32 s{sT1}, s{sT0}, {12*32*4096}\n"
          f"s_mul_i32 s{sE}, s{sROT2}, {32*4096}\ns_add_u32 s{sE}, s{sE}, s{sT0}\n"
          + "\n".join(f"s_add_u32 s{sE+k}, s{sE+k-1}, {32*4096}\ns_cmp_eq_u32 s{sE+k}, s{sT1}\ns_cselect_b32 s{sE+k}, s{sT0}, s{sE+k}" for k in range(1, c.w2e + 1)))
    if c.w2e:
        w2offs(a)
        a(f"s_lshr_b32 s{sGRP}, s2, {c.esh}")
        a(f"s_and_b32 s{sGRP}, s{sGRP}, {c.egrp-1}")
    while w1.left() > 0:
        if w1.left() == c.pe1:
            a.vm(poll_load("h"), "hpoll")
        if c.w2e and w1.n >= c.e0 and (w1.n - c.e0) % c.estep == 0 and (w1.n - c.e0) // c.estep < c.egrp:
            g = (w1.n - c.e0) // c.estep
            a(f"s_cmp_lg_u32 s{sGRP}, {g}")
            a(f"s_cbranch_scc1 L_e{g}")
            a(f"s_mov_b32 s{sM0}, m0")
            for k in range(c.w2e):
                a(f"s_add_u32 m0, s{sLDS}, {(WSLOT-c.w2e+k)*4096}")
                a("s_nop 0")
                for j in range(4):
                    a(f"buffer_load_dwordx4 v{vD2+j}, s[{RW2}:{RW2+3}], s{sE+k} offen offset:{1024*j} lds")
            a(f"s_mov_b32 m0, s{sM0}")
            a("s_nop 0")
            a(f"L_e{g}:")
        w1.step(fl)
    assert not c.w2e or c.e0 + (c.egrp - 1) * c.estep < 64
    if c.pe1 == 0:
        a.vm(poll_load("h"), "hpoll")
    fl.flush()
    a.wait("hpoll")
    stamp(4)
    spin("h")
    stamp(5)
    N1 = 64
    def hissue(n):
        r = RING + 4 * (n % NRING)
        a.vm(f"buffer_load_dwordx4 v[{r}:{r+3}], v{vH+n//16}, s[{RWS}:{RWS+3}], s{sK+n%16} offen sc1", f"h{n}")
    for n in range(c.hd):
        hissue(n)
        w1.reads(2)
    w1.drain()
    def w2setup(done):
        a(f"s_mul_i32 s{sWO0}, s{sW}, {12*32*4096}")
        a(f"s_lshl_b32 s{sT0}, s{sST}, 7")
        a(f"s_add_u32 s{sWO0}, s{sWO0}, s{sT0}")
        a(f"s_add_u32 s{sWOE}, s{sWO0}, {12*32*4096}")
        if done:
            a(f"s_mov_b32 m0, s{sLDS}")
            a(f"s_mov_b32 s{sWO}, s{sE+done}")
        else:
            a(f"s_mul_i32 s{sT0}, s{sROT2}, {32*4096}")
            a(f"s_add_u32 m0, s{sLDS}, {((WSLOT-c.w2e)%WSLOT)*4096}")
            a(f"s_add_u32 s{sWO}, s{sWO0}, s{sT0}")
    w2setup(c.w2e)
    a.dwait()
    stamp("g1s")
    w2 = W(2)
    w2.n = 4 * c.w2e
    w2.can_read = False
    def red_write(f, p, aa):
        cw = ACC + 16 * p + 4 * aa
        slot = aa if p % 2 == 0 else 2 + aa
        f(lambda: a.ds(f"ds_write_b128 v{vR}, v[{cw}:{cw+3}] offset:{(p//2)*6144+slot*1024}", f"rw{p}"))
    def red_finish(f, h):
        P0, P1, T = ACC + 32 * h, ACC + 32 * h + 16, RD + 12 * h
        for x, (k, slot, dst) in enumerate(((2, 0, P0), (3, 2, P0 + 8), (1, 4, P1 + 8), (2, 1, P0 + 4), (3, 3, P0 + 12), (1, 5, P1 + 12))):
            f(lambda k=k, slot=slot, dst=dst, x=x: a.ds(f"ds_read_b128 v[{dst}:{dst+3}], v{vR+k} offset:{h*6144+slot*1024}", f"rr{h}_{x}"))
        f("s_nop 0") if False else None
        for half in range(2):
            f(lambda half=half: a.dwait(f"rr{h}_{3*half+2}"))
            for r in range(4 * half, 4 * half + 4):
                f(f"v_add_f32 v{P0+r}, v{P0+r}, v{P0+8+r}")
                f(f"v_add_f32 v{P1+r}, v{P1+r}, v{P1+8+r}")
            for r in range(4 * half, 4 * half + 4):
                f(f"v_add_f32 v{P1+r}, v{P1+r}, v{P0+r}")
        for r in range(8):
            f(f"v_mul_f32 v{T+r}, v{P1+r}, v{P1+r}")
        for r in range(8):
            f(f"v_fma_f32 v{T+r}, v{T+r}, v{vC1+1}, v{vC1}")
        for r in range(8):
            f(f"v_mul_f32 v{T+r}, v{T+r}, v{P1+r}")
        for r in range(8):
            f(f"v_exp_f32 v{T+r}, v{T+r}")
        for r in range(8):
            f(f"v_add_f32 v{T+r}, 1.0, v{T+r}")
        for r in range(8):
            f(f"v_rcp_f32 v{T+r}, v{T+r}")
        for r in range(8):
            f(f"v_mul_f32 v{T+r}, v{T+r}, v{P1+r}")
        for r in range(4):
            f(f"v_cvt_pk_bf16_f32 v{T+8+r}, v{T+2*r}, v{T+2*r+1}")
        su = sUS0 if h == 0 else sUS1
        f(lambda: a.vm(f"buffer_store_dwordx4 v[{T+8}:{T+11}], v{vU}, s[{RWS}:{RWS+3}], s{su} offen sc1", f"ust{h}"))
    for m in range(N1 // 2):
        p, i = m // 8, 2 * (m % 8)
        stamp(f"g1_{m}")
        if 2 * m + c.hd < N1:
            hissue(2 * m + c.hd)
            hissue(2 * m + 1 + c.hd)
            if 2 * m + 2 + c.hd >= N1:
                stamp("t0")
        else:
            for _ in range(c.w2_tail):
                w2.issue()
        if m % 8 == 1 and p >= 1:
            for aa in (range(4) if p % 2 == 1 else (2, 3)):
                red_write(fl, p - 1, aa)
        a.wait(f"h{2*m+1}")
        per = [c.g1fill // 8 + (1 if g < c.g1fill % 8 else 0) for g in range(8)]
        order = (2, 3, 0, 1) if m == N1 // 2 - 1 else (0, 1, 2, 3)
        for ti, t in enumerate(order):
            for e0 in range(2):
                e = e0 ^ (ti & 1) if c.serp else e0
                rb = RING + 4 * ((2 * m + e) % NRING)
                cc = ACC + 16 * p + 4 * t
                src = "0" if (i == 0 and e0 == 0 and not (p % 2 == 1 and t < 2)) else f"v[{cc}:{cc+3}]"
                ra = 16 * (i + e) + 4 * t
                a(f"v_mfma_f32_16x16x32_bf16 v[{cc}:{cc+3}], a[{ra}:{ra+3}], v[{rb}:{rb+3}], {src}")
                fl.emit(per[2 * ti + e0])
        if m == c.g1bar:
            assert not fl.g
            a.dwait()
            a("s_barrier")
            red_finish(fl, 0)
    fl.flush()
    stamp(6)
    w2.can_read = True
    a("s_nop 3")
    red_write(fl, 3, 2)
    red_write(fl, 3, 3)
    fl.flush()
    w2.issue()
    a.dwait()
    a("s_barrier")
    red_finish(fl, 1)
    fl.emit(6)
    k = 0
    flagged = False
    while fl.g:
        if k == c.fe_pos:
            a.wait("ust0")
            stamp("fe")
            flag_add(1)
            flagged = True
        if k < c.w2_un:
            w2.step(fl, throttle=False)
        else:
            fl.emit(c.fillk)
        k += 1
    stamp(7)
    if not flagged:
        a.wait("ust0")
        stamp("fe")
        flag_add(1)
    for _ in range(c.w2_mid):
        w2.step(None, older_than="ust1")
    a.wait("ust1")
    flag_add(2)
    a("L_join:")
    join_n, join_rd = w2.n, w2.rd
    stamp(8)
    fl(f"s_mul_i32 s{sT3}, s{sJ}, {5*49152}\ns_mul_i32 s{sT1}, s{sW}, 12288\ns_add_u32 s{sT3}, s{sT3}, s{sT1}\ns_add_u32 s{sT3}, s{sT3}, {U_OFF}")
    fl(f"s_add_u32 s{sUS1}, s{sT3}, 12288\ns_lshl_b32 s{sK}, s{sROT2}, 10\ns_add_u32 s{sK}, s{sK}, s{sT3}")
    for i in range(1, NS2):
        fl(f"s_add_u32 s{sK+i}, s{sK+i-1}, 1024\ns_cmp_eq_u32 s{sK+i}, s{sUS1}\ns_cselect_b32 s{sK+i}, s{sT3}, s{sK+i}")
    fl(f"v_lshlrev_b32 v{vB2}, 16, v{vB2}")
    for t in range(5):
        for r in range(4):
            fl(f"v_mov_b32 v{ACC+16*t+r}, v{vB2}")
    for k in range(4):
        fl(f"s_xor_b32 s{sT0}, s{sW}, {k}\ns_mul_i32 s{sT0}, s{sT0}, {WSLOT*4096}\nv_add_u32 v{vR+k}, s{sT0}, v{vU}")
    fl(f"s_mul_i32 s{sUS0}, s{sJ}, 160")
    assert w2.left() > c.pe2
    while w2.left() > 0:
        if w2.left() == c.pe2:
            a.vm(poll_load("a"), "apoll")
        w2.step(fl)
    if c.pe2 == 0:
        a.vm(poll_load("a"), "apoll")
    fl.flush()
    a.wait("apoll")
    stamp(9)
    spin("a")
    stamp(10)
    N2 = 60
    def uissue(n):
        if n == 24 - c.pbl:
            a.vm(poll_load("b"), "bpoll")
        if n == 24:
            a.wait("bpoll")
            spin("b")
            stamp("pb")
        r = RING + 4 * (n % NRING)
        a.vm(f"buffer_load_dwordx4 v[{r}:{r+3}], v{vU+n//12}, s[{RWS}:{RWS+3}], s{sK+n%12} offen sc1", f"u{n}")
    for n in range(c.ud):
        uissue(n)
        w2.reads(2)
    w2.drain()
    a.dwait()
    stamp("g2s")
    def fin_reads(f, ts):
        for t in ts:
            for k in range(1, 4):
                cr = ACC + 16 * t + 4 * k
                f(lambda t=t, k=k, cr=cr: a.ds(f"ds_read_b128 v[{cr}:{cr+3}], v{vR+k} offset:{(k-1)*5120+t*1024}", f"fr{t}"))
    def fin(f, t):
        f(lambda: a.dwait(f"fr{t}"))
        cc = ACC + 16 * t
        for r in range(4):
            f(f"v_add_f32 v{cc+r}, v{cc+r}, v{cc+4+r}")
            f(f"v_add_f32 v{cc+8+r}, v{cc+8+r}, v{cc+12+r}")
        for r in range(4):
            f(f"v_add_f32 v{cc+r}, v{cc+r}, v{cc+8+r}")
        for r in (0, 2):
            f(f"v_cvt_pk_bf16_f32 v{RD+2*t+r//2}, v{cc+r}, v{cc+r+1}")
    def ostore(pp):
        a.vm(f"buffer_store_dwordx4 v[{RD+4*pp}:{RD+4*pp+3}], v{vO}, s[{ROUT}:{ROUT+3}], s{sUS0} offen offset:{64*pp}{' sc1' if c.osc >> pp & 1 else ''}", "o")
    stored0 = False
    for m in range(N2 // 2):
        t, i = m // 6, 2 * (m % 6)
        stamp(f"g2_{m}")
        if 2 * m + c.ud < N2:
            uissue(2 * m + c.ud)
            uissue(2 * m + 1 + c.ud)
        elif not stored0:
            ostore(0); stored0 = True
        if m % 6 == 1 and t >= 1:
            for b in range(1, 4):
                cw = ACC + 16 * (t - 1) + 4 * b
                fl.g.insert(b - 1, lambda cw=cw, b=b, t=t: a.ds(f"ds_write_b128 v{vR}, v[{cw}:{cw+3}] offset:{(b-1)*5120+(t-1)*1024}", "fw"))
        a.wait(f"u{2*m+1}")
        nf = 12 if t == 4 else 6
        per = [nf // 8 + (1 if g < nf % 8 else 0) for g in range(8)]
        for bi, b in enumerate((1, 2, 3, 0)):
            for e0 in range(2):
                e = e0 ^ (bi & 1) if c.serp else e0
                ra = RING + 4 * ((2 * m + e) % NRING)
                cc = ACC + 16 * t + 4 * b
                src = "0" if (i == 0 and e0 == 0 and b) else f"v[{cc}:{cc+3}]"
                rb = 16 * (i + e) + 4 * b
                a(f"v_mfma_f32_16x16x32_bf16 v[{cc}:{cc+3}], v[{ra}:{ra+3}], a[{rb}:{rb+3}], {src}")
                fl.emit(per[2 * bi + e0])
        if m in (14, 26):
            assert not fl.g
            a.dwait()
            a("s_barrier")
            ts = (0, 1) if m == 14 else (2, 3)
            fin_reads(fl, ts)
            for tt in ts:
                fin(fl, tt)
            if m == 26:
                fl(lambda: ostore(1))
    stamp(11)
    a("s_nop 1")
    for b in range(1, 4):
        cw = ACC + 64 + 4 * b
        if b > 1:
            a("s_nop 0")
        a.ds(f"ds_write_b128 v{vR}, v[{cw}:{cw+3}] offset:{(b-1)*5120+4096}")
    fl.flush()
    a.dwait()
    a("s_barrier")
    stamp("e2")
    fin_reads(fl, (4,))
    fl.flush()
    if c.stamp:
        a.dwait()
    fin(fl, 4)
    fl.flush()
    a(f"buffer_store_dwordx2 v[{RD+8}:{RD+9}], v{vO+1}, s[{ROUT}:{ROUT+3}], s{sUS0} offen offset:128{' sc1' if c.osc & 4 else ''}")
    a(f"s_or_b32 s{sT0}, s2, s{sW}")
    a("s_cbranch_scc1 L_noepoch")
    a(f"v_mov_b32 v{t5}, {EP_OFF}")
    flag_store(t5, None, "")
    a("L_noepoch:")
    if c.stamp:
        stamp("e3")
        a("s_waitcnt vmcnt(0)")
        stamp(12)
        a(f"s_lshl_b32 s{sT0}, s2, 3")
        a(f"s_add_u32 s{sT0}, s{sT0}, s{sW}")
        a(f"s_lshl_b32 s{sT0}, s{sT0}, 6")
        a(f"s_add_u32 s{sT0}, s{sT0}, {ST_OFF}")
        a(f"v_mov_b32 v{t0}, s{sT0}")
        a("s_waitcnt lgkmcnt(0)")
        for i in range(13):
            a(f"v_mov_b32 v{t1}, s{STB+2*i}")
            a(f"global_store_dword v{t0}, v{t1}, s[{WS}:{WS+1}] offset:{4*i}")
    if c.pad:
        a("s_waitcnt vmcnt(0)")
        a("s_memrealtime s[64:65]")
        a("s_waitcnt lgkmcnt(0)")
        a("s_sub_u32 s64, s64, s100")
        a(f"s_mul_i32 s64, s64, {c.mult}")
        a("s_add_u32 s64, s64, 10000")
        a(f"s_mov_b32 s{sCNT}, 0")
        a("L_pad:")
        a("s_memrealtime s[66:67]")
        a("s_waitcnt lgkmcnt(0)")
        a(f"s_add_u32 s{sCNT}, s{sCNT}, 1")
        a(f"s_cmp_ge_u32 s{sCNT}, 200000\ns_cbranch_scc1 L_end")
        a("s_sub_u32 s66, s66, s100")
        a("s_cmp_lt_u32 s66, s64\ns_cbranch_scc1 L_pad")
    a("s_endpgm")
    a("L_idle:")
    a("s_waitcnt vmcnt(0) lgkmcnt(0)")
    a.q, a.lq = [], []
    if c.stamp:
        for nm in SETS[c.sset]:
            if nm in (4, 5, 6, 7, "t0", "fe", "g1s") or str(nm).startswith(("w1_", "g1_")):
                stamp(nm)
    if c.helper and c.map2 == 1:
        a(f"s_bfe_u32 s{sT0}, s2, 0x10003")
        a(f"s_lshl_b32 s{sT0}, s{sT0}, 2")
        a(f"s_add_u32 s{sT0}, s{sT0}, s{sW}")
        a(f"s_mul_i32 s{sT0}, s{sT0}, {6*32*4096}")
        a(f"s_and_b32 s{sT1}, s2, 7")
        a(f"s_lshl_b32 s{sT1}, s{sT1}, 9")
        a(f"s_add_u32 s{sT0}, s{sT0}, s{sT1}")
        a(f"v_lshrrev_b32 v{t0}, 5, v{vL}")
        a(f"v_lshlrev_b32 v{t0}, 17, v{t0}")
        a(f"v_bfe_u32 v{t1}, v{vL}, 2, 3")
        a(f"v_lshl_add_u32 v{t0}, v{t1}, 12, v{t0}")
        a(f"v_and_b32 v{t1}, 3, v{vL}")
        a(f"v_lshl_add_u32 v{t0}, v{t1}, 7, v{t0}")
        for r in range(c.helper):
            jj, cc = 3 - r // 3, r % 3
            a(f"s_add_u32 s{sT1}, s{sT0}, {((2*cc)*32+jj*8)*4096}")
            a(f"buffer_load_dword v{t2}, v{t0}, s[{RW2}:{RW2+3}], s{sT1} offen")
            a("s_waitcnt vmcnt(1)")
    w2setup(0)
    wi = W(2)
    while wi.n < join_n:
        wi.issue()
    a("s_waitcnt vmcnt(0)")
    a.q = []
    wi.reads(join_rd - wi.rd)
    assert wi.rd == join_rd, (wi.rd, join_rd)
    a.dwait()
    a("s_branch L_join")
    a("L_end:\ns_endpgm")
    a(f""".section .rodata,"a"
.p2align 6
.amdhsa_kernel {NAME}
  .amdhsa_next_free_vgpr 512
  .amdhsa_next_free_sgpr 102
  .amdhsa_accum_offset 256
  .amdhsa_group_segment_fixed_size 0
  .amdhsa_kernarg_size 64
  .amdhsa_user_sgpr_count 2
  .amdhsa_user_sgpr_kernarg_segment_ptr 1
  .amdhsa_system_sgpr_workgroup_id_x 1
  .amdhsa_float_denorm_mode_32 3
.end_amdhsa_kernel""")
    return a.text()

if __name__ == "__main__":
    c = Cfg()
    out = sys.argv[1]
    for x in sys.argv[2:]:
        k, v = x.split("=")
        assert hasattr(c, k), k
        setattr(c, k, int(v))
    open(out, "w").write(gen(c))
```

```python
import sys, struct, math

def f32(x):
    return "0x%08x" % struct.unpack("<I", struct.pack("<f", x))[0]

S, D, F = 2048, 640, 1536
H_OFF = 0x1000
U_OFF = 0x282000
FH_OFF = 0x464000
EP_OFF = FH_OFF + (16 << 10)
FU_OFF = FH_OFF + (32 << 10)
WS_USED = FU_OFF + (64 << 10)
ST_OFF = 16 << 20
NAME = "standalone__mixer_token_mlp__prompt_kernel"
SPIN_CAP = 400000

class Cfg:
    stamp = 0
    sset = 0
    pad = 0
    mult = 0
    padat = "end"
    map1 = 1
    map2 = 1
    rot1 = 10
    rot2 = 8
    cpo = 256
    w1_pre = 0
    w1_x = 2
    w1_ln = 2
    w1_mid = 6
    wd = 7
    hd = 10
    ud = 8
    pe1 = 6
    pe2 = 6
    g1bar = 18
    g1fill = 9
    w2_tail = 1
    w2_mid = 7
    w2_un = 4
    pbl = 8
    helper = 0
    serp = 0
    fillk = 8
    osc = 0
    w2e = 0
    egrp = 4
    e0 = 20
    estep = 8
    esh = 3
    tlbw = 0
    w1_first = 4
    xbar = 1
    fhs = 5
    fus = 6
    slowl = 16
    fe_pos = 4

class A:
    def __init__(self):
        self.L = []
        self.q = []
        self.lq = []
    def __call__(self, s):
        for line in s.strip("\n").split("\n"):
            self.L.append(line)
    def vm(self, s, tag=None):
        self(s)
        self.q.append(tag)
    def recent_slow_before(self, tag, window):
        if tag not in self.q:
            return False
        idx = self.q.index(tag)
        return any(t in ("hst", "hfl", "ust0", "ust1", "ufl0", "ufl1", "b1", "b2") and len(self.q) - 1 - i < window
                   for i, t in enumerate(self.q[:idx]))
    def wait(self, tag):
        if tag not in self.q:
            return
        idx = max(i for i, t in enumerate(self.q) if t == tag)
        n = len(self.q) - 1 - idx
        assert n <= 63
        self(f"s_waitcnt vmcnt({n})")
        self.q = self.q[idx + 1:]
    def pending(self, tag):
        return tag in self.q
    def ds(self, s, tag=None):
        if len(self.lq) >= 13:
            self("s_waitcnt lgkmcnt(7)")
            self.lq = self.lq[-7:]
        self(s)
        self.lq.append(tag)
    def dwait(self, tag=None):
        if tag is None:
            self("s_waitcnt lgkmcnt(0)")
            self.lq = []
            return
        if tag not in self.lq:
            return
        idx = max(i for i, t in enumerate(self.lq) if t == tag)
        self(f"s_waitcnt lgkmcnt({len(self.lq)-1-idx})")
        self.lq = self.lq[idx + 1:]
    def text(self):
        return "\n".join(self.L) + "\n"

class Fill:
    def __init__(self, a):
        self.a = a
        self.g = []
    def __call__(self, s):
        self.g.append(s)
    def emit(self, k):
        while k > 0 and self.g:
            x = self.g.pop(0)
            if callable(x):
                x(); k -= 1
            else:
                self.a(x); k -= x.count("\n") + 1
    def flush(self):
        self.emit(1 << 30)

def srd(a, d, b, nbytes):
    a(f"s_mov_b32 s{d}, s{b}")
    a(f"s_mov_b32 s{d+1}, s{b+1}")
    a(f"s_mov_b32 s{d+2}, {nbytes}")
    a(f"s_mov_b32 s{d+3}, 0x00020000")

def gen(c):
    a = A()
    STB = 76
    SETS = {
        0: [0, 1, 2, 3, 4, 5, "t0", 6, 8, 9, 10, 11, 12],
        1: [0, "ka", "iss", 1, "x4", 2, "hsto", 3, "w1_24", "w1_40", 4, 5, "g1s"],
        2: [0, 5, "g1s", "g1_8", "g1_16", "g1_24", "t0", 6, "fe", 7, 8, 9, 10],
        3: [0, 9, 10, "g2s", "g2_6", "pb", "g2_12", "g2_18", "g2_24", 11, "e2", "e3", 12],
    }
    def stamp(name):
        if c.pad and str(name) == c.padat:
            a("s_memrealtime s[98:99]")
        if c.stamp and name in SETS[c.sset]:
            i = SETS[c.sset].index(name)
            a(f"{'s_memtime' if c.stamp == 2 else 's_memrealtime'} s[{STB+2*i}:{STB+2*i+1}]")
    a("; kernarg: x(0) w1(8) b1(16) w2(24) b2(32) out(40) debug(48) ws(56)")
    a("; @launch grid=(256,1,1) block=(256,1,1) lds=163840")
    a('.amdgcn_target "amdgcn-amd-amdhsa--gfx950"')
    a(f".text\n.globl {NAME}\n.p2align 8\n.type {NAME},@function\n{NAME}:")
    X, W1, B1, W2, B2, OUT, DBG, WS = 4, 6, 8, 10, 12, 14, 16, 18
    sMA, sMB = 20, 22
    RW1, RW2, RWS, ROUT = 24, 28, 32, 36
    sW, sLDS, sDT, sFT, sJ, sST = 40, 41, 42, 43, 44, 45
    sWO, sWO0, sWOE, sUS0 = 46, 47, 48, 49
    sT0, sT1, sUS1, sCNT, sROT1, sROT2, sT3, sTAG = 50, 51, 52, 53, 54, 55, 56, 57
    sS = 3
    FB = 4
    sFO = (16, 17, 58)
    sFD = (0, 1, 59)
    sK = 60
    vL = 1
    vD1, vD2, vH, vU, vT1, vT2, vR, vO = 4, 8, 12, 16, 21, 25, 29, 33
    vFH, vFU, vFO, vTAG, vB1, vB2, vHS, vLT, vFHO, vC1 = 35, 36, 37, 39, 40, 44, 45, 46, 49, 50
    t0, t1, t2, t3, t4, t5 = 54, 55, 56, 57, 58, 59
    vP = 60
    ACC, RING, RD = 64, 144, 208
    RED = 114688
    WSLOT = 7
    NRING = 16
    NS1, NS2 = 16, 12

    def poll_load(kind):
        if kind == "h":
            return f"global_load_dwordx4 v[{vP}:{vP+3}], v{vFH}, s[{WS}:{WS+1}] sc1"
        m = sMA if kind == "a" else sMB
        return f"s_mov_b64 exec, s[{m}:{m+1}]\nglobal_load_dword v{vP}, v{vFU}, s[{WS}:{WS+1}] sc1\ns_mov_b64 exec, -1"
    def poll_test(kind):
        if kind == "h":
            a(f"v_bitop3_b32 v{vP}, v{vP}, v{vP+1}, v{vTAG} bitop3:0x7e")
            a(f"v_bitop3_b32 v{vP+2}, v{vP+2}, v{vP+3}, v{vTAG} bitop3:0x7e")
            a(f"v_or_b32 v{vP}, v{vP}, v{vP+2}")
            a(f"v_cmp_ne_u32 vcc, 0, v{vP}")
            a("s_and_b64 vcc, vcc, exec")
        else:
            m = sMA if kind == "a" else sMB
            a(f"v_cmp_ne_u32 vcc, s{sTAG}, v{vP}")
            a(f"s_and_b64 vcc, vcc, s[{m}:{m+1}]")
    def spin(kind):
        label = "L_p" + kind
        poll_test(kind)
        a(f"s_cbranch_scc0 {label}_ok")
        a(f"s_mov_b32 s{sCNT}, 0")
        a(f"{label}_l:")
        a(poll_load(kind))
        a(f"s_add_u32 s{sCNT}, s{sCNT}, 1")
        a(f"s_cmp_ge_u32 s{sCNT}, {SPIN_CAP}")
        a(f"s_cbranch_scc1 {label}_ok")
        a("s_waitcnt vmcnt(0)")
        poll_test(kind)
        a(f"s_cbranch_scc1 {label}_l")
        a(f"{label}_ok:")
    def flag_add(k):
        a(f"s_atomic_add s{sFD[k]}, s[{FB}:{FB+1}], s{sFO[k]}")
    def flag_store(vaddr, tag, sc=" sc1"):
        a("s_mov_b64 exec, 1")
        s_ = f"global_store_dword v{vaddr}, v{vTAG}, s[{WS}:{WS+1}]{sc}"
        if tag:
            a.vm(s_, tag)
        else:
            a(s_)
        a("s_mov_b64 exec, -1")

    class W:
        def __init__(self, kind):
            self.kind = kind
            self.ns = NS1 if kind == 1 else NS2
            self.n = 0
            self.rd = 0
            self.can_read = True
        def left(self):
            return 4 * self.ns - self.n
        def tag(self, n):
            return f"w{self.kind}_{n}"
        def nslot(self):
            return WSLOT - c.w2e if self.kind == 1 else WSLOT
        def slot(self, i):
            return i % self.nslot() if self.kind == 1 else (i + WSLOT - c.w2e) % WSLOT
        def issue(self):
            i, j = self.n >> 2, self.n & 3
            vd, r, step = (vD1, RW1, 32 * 3072) if self.kind == 1 else (vD2, RW2, 32 * 4096)
            if i >= self.nslot() and j == 0:
                old = i - self.nslot()
                if self.rd < 8 * (old + 1):
                    assert self.can_read
                    a.wait(self.tag(4 * old + 3))
                    self.reads(8 * (old + 1) - self.rd)
                a.dwait(f"r{self.kind}_{old}")
            a.vm(f"buffer_load_dwordx4 v{vd+j}, s[{r}:{r+3}], s{sWO} offen offset:{1024*j} lds", self.tag(self.n))
            self.n += 1
            if j == 3 and i + 1 < self.ns:
                if self.slot(i + 1) == 0:
                    a(f"s_mov_b32 m0, s{sLDS}")
                else:
                    a("s_add_u32 m0, m0, 4096")
                a(f"s_add_u32 s{sWO}, s{sWO}, {step}")
                a(f"s_cmp_eq_u32 s{sWO}, s{sWOE}")
                a(f"s_cselect_b32 s{sWO}, s{sWO0}, s{sWO}")
        def landed_steps(self):
            k = 0
            while 4 * k + 3 < self.n and not a.pending(self.tag(4 * k + 3)):
                k += 1
            return k
        def reads(self, k):
            vt = vT1 if self.kind == 1 else vT2
            lim = 8 * self.landed_steps() if self.can_read else 0
            while k > 0 and self.rd < lim:
                i, x = self.rd >> 3, self.rd & 7
                b, e = x >> 1, x & 1
                r = 16 * i + 4 * b + 2 * e
                a.ds(f"ds_read_b64_tr_b16 a[{r}:{r+1}], v{vt+b} offset:{self.slot(i)*4096+e*2048}", f"r{self.kind}_{i}")
                self.rd += 1
                k -= 1
        def step(self, fill=None, throttle=True, older_than=None):
            if throttle and self.n >= c.wd:
                tg = self.tag(self.n - c.wd)
                if older_than is not None and a.pending(older_than) and a.pending(tg) and a.q.index(tg) > a.q.index(older_than):
                    pass
                elif not a.recent_slow_before(tg, c.slowl):
                    a.wait(tg)
            stamp(f"w{self.kind}_{self.n}")
            self.issue()
            backlog = 8 * self.landed_steps() - self.rd
            self.reads(4 if backlog > 8 else 2)
            if fill is not None:
                fill.emit(c.fillk)
        def drain(self):
            for i in range(self.rd >> 3, self.ns):
                a.wait(self.tag(4 * i + 3))
                self.reads(8)

    def tile2(f):
        if c.map2 == 0:
            f(f"s_and_b32 s{sT0}, s2, 1\ns_lshl_b32 s{sT0}, s{sT0}, 2\ns_bfe_u32 s{sT1}, s2, 0x20003\ns_add_u32 s{sJ}, s{sT0}, s{sT1}\ns_mul_i32 s{sROT2}, s{sT1}, 3")
            if c.rot2 == 42:
                f(f"s_bfe_u32 s{sT1}, s2, 0x10005\ns_mul_i32 s{sT1}, s{sT1}, 6\ns_add_u32 s{sROT2}, s{sROT2}, s{sT1}\ns_cmp_ge_u32 s{sROT2}, 12\ns_cselect_b32 s{sT1}, 12, 0\ns_sub_u32 s{sROT2}, s{sROT2}, s{sT1}")
            f(f"s_bfe_u32 s{sT0}, s2, 0x20001\ns_lshl_b32 s{sT0}, s{sT0}, 3\ns_lshr_b32 s{sST}, s2, 5\ns_add_u32 s{sST}, s{sST}, s{sT0}")
        else:
            f(f"s_bfe_u32 s{sJ}, s2, 0x30003")
            if c.rot2 == 8:
                f(f"s_mul_i32 s{sROT2}, s{sJ}, 3\ns_lshr_b32 s{sROT2}, s{sROT2}, 1")
            elif c.rot2 == 4:
                f(f"s_lshr_b32 s{sROT2}, s{sJ}, 1\ns_mul_i32 s{sROT2}, s{sROT2}, 3")
            else:
                f(f"s_mov_b32 s{sROT2}, 0")
            f(f"s_and_b32 s{sT0}, s2, 7\ns_lshl_b32 s{sT0}, s{sT0}, 2\ns_lshr_b32 s{sST}, s2, 6\ns_add_u32 s{sST}, s{sST}, s{sT0}")
    a("s_cmp_ge_u32 s2, 256\ns_cbranch_scc1 L_end")
    stamp(0)
    if c.pad:
        a("s_memrealtime s[100:101]")
    a("s_load_dwordx16 s[4:19], s[0:1], 0")
    a(f"v_lshrrev_b32 v{t0}, 6, v0")
    a("s_getpc_b64 s[22:23]")
    a("L_pc:")
    a(f"s_lshr_b32 s{sT0}, s2, 3                 ; idx")
    a(f"s_lshl_b32 s{sT1}, s{sT0}, 9")
    a(f"v_lshl_add_u32 v{t1}, v{t0}, 7, s{sT1}")
    a(f"v_min_u32 v{t1}, (L_end-L_pc-{c.cpo}-4), v{t1}")
    a.vm(f"global_load_dword v{vP}, v{t1}, s[22:23] offset:{c.cpo}", "cpf")
    a(f"v_and_b32 v{vL}, 63, v0")
    a(f"v_readfirstlane_b32 s{sW}, v{t0}")
    a(f"v_lshrrev_b32 v{t0}, 5, v0")
    a(f"v_and_b32 v{t1}, 31, v0")
    a(f"v_lshrrev_b32 v{t2}, 7, v0")
    a(f"v_mul_u32_u24 v{t2}, 12, v{t2}")
    a(f"v_add_u32 v{t2}, v{t2}, v{t0}")
    a(f"v_mul_u32_u24 v2, 1280, v{t2}")
    a(f"v_lshl_add_u32 v2, v{t1}, 3, v2          ; x offset")
    a(f"v_mul_u32_u24 v3, 1344, v{t0}")
    a(f"v_lshl_add_u32 v3, v{t1}, 3, v3")
    a(f"v_add_u32 v3, {RED}, v3")
    if c.map1 == 0:
        a(f"s_mul_i32 s{sFT}, s{sT0}, 205")
        a(f"s_lshr_b32 s{sFT}, s{sFT}, 10            ; idx/5")
        a(f"s_mul_i32 s{sT1}, s{sFT}, 5")
        a(f"s_sub_u32 s{sDT}, s{sT0}, s{sT1}         ; idx%5")
        a(f"s_and_b32 s{sS}, s{sDT}, 3")
        a(f"s_mul_i32 s{sROT1}, s{sDT}, 13")
        a(f"s_lshr_b32 s{sROT1}, s{sROT1}, 2     ; 0,3,6,9,13")
        if c.rot1 == 52:
            a(f"s_and_b32 s{sT1}, s{sFT}, 1")
            a(f"s_lshl_b32 s{sT1}, s{sT1}, 3")
            a(f"s_add_u32 s{sROT1}, s{sROT1}, s{sT1}")
            a(f"s_and_b32 s{sROT1}, s{sROT1}, 15")
        a(f"s_and_b32 s{sT1}, s2, 1")
        a(f"s_mul_i32 s{sT1}, s{sT1}, 5")
        a(f"s_add_u32 s{sDT}, s{sDT}, s{sT1}         ; dtile")
        a(f"s_bfe_u32 s{sT1}, s2, 0x20001")
        a(f"s_mul_i32 s{sT1}, s{sT1}, 6")
        a(f"s_add_u32 s{sFT}, s{sFT}, s{sT1}         ; ftile")
    else:
        a(f"s_mul_i32 s{sFT}, s{sT0}, 205")
        a(f"s_lshr_b32 s{sFT}, s{sFT}, 11            ; idx/10")
        a(f"s_mul_i32 s{sT1}, s{sFT}, 10")
        a(f"s_sub_u32 s{sDT}, s{sT0}, s{sT1}         ; dtile")
        a(f"s_cmp_ge_u32 s{sDT}, 5")
        a(f"s_cselect_b32 s{sS}, 5, 0")
        a(f"s_sub_u32 s{sS}, s{sDT}, s{sS}")
        a(f"s_and_b32 s{sS}, s{sS}, 3")
        if c.rot1 == 10:
            a(f"s_mul_i32 s{sROT1}, s{sDT}, 13")
            a(f"s_lshr_b32 s{sROT1}, s{sROT1}, 3")
        elif c.rot1 == 5:
            a(f"s_lshr_b32 s{sROT1}, s{sDT}, 1")
            a(f"s_mul_i32 s{sROT1}, s{sROT1}, 13")
            a(f"s_lshr_b32 s{sROT1}, s{sROT1}, 2")
        else:
            a(f"s_mov_b32 s{sROT1}, 0")
        a(f"s_and_b32 s{sT1}, s2, 7")
        a(f"s_mul_i32 s{sT1}, s{sT1}, 3")
        a(f"s_add_u32 s{sFT}, s{sFT}, s{sT1}         ; ftile")
    a(f"v_lshrrev_b32 v{t0}, 3, v{vL}            ; rr")
    a(f"v_and_b32 v{t1}, 6, v{t0}")
    a(f"v_and_b32 v{t2}, 7, v{vL}")
    a(f"v_xor_b32 v{t1}, v{t1}, v{t2}")
    a(f"v_lshlrev_b32 v{t1}, 4, v{t1}")
    a(f"v_mul_u32_u24 v{vD1}, 3072, v{t0}")
    a(f"v_add_u32 v{vD1}, v{vD1}, v{t1}")
    a(f"v_lshl_add_u32 v{vD2}, v{t0}, 12, v{t1}")
    for j in range(1, 4):
        a(f"v_add_u32 v{vD1+j}, {j*(8*3072-1024)}, v{vD1}")
    a(f"s_mul_i32 s{sWO0}, s{sW}, {512*3072}")
    a(f"s_lshl_b32 s{sT0}, s{sFT}, 7")
    a(f"s_add_u32 s{sWO0}, s{sWO0}, s{sT0}")
    a(f"s_add_u32 s{sWOE}, s{sWO0}, {512*3072}")
    a(f"s_mul_i32 s{sT0}, s{sROT1}, {32*3072}")
    a(f"s_add_u32 s{sWO}, s{sWO0}, s{sT0}")
    a(f"s_mul_i32 s{sLDS}, s{sW}, {WSLOT*4096}")
    a(f"s_mov_b32 m0, s{sLDS}")
    a(f"s_lshr_b32 s{sT0}, s2, 2")
    a(f"s_lshl_b32 s{sT0}, s{sT0}, 3")
    a(f"s_and_b32 s{sT1}, s2, 3")
    a(f"s_add_u32 s{sT0}, s{sT0}, s{sT1}")
    a(f"s_mul_i32 s{sT0}, s{sT0}, 5120")
    a(f"v_lshlrev_b32 v{vU}, 4, v{vL}            ; lane*16")
    a("s_waitcnt lgkmcnt(0)")
    stamp("ka")
    a(f"s_add_u32 s{X}, s{X}, s{sT0}")
    a(f"s_addc_u32 s{X+1}, s{X+1}, 0")
    XR = RING
    for i in range(5):
        a.vm(f"global_load_dwordx2 v[{XR+2*i}:{XR+2*i+1}], v2, s[{X}:{X+1}] offset:{256*i}", f"x{i}")
    srd(a, RW1, W1, S * F * 2)
    a("s_cmp_ge_u32 s2, 240")
    a(f"s_cselect_b32 s{RW1+2}, 0, s{RW1+2}")
    w1 = W(1)
    w1.can_read = False
    if c.xbar:
        a("s_barrier")
    for _ in range(c.w1_first):
        w1.issue()
    a(f"s_add_u32 s{FB}, s{WS}, {FH_OFF}")
    a(f"s_addc_u32 s{FB+1}, s{WS+1}, 0")
    a(f"s_load_dword s{sTAG}, s[{FB}:{FB+1}], {EP_OFF-FH_OFF}")
    if c.tlbw:
        a(f"v_and_b32 v{t0}, 1, v{vL}")
        a(f"v_mul_u32_u24 v{t1}, 0x281000, v{t0}")
        a(f"v_lshlrev_b32 v{t0}, 21, v{t0}")
        a.vm(f"global_load_dword v{vP+1}, v{t1}, s[{WS}:{WS+1}]", "tl")
        if c.tlbw >= 2:
            a.vm(f"global_load_dword v{vP+2}, v{t0}, s[{OUT}:{OUT+1}]", "tl")
            a(f"v_min_u32 v{t0}, 2, v{vL}")
            a(f"v_lshlrev_b32 v{t0}, 21, v{t0}")
            a.vm(f"global_load_dword v{vP+3}, v{t0}, s[{W2}:{W2+1}]", "tl")
    tile2(a)
    a(f"v_lshrrev_b32 v{t3}, 4, v{vL}            ; g")
    a(f"s_min_u32 s{sT0}, s{sFT}, 23\ns_lshl_b32 s{sT0}, s{sT0}, 1\ns_and_b32 s{sT1}, s{sW}, 1\ns_add_u32 s{sT0}, s{sT0}, s{sT1}\ns_lshl_b32 s{sT0}, s{sT0}, 6\nv_lshl_add_u32 v{t5}, v{t3}, 3, s{sT0}")
    for k in range(2):
        a.vm(f"global_load_dwordx2 v[{vB1+2*k}:{vB1+2*k+1}], v{t5}, s[{B1}:{B1+1}] offset:{32*k}", "b1")
    a(f"v_and_b32 v{t4}, 15, v{vL}")
    a(f"s_lshl_b32 s{sT0}, s{sST}, 6\ns_lshl_b32 s{sT1}, s{sW}, 4\ns_add_u32 s{sT0}, s{sT0}, s{sT1}\nv_add_u32 v{vO}, s{sT0}, v{t4}           ; s")
    a(f"v_lshlrev_b32 v{t2}, 1, v{vO}")
    a.vm(f"global_load_ushort v{vB2}, v{t2}, s[{B2}:{B2+1}]", "b2")
    a(f"s_lshl_b32 s{sT0}, s2, {c.fhs-2}\ns_add_u32 s{sT0}, s{sT0}, s{sW}\ns_lshl_b32 s{sFO[0]}, s{sT0}, 2")
    a(f"s_load_dword s{sFD[0]}, s[{FB}:{FB+1}], s{sFO[0]}")
    for h, su in enumerate((sUS0, sUS1)):
        a(f"s_lshr_b32 s{sT0}, s{sW}, 1\ns_add_u32 s{sT0}, s{sT0}, s{sS}\ns_add_u32 s{sT0}, s{sT0}, {2*h}\ns_and_b32 s{sT0}, s{sT0}, 3\ns_lshl_b32 s{sT1}, s{sDT}, 2\ns_add_u32 s{su}, s{sT0}, s{sT1}")
        a(f"s_mul_i32 s{sT0}, s{su}, 24\ns_add_u32 s{sT0}, s{sT0}, s{sFT}\ns_lshl_b32 s{sT0}, s{sT0}, {c.fus-2}\ns_and_b32 s{sT1}, s{sW}, 1\ns_add_u32 s{sT0}, s{sT0}, s{sT1}\ns_lshl_b32 s{sT0}, s{sT0}, 2\ns_add_u32 s{sFO[1+h]}, s{sT0}, {FU_OFF-FH_OFF}")
        a(f"s_load_dword s{sFD[1+h]}, s[{FB}:{FB+1}], s{sFO[1+h]}")
    srd(a, RWS, WS, WS_USED)
    a(f"v_lshrrev_b32 v{t3}, 4, v{vL}            ; g")
    a(f"v_and_b32 v{t4}, 15, v{vL}")
    a(f"v_lshlrev_b32 v{vHS}, 16, v{t3}")
    a(f"v_lshl_add_u32 v{vHS}, v{t4}, 4, v{vHS}")
    a(f"v_bfe_u32 v{t0}, v{vL}, 2, 2             ; r")
    a(f"v_mul_u32_u24 v{t0}, 1344, v{t0}")
    a(f"v_add_u32 v{t0}, {RED}, v{t0}")
    a(f"v_and_b32 v{t1}, 3, v{vL}                ; c")
    a(f"s_lshl_b32 s{sT0}, s{sW}, 2")
    a(f"v_add_u32 v{t3}, s{sT0}, v{t3}           ; T for m=0")
    for m in range(3):
        a(f"v_mul_u32_u24 v{t2}, 205, v{t3}")
        a(f"v_lshrrev_b32 v{t2}, 10, v{t2}       ; j")
        a(f"v_mul_u32_u24 v{t4}, 5, v{t2}")
        a(f"v_sub_u32 v{t4}, v{t3}, v{t4}        ; t")
        a(f"v_mul_u32_u24 v{t2}, 160, v{t2}")
        a(f"v_add_u32 v{t2}, v{t2}, v{t0}")
        a(f"v_lshrrev_b32 v{t5}, 1, v{t4}")
        a(f"v_lshl_add_u32 v{t2}, v{t5}, 6, v{t2}")
        a(f"v_and_b32 v{t5}, 1, v{t4}")
        a(f"v_lshl_add_u32 v{t2}, v{t5}, 3, v{t2}")
        a(f"v_lshrrev_b32 v{t4}, 2, v{t4}")
        a(f"v_sub_u32 v{t4}, 4, v{t4}")
        a(f"v_lshlrev_b32 v{t4}, v{t4}, v{t1}")
        a(f"v_add_u32 v{vLT+m}, v{t2}, v{t4}")
        if m < 2:
            a(f"v_add_u32 v{t3}, 16, v{t3}")
    a(f"s_lshl_b32 s{sT3}, s2, 8")
    a(f"s_lshl_b32 s{sT0}, s{sW}, 18")
    a(f"s_add_u32 s{sT3}, s{sT3}, s{sT0}")
    a(f"s_add_u32 s{sT3}, s{sT3}, {H_OFF}")
    for _ in range(c.w1_pre):
        w1.issue()
    stamp("iss")
    XF = RING + 12
    for i in range(5):
        a.wait(f"x{i}")
        if i == 0:
            stamp(1)
        if i == 4:
            stamp("x4")
            for _ in range(c.w1_x):
                w1.issue()
        for k in range(2):
            a(f"v_lshlrev_b32 v{XF+4*i+2*k}, 16, v{XR+2*i+k}")
            a(f"v_and_b32 v{XF+4*i+2*k+1}, 0xffff0000, v{XR+2*i+k}")
        if i == 0:
            a(f"v_pk_add_f32 v[{t0}:{t0+1}], v[{XF}:{XF+1}], v[{XF+2}:{XF+3}]")
        else:
            a(f"v_pk_add_f32 v[{t0}:{t0+1}], v[{t0}:{t0+1}], v[{XF+4*i}:{XF+4*i+1}]")
            a(f"v_pk_add_f32 v[{t0}:{t0+1}], v[{t0}:{t0+1}], v[{XF+4*i+2}:{XF+4*i+3}]")
    def half_sum():
        a(f"v_add_f32 v{t0}, v{t0}, v{t0+1}")
        for r in (8, 4, 2, 1):
            a("s_nop 1")
            a(f"v_add_f32_dpp v{t0}, v{t0}, v{t0} row_ror:{r} row_mask:0xf bank_mask:0xf")
        a(f"v_mov_b32 v{t0+1}, v{t0}")
        a("s_nop 1")
        a(f"v_permlane16_swap_b32 v{t0+1}, v{t0}")
        a(f"v_add_f32 v{t0}, v{t0}, v{t0+1}")
    half_sum()
    a(f"v_mul_f32 v{t0}, {f32(-1.0/D)}, v{t0}    ; -mean")
    a(f"v_mov_b32 v{t0+1}, v{t0}")
    for i in range(10):
        a(f"v_pk_add_f32 v[{XF+2*i}:{XF+2*i+1}], v[{XF+2*i}:{XF+2*i+1}], v[{t0}:{t0+1}]")
    a(f"v_pk_mul_f32 v[{t0}:{t0+1}], v[{XF}:{XF+1}], v[{XF}:{XF+1}]")
    for i in range(1, 10):
        a(f"v_pk_fma_f32 v[{t0}:{t0+1}], v[{XF+2*i}:{XF+2*i+1}], v[{XF+2*i}:{XF+2*i+1}], v[{t0}:{t0+1}]")
    half_sum()
    a(f"v_mov_b32 v{t0+1}, {f32(1e-5)}")
    a(f"v_fmac_f32 v{t0+1}, {f32(1.0/D)}, v{t0}")
    a(f"v_rsq_f32 v{t0}, v{t0+1}")
    a("s_nop 0")
    a(f"v_mov_b32 v{t0+1}, v{t0}")
    for i in range(10):
        a(f"v_pk_mul_f32 v[{XF+2*i}:{XF+2*i+1}], v[{XF+2*i}:{XF+2*i+1}], v[{t0}:{t0+1}]")
    for i in range(5):
        a(f"v_cvt_pk_bf16_f32 v{XR+2*i}, v{XF+4*i}, v{XF+4*i+1}")
        a(f"v_cvt_pk_bf16_f32 v{XR+2*i+1}, v{XF+4*i+2}, v{XF+4*i+3}")
        a(f"ds_write_b64 v3, v[{XR+2*i}:{XR+2*i+1}] offset:{256*i}")
    for _ in range(c.w1_ln):
        w1.issue()
    a("s_waitcnt lgkmcnt(0)")
    a("s_barrier")
    stamp(2)
    HT = RING + 12
    for m in range(3):
        a(f"ds_read_b64_tr_b16 v[{HT+4*m}:{HT+4*m+1}], v{vLT+m}")
        a(f"ds_read_b64_tr_b16 v[{HT+4*m+2}:{HT+4*m+3}], v{vLT+m} offset:{4*1344}")
    a(f"s_add_u32 s{sT0}, s{sT3}, {1<<20}")
    a(f"s_add_u32 s{sT1}, s{sT3}, {2<<20}")
    a(f"s_cmp_ge_u32 s{sW}, 2")
    a(f"s_cselect_b32 s{sT1}, 0x40000000, s{sT1}")
    if c.stamp or c.pad:
        a("s_waitcnt lgkmcnt(0)")
    for m, so in enumerate((sT3, sT0, sT1)):
        a(f"s_waitcnt lgkmcnt({4-2*m})")
        a.vm(f"buffer_store_dwordx4 v[{HT+4*m}:{HT+4*m+3}], v{vHS}, s[{RWS}:{RWS+3}], s{so} offen sc1", "hst")
    stamp("hsto")
    def setup_common(f):
        f(f"s_mul_i32 s{sTAG}, s{sTAG}, 1664525")
        f(f"s_add_u32 s{sTAG}, s{sTAG}, 1013904223")
        f(f"v_mov_b32 v{vTAG}, s{sTAG}")
        for k in range(3):
            f(f"s_sub_u32 s{sFD[k]}, s{sTAG}, s{sFD[k]}")
        f(f"v_lshrrev_b32 v{t0}, 2, v{vL}            ; row = 4g + r")
        f(f"v_lshlrev_b32 v{vT1}, 7, v{t0}")
        f(f"v_bfe_u32 v{t0}, v{vL}, 3, 2")
        f(f"v_lshl_add_u32 v{vT1}, v{t0}, 5, v{vT1}")
        f(f"v_and_b32 v{t0}, 3, v{vL}")
        f(f"v_lshl_add_u32 v{vT1}, v{t0}, 3, v{vT1}")
        f(f"v_add_u32 v{vT1}, s{sLDS}, v{vT1}")
        f(f"s_lshl_b32 s{sT0}, s{sW}, 5\nv_xor_b32 v{vT2}, s{sT0}, v{vT1}")
        f(f"s_and_b32 s{sT0}, s{sW}, 1\ns_lshl_b32 s{sT0}, s{sT0}, 6\nv_xor_b32 v{vT1}, s{sT0}, v{vT1}")
        for b in range(1, 4):
            f(f"v_xor_b32 v{vT1+b}, {b*32}, v{vT1}")
    def setup_g2(f):
        f(f"v_lshrrev_b32 v{t3}, 4, v{vL}")
        f(f"v_mul_u32_u24 v{vO}, 1280, v{vO}")
        f(f"v_lshl_add_u32 v{vO+1}, v{t3}, 3, v{vO}")
        f(f"v_lshl_add_u32 v{vO}, v{t3}, 4, v{vO}")
        for b in range(1, 4):
            f(f"v_xor_b32 v{vT2+b}, {b*32}, v{vT2}")
        for j in range(1, 4):
            f(f"v_add_u32 v{vD2+j}, {j*(8*4096-1024)}, v{vD2}")
        for t in range(1, 5):
            f(f"v_add_u32 v{vU+t}, {t*49152}, v{vU}")
        f(f"v_min_u32 v{t0}, 59, v{vL}")
        f(f"v_mul_u32_u24 v{t1}, 43, v{t0}")
        f(f"v_lshrrev_b32 v{t1}, 9, v{t1}            ; l/12")
        f(f"v_mul_u32_u24 v{t1}, 18, v{t1}")
        f(f"v_lshrrev_b32 v{t2}, 1, v{t0}")
        f(f"s_mul_i32 s{sT0}, s{sJ}, 120\ns_mul_i32 s{sT1}, s{sW}, 6\ns_add_u32 s{sT0}, s{sT0}, s{sT1}\nv_add3_u32 v{t1}, v{t1}, v{t2}, s{sT0}")
        f(f"v_and_b32 v{t0}, 1, v{t0}")
        f(f"v_lshlrev_b32 v{t0}, 2, v{t0}")
        f(f"v_lshl_add_u32 v{vFU}, v{t1}, {c.fus}, v{t0}")
        f(f"v_add_u32 v{vFU}, {FU_OFF}, v{vFU}")
        f(f"s_mov_b32 s{sMA}, 0x00ffffff\ns_mov_b32 s{sMA+1}, 0")
        f(f"s_mov_b32 s{sMB}, 0xff000000\ns_mov_b32 s{sMB+1}, 0x0fffffff")
        srd(f, RW2, W2, S * F * 2)
        srd(f, ROUT, OUT, S * D * 2)
    def setup_g1(f):
        f(f"v_lshlrev_b32 v{vFH}, {c.fhs}, v0")
        f(f"v_add_u32 v{vFH}, {FH_OFF}, v{vFH}")
        for p in range(4):
            f(f"s_lshr_b32 s{sT0}, s{sW}, 1\ns_xor_b32 s{sT0}, s{sT0}, {(p&1)^1}\ns_add_u32 s{sT0}, s{sT0}, s{sS}\ns_add_u32 s{sT0}, s{sT0}, {p&2}\ns_and_b32 s{sT0}, s{sT0}, 3\ns_lshl_b32 s{sT1}, s{sT0}, 16\nv_add_u32 v{vH+p}, s{sT1}, v{vU}")
        for h, su in enumerate((sUS0, sUS1)):
            f(f"s_mul_i32 s{su}, s{su}, 48\ns_lshl_b32 s{sT0}, s{sFT}, 1\ns_add_u32 s{su}, s{su}, s{sT0}\ns_and_b32 s{sT1}, s{sW}, 1\ns_add_u32 s{su}, s{su}, s{sT1}\ns_lshl_b32 s{su}, s{su}, 10\ns_add_u32 s{su}, s{su}, {U_OFF}")
        f(f"s_lshl_b32 s{sT3}, s{sDT}, 18\ns_lshl_b32 s{sT1}, s{sW}, 14\ns_add_u32 s{sT3}, s{sT3}, s{sT1}\ns_add_u32 s{sT3}, s{sT3}, {H_OFF}")
        for i in range(NS1):
            f(f"s_add_u32 s{sT1}, s{sROT1}, {i}\ns_and_b32 s{sT1}, s{sT1}, 15\ns_lshl_b32 s{sT1}, s{sT1}, 10\ns_add_u32 s{sK+i}, s{sT1}, s{sT3}")
        for k in range(4):
            f(f"s_xor_b32 s{sT0}, s{sW}, {k}\ns_mul_i32 s{sT0}, s{sT0}, 12288\ns_add_u32 s{sT0}, s{sT0}, {RED}\nv_add_u32 v{vR+k}, s{sT0}, v{vU}")
        c1 = -2.0 * math.log2(math.e) * math.sqrt(2.0 / math.pi)
        f(f"v_mov_b32 v{vC1}, {f32(c1)}")
        f(f"v_mov_b32 v{vC1+1}, {f32(c1*0.044715)}")
        f(lambda: a.wait("b1"))
        for p in (1, 3):
            for k in range(4):
                f(f"v_lshlrev_b32 v{ACC+16*p+2*k}, 16, v{vB1+k}")
                f(f"v_and_b32 v{ACC+16*p+2*k+1}, 0xffff0000, v{vB1+k}")
    fl = Fill(a)
    setup_common(fl)
    fl(lambda: setattr(w1, "can_read", True))
    setup_g2(fl)
    for _ in range(c.w1_mid):
        w1.step(fl, older_than="hst")
    fl.flush()
    a.wait("hst")
    stamp(3)
    flag_add(0)
    a("s_cmp_ge_u32 s2, 240")
    a("s_cbranch_scc1 L_idle")
    setup_g1(fl)
    fl.emit(2)
    sE, sGRP, sM0 = 6, 9, 12
    def w2offs(f):
        f(f"s_mul_i32 s{sT0}, s{sW}, {12*32*4096}\ns_lshl_b32 s{sT1}, s{sST}, 7\ns_add_u32 s{sT0}, s{sT0}, s{sT1}\ns_add_u32 s{sT1}, s{sT0}, {12*32*4096}\n"
          f"s_mul_i32 s{sE}, s{sROT2}, {32*4096}\ns_add_u32 s{sE}, s{sE}, s{sT0}\n"
          + "\n".join(f"s_add_u32 s{sE+k}, s{sE+k-1}, {32*4096}\ns_cmp_eq_u32 s{sE+k}, s{sT1}\ns_cselect_b32 s{sE+k}, s{sT0}, s{sE+k}" for k in range(1, c.w2e + 1)))
    if c.w2e:
        w2offs(a)
        a(f"s_lshr_b32 s{sGRP}, s2, {c.esh}")
        a(f"s_and_b32 s{sGRP}, s{sGRP}, {c.egrp-1}")
    while w1.left() > 0:
        if w1.left() == c.pe1:
            a.vm(poll_load("h"), "hpoll")
        if c.w2e and w1.n >= c.e0 and (w1.n - c.e0) % c.estep == 0 and (w1.n - c.e0) // c.estep < c.egrp:
            g = (w1.n - c.e0) // c.estep
            a(f"s_cmp_lg_u32 s{sGRP}, {g}")
            a(f"s_cbranch_scc1 L_e{g}")
            a(f"s_mov_b32 s{sM0}, m0")
            for k in range(c.w2e):
                a(f"s_add_u32 m0, s{sLDS}, {(WSLOT-c.w2e+k)*4096}")
                a("s_nop 0")
                for j in range(4):
                    a(f"buffer_load_dwordx4 v{vD2+j}, s[{RW2}:{RW2+3}], s{sE+k} offen offset:{1024*j} lds")
            a(f"s_mov_b32 m0, s{sM0}")
            a("s_nop 0")
            a(f"L_e{g}:")
        w1.step(fl)
    assert not c.w2e or c.e0 + (c.egrp - 1) * c.estep < 64
    if c.pe1 == 0:
        a.vm(poll_load("h"), "hpoll")
    fl.flush()
    a.wait("hpoll")
    stamp(4)
    spin("h")
    stamp(5)
    N1 = 64
    def hissue(n):
        r = RING + 4 * (n % NRING)
        a.vm(f"buffer_load_dwordx4 v[{r}:{r+3}], v{vH+n//16}, s[{RWS}:{RWS+3}], s{sK+n%16} offen sc1", f"h{n}")
    for n in range(c.hd):
        hissue(n)
        w1.reads(2)
    w1.drain()
    def w2setup(done):
        a(f"s_mul_i32 s{sWO0}, s{sW}, {12*32*4096}")
        a(f"s_lshl_b32 s{sT0}, s{sST}, 7")
        a(f"s_add_u32 s{sWO0}, s{sWO0}, s{sT0}")
        a(f"s_add_u32 s{sWOE}, s{sWO0}, {12*32*4096}")
        if done:
            a(f"s_mov_b32 m0, s{sLDS}")
            a(f"s_mov_b32 s{sWO}, s{sE+done}")
        else:
            a(f"s_mul_i32 s{sT0}, s{sROT2}, {32*4096}")
            a(f"s_add_u32 m0, s{sLDS}, {((WSLOT-c.w2e)%WSLOT)*4096}")
            a(f"s_add_u32 s{sWO}, s{sWO0}, s{sT0}")
    w2setup(c.w2e)
    a.dwait()
    stamp("g1s")
    w2 = W(2)
    w2.n = 4 * c.w2e
    w2.can_read = False
    def red_write(f, p, aa):
        cw = ACC + 16 * p + 4 * aa
        slot = aa if p % 2 == 0 else 2 + aa
        f(lambda: a.ds(f"ds_write_b128 v{vR}, v[{cw}:{cw+3}] offset:{(p//2)*6144+slot*1024}", f"rw{p}"))
    def red_finish(f, h):
        P0, P1, T = ACC + 32 * h, ACC + 32 * h + 16, RD + 12 * h
        for x, (k, slot, dst) in enumerate(((2, 0, P0), (3, 2, P0 + 8), (1, 4, P1 + 8), (2, 1, P0 + 4), (3, 3, P0 + 12), (1, 5, P1 + 12))):
            f(lambda k=k, slot=slot, dst=dst, x=x: a.ds(f"ds_read_b128 v[{dst}:{dst+3}], v{vR+k} offset:{h*6144+slot*1024}", f"rr{h}_{x}"))
        f("s_nop 0") if False else None
        for half in range(2):
            f(lambda half=half: a.dwait(f"rr{h}_{3*half+2}"))
            for r in range(4 * half, 4 * half + 4):
                f(f"v_add_f32 v{P0+r}, v{P0+r}, v{P0+8+r}")
                f(f"v_add_f32 v{P1+r}, v{P1+r}, v{P1+8+r}")
            for r in range(4 * half, 4 * half + 4):
                f(f"v_add_f32 v{P1+r}, v{P1+r}, v{P0+r}")
        for r in range(8):
            f(f"v_mul_f32 v{T+r}, v{P1+r}, v{P1+r}")
        for r in range(8):
            f(f"v_fma_f32 v{T+r}, v{T+r}, v{vC1+1}, v{vC1}")
        for r in range(8):
            f(f"v_mul_f32 v{T+r}, v{T+r}, v{P1+r}")
        for r in range(8):
            f(f"v_exp_f32 v{T+r}, v{T+r}")
        for r in range(8):
            f(f"v_add_f32 v{T+r}, 1.0, v{T+r}")
        for r in range(8):
            f(f"v_rcp_f32 v{T+r}, v{T+r}")
        for r in range(8):
            f(f"v_mul_f32 v{T+r}, v{T+r}, v{P1+r}")
        for r in range(4):
            f(f"v_cvt_pk_bf16_f32 v{T+8+r}, v{T+2*r}, v{T+2*r+1}")
        su = sUS0 if h == 0 else sUS1
        f(lambda: a.vm(f"buffer_store_dwordx4 v[{T+8}:{T+11}], v{vU}, s[{RWS}:{RWS+3}], s{su} offen sc1", f"ust{h}"))
    for m in range(N1 // 2):
        p, i = m // 8, 2 * (m % 8)
        stamp(f"g1_{m}")
        if 2 * m + c.hd < N1:
            hissue(2 * m + c.hd)
            hissue(2 * m + 1 + c.hd)
            if 2 * m + 2 + c.hd >= N1:
                stamp("t0")
        else:
            for _ in range(c.w2_tail):
                w2.issue()
        if m % 8 == 1 and p >= 1:
            for aa in (range(4) if p % 2 == 1 else (2, 3)):
                red_write(fl, p - 1, aa)
        a.wait(f"h{2*m+1}")
        per = [c.g1fill // 8 + (1 if g < c.g1fill % 8 else 0) for g in range(8)]
        order = (2, 3, 0, 1) if m == N1 // 2 - 1 else (0, 1, 2, 3)
        for ti, t in enumerate(order):
            for e0 in range(2):
                e = e0 ^ (ti & 1) if c.serp else e0
                rb = RING + 4 * ((2 * m + e) % NRING)
                cc = ACC + 16 * p + 4 * t
                src = "0" if (i == 0 and e0 == 0 and not (p % 2 == 1 and t < 2)) else f"v[{cc}:{cc+3}]"
                ra = 16 * (i + e) + 4 * t
                a(f"v_mfma_f32_16x16x32_bf16 v[{cc}:{cc+3}], a[{ra}:{ra+3}], v[{rb}:{rb+3}], {src}")
                fl.emit(per[2 * ti + e0])
        if m == c.g1bar:
            assert not fl.g
            a.dwait()
            a("s_barrier")
            red_finish(fl, 0)
    fl.flush()
    stamp(6)
    w2.can_read = True
    a("s_nop 3")
    red_write(fl, 3, 2)
    red_write(fl, 3, 3)
    fl.flush()
    w2.issue()
    a.dwait()
    a("s_barrier")
    red_finish(fl, 1)
    fl.emit(6)
    k = 0
    flagged = False
    while fl.g:
        if k == c.fe_pos:
            a.wait("ust0")
            stamp("fe")
            flag_add(1)
            flagged = True
        if k < c.w2_un:
            w2.step(fl, throttle=False)
        else:
            fl.emit(c.fillk)
        k += 1
    stamp(7)
    if not flagged:
        a.wait("ust0")
        stamp("fe")
        flag_add(1)
    for _ in range(c.w2_mid):
        w2.step(None, older_than="ust1")
    a.wait("ust1")
    flag_add(2)
    a("L_join:")
    join_n, join_rd = w2.n, w2.rd
    stamp(8)
    fl(f"s_mul_i32 s{sT3}, s{sJ}, {5*49152}\ns_mul_i32 s{sT1}, s{sW}, 12288\ns_add_u32 s{sT3}, s{sT3}, s{sT1}\ns_add_u32 s{sT3}, s{sT3}, {U_OFF}")
    fl(f"s_add_u32 s{sUS1}, s{sT3}, 12288\ns_lshl_b32 s{sK}, s{sROT2}, 10\ns_add_u32 s{sK}, s{sK}, s{sT3}")
    for i in range(1, NS2):
        fl(f"s_add_u32 s{sK+i}, s{sK+i-1}, 1024\ns_cmp_eq_u32 s{sK+i}, s{sUS1}\ns_cselect_b32 s{sK+i}, s{sT3}, s{sK+i}")
    fl(f"v_lshlrev_b32 v{vB2}, 16, v{vB2}")
    for t in range(5):
        for r in range(4):
            fl(f"v_mov_b32 v{ACC+16*t+r}, v{vB2}")
    for k in range(4):
        fl(f"s_xor_b32 s{sT0}, s{sW}, {k}\ns_mul_i32 s{sT0}, s{sT0}, {WSLOT*4096}\nv_add_u32 v{vR+k}, s{sT0}, v{vU}")
    fl(f"s_mul_i32 s{sUS0}, s{sJ}, 160")
    assert w2.left() > c.pe2
    while w2.left() > 0:
        if w2.left() == c.pe2:
            a.vm(poll_load("a"), "apoll")
        w2.step(fl)
    if c.pe2 == 0:
        a.vm(poll_load("a"), "apoll")
    fl.flush()
    a.wait("apoll")
    stamp(9)
    spin("a")
    stamp(10)
    N2 = 60
    def uissue(n):
        if n == 24 - c.pbl:
            a.vm(poll_load("b"), "bpoll")
        if n == 24:
            a.wait("bpoll")
            spin("b")
            stamp("pb")
        r = RING + 4 * (n % NRING)
        a.vm(f"buffer_load_dwordx4 v[{r}:{r+3}], v{vU+n//12}, s[{RWS}:{RWS+3}], s{sK+n%12} offen sc1", f"u{n}")
    for n in range(c.ud):
        uissue(n)
        w2.reads(2)
    w2.drain()
    a.dwait()
    stamp("g2s")
    def fin_reads(f, ts):
        for t in ts:
            for k in range(1, 4):
                cr = ACC + 16 * t + 4 * k
                f(lambda t=t, k=k, cr=cr: a.ds(f"ds_read_b128 v[{cr}:{cr+3}], v{vR+k} offset:{(k-1)*5120+t*1024}", f"fr{t}"))
    def fin(f, t):
        f(lambda: a.dwait(f"fr{t}"))
        cc = ACC + 16 * t
        for r in range(4):
            f(f"v_add_f32 v{cc+r}, v{cc+r}, v{cc+4+r}")
            f(f"v_add_f32 v{cc+8+r}, v{cc+8+r}, v{cc+12+r}")
        for r in range(4):
            f(f"v_add_f32 v{cc+r}, v{cc+r}, v{cc+8+r}")
        for r in (0, 2):
            f(f"v_cvt_pk_bf16_f32 v{RD+2*t+r//2}, v{cc+r}, v{cc+r+1}")
    def ostore(pp):
        a.vm(f"buffer_store_dwordx4 v[{RD+4*pp}:{RD+4*pp+3}], v{vO}, s[{ROUT}:{ROUT+3}], s{sUS0} offen offset:{64*pp}{' sc1' if c.osc >> pp & 1 else ''}", "o")
    stored0 = False
    for m in range(N2 // 2):
        t, i = m // 6, 2 * (m % 6)
        stamp(f"g2_{m}")
        if 2 * m + c.ud < N2:
            uissue(2 * m + c.ud)
            uissue(2 * m + 1 + c.ud)
        elif not stored0:
            ostore(0); stored0 = True
        if m % 6 == 1 and t >= 1:
            for b in range(1, 4):
                cw = ACC + 16 * (t - 1) + 4 * b
                fl.g.insert(b - 1, lambda cw=cw, b=b, t=t: a.ds(f"ds_write_b128 v{vR}, v[{cw}:{cw+3}] offset:{(b-1)*5120+(t-1)*1024}", "fw"))
        a.wait(f"u{2*m+1}")
        nf = 12 if t == 4 else 6
        per = [nf // 8 + (1 if g < nf % 8 else 0) for g in range(8)]
        for bi, b in enumerate((1, 2, 3, 0)):
            for e0 in range(2):
                e = e0 ^ (bi & 1) if c.serp else e0
                ra = RING + 4 * ((2 * m + e) % NRING)
                cc = ACC + 16 * t + 4 * b
                src = "0" if (i == 0 and e0 == 0 and b) else f"v[{cc}:{cc+3}]"
                rb = 16 * (i + e) + 4 * b
                a(f"v_mfma_f32_16x16x32_bf16 v[{cc}:{cc+3}], v[{ra}:{ra+3}], a[{rb}:{rb+3}], {src}")
                fl.emit(per[2 * bi + e0])
        if m in (14, 26):
            assert not fl.g
            a.dwait()
            a("s_barrier")
            ts = (0, 1) if m == 14 else (2, 3)
            fin_reads(fl, ts)
            for tt in ts:
                fin(fl, tt)
            if m == 26:
                fl(lambda: ostore(1))
    stamp(11)
    a("s_nop 1")
    for b in range(1, 4):
        cw = ACC + 64 + 4 * b
        if b > 1:
            a("s_nop 0")
        a.ds(f"ds_write_b128 v{vR}, v[{cw}:{cw+3}] offset:{(b-1)*5120+4096}")
    fl.flush()
    a.dwait()
    a("s_barrier")
    stamp("e2")
    fin_reads(fl, (4,))
    fl.flush()
    if c.stamp:
        a.dwait()
    fin(fl, 4)
    fl.flush()
    a(f"buffer_store_dwordx2 v[{RD+8}:{RD+9}], v{vO+1}, s[{ROUT}:{ROUT+3}], s{sUS0} offen offset:128{' sc1' if c.osc & 4 else ''}")
    a(f"s_or_b32 s{sT0}, s2, s{sW}")
    a("s_cbranch_scc1 L_noepoch")
    a(f"v_mov_b32 v{t5}, {EP_OFF}")
    flag_store(t5, None, "")
    a("L_noepoch:")
    if c.stamp:
        stamp("e3")
        a("s_waitcnt vmcnt(0)")
        stamp(12)
        a(f"s_lshl_b32 s{sT0}, s2, 3")
        a(f"s_add_u32 s{sT0}, s{sT0}, s{sW}")
        a(f"s_lshl_b32 s{sT0}, s{sT0}, 6")
        a(f"s_add_u32 s{sT0}, s{sT0}, {ST_OFF}")
        a(f"v_mov_b32 v{t0}, s{sT0}")
        a("s_waitcnt lgkmcnt(0)")
        for i in range(13):
            a(f"v_mov_b32 v{t1}, s{STB+2*i}")
            a(f"global_store_dword v{t0}, v{t1}, s[{WS}:{WS+1}] offset:{4*i}")
    if c.pad:
        a("s_waitcnt vmcnt(0)")
        stamp("end")
        a("s_waitcnt lgkmcnt(0)")
        a("s_sub_u32 s64, s98, s100")
        a(f"s_mul_i32 s64, s64, {c.mult}")
        a("s_add_u32 s64, s64, 10000")
        a(f"s_mov_b32 s{sCNT}, 0")
        a("L_pad:")
        a("s_memrealtime s[66:67]")
        a("s_waitcnt lgkmcnt(0)")
        a(f"s_add_u32 s{sCNT}, s{sCNT}, 1")
        a(f"s_cmp_ge_u32 s{sCNT}, 200000\ns_cbranch_scc1 L_end")
        a("s_sub_u32 s66, s66, s100")
        a("s_cmp_lt_u32 s66, s64\ns_cbranch_scc1 L_pad")
    a("s_endpgm")
    a("L_idle:")
    a("s_waitcnt vmcnt(0) lgkmcnt(0)")
    a.q, a.lq = [], []
    if c.pad and c.padat in ("4", "5", "6", "7", "t0", "fe", "g1s"):
        stamp(c.padat)
    if c.stamp:
        for nm in SETS[c.sset]:
            if nm in (4, 5, 6, 7, "t0", "fe", "g1s") or str(nm).startswith(("w1_", "g1_")):
                stamp(nm)
    if c.helper and c.map2 == 1:
        a(f"s_bfe_u32 s{sT0}, s2, 0x10003")
        a(f"s_lshl_b32 s{sT0}, s{sT0}, 2")
        a(f"s_add_u32 s{sT0}, s{sT0}, s{sW}")
        a(f"s_mul_i32 s{sT0}, s{sT0}, {6*32*4096}")
        a(f"s_and_b32 s{sT1}, s2, 7")
        a(f"s_lshl_b32 s{sT1}, s{sT1}, 9")
        a(f"s_add_u32 s{sT0}, s{sT0}, s{sT1}")
        a(f"v_lshrrev_b32 v{t0}, 5, v{vL}")
        a(f"v_lshlrev_b32 v{t0}, 17, v{t0}")
        a(f"v_bfe_u32 v{t1}, v{vL}, 2, 3")
        a(f"v_lshl_add_u32 v{t0}, v{t1}, 12, v{t0}")
        a(f"v_and_b32 v{t1}, 3, v{vL}")
        a(f"v_lshl_add_u32 v{t0}, v{t1}, 7, v{t0}")
        for r in range(c.helper):
            jj, cc = 3 - r // 3, r % 3
            a(f"s_add_u32 s{sT1}, s{sT0}, {((2*cc)*32+jj*8)*4096}")
            a(f"buffer_load_dword v{t2}, v{t0}, s[{RW2}:{RW2+3}], s{sT1} offen")
            a("s_waitcnt vmcnt(1)")
    w2setup(0)
    wi = W(2)
    while wi.n < join_n:
        wi.issue()
    a("s_waitcnt vmcnt(0)")
    a.q = []
    wi.reads(join_rd - wi.rd)
    assert wi.rd == join_rd, (wi.rd, join_rd)
    a.dwait()
    a("s_branch L_join")
    a("L_end:\ns_endpgm")
    a(f""".section .rodata,"a"
.p2align 6
.amdhsa_kernel {NAME}
  .amdhsa_next_free_vgpr 512
  .amdhsa_next_free_sgpr 102
  .amdhsa_accum_offset 256
  .amdhsa_group_segment_fixed_size 0
  .amdhsa_kernarg_size 64
  .amdhsa_user_sgpr_count 2
  .amdhsa_user_sgpr_kernarg_segment_ptr 1
  .amdhsa_system_sgpr_workgroup_id_x 1
  .amdhsa_float_denorm_mode_32 3
.end_amdhsa_kernel""")
    return a.text()

if __name__ == "__main__":
    c = Cfg()
    out = sys.argv[1]
    for x in sys.argv[2:]:
        k, v = x.split("=")
        assert hasattr(c, k), k
        setattr(c, k, v if k == 'padat' else int(v))
    open(out, "w").write(gen(c))
```

```python
import sys, struct, math

def f32(x):
    return "0x%08x" % struct.unpack("<I", struct.pack("<f", x))[0]

S, D, F = 2048, 640, 1536
H_OFF = 0x1000
U_OFF = 0x282000
FH_OFF = 0x464000
EP_OFF = FH_OFF + (16 << 10)
FU_OFF = FH_OFF + (32 << 10)
WS_USED = FU_OFF + (64 << 10)
ST_OFF = 16 << 20
NAME = "standalone__mixer_token_mlp__prompt_kernel"
SPIN_CAP = 400000
OP = [" sc1", " nt", " sc0", " sc0 nt", " sc1 nt"]

class Cfg:
    stamp = 0
    sset = 0
    pad = 0
    mult = 0
    padx = -1
    padat = "end"
    map1 = 1
    map2 = 1
    rot1 = 10
    rot2 = 8
    cpo = 256
    w1_pre = 0
    w1_x = 2
    w1_ln = 2
    w1_mid = 6
    wd = 7
    hd = 10
    ud = 10
    pe1 = 6
    pe2 = 6
    g1bar = 18
    g1fill = 9
    w2_tail = 2
    w2_mid = 7
    w2_un = 5
    pbl = 8
    helper = 0
    serp = 0
    fillk = 8
    opol = 0
    o0e = 0
    fast0 = 0
    ov1 = 0
    ov2 = 0
    d0 = 6
    wpp = 4
    n1 = 3
    hearly = 1
    lg0 = 1
    lg1 = 5
    fake = 0
    gap2 = 0
    g2f = 6
    g2l = 12
    g2b0 = 14
    g2b1 = 26
    nh = 4
    hsec = 1
    hq = 1
    osc = 0
    w2e = 0
    egrp = 4
    e0 = 20
    estep = 8
    esh = 3
    tlbw = 0
    w1_first = 4
    xbar = 1
    fhs = 5
    fus = 6
    slowl = 16
    fe_pos = 4

class A:
    def __init__(self):
        self.L = []
        self.q = []
        self.lq = []
    def __call__(self, s):
        for line in s.strip("\n").split("\n"):
            self.L.append(line)
    def vm(self, s, tag=None):
        self(s)
        self.q.append(tag)
    def recent_slow_before(self, tag, window):
        if tag not in self.q:
            return False
        idx = self.q.index(tag)
        return any(t in ("hst", "hfl", "ust0", "ust1", "ufl0", "ufl1", "b1", "b2") and len(self.q) - 1 - i < window
                   for i, t in enumerate(self.q[:idx]))
    def wait(self, tag):
        if tag not in self.q:
            return
        idx = max(i for i, t in enumerate(self.q) if t == tag)
        n = len(self.q) - 1 - idx
        assert n <= 63
        self(f"s_waitcnt vmcnt({n})")
        self.q = self.q[idx + 1:]
    def pending(self, tag):
        return tag in self.q
    def ds(self, s, tag=None):
        if len(self.lq) >= 13:
            self("s_waitcnt lgkmcnt(7)")
            self.lq = self.lq[-7:]
        self(s)
        self.lq.append(tag)
    def dwait(self, tag=None):
        if tag is None:
            self("s_waitcnt lgkmcnt(0)")
            self.lq = []
            return
        if tag not in self.lq:
            return
        idx = max(i for i, t in enumerate(self.lq) if t == tag)
        self(f"s_waitcnt lgkmcnt({len(self.lq)-1-idx})")
        self.lq = self.lq[idx + 1:]
    def text(self):
        return "\n".join(self.L) + "\n"

class Fill:
    def __init__(self, a):
        self.a = a
        self.g = []
    def __call__(self, s):
        self.g.append(s)
    def emit(self, k):
        while k > 0 and self.g:
            x = self.g.pop(0)
            if callable(x):
                x(); k -= 1
            else:
                self.a(x); k -= x.count("\n") + 1
    def flush(self):
        self.emit(1 << 30)

def srd(a, d, b, nbytes):
    a(f"s_mov_b32 s{d}, s{b}")
    a(f"s_mov_b32 s{d+1}, s{b+1}")
    a(f"s_mov_b32 s{d+2}, {nbytes}")
    a(f"s_mov_b32 s{d+3}, 0x00020000")

def gen(c):
    a = A()
    STB = 76
    SETS = {
        0: [0, 1, 2, 3, 4, 5, "t0", 6, 8, 9, 10, 11, 12],
        1: [0, "ka", "iss", 1, "x4", 2, "hsto", 3, "w1_24", "w1_40", 4, 5, "g1s"],
        2: [0, 5, "g1s", "g1_8", "g1_16", "g1_24", "t0", 6, "fe", 7, 8, 9, 10],
        3: [0, 9, 10, "g2s", "g2_6", "pb", "g2_12", "g2_18", "g2_24", 11, "e2", "e3", 12],
    }
    def stamp(name):
        if c.pad and str(name) == c.padat:
            a("s_memrealtime s[98:99]")
        if c.stamp and name in SETS[c.sset]:
            i = SETS[c.sset].index(name)
            a(f"{'s_memtime' if c.stamp == 2 else 's_memrealtime'} s[{STB+2*i}:{STB+2*i+1}]")
    a("; kernarg: x(0) w1(8) b1(16) w2(24) b2(32) out(40) debug(48) ws(56)")
    a("; @launch grid=(256,1,1) block=(256,1,1) lds=163840")
    a('.amdgcn_target "amdgcn-amd-amdhsa--gfx950"')
    a(f".text\n.globl {NAME}\n.p2align 8\n.type {NAME},@function\n{NAME}:")
    X, W1, B1, W2, B2, OUT, DBG, WS = 4, 6, 8, 10, 12, 14, 16, 18
    sMA, sMB = 20, 22
    RW1, RW2, RWS, ROUT = 24, 28, 32, 36
    sW, sLDS, sDT, sFT, sJ, sST = 40, 41, 42, 43, 44, 45
    sWO, sWO0, sWOE, sUS0 = 46, 47, 48, 49
    sT0, sT1, sUS1, sCNT, sROT1, sROT2, sT3, sTAG = 50, 51, 52, 53, 54, 55, 56, 57
    sS = 3
    FB = 4
    sFO = (16, 17, 58)
    sFD = (0, 1, 59)
    sK = 60
    vL = 1
    vD1, vD2, vH, vU, vT1, vT2, vR, vO = 4, 8, 12, 16, 21, 25, 29, 33
    vFH, vFU, vFO, vTAG, vB1, vB2, vHS, vLT, vFHO, vC1 = 35, 36, 37, 39, 40, 44, 45, 46, 49, 50
    t0, t1, t2, t3, t4, t5 = 54, 55, 56, 57, 58, 59
    vP = 60
    ACC, RING, RD = 64, 144, 208
    RED = 114688
    WSLOT = 7
    NRING = 16
    NS1, NS2 = 16, 12

    def poll_load(kind):
        if kind == "h":
            return f"global_load_dwordx4 v[{vP}:{vP+3}], v{vFH}, s[{WS}:{WS+1}] sc1"
        return f"global_load_dword v{vP}, v{vFU if kind == 'a' else vFU+1}, s[{WS}:{WS+1}] sc1"
    def poll_test(kind):
        if kind == "h":
            a(f"v_bitop3_b32 v{vP}, v{vP}, v{vP+1}, v{vTAG} bitop3:0x7e")
            a(f"v_bitop3_b32 v{vP+2}, v{vP+2}, v{vP+3}, v{vTAG} bitop3:0x7e")
            a(f"v_or_b32 v{vP}, v{vP}, v{vP+2}")
            a(f"v_cmp_ne_u32 vcc, 0, v{vP}")
        else:
            a(f"v_cmp_ne_u32 vcc, s{sTAG}, v{vP}")
    def spin(kind):
        label = "L_p" + kind
        poll_test(kind)
        a(f"s_cbranch_vccz {label}_ok")
        a(f"s_mov_b32 s{sCNT}, 0")
        a(f"{label}_l:")
        a(poll_load(kind))
        a(f"s_add_u32 s{sCNT}, s{sCNT}, 1")
        a(f"s_cmp_ge_u32 s{sCNT}, {SPIN_CAP}")
        a(f"s_cbranch_scc1 {label}_ok")
        a("s_waitcnt vmcnt(0)")
        poll_test(kind)
        a(f"s_cbranch_vccnz {label}_l")
        a(f"{label}_ok:")
    def flag_add(k):
        a(f"s_atomic_add s{sFD[k]}, s[{FB}:{FB+1}], s{sFO[k]}")
    def flag_store(vaddr, tag, sc=" sc1"):
        a("s_mov_b64 exec, 1")
        s_ = f"global_store_dword v{vaddr}, v{vTAG}, s[{WS}:{WS+1}]{sc}"
        if tag:
            a.vm(s_, tag)
        else:
            a(s_)
        a("s_mov_b64 exec, -1")

    def step_off(dst, base, i, sh):
        if i < c.n1:
            return f"s_add_u32 s{dst}, s{base}, {i << sh}"
        if c.n1 < i <= c.nh:
            return f"s_add_u32 s{dst}, s{base}, {(i - 1) << sh}"
        k = 0 if i == c.n1 else i - c.nh
        return (f"s_add_u32 s{dst}, s{sROT2}, {k}\ns_and_b32 s{dst}, s{dst}, {12-c.nh-1}\ns_add_u32 s{dst}, s{dst}, {c.nh}\n"
                f"s_lshl_b32 s{dst}, s{dst}, {sh}\ns_add_u32 s{dst}, s{dst}, s{base}")
    class W:
        def __init__(self, kind):
            self.kind = kind
            self.ns = NS1 if kind == 1 else NS2
            self.n = 0
            self.rd = 0
            self.can_read = True
        def left(self):
            return 4 * self.ns - self.n
        def tag(self, n):
            return f"w{self.kind}_{n}"
        def nslot(self):
            return WSLOT - c.w2e if self.kind == 1 else WSLOT
        def slot(self, i):
            return i % self.nslot() if self.kind == 1 else (i + WSLOT - c.w2e) % WSLOT
        def issue(self):
            i, j = self.n >> 2, self.n & 3
            vd, r, step = (vD1, RW1, 32 * 3072) if self.kind == 1 else (vD2, RW2, 32 * 4096)
            if i >= self.nslot() and j == 0:
                old = i - self.nslot()
                if self.rd < 8 * (old + 1):
                    assert self.can_read
                    a.wait(self.tag(4 * old + 3))
                    self.reads(8 * (old + 1) - self.rd)
                a.dwait(f"r{self.kind}_{old}")
            a.vm(f"buffer_load_dwordx4 v{vd+j}, s[{r}:{r+3}], s{sWO} offen offset:{1024*j} lds", self.tag(self.n))
            self.n += 1
            if j == 3 and i + 1 < self.ns:
                if self.slot(i + 1) == 0:
                    a(f"s_mov_b32 m0, s{sLDS}")
                else:
                    a("s_add_u32 m0, m0, 4096")
                if self.kind == 2 and c.nh:
                    a(step_off(sWO, sWO0, i + 1, 17))
                else:
                    a(f"s_add_u32 s{sWO}, s{sWO}, {step}")
                    a(f"s_cmp_eq_u32 s{sWO}, s{sWOE}")
                    a(f"s_cselect_b32 s{sWO}, s{sWO0}, s{sWO}")
        def landed_steps(self):
            k = 0
            while 4 * k + 3 < self.n and not a.pending(self.tag(4 * k + 3)):
                k += 1
            return k
        def reads(self, k):
            vt = vT1 if self.kind == 1 else vT2
            lim = 8 * self.landed_steps() if self.can_read else 0
            while k > 0 and self.rd < lim:
                i, x = self.rd >> 3, self.rd & 7
                b, e = x >> 1, x & 1
                r = 16 * i + 4 * b + 2 * e
                a.ds(f"ds_read_b64_tr_b16 a[{r}:{r+1}], v{vt+b} offset:{self.slot(i)*4096+e*2048}", f"r{self.kind}_{i}")
                self.rd += 1
                k -= 1
        def step(self, fill=None, throttle=True, older_than=None):
            if throttle and self.n >= c.wd:
                tg = self.tag(self.n - c.wd)
                if older_than is not None and a.pending(older_than) and a.pending(tg) and a.q.index(tg) > a.q.index(older_than):
                    pass
                elif not a.recent_slow_before(tg, c.slowl):
                    a.wait(tg)
            stamp(f"w{self.kind}_{self.n}")
            self.issue()
            backlog = 8 * self.landed_steps() - self.rd
            self.reads(4 if backlog > 8 else 2)
            if fill is not None:
                fill.emit(c.fillk)
        def drain(self):
            for i in range(self.rd >> 3, self.ns):
                a.wait(self.tag(4 * i + 3))
                self.reads(8)

    def tile2(f):
        if c.map2 == 0:
            f(f"s_and_b32 s{sT0}, s2, 1\ns_lshl_b32 s{sT0}, s{sT0}, 2\ns_bfe_u32 s{sT1}, s2, 0x20003\ns_add_u32 s{sJ}, s{sT0}, s{sT1}\ns_mul_i32 s{sROT2}, s{sT1}, 3")
            if c.rot2 == 42:
                f(f"s_bfe_u32 s{sT1}, s2, 0x10005\ns_mul_i32 s{sT1}, s{sT1}, 6\ns_add_u32 s{sROT2}, s{sROT2}, s{sT1}\ns_cmp_ge_u32 s{sROT2}, 12\ns_cselect_b32 s{sT1}, 12, 0\ns_sub_u32 s{sROT2}, s{sROT2}, s{sT1}")
            f(f"s_bfe_u32 s{sT0}, s2, 0x20001\ns_lshl_b32 s{sT0}, s{sT0}, 3\ns_lshr_b32 s{sST}, s2, 5\ns_add_u32 s{sST}, s{sST}, s{sT0}")
        else:
            f(f"s_bfe_u32 s{sJ}, s2, 0x30003")
            if c.nh == 4:
                f(f"s_mov_b32 s{sROT2}, s{sJ}")
            elif c.nh == 8:
                f(f"s_lshr_b32 s{sROT2}, s{sJ}, 1")
            elif c.rot2 == 8:
                f(f"s_mul_i32 s{sROT2}, s{sJ}, 3\ns_lshr_b32 s{sROT2}, s{sROT2}, 1")
            elif c.rot2 == 4:
                f(f"s_lshr_b32 s{sROT2}, s{sJ}, 1\ns_mul_i32 s{sROT2}, s{sROT2}, 3")
            else:
                f(f"s_mov_b32 s{sROT2}, 0")
            f(f"s_and_b32 s{sT0}, s2, 7\ns_lshl_b32 s{sT0}, s{sT0}, 2\ns_lshr_b32 s{sST}, s2, 6\ns_add_u32 s{sST}, s{sST}, s{sT0}")
    a("s_cmp_ge_u32 s2, 256\ns_cbranch_scc1 L_end")
    stamp(0)
    if c.pad:
        a("s_memrealtime s[100:101]")
    a("s_load_dwordx16 s[4:19], s[0:1], 0")
    a(f"v_lshrrev_b32 v{t0}, 6, v0")
    a("s_getpc_b64 s[22:23]")
    a("L_pc:")
    a(f"s_lshr_b32 s{sT0}, s2, 3                 ; idx")
    a(f"s_lshl_b32 s{sT1}, s{sT0}, 9")
    a(f"v_lshl_add_u32 v{t1}, v{t0}, 7, s{sT1}")
    a(f"v_min_u32 v{t1}, (L_end-L_pc-{c.cpo}-4), v{t1}")
    a.vm(f"global_load_dword v{vP}, v{t1}, s[22:23] offset:{c.cpo}", "cpf")
    a(f"v_and_b32 v{vL}, 63, v0")
    a(f"v_readfirstlane_b32 s{sW}, v{t0}")
    a(f"v_lshrrev_b32 v{t0}, 5, v0")
    a(f"v_and_b32 v{t1}, 31, v0")
    a(f"v_lshrrev_b32 v{t2}, 7, v0")
    a(f"v_mul_u32_u24 v{t2}, 12, v{t2}")
    a(f"v_add_u32 v{t2}, v{t2}, v{t0}")
    a(f"v_mul_u32_u24 v2, 1280, v{t2}")
    a(f"v_lshl_add_u32 v2, v{t1}, 3, v2          ; x offset")
    def early_setup():
        a(f"s_lshr_b32 s{sT0}, s2, 3                 ; idx")
        a(f"v_mul_u32_u24 v3, 1344, v{t0}")
        a(f"v_lshl_add_u32 v3, v{t1}, 3, v3")
        a(f"v_add_u32 v3, {RED}, v3")
        if c.map1 == 0:
            a(f"s_mul_i32 s{sFT}, s{sT0}, 205")
            a(f"s_lshr_b32 s{sFT}, s{sFT}, 10            ; idx/5")
            a(f"s_mul_i32 s{sT1}, s{sFT}, 5")
            a(f"s_sub_u32 s{sDT}, s{sT0}, s{sT1}         ; idx%5")
            a(f"s_and_b32 s{sS}, s{sDT}, 3")
            a(f"s_mul_i32 s{sROT1}, s{sDT}, 13")
            a(f"s_lshr_b32 s{sROT1}, s{sROT1}, 2     ; 0,3,6,9,13")
            if c.rot1 == 52:
                a(f"s_and_b32 s{sT1}, s{sFT}, 1")
                a(f"s_lshl_b32 s{sT1}, s{sT1}, 3")
                a(f"s_add_u32 s{sROT1}, s{sROT1}, s{sT1}")
                a(f"s_and_b32 s{sROT1}, s{sROT1}, 15")
            a(f"s_and_b32 s{sT1}, s2, 1")
            a(f"s_mul_i32 s{sT1}, s{sT1}, 5")
            a(f"s_add_u32 s{sDT}, s{sDT}, s{sT1}         ; dtile")
            a(f"s_bfe_u32 s{sT1}, s2, 0x20001")
            a(f"s_mul_i32 s{sT1}, s{sT1}, 6")
            a(f"s_add_u32 s{sFT}, s{sFT}, s{sT1}         ; ftile")
        else:
            a(f"s_mul_i32 s{sFT}, s{sT0}, 205")
            a(f"s_lshr_b32 s{sFT}, s{sFT}, 11            ; idx/10")
            a(f"s_mul_i32 s{sT1}, s{sFT}, 10")
            a(f"s_sub_u32 s{sDT}, s{sT0}, s{sT1}         ; dtile")
            a(f"s_cmp_ge_u32 s{sDT}, 5")
            a(f"s_cselect_b32 s{sS}, 5, 0")
            a(f"s_sub_u32 s{sS}, s{sDT}, s{sS}")
            a(f"s_and_b32 s{sS}, s{sS}, 3")
            if c.rot1 == 10:
                a(f"s_mul_i32 s{sROT1}, s{sDT}, 13")
                a(f"s_lshr_b32 s{sROT1}, s{sROT1}, 3")
            elif c.rot1 == 5:
                a(f"s_lshr_b32 s{sROT1}, s{sDT}, 1")
                a(f"s_mul_i32 s{sROT1}, s{sROT1}, 13")
                a(f"s_lshr_b32 s{sROT1}, s{sROT1}, 2")
            else:
                a(f"s_mov_b32 s{sROT1}, 0")
            a(f"s_and_b32 s{sT1}, s2, 7")
            a(f"s_mul_i32 s{sT1}, s{sT1}, 3")
            a(f"s_add_u32 s{sFT}, s{sFT}, s{sT1}         ; ftile")
        a(f"v_lshrrev_b32 v{t0}, 3, v{vL}            ; rr")
        a(f"v_and_b32 v{t1}, 6, v{t0}")
        a(f"v_and_b32 v{t2}, 7, v{vL}")
        a(f"v_xor_b32 v{t1}, v{t1}, v{t2}")
        a(f"v_lshlrev_b32 v{t1}, 4, v{t1}")
        a(f"v_mul_u32_u24 v{vD1}, 3072, v{t0}")
        a(f"v_add_u32 v{vD1}, v{vD1}, v{t1}")
        a(f"v_lshl_add_u32 v{vD2}, v{t0}, 12, v{t1}")
        for j in range(1, 4):
            a(f"v_add_u32 v{vD1+j}, {j*(8*3072-1024)}, v{vD1}")
        a(f"s_mul_i32 s{sWO0}, s{sW}, {512*3072}")
        a(f"s_lshl_b32 s{sT0}, s{sFT}, 7")
        a(f"s_add_u32 s{sWO0}, s{sWO0}, s{sT0}")
        a(f"s_add_u32 s{sWOE}, s{sWO0}, {512*3072}")
        a(f"s_mul_i32 s{sT0}, s{sROT1}, {32*3072}")
        a(f"s_add_u32 s{sWO}, s{sWO0}, s{sT0}")
        a(f"s_mul_i32 s{sLDS}, s{sW}, {WSLOT*4096}")
        a(f"s_mov_b32 m0, s{sLDS}")
    if not c.fast0:
        early_setup()
    a(f"s_lshr_b32 s{sT0}, s2, 2")
    a(f"s_lshl_b32 s{sT0}, s{sT0}, 3")
    a(f"s_and_b32 s{sT1}, s2, 3")
    a(f"s_add_u32 s{sT0}, s{sT0}, s{sT1}")
    a(f"s_mul_i32 s{sT0}, s{sT0}, 5120")
    a(f"v_lshlrev_b32 v{vU}, 4, v{vL}            ; lane*16")
    a("s_waitcnt lgkmcnt(0)")
    stamp("ka")
    a(f"s_add_u32 s{X}, s{X}, s{sT0}")
    a(f"s_addc_u32 s{X+1}, s{X+1}, 0")
    XR = RING
    for i in range(5):
        a.vm(f"global_load_dwordx2 v[{XR+2*i}:{XR+2*i+1}], v2, s[{X}:{X+1}] offset:{256*i}", f"x{i}")
    if c.fast0:
        early_setup()
    srd(a, RW1, W1, S * F * 2)
    a("s_cmp_ge_u32 s2, 240")
    a(f"s_cselect_b32 s{RW1+2}, 0, s{RW1+2}")
    w1 = W(1)
    w1.can_read = False
    if c.xbar:
        a("s_barrier")
    for _ in range(c.w1_first):
        w1.issue()
    a(f"s_add_u32 s{FB}, s{WS}, {FH_OFF}")
    a(f"s_addc_u32 s{FB+1}, s{WS+1}, 0")
    a(f"s_load_dword s{sTAG}, s[{FB}:{FB+1}], {EP_OFF-FH_OFF}")
    if c.tlbw:
        a(f"v_and_b32 v{t0}, 1, v{vL}")
        a(f"v_mul_u32_u24 v{t1}, 0x281000, v{t0}")
        a(f"v_lshlrev_b32 v{t0}, 21, v{t0}")
        a.vm(f"global_load_dword v{vP+1}, v{t1}, s[{WS}:{WS+1}]", "tl")
        if c.tlbw >= 2:
            a.vm(f"global_load_dword v{vP+2}, v{t0}, s[{OUT}:{OUT+1}]", "tl")
            a(f"v_min_u32 v{t0}, 2, v{vL}")
            a(f"v_lshlrev_b32 v{t0}, 21, v{t0}")
            a.vm(f"global_load_dword v{vP+3}, v{t0}, s[{W2}:{W2+1}]", "tl")
    tile2(a)
    a(f"v_lshrrev_b32 v{t3}, 4, v{vL}            ; g")
    a(f"s_min_u32 s{sT0}, s{sFT}, 23\ns_lshl_b32 s{sT0}, s{sT0}, 1\ns_and_b32 s{sT1}, s{sW}, 1\ns_add_u32 s{sT0}, s{sT0}, s{sT1}\ns_lshl_b32 s{sT0}, s{sT0}, 6\nv_lshl_add_u32 v{t5}, v{t3}, 3, s{sT0}")
    for k in range(2):
        a.vm(f"global_load_dwordx2 v[{vB1+2*k}:{vB1+2*k+1}], v{t5}, s[{B1}:{B1+1}] offset:{32*k}", "b1")
    a(f"v_and_b32 v{t4}, 15, v{vL}")
    a(f"s_lshl_b32 s{sT0}, s{sST}, 6\ns_lshl_b32 s{sT1}, s{sW}, 4\ns_add_u32 s{sT0}, s{sT0}, s{sT1}\nv_add_u32 v{vO}, s{sT0}, v{t4}           ; s")
    a(f"v_lshlrev_b32 v{t2}, 1, v{vO}")
    a.vm(f"global_load_ushort v{vB2}, v{t2}, s[{B2}:{B2+1}]", "b2")
    a(f"s_lshl_b32 s{sT0}, s2, {c.fhs-2}\ns_add_u32 s{sT0}, s{sT0}, s{sW}\ns_lshl_b32 s{sFO[0]}, s{sT0}, 2")
    a(f"s_load_dword s{sFD[0]}, s[{FB}:{FB+1}], s{sFO[0]}")
    for h, su in enumerate((sUS0, sUS1)):
        a(f"s_lshr_b32 s{sT0}, s{sW}, 1\ns_add_u32 s{sT0}, s{sT0}, s{sS}\ns_add_u32 s{sT0}, s{sT0}, {2*h}\ns_and_b32 s{sT0}, s{sT0}, 3\ns_lshl_b32 s{sT1}, s{sDT}, 2\ns_add_u32 s{su}, s{sT0}, s{sT1}")
        a(f"s_mul_i32 s{sT0}, s{su}, 24\ns_add_u32 s{sT0}, s{sT0}, s{sFT}\ns_lshl_b32 s{sT0}, s{sT0}, {c.fus-2}\ns_and_b32 s{sT1}, s{sW}, 1\ns_add_u32 s{sT0}, s{sT0}, s{sT1}\ns_lshl_b32 s{sT0}, s{sT0}, 2\ns_add_u32 s{sFO[1+h]}, s{sT0}, {FU_OFF-FH_OFF}")
        a(f"s_load_dword s{sFD[1+h]}, s[{FB}:{FB+1}], s{sFO[1+h]}")
    srd(a, RWS, WS, WS_USED)
    a(f"v_lshrrev_b32 v{t3}, 4, v{vL}            ; g")
    a(f"v_and_b32 v{t4}, 15, v{vL}")
    a(f"v_lshlrev_b32 v{vHS}, 16, v{t3}")
    a(f"v_lshl_add_u32 v{vHS}, v{t4}, 4, v{vHS}")
    a(f"v_bfe_u32 v{t0}, v{vL}, 2, 2             ; r")
    a(f"v_mul_u32_u24 v{t0}, 1344, v{t0}")
    a(f"v_add_u32 v{t0}, {RED}, v{t0}")
    a(f"v_and_b32 v{t1}, 3, v{vL}                ; c")
    a(f"s_lshl_b32 s{sT0}, s{sW}, 2")
    a(f"v_add_u32 v{t3}, s{sT0}, v{t3}           ; T for m=0")
    for m in range(3):
        a(f"v_mul_u32_u24 v{t2}, 205, v{t3}")
        a(f"v_lshrrev_b32 v{t2}, 10, v{t2}       ; j")
        a(f"v_mul_u32_u24 v{t4}, 5, v{t2}")
        a(f"v_sub_u32 v{t4}, v{t3}, v{t4}        ; t")
        a(f"v_mul_u32_u24 v{t2}, 160, v{t2}")
        a(f"v_add_u32 v{t2}, v{t2}, v{t0}")
        a(f"v_lshrrev_b32 v{t5}, 1, v{t4}")
        a(f"v_lshl_add_u32 v{t2}, v{t5}, 6, v{t2}")
        a(f"v_and_b32 v{t5}, 1, v{t4}")
        a(f"v_lshl_add_u32 v{t2}, v{t5}, 3, v{t2}")
        a(f"v_lshrrev_b32 v{t4}, 2, v{t4}")
        a(f"v_sub_u32 v{t4}, 4, v{t4}")
        a(f"v_lshlrev_b32 v{t4}, v{t4}, v{t1}")
        a(f"v_add_u32 v{vLT+m}, v{t2}, v{t4}")
        if m < 2:
            a(f"v_add_u32 v{t3}, 16, v{t3}")
    a(f"s_lshl_b32 s{sT3}, s2, 8")
    a(f"s_lshl_b32 s{sT0}, s{sW}, 18")
    a(f"s_add_u32 s{sT3}, s{sT3}, s{sT0}")
    a(f"s_add_u32 s{sT3}, s{sT3}, {H_OFF}")
    for _ in range(c.w1_pre):
        w1.issue()
    stamp("iss")
    XF = RING + 12
    for i in range(5):
        a.wait(f"x{i}")
        if i == 0:
            stamp(1)
        if i == 4:
            stamp("x4")
            for _ in range(c.w1_x):
                w1.issue()
        for k in range(2):
            a(f"v_lshlrev_b32 v{XF+4*i+2*k}, 16, v{XR+2*i+k}")
            a(f"v_and_b32 v{XF+4*i+2*k+1}, 0xffff0000, v{XR+2*i+k}")
        if i == 0:
            a(f"v_pk_add_f32 v[{t0}:{t0+1}], v[{XF}:{XF+1}], v[{XF+2}:{XF+3}]")
        else:
            a(f"v_pk_add_f32 v[{t0}:{t0+1}], v[{t0}:{t0+1}], v[{XF+4*i}:{XF+4*i+1}]")
            a(f"v_pk_add_f32 v[{t0}:{t0+1}], v[{t0}:{t0+1}], v[{XF+4*i+2}:{XF+4*i+3}]")
    def half_sum():
        a(f"v_add_f32 v{t0}, v{t0}, v{t0+1}")
        for r in (8, 4, 2, 1):
            a("s_nop 1")
            a(f"v_add_f32_dpp v{t0}, v{t0}, v{t0} row_ror:{r} row_mask:0xf bank_mask:0xf")
        a(f"v_mov_b32 v{t0+1}, v{t0}")
        a("s_nop 1")
        a(f"v_permlane16_swap_b32 v{t0+1}, v{t0}")
        a(f"v_add_f32 v{t0}, v{t0}, v{t0+1}")
    half_sum()
    a(f"v_mul_f32 v{t0}, {f32(-1.0/D)}, v{t0}    ; -mean")
    a(f"v_mov_b32 v{t0+1}, v{t0}")
    for i in range(10):
        a(f"v_pk_add_f32 v[{XF+2*i}:{XF+2*i+1}], v[{XF+2*i}:{XF+2*i+1}], v[{t0}:{t0+1}]")
    a(f"v_pk_mul_f32 v[{t0}:{t0+1}], v[{XF}:{XF+1}], v[{XF}:{XF+1}]")
    for i in range(1, 10):
        a(f"v_pk_fma_f32 v[{t0}:{t0+1}], v[{XF+2*i}:{XF+2*i+1}], v[{XF+2*i}:{XF+2*i+1}], v[{t0}:{t0+1}]")
    half_sum()
    a(f"v_mov_b32 v{t0+1}, {f32(1e-5)}")
    a(f"v_fmac_f32 v{t0+1}, {f32(1.0/D)}, v{t0}")
    a(f"v_rsq_f32 v{t0}, v{t0+1}")
    a("s_nop 0")
    a(f"v_mov_b32 v{t0+1}, v{t0}")
    for i in range(10):
        a(f"v_pk_mul_f32 v[{XF+2*i}:{XF+2*i+1}], v[{XF+2*i}:{XF+2*i+1}], v[{t0}:{t0+1}]")
    for i in range(5):
        a(f"v_cvt_pk_bf16_f32 v{XR+2*i}, v{XF+4*i}, v{XF+4*i+1}")
        a(f"v_cvt_pk_bf16_f32 v{XR+2*i+1}, v{XF+4*i+2}, v{XF+4*i+3}")
        a(f"ds_write_b64 v3, v[{XR+2*i}:{XR+2*i+1}] offset:{256*i}")
    for _ in range(c.w1_ln):
        w1.issue()
    a("s_waitcnt lgkmcnt(0)")
    a("s_barrier")
    stamp(2)
    HT = RING + 12
    for m in range(3):
        a(f"ds_read_b64_tr_b16 v[{HT+4*m}:{HT+4*m+1}], v{vLT+m}")
        a(f"ds_read_b64_tr_b16 v[{HT+4*m+2}:{HT+4*m+3}], v{vLT+m} offset:{4*1344}")
    a(f"s_add_u32 s{sT0}, s{sT3}, {1<<20}")
    a(f"s_add_u32 s{sT1}, s{sT3}, {2<<20}")
    a(f"s_cmp_ge_u32 s{sW}, 2")
    a(f"s_cselect_b32 s{sT1}, 0x40000000, s{sT1}")
    if c.stamp or c.pad:
        a("s_waitcnt lgkmcnt(0)")
    for m, so in enumerate((sT3, sT0, sT1)):
        a(f"s_waitcnt lgkmcnt({4-2*m})")
        a.vm(f"buffer_store_dwordx4 v[{HT+4*m}:{HT+4*m+3}], v{vHS}, s[{RWS}:{RWS+3}], s{so} offen sc1", "hst")
    stamp("hsto")
    if c.padx >= 0:
        a(f"s_or_b32 s{sT0}, s2, s{sW}")
        a("s_cbranch_scc1 L_nopx")
        a(f"v_mov_b32 v{t0}, {ST_OFF}")
        a(f"v_mov_b32 v{t1}, s100")
        a(f"global_store_dword v{t0}, v{t1}, s[{WS}:{WS+1}] sc1")
        a("L_nopx:")
    def setup_common(f):
        f(f"s_mul_i32 s{sTAG}, s{sTAG}, 1664525")
        f(f"s_add_u32 s{sTAG}, s{sTAG}, 1013904223")
        f(f"v_mov_b32 v{vTAG}, s{sTAG}")
        for k in range(3):
            f(f"s_sub_u32 s{sFD[k]}, s{sTAG}, s{sFD[k]}")
        f(f"v_lshrrev_b32 v{t0}, 2, v{vL}            ; row = 4g + r")
        f(f"v_lshlrev_b32 v{vT1}, 7, v{t0}")
        f(f"v_bfe_u32 v{t0}, v{vL}, 3, 2")
        f(f"v_lshl_add_u32 v{vT1}, v{t0}, 5, v{vT1}")
        f(f"v_and_b32 v{t0}, 3, v{vL}")
        f(f"v_lshl_add_u32 v{vT1}, v{t0}, 3, v{vT1}")
        f(f"v_add_u32 v{vT1}, s{sLDS}, v{vT1}")
        f(f"s_lshl_b32 s{sT0}, s{sW}, 5\nv_xor_b32 v{vT2}, s{sT0}, v{vT1}")
        f(f"s_and_b32 s{sT0}, s{sW}, 1\ns_lshl_b32 s{sT0}, s{sT0}, 6\nv_xor_b32 v{vT1}, s{sT0}, v{vT1}")
        for b in range(1, 4):
            f(f"v_xor_b32 v{vT1+b}, {b*32}, v{vT1}")
    def setup_g2(f):
        f(f"v_lshrrev_b32 v{t3}, 4, v{vL}")
        f(f"v_mul_u32_u24 v{vO}, 1280, v{vO}")
        f(f"v_lshl_add_u32 v{vO+1}, v{t3}, 3, v{vO}")
        f(f"v_lshl_add_u32 v{vO}, v{t3}, 4, v{vO}")
        for b in range(1, 4):
            f(f"v_xor_b32 v{vT2+b}, {b*32}, v{vT2}")
        for j in range(1, 4):
            f(f"v_add_u32 v{vD2+j}, {j*(8*4096-1024)}, v{vD2}")
        for t in range(1, 5):
            f(f"v_add_u32 v{vU+t}, {t*49152}, v{vU}")
        for k, (lo, cnt) in enumerate(((0, 24), (24, 36))):
            f(f"v_min_u32 v{t0}, {cnt-1}, v{vL}")
            f(f"v_mul_u32_u24 v{t1}, 43, v{t0}")
            f(f"v_lshrrev_b32 v{t1}, 9, v{t1}            ; n/12")
            f(f"v_mul_u32_u24 v{t1}, 18, v{t1}")
            f(f"v_lshrrev_b32 v{t2}, 1, v{t0}")
            f(f"s_mul_i32 s{sT0}, s{sJ}, 120\ns_mul_i32 s{sT1}, s{sW}, 6\ns_add_u32 s{sT0}, s{sT0}, s{sT1}\nv_add3_u32 v{t1}, v{t1}, v{t2}, s{sT0}")
            f(f"v_and_b32 v{t0}, 1, v{t0}")
            f(f"v_lshlrev_b32 v{t0}, 2, v{t0}")
            f(f"v_lshl_add_u32 v{vFU+k}, v{t1}, {c.fus}, v{t0}")
            f(f"v_add_u32 v{vFU+k}, {FU_OFF + ((lo // 12 * 24) << c.fus)}, v{vFU+k}")
        srd(f, RW2, W2, S * F * 2)
        srd(f, ROUT, OUT, S * D * 2)
    def setup_g1(f):
        f(f"v_lshlrev_b32 v{vFH}, {c.fhs}, v0")
        f(f"v_add_u32 v{vFH}, {FH_OFF}, v{vFH}")
        for p in range(4):
            f(f"s_lshr_b32 s{sT0}, s{sW}, 1\ns_xor_b32 s{sT0}, s{sT0}, {(p&1)^1}\ns_add_u32 s{sT0}, s{sT0}, s{sS}\ns_add_u32 s{sT0}, s{sT0}, {p&2}\ns_and_b32 s{sT0}, s{sT0}, 3\ns_lshl_b32 s{sT1}, s{sT0}, 16\nv_add_u32 v{vH+p}, s{sT1}, v{vU}")
        for h, su in enumerate((sUS0, sUS1)):
            f(f"s_mul_i32 s{su}, s{su}, 48\ns_lshl_b32 s{sT0}, s{sFT}, 1\ns_add_u32 s{su}, s{su}, s{sT0}\ns_and_b32 s{sT1}, s{sW}, 1\ns_add_u32 s{su}, s{su}, s{sT1}\ns_lshl_b32 s{su}, s{su}, 10\ns_add_u32 s{su}, s{su}, {U_OFF}")
        f(f"s_lshl_b32 s{sT3}, {0 if c.fake & 1 else 's%d' % sDT}, 18\ns_lshl_b32 s{sT1}, s{sW}, 14\ns_add_u32 s{sT3}, s{sT3}, s{sT1}\ns_add_u32 s{sT3}, s{sT3}, {H_OFF}")
        for i in range(NS1):
            f(f"s_add_u32 s{sT1}, s{sROT1}, {i}\ns_and_b32 s{sT1}, s{sT1}, 15\ns_lshl_b32 s{sT1}, s{sT1}, 10\ns_add_u32 s{sK+i}, s{sT1}, s{sT3}")
        for k in range(4):
            f(f"s_xor_b32 s{sT0}, s{sW}, {k}\ns_mul_i32 s{sT0}, s{sT0}, 12288\ns_add_u32 s{sT0}, s{sT0}, {RED}\nv_add_u32 v{vR+k}, s{sT0}, v{vU}")
        c1 = -2.0 * math.log2(math.e) * math.sqrt(2.0 / math.pi)
        f(f"v_mov_b32 v{vC1}, {f32(c1)}")
        f(f"v_mov_b32 v{vC1+1}, {f32(c1*0.044715)}")
        f(lambda: a.wait("b1"))
        for p in (1, 3):
            for k in range(4):
                f(f"v_lshlrev_b32 v{ACC+16*p+2*k}, 16, v{vB1+k}")
                f(f"v_and_b32 v{ACC+16*p+2*k+1}, 0xffff0000, v{vB1+k}")
    fl = Fill(a)
    if c.hearly:
        a("s_cmp_ge_u32 s2, 240")
        a("s_cbranch_scc1 L_idle")
    setup_common(fl)
    fl(lambda: setattr(w1, "can_read", True))
    setup_g2(fl)
    for _ in range(c.w1_mid):
        w1.step(fl, older_than="hst")
    fl.flush()
    a.wait("hst")
    stamp(3)
    flag_add(0)
    if not c.hearly:
        a("s_cmp_ge_u32 s2, 240")
        a("s_cbranch_scc1 L_idle")
    setup_g1(fl)
    fl.emit(2)
    sE, sGRP, sM0 = 6, 9, 12
    def w2offs(f):
        f(f"s_mul_i32 s{sT0}, s{sW}, {12*32*4096}\ns_lshl_b32 s{sT1}, s{sST}, 7\ns_add_u32 s{sT0}, s{sT0}, s{sT1}\ns_add_u32 s{sT1}, s{sT0}, {12*32*4096}\n"
          f"s_mul_i32 s{sE}, s{sROT2}, {32*4096}\ns_add_u32 s{sE}, s{sE}, s{sT0}\n"
          + "\n".join(f"s_add_u32 s{sE+k}, s{sE+k-1}, {32*4096}\ns_cmp_eq_u32 s{sE+k}, s{sT1}\ns_cselect_b32 s{sE+k}, s{sT0}, s{sE+k}" for k in range(1, c.w2e + 1)))
    if c.w2e:
        w2offs(a)
        a(f"s_lshr_b32 s{sGRP}, s2, {c.esh}")
        a(f"s_and_b32 s{sGRP}, s{sGRP}, {c.egrp-1}")
    while w1.left() > c.ov1:
        if w1.left() == c.pe1 + c.ov1:
            a.vm(poll_load("h"), "hpoll")
        if c.w2e and w1.n >= c.e0 and (w1.n - c.e0) % c.estep == 0 and (w1.n - c.e0) // c.estep < c.egrp:
            g = (w1.n - c.e0) // c.estep
            a(f"s_cmp_lg_u32 s{sGRP}, {g}")
            a(f"s_cbranch_scc1 L_e{g}")
            a(f"s_mov_b32 s{sM0}, m0")
            for k in range(c.w2e):
                a(f"s_add_u32 m0, s{sLDS}, {(WSLOT-c.w2e+k)*4096}")
                a("s_nop 0")
                for j in range(4):
                    a(f"buffer_load_dwordx4 v{vD2+j}, s[{RW2}:{RW2+3}], s{sE+k} offen offset:{1024*j} lds")
            a(f"s_mov_b32 m0, s{sM0}")
            a("s_nop 0")
            a(f"L_e{g}:")
        w1.step(fl)
    assert not c.w2e or c.e0 + (c.egrp - 1) * c.estep < 64
    if c.pe1 == 0:
        a.vm(poll_load("h"), "hpoll")
    fl.flush()
    a.wait("hpoll")
    stamp(4)
    spin("h")
    stamp(5)
    N1 = 64
    def hissue(n):
        r = RING + 4 * (n % NRING)
        a.vm(f"buffer_load_dwordx4 v[{r}:{r+3}], v{vH+n//16}, s[{RWS}:{RWS+3}], s{sK+n%16} offen sc1", f"h{n}")
    hst_ = [c.d0 if c.ov1 else c.hd]
    for n in range(hst_[0]):
        hissue(n)
        w1.reads(2)
    if not c.ov1:
        w1.drain()
    def w2setup(done):
        a(f"s_mul_i32 s{sWO0}, s{sW}, {12*32*4096}")
        a(f"s_lshl_b32 s{sT0}, s{sST}, 7")
        a(f"s_add_u32 s{sWO0}, s{sWO0}, s{sT0}")
        a(f"s_add_u32 s{sWOE}, s{sWO0}, {12*32*4096}")
        if c.nh:
            a(f"s_mov_b32 m0, s{sLDS}")
            a(step_off(sWO, sWO0, 0, 17))
        elif done:
            a(f"s_mov_b32 m0, s{sLDS}")
            a(f"s_mov_b32 s{sWO}, s{sE+done}")
        else:
            a(f"s_mul_i32 s{sT0}, s{sROT2}, {32*4096}")
            a(f"s_add_u32 m0, s{sLDS}, {((WSLOT-c.w2e)%WSLOT)*4096}")
            a(f"s_add_u32 s{sWO}, s{sWO0}, s{sT0}")
    if not c.ov1:
        w2setup(c.w2e)
        a.dwait()
    stamp("g1s")
    w2 = W(2)
    w2.n = 4 * c.w2e
    w2.can_read = False
    def plan(m, st, w, issue, total, depth, tail):
        ops = []
        nw = min(c.wpp, w.left())
        want = min(total, 2 * m + 2 + (c.d0 if nw else depth))
        na = min(want - st[0], 2 if nw else 4)
        acts = [lambda n=st[0] + k: issue(n) for k in range(na)]
        st[0] += na
        ws_ = [w.issue] * nw
        while acts or ws_:
            for _ in range((c.wpp + 1) // 2):
                if ws_:
                    ops.append(ws_.pop(0))
            if acts:
                ops.append(acts.pop(0))
        if not ops and st[0] == total:
            ops = tail()
        gaps = {0: [], 1: [1], 2: [c.lg0, c.lg1], 3: [1, 3, 5], 4: [0, 2, 4, 6], 5: [0, 1, 3, 4, 6], 6: [0, 1, 2, 4, 5, 6], 7: list(range(7)), 8: list(range(8))}[len(ops)]
        return dict(zip(gaps, ops))
    def need_steps(w, upto):
        if w.rd < 8 * (upto + 1):
            a.wait(w.tag(4 * upto + 3))
            w.reads(8 * (upto + 1) - w.rd)
        for i in range(upto + 1):
            a.dwait(f"r{w.kind}_{i}")
    def spread(nf):
        if c.lg0 >= 0:
            free = [g for g in range(8) if g not in (c.lg0, c.lg1)]
            free.sort(key=lambda g: g == 7)
            per = [0] * 8
            for x in range(nf):
                per[free[x % len(free)]] += 1
            return per
        if c.gap2:
            return [0 if g % 2 == 0 else nf // 4 + (1 if g // 2 < nf % 4 else 0) for g in range(8)]
        return [nf // 8 + (1 if g < nf % 8 else 0) for g in range(8)]
    def red_write(f, p, aa):
        cw = ACC + 16 * p + 4 * aa
        slot = aa if p % 2 == 0 else 2 + aa
        f(lambda: a.ds(f"ds_write_b128 v{vR}, v[{cw}:{cw+3}] offset:{(p//2)*6144+slot*1024}", f"rw{p}"))
    def red_finish(f, h):
        P0, P1, T = ACC + 32 * h, ACC + 32 * h + 16, RD + 12 * h
        for x, (k, slot, dst) in enumerate(((2, 0, P0), (3, 2, P0 + 8), (1, 4, P1 + 8), (2, 1, P0 + 4), (3, 3, P0 + 12), (1, 5, P1 + 12))):
            f(lambda k=k, slot=slot, dst=dst, x=x: a.ds(f"ds_read_b128 v[{dst}:{dst+3}], v{vR+k} offset:{h*6144+slot*1024}", f"rr{h}_{x}"))
        f("s_nop 0") if False else None
        for half in range(2):
            f(lambda half=half: a.dwait(f"rr{h}_{3*half+2}"))
            for r in range(4 * half, 4 * half + 4):
                f(f"v_add_f32 v{P0+r}, v{P0+r}, v{P0+8+r}")
                f(f"v_add_f32 v{P1+r}, v{P1+r}, v{P1+8+r}")
            for r in range(4 * half, 4 * half + 4):
                f(f"v_add_f32 v{P1+r}, v{P1+r}, v{P0+r}")
        for r in range(8):
            f(f"v_mul_f32 v{T+r}, v{P1+r}, v{P1+r}")
        for r in range(8):
            f(f"v_fma_f32 v{T+r}, v{T+r}, v{vC1+1}, v{vC1}")
        for r in range(8):
            f(f"v_mul_f32 v{T+r}, v{T+r}, v{P1+r}")
        for r in range(8):
            f(f"v_exp_f32 v{T+r}, v{T+r}")
        for r in range(8):
            f(f"v_add_f32 v{T+r}, 1.0, v{T+r}")
        for r in range(8):
            f(f"v_rcp_f32 v{T+r}, v{T+r}")
        for r in range(8):
            f(f"v_mul_f32 v{T+r}, v{T+r}, v{P1+r}")
        for r in range(4):
            f(f"v_cvt_pk_bf16_f32 v{T+8+r}, v{T+2*r}, v{T+2*r+1}")
        su = sUS0 if h == 0 else sUS1
        f(lambda: a.vm(f"buffer_store_dwordx4 v[{T+8}:{T+11}], v{vU}, s[{RWS}:{RWS+3}], s{su} offen sc1", f"ust{h}"))
    for m in range(N1 // 2):
        p, i = m // 8, 2 * (m % 8)
        stamp(f"g1_{m}")
        if hst_[0] == N1 and w2.n == 4 * c.w2e:
            stamp("t0")
        ops = plan(m, hst_, w1, hissue, N1, c.hd, lambda: [w2.issue] * c.w2_tail)
        if c.ov1 and m == 8:
            assert w1.left() == 0 and w1.rd == 8 * NS1
            w2setup(c.w2e)
        if m % 8 == 1 and p >= 1:
            for aa in (range(4) if p % 2 == 1 else (2, 3)):
                red_write(fl, p - 1, aa)
        a.wait(f"h{2*m+1}")
        if m < 8:
            need_steps(w1, 2 * m + 1)
        per = spread(c.g1fill)
        order = (2, 3, 0, 1) if m == N1 // 2 - 1 else (0, 1, 2, 3)
        for ti, t in enumerate(order):
            for e0 in range(2):
                e = e0 ^ (ti & 1) if c.serp else e0
                rb = RING + 4 * ((2 * m + e) % NRING)
                cc = ACC + 16 * p + 4 * t
                src = "0" if (i == 0 and e0 == 0 and not (p % 2 == 1 and t < 2)) else f"v[{cc}:{cc+3}]"
                ra = 16 * (i + e) + 4 * t
                if not (c.fake & 4):
                    a(f"v_mfma_f32_16x16x32_bf16 v[{cc}:{cc+3}], a[{ra}:{ra+3}], v[{rb}:{rb+3}], {src}")
                if 2 * ti + e0 in ops:
                    ops[2 * ti + e0]()
                if m < 8:
                    w1.reads(2)
                fl.emit(per[2 * ti + e0])
        if m == c.g1bar:
            assert not fl.g
            a.dwait()
            if not (c.fake & 16):
                a("s_barrier")
            red_finish(fl, 0)
            if c.fake & 8:
                fl.g = [x if callable(x) else (lambda: None) for x in fl.g]
    fl.flush()
    stamp(6)
    w2.can_read = True
    a("s_nop 3")
    red_write(fl, 3, 2)
    red_write(fl, 3, 3)
    fl.flush()
    w2.issue()
    a.dwait()
    a("s_barrier")
    red_finish(fl, 1)
    fl.emit(6)
    k = 0
    flagged = False
    while fl.g:
        if k == c.fe_pos:
            a.wait("ust0")
            stamp("fe")
            flag_add(1)
            flagged = True
        if k < c.w2_un:
            w2.step(fl, throttle=False)
        else:
            fl.emit(c.fillk)
        k += 1
    stamp(7)
    if not flagged:
        a.wait("ust0")
        stamp("fe")
        flag_add(1)
    for _ in range(c.w2_mid):
        w2.step(None, older_than="ust1")
    a.wait("ust1")
    flag_add(2)
    a("L_join:")
    join_n, join_rd = w2.n, w2.rd
    stamp(8)
    fl(f"s_mul_i32 s{sT3}, {0 if c.fake & 2 else 's%d' % sJ}, {5*49152}\ns_mul_i32 s{sT1}, s{sW}, 12288\ns_add_u32 s{sT3}, s{sT3}, s{sT1}\ns_add_u32 s{sT3}, s{sT3}, {U_OFF}")
    if c.nh:
        for i in range(NS2):
            fl(step_off(sK + i, sT3, i, 10))
    else:
        fl(f"s_add_u32 s{sUS1}, s{sT3}, 12288\ns_lshl_b32 s{sK}, s{sROT2}, 10\ns_add_u32 s{sK}, s{sK}, s{sT3}")
        for i in range(1, NS2):
            fl(f"s_add_u32 s{sK+i}, s{sK+i-1}, 1024\ns_cmp_eq_u32 s{sK+i}, s{sUS1}\ns_cselect_b32 s{sK+i}, s{sT3}, s{sK+i}")
    fl(f"v_lshlrev_b32 v{vB2}, 16, v{vB2}")
    for t in range(5):
        for r in range(4):
            fl(f"v_mov_b32 v{ACC+16*t+r}, v{vB2}")
    for k in range(4):
        fl(f"s_xor_b32 s{sT0}, s{sW}, {k}\ns_mul_i32 s{sT0}, s{sT0}, {WSLOT*4096}\nv_add_u32 v{vR+k}, s{sT0}, v{vU}")
    fl(f"s_mul_i32 s{sUS0}, s{sJ}, 160")
    assert w2.left() >= c.pe2 + c.ov2
    while w2.left() > c.ov2:
        if w2.left() == c.pe2 + c.ov2:
            a.vm(poll_load("a"), "apoll")
        w2.step(fl)
    if c.pe2 == 0:
        a.vm(poll_load("a"), "apoll")
    fl.flush()
    a.wait("apoll")
    stamp(9)
    spin("a")
    stamp(10)
    N2 = 60
    def uissue(n):
        if n == 24 - c.pbl:
            a.vm(poll_load("b"), "bpoll")
        if n == 24:
            a.wait("bpoll")
            spin("b")
            stamp("pb")
        r = RING + 4 * (n % NRING)
        a.vm(f"buffer_load_dwordx4 v[{r}:{r+3}], v{vU+n//12}, s[{RWS}:{RWS+3}], s{sK+n%12} offen sc1", f"u{n}")
    ust_ = [c.d0 if c.ov2 else c.ud]
    for n in range(ust_[0]):
        uissue(n)
        w2.reads(2)
    if not c.ov2:
        w2.drain()
        a.dwait()
    stamp("g2s")
    def fin_reads(f, ts):
        for t in ts:
            for k in range(1, 4):
                cr = ACC + 16 * t + 4 * k
                f(lambda t=t, k=k, cr=cr: a.ds(f"ds_read_b128 v[{cr}:{cr+3}], v{vR+k} offset:{(k-1)*5120+t*1024}", f"fr{t}"))
    def fin(f, t):
        f(lambda: a.dwait(f"fr{t}"))
        cc = ACC + 16 * t
        for r in range(4):
            f(f"v_add_f32 v{cc+r}, v{cc+r}, v{cc+4+r}")
            f(f"v_add_f32 v{cc+8+r}, v{cc+8+r}, v{cc+12+r}")
        for r in range(4):
            f(f"v_add_f32 v{cc+r}, v{cc+r}, v{cc+8+r}")
        for r in (0, 2):
            f(f"v_cvt_pk_bf16_f32 v{RD+2*t+r//2}, v{cc+r}, v{cc+r+1}")
    def ostore(pp):
        a.vm(f"buffer_store_dwordx4 v[{RD+4*pp}:{RD+4*pp+3}], v{vO}, s[{ROUT}:{ROUT+3}], s{sUS0} offen offset:{64*pp}{OP[c.opol] if c.osc >> pp & 1 else ''}", "o")
    stored0 = [False]
    for m in range(N2 // 2):
        t, i = m // 6, 2 * (m % 6)
        stamp(f"g2_{m}")
        def tail2():
            if stored0[0]:
                return []
            stored0[0] = True
            return [lambda: ostore(0)]
        ops = plan(m, ust_, w2, uissue, N2, c.ud, tail2)
        if m % 6 == 1 and t >= 1:
            for b in range(1, 4):
                cw = ACC + 16 * (t - 1) + 4 * b
                fl.g.insert(b - 1, lambda cw=cw, b=b, t=t: a.ds(f"ds_write_b128 v{vR}, v[{cw}:{cw+3}] offset:{(b-1)*5120+(t-1)*1024}", "fw"))
        a.wait(f"u{2*m+1}")
        if m < 6:
            need_steps(w2, 2 * m + 1)
        per = spread(c.g2l if m > c.g2b1 else c.g2f)
        for bi, b in enumerate((1, 2, 3, 0)):
            for e0 in range(2):
                e = e0 ^ (bi & 1) if c.serp else e0
                ra = RING + 4 * ((2 * m + e) % NRING)
                cc = ACC + 16 * t + 4 * b
                src = "0" if (i == 0 and e0 == 0 and b) else f"v[{cc}:{cc+3}]"
                rb = 16 * (i + e) + 4 * b
                if not (c.fake & 4):
                    a(f"v_mfma_f32_16x16x32_bf16 v[{cc}:{cc+3}], v[{ra}:{ra+3}], a[{rb}:{rb+3}], {src}")
                if 2 * bi + e0 in ops:
                    ops[2 * bi + e0]()
                if m < 6:
                    w2.reads(2)
                fl.emit(per[2 * bi + e0])
        if m in (c.g2b0, c.g2b1):
            assert not fl.g
            a.dwait()
            if not (c.fake & 16):
                a("s_barrier")
            ts = (0, 1) if m == c.g2b0 else (2, 3)
            fin_reads(fl, ts)
            for tt in ts:
                fin(fl, tt)
            if c.fake & 8:
                fl.g = [x if callable(x) else (lambda: None) for x in fl.g]
            if m == c.g2b1:
                fl(lambda: ostore(1))
            elif c.o0e:
                fl(lambda: ostore(0))
                stored0[0] = True
    stamp(11)
    a("s_nop 1")
    for b in range(1, 4):
        cw = ACC + 64 + 4 * b
        if b > 1:
            a("s_nop 0")
        a.ds(f"ds_write_b128 v{vR}, v[{cw}:{cw+3}] offset:{(b-1)*5120+4096}")
    fl.flush()
    a.dwait()
    a("s_barrier")
    stamp("e2")
    fin_reads(fl, (4,))
    fl.flush()
    if c.stamp:
        a.dwait()
    fin(fl, 4)
    fl.flush()
    a(f"buffer_store_dwordx2 v[{RD+8}:{RD+9}], v{vO+1}, s[{ROUT}:{ROUT+3}], s{sUS0} offen offset:128{OP[c.opol] if c.osc & 4 else ''}")
    a(f"s_or_b32 s{sT0}, s2, s{sW}")
    a("s_cbranch_scc1 L_noepoch")
    a(f"v_mov_b32 v{t5}, {EP_OFF}")
    flag_store(t5, None, "")
    a("L_noepoch:")
    if c.stamp:
        stamp("e3")
        a("s_waitcnt vmcnt(0)")
        stamp(12)
        a(f"s_lshl_b32 s{sT0}, s2, 3")
        a(f"s_add_u32 s{sT0}, s{sT0}, s{sW}")
        a(f"s_lshl_b32 s{sT0}, s{sT0}, 6")
        a(f"s_add_u32 s{sT0}, s{sT0}, {ST_OFF}")
        a(f"v_mov_b32 v{t0}, s{sT0}")
        a("s_waitcnt lgkmcnt(0)")
        for i in range(13):
            a(f"v_mov_b32 v{t1}, s{STB+2*i}")
            a(f"global_store_dword v{t0}, v{t1}, s[{WS}:{WS+1}] offset:{4*i}")
    if c.pad:
        a("s_waitcnt vmcnt(0)")
        stamp("end")
        a("s_waitcnt lgkmcnt(0)")
        a("s_sub_u32 s64, s98, s100")
        if c.padx >= 0:
            a(f"s_cmp_lg_u32 s2, {c.padx}")
            a("s_cbranch_scc1 L_end")
            a(f"v_mov_b32 v{t0}, {ST_OFF}")
            a(f"global_load_dword v{t1}, v{t0}, s[{WS}:{WS+1}] sc1")
            a("s_waitcnt vmcnt(0)")
            a(f"v_readfirstlane_b32 s64, v{t1}")
            a("s_nop 3")
            a("s_sub_u32 s64, s100, s64")
            a("s_add_u32 s64, s64, 100")
            a("s_min_u32 s64, s64, 1000")
        a(f"s_mul_i32 s64, s64, {c.mult}")
        a("s_add_u32 s64, s64, 10000")
        a(f"s_mov_b32 s{sCNT}, 0")
        a("L_pad:")
        a("s_memrealtime s[66:67]")
        a("s_waitcnt lgkmcnt(0)")
        a(f"s_add_u32 s{sCNT}, s{sCNT}, 1")
        a(f"s_cmp_ge_u32 s{sCNT}, 200000\ns_cbranch_scc1 L_end")
        a("s_sub_u32 s66, s66, s100")
        a("s_cmp_lt_u32 s66, s64\ns_cbranch_scc1 L_pad")
    a("s_endpgm")
    a("L_idle:")
    if c.hearly:
        srd(a, RW2, W2, S * F * 2)
    else:
        a("s_waitcnt vmcnt(0) lgkmcnt(0)")
    a.q, a.lq = [], []
    if c.pad and c.padat in ("4", "5", "6", "7", "t0", "fe", "g1s"):
        stamp(c.padat)
    if c.stamp:
        for nm in SETS[c.sset]:
            if nm in (4, 5, 6, 7, "t0", "fe", "g1s") or str(nm).startswith(("w1_", "g1_")):
                stamp(nm)
    if c.nh:
        a(f"s_bfe_u32 s{sT1}, s2, 0x10003")
        if c.nh == 4:
            a(f"s_mul_i32 s{sROT2}, s{sT1}, {(12-c.nh)//2}")
        a(f"s_lshl_b32 s{sT1}, s{sT1}, 16")
        a(f"s_mul_i32 s{sT0}, s{sW}, {12*32*4096}")
        a(f"s_add_u32 s{sT0}, s{sT0}, s{sT1}")
        a(f"s_and_b32 s{sT1}, s2, 7")
        a(f"s_lshl_b32 s{sT1}, s{sT1}, 9")
        a(f"s_add_u32 s{sT3}, s{sT0}, s{sT1}")
        sh = c.hsec + 1
        a(f"v_lshrrev_b32 v{vH}, {sh}, v{vL}")
        a(f"v_lshlrev_b32 v{vH}, 12, v{vH}")
        a(f"v_and_b32 v{t1}, {(1<<sh)-1}, v{vL}")
        a(f"v_lshl_add_u32 v{vH}, v{t1}, {9-sh}, v{vH}")
        for r in range(c.nh * c.hsec):
            a(f"buffer_load_dword v{vH+1}, v{vH}, s[{RW2}:{RW2+3}], s{sT3} offen")
            inc = 32 if c.hsec == 1 else (8 if r % 2 == 0 else 24)
            a(f"s_add_u32 s{sT3}, s{sT3}, {inc*4096}")
            if c.hearly and r == 0:
                setup_common(a)
                setup_g2(a)
                a("s_waitcnt vmcnt(1)")
                stamp(3)
                flag_add(0)
            a(f"s_waitcnt vmcnt({c.hq-1})")
    elif c.helper:
        a(f"s_bfe_u32 s{sT1}, s2, 0x10003")
        a(f"s_mul_i32 s{sROT2}, s{sT1}, 6")
    w2setup(0)
    wi = W(2)
    while wi.n < join_n:
        wi.issue()
    a("s_waitcnt vmcnt(0)")
    a.q = []
    wi.reads(join_rd - wi.rd)
    assert wi.rd == join_rd, (wi.rd, join_rd)
    a.dwait()
    a("s_branch L_join")
    a("L_end:\ns_endpgm")
    a(f""".section .rodata,"a"
.p2align 6
.amdhsa_kernel {NAME}
  .amdhsa_next_free_vgpr 512
  .amdhsa_next_free_sgpr 102
  .amdhsa_accum_offset 256
  .amdhsa_group_segment_fixed_size 0
  .amdhsa_kernarg_size 64
  .amdhsa_user_sgpr_count 2
  .amdhsa_user_sgpr_kernarg_segment_ptr 1
  .amdhsa_system_sgpr_workgroup_id_x 1
  .amdhsa_float_denorm_mode_32 3
.end_amdhsa_kernel""")
    return a.text()

if __name__ == "__main__":
    c = Cfg()
    out = sys.argv[1]
    for x in sys.argv[2:]:
        k, v = x.split("=")
        assert hasattr(c, k), k
        setattr(c, k, v if k == 'padat' else int(v))
    open(out, "w").write(gen(c))
```

```python
import sys, struct, math

def f32(x):
    return "0x%08x" % struct.unpack("<I", struct.pack("<f", x))[0]

S, D, F = 2048, 640, 1536
H_OFF = 0x1000
U_OFF = 0x282000
FH_OFF = 0x464000
EP_OFF = FH_OFF + (16 << 10)
FU_OFF = FH_OFF + (32 << 10)
WS_USED = FU_OFF + (64 << 10)
ST_OFF = 16 << 20
NAME = "standalone__mixer_token_mlp__prompt_kernel"
SPIN_CAP = 400000
OP = [" sc1", " nt", " sc0", " sc0 nt", " sc1 nt"]

class Cfg:
    stamp = 0
    sset = 0
    pad = 0
    mult = 0
    padx = -1
    padat = "end"
    map1 = 1
    map2 = 1
    rot1 = 10
    rot2 = 8
    cpo = 256
    w1_pre = 0
    w1_x = 2
    w1_ln = 2
    w1_mid = 6
    wd = 7
    hd = 10
    ud = 10
    pe1 = 6
    pe2 = 6
    g1bar = 18
    g1fill = 9
    w2_tail = 2
    w2_mid = 7
    w2_un = 5
    pbl = 8
    helper = 0
    serp = 0
    fillk = 8
    rm1 = 0
    rm2 = 0
    opol = 0
    o0e = 0
    fast0 = 0
    ov1 = 0
    ov2 = 0
    d0 = 6
    wpp = 4
    n1 = 3
    hearly = 1
    lg0 = 1
    lg1 = 5
    fake = 0
    gap2 = 0
    g2f = 6
    g2l = 12
    g2b0 = 14
    g2b1 = 26
    nh = 4
    hsec = 1
    hq = 1
    osc = 0
    w2e = 0
    egrp = 4
    e0 = 20
    estep = 8
    esh = 3
    tlbw = 0
    w1_first = 4
    xbar = 1
    fhs = 5
    fus = 6
    slowl = 16
    fe_pos = 4

class A:
    def __init__(self):
        self.L = []
        self.q = []
        self.lq = []
    def __call__(self, s):
        for line in s.strip("\n").split("\n"):
            self.L.append(line)
    def vm(self, s, tag=None):
        self(s)
        self.q.append(tag)
    def recent_slow_before(self, tag, window):
        if tag not in self.q:
            return False
        idx = self.q.index(tag)
        return any(t in ("hst", "hfl", "ust0", "ust1", "ufl0", "ufl1", "b1", "b2") and len(self.q) - 1 - i < window
                   for i, t in enumerate(self.q[:idx]))
    def wait(self, tag):
        if tag not in self.q:
            return
        idx = max(i for i, t in enumerate(self.q) if t == tag)
        n = len(self.q) - 1 - idx
        assert n <= 63
        self(f"s_waitcnt vmcnt({n})")
        self.q = self.q[idx + 1:]
    def pending(self, tag):
        return tag in self.q
    def ds(self, s, tag=None):
        if len(self.lq) >= 13:
            self("s_waitcnt lgkmcnt(7)")
            self.lq = self.lq[-7:]
        self(s)
        self.lq.append(tag)
    def dwait(self, tag=None):
        if tag is None:
            self("s_waitcnt lgkmcnt(0)")
            self.lq = []
            return
        if tag not in self.lq:
            return
        idx = max(i for i, t in enumerate(self.lq) if t == tag)
        self(f"s_waitcnt lgkmcnt({len(self.lq)-1-idx})")
        self.lq = self.lq[idx + 1:]
    def text(self):
        return "\n".join(self.L) + "\n"

class Fill:
    def __init__(self, a):
        self.a = a
        self.g = []
    def __call__(self, s):
        self.g.append(s)
    def emit(self, k):
        while k > 0 and self.g:
            x = self.g.pop(0)
            if callable(x):
                x(); k -= 1
            else:
                self.a(x); k -= x.count("\n") + 1
    def flush(self):
        self.emit(1 << 30)

def srd(a, d, b, nbytes):
    a(f"s_mov_b32 s{d}, s{b}")
    a(f"s_mov_b32 s{d+1}, s{b+1}")
    a(f"s_mov_b32 s{d+2}, {nbytes}")
    a(f"s_mov_b32 s{d+3}, 0x00020000")

def gen(c):
    a = A()
    STB = 76
    SETS = {
        0: [0, 1, 2, 3, 4, 5, "t0", 6, 8, 9, 10, 11, 12],
        1: [0, "ka", "iss", 1, "x4", 2, "hsto", 3, "w1_24", "w1_40", 4, 5, "g1s"],
        2: [0, 5, "g1s", "g1_8", "g1_16", "g1_24", "t0", 6, "fe", 7, 8, 9, 10],
        3: [0, 9, 10, "g2s", "g2_6", "pb", "g2_12", "g2_18", "g2_24", 11, "e2", "e3", 12],
    }
    def stamp(name):
        if c.pad and str(name) == c.padat:
            a("s_memrealtime s[98:99]")
        if c.stamp and name in SETS[c.sset]:
            i = SETS[c.sset].index(name)
            a(f"{'s_memtime' if c.stamp == 2 else 's_memrealtime'} s[{STB+2*i}:{STB+2*i+1}]")
    a("; kernarg: x(0) w1(8) b1(16) w2(24) b2(32) out(40) debug(48) ws(56)")
    a("; @launch grid=(256,1,1) block=(256,1,1) lds=163840")
    a('.amdgcn_target "amdgcn-amd-amdhsa--gfx950"')
    a(f".text\n.globl {NAME}\n.p2align 8\n.type {NAME},@function\n{NAME}:")
    X, W1, B1, W2, B2, OUT, DBG, WS = 4, 6, 8, 10, 12, 14, 16, 18
    sMA, sMB = 20, 22
    RW1, RW2, RWS, ROUT = 24, 28, 32, 36
    sW, sLDS, sDT, sFT, sJ, sST = 40, 41, 42, 43, 44, 45
    sWO, sWO0, sWOE, sUS0 = 46, 47, 48, 49
    sT0, sT1, sUS1, sCNT, sROT1, sROT2, sT3, sTAG = 50, 51, 52, 53, 54, 55, 56, 57
    sS = 3
    FB = 4
    sFO = (16, 17, 58)
    sFD = (0, 1, 59)
    sK = 60
    vL = 1
    vD1, vD2, vH, vU, vT1, vT2, vR, vO = 4, 8, 12, 16, 21, 25, 29, 33
    vFH, vFU, vFO, vTAG, vB1, vB2, vHS, vLT, vFHO, vC1 = 35, 36, 37, 39, 40, 44, 45, 46, 49, 50
    t0, t1, t2, t3, t4, t5 = 54, 55, 56, 57, 58, 59
    vP = 60
    ACC, RING, RD = 64, 144, 208
    RED = 114688
    WSLOT = 7
    NRING = 16
    NS1, NS2 = 16, 12

    def poll_load(kind):
        if kind == "h":
            return f"global_load_dwordx4 v[{vP}:{vP+3}], v{vFH}, s[{WS}:{WS+1}] sc1"
        return f"global_load_dword v{vP}, v{vFU if kind == 'a' else vFU+1}, s[{WS}:{WS+1}] sc1"
    def poll_test(kind):
        if kind == "h":
            a(f"v_bitop3_b32 v{vP}, v{vP}, v{vP+1}, v{vTAG} bitop3:0x7e")
            a(f"v_bitop3_b32 v{vP+2}, v{vP+2}, v{vP+3}, v{vTAG} bitop3:0x7e")
            a(f"v_or_b32 v{vP}, v{vP}, v{vP+2}")
            a(f"v_cmp_ne_u32 vcc, 0, v{vP}")
        else:
            a(f"v_cmp_ne_u32 vcc, s{sTAG}, v{vP}")
    def spin(kind):
        label = "L_p" + kind
        poll_test(kind)
        a(f"s_cbranch_vccz {label}_ok")
        a(f"s_mov_b32 s{sCNT}, 0")
        a(f"{label}_l:")
        a(poll_load(kind))
        a(f"s_add_u32 s{sCNT}, s{sCNT}, 1")
        a(f"s_cmp_ge_u32 s{sCNT}, {SPIN_CAP}")
        a(f"s_cbranch_scc1 {label}_ok")
        a("s_waitcnt vmcnt(0)")
        poll_test(kind)
        a(f"s_cbranch_vccnz {label}_l")
        a(f"{label}_ok:")
    def flag_add(k):
        a(f"s_atomic_add s{sFD[k]}, s[{FB}:{FB+1}], s{sFO[k]}")
    def flag_store(vaddr, tag, sc=" sc1"):
        a("s_mov_b64 exec, 1")
        s_ = f"global_store_dword v{vaddr}, v{vTAG}, s[{WS}:{WS+1}]{sc}"
        if tag:
            a.vm(s_, tag)
        else:
            a(s_)
        a("s_mov_b64 exec, -1")

    def step_off(dst, base, i, sh):
        if i < c.n1:
            return f"s_add_u32 s{dst}, s{base}, {i << sh}"
        if c.n1 < i <= c.nh:
            return f"s_add_u32 s{dst}, s{base}, {(i - 1) << sh}"
        k = 0 if i == c.n1 else i - c.nh
        return (f"s_add_u32 s{dst}, s{sROT2}, {k}\ns_and_b32 s{dst}, s{dst}, {12-c.nh-1}\ns_add_u32 s{dst}, s{dst}, {c.nh}\n"
                f"s_lshl_b32 s{dst}, s{dst}, {sh}\ns_add_u32 s{dst}, s{dst}, s{base}")
    class W:
        def __init__(self, kind):
            self.kind = kind
            self.ns = NS1 if kind == 1 else NS2
            self.n = 0
            self.rd = 0
            self.can_read = True
        def left(self):
            return 4 * self.ns - self.n
        def tag(self, n):
            return f"w{self.kind}_{n}"
        def nslot(self):
            return WSLOT - c.w2e if self.kind == 1 else WSLOT
        def slot(self, i):
            return i % self.nslot() if self.kind == 1 else (i + WSLOT - c.w2e) % WSLOT
        def issue(self):
            i, j = self.n >> 2, self.n & 3
            vd, r, step = (vD1, RW1, 32 * 3072) if self.kind == 1 else (vD2, RW2, 32 * 4096)
            if i >= self.nslot() and j == 0:
                old = i - self.nslot()
                if self.rd < 8 * (old + 1):
                    assert self.can_read
                    a.wait(self.tag(4 * old + 3))
                    self.reads(8 * (old + 1) - self.rd)
                a.dwait(f"r{self.kind}_{old}")
            a.vm(f"buffer_load_dwordx4 v{vd+j}, s[{r}:{r+3}], s{sWO} offen offset:{1024*j} lds", self.tag(self.n))
            self.n += 1
            if j == 3 and i + 1 < self.ns:
                if self.slot(i + 1) == 0:
                    a(f"s_mov_b32 m0, s{sLDS}")
                else:
                    a("s_add_u32 m0, m0, 4096")
                if self.kind == 2 and c.nh:
                    a(step_off(sWO, sWO0, i + 1, 17))
                else:
                    a(f"s_add_u32 s{sWO}, s{sWO}, {step}")
                    a(f"s_cmp_eq_u32 s{sWO}, s{sWOE}")
                    a(f"s_cselect_b32 s{sWO}, s{sWO0}, s{sWO}")
        def landed_steps(self):
            k = 0
            while 4 * k + 3 < self.n and not a.pending(self.tag(4 * k + 3)):
                k += 1
            return k
        def reads(self, k):
            vt = vT1 if self.kind == 1 else vT2
            lim = 8 * self.landed_steps() if self.can_read else 0
            while k > 0 and self.rd < lim:
                i, x = self.rd >> 3, self.rd & 7
                b, e = x >> 1, x & 1
                r = 16 * i + 4 * b + 2 * e
                a.ds(f"ds_read_b64_tr_b16 a[{r}:{r+1}], v{vt+b} offset:{self.slot(i)*4096+e*2048}", f"r{self.kind}_{i}")
                self.rd += 1
                k -= 1
        def step(self, fill=None, throttle=True, older_than=None):
            if throttle and self.n >= c.wd:
                tg = self.tag(self.n - c.wd)
                if older_than is not None and a.pending(older_than) and a.pending(tg) and a.q.index(tg) > a.q.index(older_than):
                    pass
                elif not a.recent_slow_before(tg, c.slowl):
                    a.wait(tg)
            stamp(f"w{self.kind}_{self.n}")
            self.issue()
            backlog = 8 * self.landed_steps() - self.rd
            self.reads(4 if backlog > 8 else 2)
            if fill is not None:
                fill.emit(c.fillk)
        def drain(self):
            for i in range(self.rd >> 3, self.ns):
                a.wait(self.tag(4 * i + 3))
                self.reads(8)

    def tile2(f):
        if c.map2 == 0:
            f(f"s_and_b32 s{sT0}, s2, 1\ns_lshl_b32 s{sT0}, s{sT0}, 2\ns_bfe_u32 s{sT1}, s2, 0x20003\ns_add_u32 s{sJ}, s{sT0}, s{sT1}\ns_mul_i32 s{sROT2}, s{sT1}, 3")
            if c.rot2 == 42:
                f(f"s_bfe_u32 s{sT1}, s2, 0x10005\ns_mul_i32 s{sT1}, s{sT1}, 6\ns_add_u32 s{sROT2}, s{sROT2}, s{sT1}\ns_cmp_ge_u32 s{sROT2}, 12\ns_cselect_b32 s{sT1}, 12, 0\ns_sub_u32 s{sROT2}, s{sROT2}, s{sT1}")
            f(f"s_bfe_u32 s{sT0}, s2, 0x20001\ns_lshl_b32 s{sT0}, s{sT0}, 3\ns_lshr_b32 s{sST}, s2, 5\ns_add_u32 s{sST}, s{sST}, s{sT0}")
        else:
            f(f"s_bfe_u32 s{sJ}, s2, 0x30003")
            if c.nh == 4:
                f(f"s_mov_b32 s{sROT2}, s{sJ}")
            elif c.nh == 8:
                f(f"s_lshr_b32 s{sROT2}, s{sJ}, 1")
            elif c.rot2 == 8:
                f(f"s_mul_i32 s{sROT2}, s{sJ}, 3\ns_lshr_b32 s{sROT2}, s{sROT2}, 1")
            elif c.rot2 == 4:
                f(f"s_lshr_b32 s{sROT2}, s{sJ}, 1\ns_mul_i32 s{sROT2}, s{sROT2}, 3")
            else:
                f(f"s_mov_b32 s{sROT2}, 0")
            f(f"s_and_b32 s{sT0}, s2, 7\ns_xor_b32 s{sT0}, s{sT0}, {c.rm2}\ns_lshl_b32 s{sT0}, s{sT0}, 2\ns_lshr_b32 s{sST}, s2, 6\ns_add_u32 s{sST}, s{sST}, s{sT0}")
    a("s_cmp_ge_u32 s2, 256\ns_cbranch_scc1 L_end")
    stamp(0)
    if c.pad:
        a("s_memrealtime s[100:101]")
    a("s_load_dwordx16 s[4:19], s[0:1], 0")
    a(f"v_lshrrev_b32 v{t0}, 6, v0")
    a("s_getpc_b64 s[22:23]")
    a("L_pc:")
    a(f"s_lshr_b32 s{sT0}, s2, 3                 ; idx")
    a(f"s_lshl_b32 s{sT1}, s{sT0}, 9")
    a(f"v_lshl_add_u32 v{t1}, v{t0}, 7, s{sT1}")
    a(f"v_min_u32 v{t1}, (L_end-L_pc-{c.cpo}-4), v{t1}")
    a.vm(f"global_load_dword v{vP}, v{t1}, s[22:23] offset:{c.cpo}", "cpf")
    a(f"v_and_b32 v{vL}, 63, v0")
    a(f"v_readfirstlane_b32 s{sW}, v{t0}")
    a(f"v_lshrrev_b32 v{t0}, 5, v0")
    a(f"v_and_b32 v{t1}, 31, v0")
    a(f"v_lshrrev_b32 v{t2}, 7, v0")
    a(f"v_mul_u32_u24 v{t2}, 12, v{t2}")
    a(f"v_add_u32 v{t2}, v{t2}, v{t0}")
    a(f"v_mul_u32_u24 v2, 1280, v{t2}")
    a(f"v_lshl_add_u32 v2, v{t1}, 3, v2          ; x offset")
    def early_setup():
        a(f"s_lshr_b32 s{sT0}, s2, 3                 ; idx")
        a(f"v_mul_u32_u24 v3, 1344, v{t0}")
        a(f"v_lshl_add_u32 v3, v{t1}, 3, v3")
        a(f"v_add_u32 v3, {RED}, v3")
        if c.map1 == 0:
            a(f"s_mul_i32 s{sFT}, s{sT0}, 205")
            a(f"s_lshr_b32 s{sFT}, s{sFT}, 10            ; idx/5")
            a(f"s_mul_i32 s{sT1}, s{sFT}, 5")
            a(f"s_sub_u32 s{sDT}, s{sT0}, s{sT1}         ; idx%5")
            a(f"s_and_b32 s{sS}, s{sDT}, 3")
            a(f"s_mul_i32 s{sROT1}, s{sDT}, 13")
            a(f"s_lshr_b32 s{sROT1}, s{sROT1}, 2     ; 0,3,6,9,13")
            if c.rot1 == 52:
                a(f"s_and_b32 s{sT1}, s{sFT}, 1")
                a(f"s_lshl_b32 s{sT1}, s{sT1}, 3")
                a(f"s_add_u32 s{sROT1}, s{sROT1}, s{sT1}")
                a(f"s_and_b32 s{sROT1}, s{sROT1}, 15")
            a(f"s_and_b32 s{sT1}, s2, 1")
            a(f"s_mul_i32 s{sT1}, s{sT1}, 5")
            a(f"s_add_u32 s{sDT}, s{sDT}, s{sT1}         ; dtile")
            a(f"s_bfe_u32 s{sT1}, s2, 0x20001")
            a(f"s_mul_i32 s{sT1}, s{sT1}, 6")
            a(f"s_add_u32 s{sFT}, s{sFT}, s{sT1}         ; ftile")
        else:
            a(f"s_mul_i32 s{sFT}, s{sT0}, 205")
            a(f"s_lshr_b32 s{sFT}, s{sFT}, 11            ; idx/10")
            a(f"s_mul_i32 s{sT1}, s{sFT}, 10")
            a(f"s_sub_u32 s{sDT}, s{sT0}, s{sT1}         ; dtile")
            a(f"s_cmp_ge_u32 s{sDT}, 5")
            a(f"s_cselect_b32 s{sS}, 5, 0")
            a(f"s_sub_u32 s{sS}, s{sDT}, s{sS}")
            a(f"s_and_b32 s{sS}, s{sS}, 3")
            if c.rot1 == 10:
                a(f"s_mul_i32 s{sROT1}, s{sDT}, 13")
                a(f"s_lshr_b32 s{sROT1}, s{sROT1}, 3")
            elif c.rot1 == 5:
                a(f"s_lshr_b32 s{sROT1}, s{sDT}, 1")
                a(f"s_mul_i32 s{sROT1}, s{sROT1}, 13")
                a(f"s_lshr_b32 s{sROT1}, s{sROT1}, 2")
            else:
                a(f"s_mov_b32 s{sROT1}, 0")
            a(f"s_and_b32 s{sT1}, s2, 7")
            if c.rm1:
                a(f"s_sub_u32 s{sT0}, 2, s{sFT}")
                a(f"s_cmp_eq_u32 s{sT1}, 3")
                a(f"s_cselect_b32 s{sFT}, s{sT0}, s{sFT}")
                a(f"s_cmp_ge_u32 s{sT1}, 6")
                a(f"s_cselect_b32 s{sT0}, 1, 0")
                a(f"s_xor_b32 s{sT1}, s{sT1}, s{sT0}")
            a(f"s_mul_i32 s{sT1}, s{sT1}, 3")
            a(f"s_add_u32 s{sFT}, s{sFT}, s{sT1}         ; ftile")
        a(f"v_lshrrev_b32 v{t0}, 3, v{vL}            ; rr")
        a(f"v_and_b32 v{t1}, 6, v{t0}")
        a(f"v_and_b32 v{t2}, 7, v{vL}")
        a(f"v_xor_b32 v{t1}, v{t1}, v{t2}")
        a(f"v_lshlrev_b32 v{t1}, 4, v{t1}")
        a(f"v_mul_u32_u24 v{vD1}, 3072, v{t0}")
        a(f"v_add_u32 v{vD1}, v{vD1}, v{t1}")
        a(f"v_lshl_add_u32 v{vD2}, v{t0}, 12, v{t1}")
        for j in range(1, 4):
            a(f"v_add_u32 v{vD1+j}, {j*(8*3072-1024)}, v{vD1}")
        a(f"s_mul_i32 s{sWO0}, s{sW}, {512*3072}")
        a(f"s_lshl_b32 s{sT0}, s{sFT}, 7")
        a(f"s_add_u32 s{sWO0}, s{sWO0}, s{sT0}")
        a(f"s_add_u32 s{sWOE}, s{sWO0}, {512*3072}")
        a(f"s_mul_i32 s{sT0}, s{sROT1}, {32*3072}")
        a(f"s_add_u32 s{sWO}, s{sWO0}, s{sT0}")
        a(f"s_mul_i32 s{sLDS}, s{sW}, {WSLOT*4096}")
        a(f"s_mov_b32 m0, s{sLDS}")
    if not c.fast0:
        early_setup()
    a(f"s_lshr_b32 s{sT0}, s2, 2")
    a(f"s_lshl_b32 s{sT0}, s{sT0}, 3")
    a(f"s_and_b32 s{sT1}, s2, 3")
    a(f"s_add_u32 s{sT0}, s{sT0}, s{sT1}")
    a(f"s_mul_i32 s{sT0}, s{sT0}, 5120")
    a(f"v_lshlrev_b32 v{vU}, 4, v{vL}            ; lane*16")
    a("s_waitcnt lgkmcnt(0)")
    stamp("ka")
    a(f"s_add_u32 s{X}, s{X}, s{sT0}")
    a(f"s_addc_u32 s{X+1}, s{X+1}, 0")
    XR = RING
    for i in range(5):
        a.vm(f"global_load_dwordx2 v[{XR+2*i}:{XR+2*i+1}], v2, s[{X}:{X+1}] offset:{256*i}", f"x{i}")
    if c.fast0:
        early_setup()
    srd(a, RW1, W1, S * F * 2)
    a("s_cmp_ge_u32 s2, 240")
    a(f"s_cselect_b32 s{RW1+2}, 0, s{RW1+2}")
    w1 = W(1)
    w1.can_read = False
    if c.xbar:
        a("s_barrier")
    for _ in range(c.w1_first):
        w1.issue()
    a(f"s_add_u32 s{FB}, s{WS}, {FH_OFF}")
    a(f"s_addc_u32 s{FB+1}, s{WS+1}, 0")
    a(f"s_load_dword s{sTAG}, s[{FB}:{FB+1}], {EP_OFF-FH_OFF}")
    if c.tlbw:
        a(f"v_and_b32 v{t0}, 1, v{vL}")
        a(f"v_mul_u32_u24 v{t1}, 0x281000, v{t0}")
        a(f"v_lshlrev_b32 v{t0}, 21, v{t0}")
        a.vm(f"global_load_dword v{vP+1}, v{t1}, s[{WS}:{WS+1}]", "tl")
        if c.tlbw >= 2:
            a.vm(f"global_load_dword v{vP+2}, v{t0}, s[{OUT}:{OUT+1}]", "tl")
            a(f"v_min_u32 v{t0}, 2, v{vL}")
            a(f"v_lshlrev_b32 v{t0}, 21, v{t0}")
            a.vm(f"global_load_dword v{vP+3}, v{t0}, s[{W2}:{W2+1}]", "tl")
    tile2(a)
    a(f"v_lshrrev_b32 v{t3}, 4, v{vL}            ; g")
    a(f"s_min_u32 s{sT0}, s{sFT}, 23\ns_lshl_b32 s{sT0}, s{sT0}, 1\ns_and_b32 s{sT1}, s{sW}, 1\ns_add_u32 s{sT0}, s{sT0}, s{sT1}\ns_lshl_b32 s{sT0}, s{sT0}, 6\nv_lshl_add_u32 v{t5}, v{t3}, 3, s{sT0}")
    for k in range(2):
        a.vm(f"global_load_dwordx2 v[{vB1+2*k}:{vB1+2*k+1}], v{t5}, s[{B1}:{B1+1}] offset:{32*k}", "b1")
    a(f"v_and_b32 v{t4}, 15, v{vL}")
    a(f"s_lshl_b32 s{sT0}, s{sST}, 6\ns_lshl_b32 s{sT1}, s{sW}, 4\ns_add_u32 s{sT0}, s{sT0}, s{sT1}\nv_add_u32 v{vO}, s{sT0}, v{t4}           ; s")
    a(f"v_lshlrev_b32 v{t2}, 1, v{vO}")
    a.vm(f"global_load_ushort v{vB2}, v{t2}, s[{B2}:{B2+1}]", "b2")
    a(f"s_lshl_b32 s{sT0}, s2, {c.fhs-2}\ns_add_u32 s{sT0}, s{sT0}, s{sW}\ns_lshl_b32 s{sFO[0]}, s{sT0}, 2")
    a(f"s_load_dword s{sFD[0]}, s[{FB}:{FB+1}], s{sFO[0]}")
    for h, su in enumerate((sUS0, sUS1)):
        a(f"s_lshr_b32 s{sT0}, s{sW}, 1\ns_add_u32 s{sT0}, s{sT0}, s{sS}\ns_add_u32 s{sT0}, s{sT0}, {2*h}\ns_and_b32 s{sT0}, s{sT0}, 3\ns_lshl_b32 s{sT1}, s{sDT}, 2\ns_add_u32 s{su}, s{sT0}, s{sT1}")
        a(f"s_mul_i32 s{sT0}, s{su}, 24\ns_add_u32 s{sT0}, s{sT0}, s{sFT}\ns_lshl_b32 s{sT0}, s{sT0}, {c.fus-2}\ns_and_b32 s{sT1}, s{sW}, 1\ns_add_u32 s{sT0}, s{sT0}, s{sT1}\ns_lshl_b32 s{sT0}, s{sT0}, 2\ns_add_u32 s{sFO[1+h]}, s{sT0}, {FU_OFF-FH_OFF}")
        a(f"s_load_dword s{sFD[1+h]}, s[{FB}:{FB+1}], s{sFO[1+h]}")
    srd(a, RWS, WS, WS_USED)
    a(f"v_lshrrev_b32 v{t3}, 4, v{vL}            ; g")
    a(f"v_and_b32 v{t4}, 15, v{vL}")
    a(f"v_lshlrev_b32 v{vHS}, 16, v{t3}")
    a(f"v_lshl_add_u32 v{vHS}, v{t4}, 4, v{vHS}")
    a(f"v_bfe_u32 v{t0}, v{vL}, 2, 2             ; r")
    a(f"v_mul_u32_u24 v{t0}, 1344, v{t0}")
    a(f"v_add_u32 v{t0}, {RED}, v{t0}")
    a(f"v_and_b32 v{t1}, 3, v{vL}                ; c")
    a(f"s_lshl_b32 s{sT0}, s{sW}, 2")
    a(f"v_add_u32 v{t3}, s{sT0}, v{t3}           ; T for m=0")
    for m in range(3):
        a(f"v_mul_u32_u24 v{t2}, 205, v{t3}")
        a(f"v_lshrrev_b32 v{t2}, 10, v{t2}       ; j")
        a(f"v_mul_u32_u24 v{t4}, 5, v{t2}")
        a(f"v_sub_u32 v{t4}, v{t3}, v{t4}        ; t")
        a(f"v_mul_u32_u24 v{t2}, 160, v{t2}")
        a(f"v_add_u32 v{t2}, v{t2}, v{t0}")
        a(f"v_lshrrev_b32 v{t5}, 1, v{t4}")
        a(f"v_lshl_add_u32 v{t2}, v{t5}, 6, v{t2}")
        a(f"v_and_b32 v{t5}, 1, v{t4}")
        a(f"v_lshl_add_u32 v{t2}, v{t5}, 3, v{t2}")
        a(f"v_lshrrev_b32 v{t4}, 2, v{t4}")
        a(f"v_sub_u32 v{t4}, 4, v{t4}")
        a(f"v_lshlrev_b32 v{t4}, v{t4}, v{t1}")
        a(f"v_add_u32 v{vLT+m}, v{t2}, v{t4}")
        if m < 2:
            a(f"v_add_u32 v{t3}, 16, v{t3}")
    a(f"s_lshl_b32 s{sT3}, s2, 8")
    a(f"s_lshl_b32 s{sT0}, s{sW}, 18")
    a(f"s_add_u32 s{sT3}, s{sT3}, s{sT0}")
    a(f"s_add_u32 s{sT3}, s{sT3}, {H_OFF}")
    for _ in range(c.w1_pre):
        w1.issue()
    stamp("iss")
    XF = RING + 12
    for i in range(5):
        a.wait(f"x{i}")
        if i == 0:
            stamp(1)
        if i == 4:
            stamp("x4")
            for _ in range(c.w1_x):
                w1.issue()
        for k in range(2):
            a(f"v_lshlrev_b32 v{XF+4*i+2*k}, 16, v{XR+2*i+k}")
            a(f"v_and_b32 v{XF+4*i+2*k+1}, 0xffff0000, v{XR+2*i+k}")
        if i == 0:
            a(f"v_pk_add_f32 v[{t0}:{t0+1}], v[{XF}:{XF+1}], v[{XF+2}:{XF+3}]")
        else:
            a(f"v_pk_add_f32 v[{t0}:{t0+1}], v[{t0}:{t0+1}], v[{XF+4*i}:{XF+4*i+1}]")
            a(f"v_pk_add_f32 v[{t0}:{t0+1}], v[{t0}:{t0+1}], v[{XF+4*i+2}:{XF+4*i+3}]")
    def half_sum():
        a(f"v_add_f32 v{t0}, v{t0}, v{t0+1}")
        for r in (8, 4, 2, 1):
            a("s_nop 1")
            a(f"v_add_f32_dpp v{t0}, v{t0}, v{t0} row_ror:{r} row_mask:0xf bank_mask:0xf")
        a(f"v_mov_b32 v{t0+1}, v{t0}")
        a("s_nop 1")
        a(f"v_permlane16_swap_b32 v{t0+1}, v{t0}")
        a(f"v_add_f32 v{t0}, v{t0}, v{t0+1}")
    half_sum()
    a(f"v_mul_f32 v{t0}, {f32(-1.0/D)}, v{t0}    ; -mean")
    a(f"v_mov_b32 v{t0+1}, v{t0}")
    for i in range(10):
        a(f"v_pk_add_f32 v[{XF+2*i}:{XF+2*i+1}], v[{XF+2*i}:{XF+2*i+1}], v[{t0}:{t0+1}]")
    a(f"v_pk_mul_f32 v[{t0}:{t0+1}], v[{XF}:{XF+1}], v[{XF}:{XF+1}]")
    for i in range(1, 10):
        a(f"v_pk_fma_f32 v[{t0}:{t0+1}], v[{XF+2*i}:{XF+2*i+1}], v[{XF+2*i}:{XF+2*i+1}], v[{t0}:{t0+1}]")
    half_sum()
    a(f"v_mov_b32 v{t0+1}, {f32(1e-5)}")
    a(f"v_fmac_f32 v{t0+1}, {f32(1.0/D)}, v{t0}")
    a(f"v_rsq_f32 v{t0}, v{t0+1}")
    a("s_nop 0")
    a(f"v_mov_b32 v{t0+1}, v{t0}")
    for i in range(10):
        a(f"v_pk_mul_f32 v[{XF+2*i}:{XF+2*i+1}], v[{XF+2*i}:{XF+2*i+1}], v[{t0}:{t0+1}]")
    for i in range(5):
        a(f"v_cvt_pk_bf16_f32 v{XR+2*i}, v{XF+4*i}, v{XF+4*i+1}")
        a(f"v_cvt_pk_bf16_f32 v{XR+2*i+1}, v{XF+4*i+2}, v{XF+4*i+3}")
        a(f"ds_write_b64 v3, v[{XR+2*i}:{XR+2*i+1}] offset:{256*i}")
    for _ in range(c.w1_ln):
        w1.issue()
    a("s_waitcnt lgkmcnt(0)")
    a("s_barrier")
    stamp(2)
    HT = RING + 12
    for m in range(3):
        a(f"ds_read_b64_tr_b16 v[{HT+4*m}:{HT+4*m+1}], v{vLT+m}")
        a(f"ds_read_b64_tr_b16 v[{HT+4*m+2}:{HT+4*m+3}], v{vLT+m} offset:{4*1344}")
    a(f"s_add_u32 s{sT0}, s{sT3}, {1<<20}")
    a(f"s_add_u32 s{sT1}, s{sT3}, {2<<20}")
    a(f"s_cmp_ge_u32 s{sW}, 2")
    a(f"s_cselect_b32 s{sT1}, 0x40000000, s{sT1}")
    if c.stamp or c.pad:
        a("s_waitcnt lgkmcnt(0)")
    for m, so in enumerate((sT3, sT0, sT1)):
        a(f"s_waitcnt lgkmcnt({4-2*m})")
        a.vm(f"buffer_store_dwordx4 v[{HT+4*m}:{HT+4*m+3}], v{vHS}, s[{RWS}:{RWS+3}], s{so} offen sc1", "hst")
    stamp("hsto")
    if c.padx != -1:
        a(f"s_or_b32 s{sT0}, s2, s{sW}")
        a("s_cbranch_scc1 L_nopx")
        a(f"v_mov_b32 v{t0}, {ST_OFF}")
        a(f"v_mov_b32 v{t1}, s100")
        a(f"global_store_dword v{t0}, v{t1}, s[{WS}:{WS+1}] sc1")
        a("L_nopx:")
    def setup_common(f):
        f(f"s_mul_i32 s{sTAG}, s{sTAG}, 1664525")
        f(f"s_add_u32 s{sTAG}, s{sTAG}, 1013904223")
        f(f"v_mov_b32 v{vTAG}, s{sTAG}")
        for k in range(3):
            f(f"s_sub_u32 s{sFD[k]}, s{sTAG}, s{sFD[k]}")
        f(f"v_lshrrev_b32 v{t0}, 2, v{vL}            ; row = 4g + r")
        f(f"v_lshlrev_b32 v{vT1}, 7, v{t0}")
        f(f"v_bfe_u32 v{t0}, v{vL}, 3, 2")
        f(f"v_lshl_add_u32 v{vT1}, v{t0}, 5, v{vT1}")
        f(f"v_and_b32 v{t0}, 3, v{vL}")
        f(f"v_lshl_add_u32 v{vT1}, v{t0}, 3, v{vT1}")
        f(f"v_add_u32 v{vT1}, s{sLDS}, v{vT1}")
        f(f"s_lshl_b32 s{sT0}, s{sW}, 5\nv_xor_b32 v{vT2}, s{sT0}, v{vT1}")
        f(f"s_and_b32 s{sT0}, s{sW}, 1\ns_lshl_b32 s{sT0}, s{sT0}, 6\nv_xor_b32 v{vT1}, s{sT0}, v{vT1}")
        for b in range(1, 4):
            f(f"v_xor_b32 v{vT1+b}, {b*32}, v{vT1}")
    def setup_g2(f):
        f(f"v_lshrrev_b32 v{t3}, 4, v{vL}")
        f(f"v_mul_u32_u24 v{vO}, 1280, v{vO}")
        f(f"v_lshl_add_u32 v{vO+1}, v{t3}, 3, v{vO}")
        f(f"v_lshl_add_u32 v{vO}, v{t3}, 4, v{vO}")
        for b in range(1, 4):
            f(f"v_xor_b32 v{vT2+b}, {b*32}, v{vT2}")
        for j in range(1, 4):
            f(f"v_add_u32 v{vD2+j}, {j*(8*4096-1024)}, v{vD2}")
        for t in range(1, 5):
            f(f"v_add_u32 v{vU+t}, {t*49152}, v{vU}")
        for k, (lo, cnt) in enumerate(((0, 24), (24, 36))):
            f(f"v_min_u32 v{t0}, {cnt-1}, v{vL}")
            f(f"v_mul_u32_u24 v{t1}, 43, v{t0}")
            f(f"v_lshrrev_b32 v{t1}, 9, v{t1}            ; n/12")
            f(f"v_mul_u32_u24 v{t1}, 18, v{t1}")
            f(f"v_lshrrev_b32 v{t2}, 1, v{t0}")
            f(f"s_mul_i32 s{sT0}, s{sJ}, 120\ns_mul_i32 s{sT1}, s{sW}, 6\ns_add_u32 s{sT0}, s{sT0}, s{sT1}\nv_add3_u32 v{t1}, v{t1}, v{t2}, s{sT0}")
            f(f"v_and_b32 v{t0}, 1, v{t0}")
            f(f"v_lshlrev_b32 v{t0}, 2, v{t0}")
            f(f"v_lshl_add_u32 v{vFU+k}, v{t1}, {c.fus}, v{t0}")
            f(f"v_add_u32 v{vFU+k}, {FU_OFF + ((lo // 12 * 24) << c.fus)}, v{vFU+k}")
        srd(f, RW2, W2, S * F * 2)
        srd(f, ROUT, OUT, S * D * 2)
    def setup_g1(f):
        f(f"v_lshlrev_b32 v{vFH}, {c.fhs}, v0")
        f(f"v_add_u32 v{vFH}, {FH_OFF}, v{vFH}")
        for p in range(4):
            f(f"s_lshr_b32 s{sT0}, s{sW}, 1\ns_xor_b32 s{sT0}, s{sT0}, {(p&1)^1}\ns_add_u32 s{sT0}, s{sT0}, s{sS}\ns_add_u32 s{sT0}, s{sT0}, {p&2}\ns_and_b32 s{sT0}, s{sT0}, 3\ns_lshl_b32 s{sT1}, s{sT0}, 16\nv_add_u32 v{vH+p}, s{sT1}, v{vU}")
        for h, su in enumerate((sUS0, sUS1)):
            f(f"s_mul_i32 s{su}, s{su}, 48\ns_lshl_b32 s{sT0}, s{sFT}, 1\ns_add_u32 s{su}, s{su}, s{sT0}\ns_and_b32 s{sT1}, s{sW}, 1\ns_add_u32 s{su}, s{su}, s{sT1}\ns_lshl_b32 s{su}, s{su}, 10\ns_add_u32 s{su}, s{su}, {U_OFF}")
        f(f"s_lshl_b32 s{sT3}, {0 if c.fake & 1 else 's%d' % sDT}, 18\ns_lshl_b32 s{sT1}, s{sW}, 14\ns_add_u32 s{sT3}, s{sT3}, s{sT1}\ns_add_u32 s{sT3}, s{sT3}, {H_OFF}")
        for i in range(NS1):
            f(f"s_add_u32 s{sT1}, s{sROT1}, {i}\ns_and_b32 s{sT1}, s{sT1}, 15\ns_lshl_b32 s{sT1}, s{sT1}, 10\ns_add_u32 s{sK+i}, s{sT1}, s{sT3}")
        for k in range(4):
            f(f"s_xor_b32 s{sT0}, s{sW}, {k}\ns_mul_i32 s{sT0}, s{sT0}, 12288\ns_add_u32 s{sT0}, s{sT0}, {RED}\nv_add_u32 v{vR+k}, s{sT0}, v{vU}")
        c1 = -2.0 * math.log2(math.e) * math.sqrt(2.0 / math.pi)
        f(f"v_mov_b32 v{vC1}, {f32(c1)}")
        f(f"v_mov_b32 v{vC1+1}, {f32(c1*0.044715)}")
        f(lambda: a.wait("b1"))
        for p in (1, 3):
            for k in range(4):
                f(f"v_lshlrev_b32 v{ACC+16*p+2*k}, 16, v{vB1+k}")
                f(f"v_and_b32 v{ACC+16*p+2*k+1}, 0xffff0000, v{vB1+k}")
    fl = Fill(a)
    if c.hearly:
        a("s_cmp_ge_u32 s2, 240")
        a("s_cbranch_scc1 L_idle")
    setup_common(fl)
    fl(lambda: setattr(w1, "can_read", True))
    setup_g2(fl)
    for _ in range(c.w1_mid):
        w1.step(fl, older_than="hst")
    fl.flush()
    a.wait("hst")
    stamp(3)
    flag_add(0)
    if not c.hearly:
        a("s_cmp_ge_u32 s2, 240")
        a("s_cbranch_scc1 L_idle")
    setup_g1(fl)
    fl.emit(2)
    sE, sGRP, sM0 = 6, 9, 12
    def w2offs(f):
        f(f"s_mul_i32 s{sT0}, s{sW}, {12*32*4096}\ns_lshl_b32 s{sT1}, s{sST}, 7\ns_add_u32 s{sT0}, s{sT0}, s{sT1}\ns_add_u32 s{sT1}, s{sT0}, {12*32*4096}\n"
          f"s_mul_i32 s{sE}, s{sROT2}, {32*4096}\ns_add_u32 s{sE}, s{sE}, s{sT0}\n"
          + "\n".join(f"s_add_u32 s{sE+k}, s{sE+k-1}, {32*4096}\ns_cmp_eq_u32 s{sE+k}, s{sT1}\ns_cselect_b32 s{sE+k}, s{sT0}, s{sE+k}" for k in range(1, c.w2e + 1)))
    if c.w2e:
        w2offs(a)
        a(f"s_lshr_b32 s{sGRP}, s2, {c.esh}")
        a(f"s_and_b32 s{sGRP}, s{sGRP}, {c.egrp-1}")
    while w1.left() > c.ov1:
        if w1.left() == c.pe1 + c.ov1:
            a.vm(poll_load("h"), "hpoll")
        if c.w2e and w1.n >= c.e0 and (w1.n - c.e0) % c.estep == 0 and (w1.n - c.e0) // c.estep < c.egrp:
            g = (w1.n - c.e0) // c.estep
            a(f"s_cmp_lg_u32 s{sGRP}, {g}")
            a(f"s_cbranch_scc1 L_e{g}")
            a(f"s_mov_b32 s{sM0}, m0")
            for k in range(c.w2e):
                a(f"s_add_u32 m0, s{sLDS}, {(WSLOT-c.w2e+k)*4096}")
                a("s_nop 0")
                for j in range(4):
                    a(f"buffer_load_dwordx4 v{vD2+j}, s[{RW2}:{RW2+3}], s{sE+k} offen offset:{1024*j} lds")
            a(f"s_mov_b32 m0, s{sM0}")
            a("s_nop 0")
            a(f"L_e{g}:")
        w1.step(fl)
    assert not c.w2e or c.e0 + (c.egrp - 1) * c.estep < 64
    if c.pe1 == 0:
        a.vm(poll_load("h"), "hpoll")
    fl.flush()
    a.wait("hpoll")
    stamp(4)
    spin("h")
    stamp(5)
    N1 = 64
    def hissue(n):
        r = RING + 4 * (n % NRING)
        a.vm(f"buffer_load_dwordx4 v[{r}:{r+3}], v{vH+n//16}, s[{RWS}:{RWS+3}], s{sK+n%16} offen sc1", f"h{n}")
    hst_ = [c.d0 if c.ov1 else c.hd]
    for n in range(hst_[0]):
        hissue(n)
        w1.reads(2)
    if not c.ov1:
        w1.drain()
    def w2setup(done):
        a(f"s_mul_i32 s{sWO0}, s{sW}, {12*32*4096}")
        a(f"s_lshl_b32 s{sT0}, s{sST}, 7")
        a(f"s_add_u32 s{sWO0}, s{sWO0}, s{sT0}")
        a(f"s_add_u32 s{sWOE}, s{sWO0}, {12*32*4096}")
        if c.nh:
            a(f"s_mov_b32 m0, s{sLDS}")
            a(step_off(sWO, sWO0, 0, 17))
        elif done:
            a(f"s_mov_b32 m0, s{sLDS}")
            a(f"s_mov_b32 s{sWO}, s{sE+done}")
        else:
            a(f"s_mul_i32 s{sT0}, s{sROT2}, {32*4096}")
            a(f"s_add_u32 m0, s{sLDS}, {((WSLOT-c.w2e)%WSLOT)*4096}")
            a(f"s_add_u32 s{sWO}, s{sWO0}, s{sT0}")
    if not c.ov1:
        w2setup(c.w2e)
        a.dwait()
    stamp("g1s")
    w2 = W(2)
    w2.n = 4 * c.w2e
    w2.can_read = False
    def plan(m, st, w, issue, total, depth, tail):
        ops = []
        nw = min(c.wpp, w.left())
        want = min(total, 2 * m + 2 + (c.d0 if nw else depth))
        na = min(want - st[0], 2 if nw else 4)
        acts = [lambda n=st[0] + k: issue(n) for k in range(na)]
        st[0] += na
        ws_ = [w.issue] * nw
        while acts or ws_:
            for _ in range((c.wpp + 1) // 2):
                if ws_:
                    ops.append(ws_.pop(0))
            if acts:
                ops.append(acts.pop(0))
        if not ops and st[0] == total:
            ops = tail()
        gaps = {0: [], 1: [1], 2: [c.lg0, c.lg1], 3: [1, 3, 5], 4: [0, 2, 4, 6], 5: [0, 1, 3, 4, 6], 6: [0, 1, 2, 4, 5, 6], 7: list(range(7)), 8: list(range(8))}[len(ops)]
        return dict(zip(gaps, ops))
    def need_steps(w, upto):
        if w.rd < 8 * (upto + 1):
            a.wait(w.tag(4 * upto + 3))
            w.reads(8 * (upto + 1) - w.rd)
        for i in range(upto + 1):
            a.dwait(f"r{w.kind}_{i}")
    def spread(nf):
        if c.lg0 >= 0:
            free = [g for g in range(8) if g not in (c.lg0, c.lg1)]
            free.sort(key=lambda g: g == 7)
            per = [0] * 8
            for x in range(nf):
                per[free[x % len(free)]] += 1
            return per
        if c.gap2:
            return [0 if g % 2 == 0 else nf // 4 + (1 if g // 2 < nf % 4 else 0) for g in range(8)]
        return [nf // 8 + (1 if g < nf % 8 else 0) for g in range(8)]
    def red_write(f, p, aa):
        cw = ACC + 16 * p + 4 * aa
        slot = aa if p % 2 == 0 else 2 + aa
        f(lambda: a.ds(f"ds_write_b128 v{vR}, v[{cw}:{cw+3}] offset:{(p//2)*6144+slot*1024}", f"rw{p}"))
    def red_finish(f, h):
        P0, P1, T = ACC + 32 * h, ACC + 32 * h + 16, RD + 12 * h
        for x, (k, slot, dst) in enumerate(((2, 0, P0), (3, 2, P0 + 8), (1, 4, P1 + 8), (2, 1, P0 + 4), (3, 3, P0 + 12), (1, 5, P1 + 12))):
            f(lambda k=k, slot=slot, dst=dst, x=x: a.ds(f"ds_read_b128 v[{dst}:{dst+3}], v{vR+k} offset:{h*6144+slot*1024}", f"rr{h}_{x}"))
        f("s_nop 0") if False else None
        for half in range(2):
            f(lambda half=half: a.dwait(f"rr{h}_{3*half+2}"))
            for r in range(4 * half, 4 * half + 4):
                f(f"v_add_f32 v{P0+r}, v{P0+r}, v{P0+8+r}")
                f(f"v_add_f32 v{P1+r}, v{P1+r}, v{P1+8+r}")
            for r in range(4 * half, 4 * half + 4):
                f(f"v_add_f32 v{P1+r}, v{P1+r}, v{P0+r}")
        for r in range(8):
            f(f"v_mul_f32 v{T+r}, v{P1+r}, v{P1+r}")
        for r in range(8):
            f(f"v_fma_f32 v{T+r}, v{T+r}, v{vC1+1}, v{vC1}")
        for r in range(8):
            f(f"v_mul_f32 v{T+r}, v{T+r}, v{P1+r}")
        for r in range(8):
            f(f"v_exp_f32 v{T+r}, v{T+r}")
        for r in range(8):
            f(f"v_add_f32 v{T+r}, 1.0, v{T+r}")
        for r in range(8):
            f(f"v_rcp_f32 v{T+r}, v{T+r}")
        for r in range(8):
            f(f"v_mul_f32 v{T+r}, v{T+r}, v{P1+r}")
        for r in range(4):
            f(f"v_cvt_pk_bf16_f32 v{T+8+r}, v{T+2*r}, v{T+2*r+1}")
        su = sUS0 if h == 0 else sUS1
        f(lambda: a.vm(f"buffer_store_dwordx4 v[{T+8}:{T+11}], v{vU}, s[{RWS}:{RWS+3}], s{su} offen sc1", f"ust{h}"))
    for m in range(N1 // 2):
        p, i = m // 8, 2 * (m % 8)
        stamp(f"g1_{m}")
        if hst_[0] == N1 and w2.n == 4 * c.w2e:
            stamp("t0")
        ops = plan(m, hst_, w1, hissue, N1, c.hd, lambda: [w2.issue] * c.w2_tail)
        if c.ov1 and m == 8:
            assert w1.left() == 0 and w1.rd == 8 * NS1
            w2setup(c.w2e)
        if m % 8 == 1 and p >= 1:
            for aa in (range(4) if p % 2 == 1 else (2, 3)):
                red_write(fl, p - 1, aa)
        a.wait(f"h{2*m+1}")
        if m < 8:
            need_steps(w1, 2 * m + 1)
        per = spread(c.g1fill)
        order = (2, 3, 0, 1) if m == N1 // 2 - 1 else (0, 1, 2, 3)
        for ti, t in enumerate(order):
            for e0 in range(2):
                e = e0 ^ (ti & 1) if c.serp else e0
                rb = RING + 4 * ((2 * m + e) % NRING)
                cc = ACC + 16 * p + 4 * t
                src = "0" if (i == 0 and e0 == 0 and not (p % 2 == 1 and t < 2)) else f"v[{cc}:{cc+3}]"
                ra = 16 * (i + e) + 4 * t
                if not (c.fake & 4):
                    a(f"v_mfma_f32_16x16x32_bf16 v[{cc}:{cc+3}], a[{ra}:{ra+3}], v[{rb}:{rb+3}], {src}")
                if 2 * ti + e0 in ops:
                    ops[2 * ti + e0]()
                if m < 8:
                    w1.reads(2)
                fl.emit(per[2 * ti + e0])
        if m == c.g1bar:
            assert not fl.g
            a.dwait()
            if not (c.fake & 16):
                a("s_barrier")
            red_finish(fl, 0)
            if c.fake & 8:
                fl.g = [x if callable(x) else (lambda: None) for x in fl.g]
    fl.flush()
    stamp(6)
    w2.can_read = True
    a("s_nop 3")
    red_write(fl, 3, 2)
    red_write(fl, 3, 3)
    fl.flush()
    w2.issue()
    a.dwait()
    a("s_barrier")
    red_finish(fl, 1)
    fl.emit(6)
    k = 0
    flagged = False
    while fl.g:
        if k == c.fe_pos:
            a.wait("ust0")
            stamp("fe")
            flag_add(1)
            flagged = True
        if k < c.w2_un:
            w2.step(fl, throttle=False)
        else:
            fl.emit(c.fillk)
        k += 1
    stamp(7)
    if not flagged:
        a.wait("ust0")
        stamp("fe")
        flag_add(1)
    for _ in range(c.w2_mid):
        w2.step(None, older_than="ust1")
    a.wait("ust1")
    flag_add(2)
    a("L_join:")
    join_n, join_rd = w2.n, w2.rd
    stamp(8)
    fl(f"s_mul_i32 s{sT3}, {0 if c.fake & 2 else 's%d' % sJ}, {5*49152}\ns_mul_i32 s{sT1}, s{sW}, 12288\ns_add_u32 s{sT3}, s{sT3}, s{sT1}\ns_add_u32 s{sT3}, s{sT3}, {U_OFF}")
    if c.nh:
        for i in range(NS2):
            fl(step_off(sK + i, sT3, i, 10))
    else:
        fl(f"s_add_u32 s{sUS1}, s{sT3}, 12288\ns_lshl_b32 s{sK}, s{sROT2}, 10\ns_add_u32 s{sK}, s{sK}, s{sT3}")
        for i in range(1, NS2):
            fl(f"s_add_u32 s{sK+i}, s{sK+i-1}, 1024\ns_cmp_eq_u32 s{sK+i}, s{sUS1}\ns_cselect_b32 s{sK+i}, s{sT3}, s{sK+i}")
    fl(f"v_lshlrev_b32 v{vB2}, 16, v{vB2}")
    for t in range(5):
        for r in range(4):
            fl(f"v_mov_b32 v{ACC+16*t+r}, v{vB2}")
    for k in range(4):
        fl(f"s_xor_b32 s{sT0}, s{sW}, {k}\ns_mul_i32 s{sT0}, s{sT0}, {WSLOT*4096}\nv_add_u32 v{vR+k}, s{sT0}, v{vU}")
    fl(f"s_mul_i32 s{sUS0}, s{sJ}, 160")
    assert w2.left() >= c.pe2 + c.ov2
    while w2.left() > c.ov2:
        if w2.left() == c.pe2 + c.ov2:
            a.vm(poll_load("a"), "apoll")
        w2.step(fl)
    if c.pe2 == 0:
        a.vm(poll_load("a"), "apoll")
    fl.flush()
    a.wait("apoll")
    stamp(9)
    spin("a")
    stamp(10)
    N2 = 60
    def uissue(n):
        if n == 24 - c.pbl:
            a.vm(poll_load("b"), "bpoll")
        if n == 24:
            a.wait("bpoll")
            spin("b")
            stamp("pb")
        r = RING + 4 * (n % NRING)
        a.vm(f"buffer_load_dwordx4 v[{r}:{r+3}], v{vU+n//12}, s[{RWS}:{RWS+3}], s{sK+n%12} offen sc1", f"u{n}")
    ust_ = [c.d0 if c.ov2 else c.ud]
    for n in range(ust_[0]):
        uissue(n)
        w2.reads(2)
    if not c.ov2:
        w2.drain()
        a.dwait()
    stamp("g2s")
    def fin_reads(f, ts):
        for t in ts:
            for k in range(1, 4):
                cr = ACC + 16 * t + 4 * k
                f(lambda t=t, k=k, cr=cr: a.ds(f"ds_read_b128 v[{cr}:{cr+3}], v{vR+k} offset:{(k-1)*5120+t*1024}", f"fr{t}"))
    def fin(f, t):
        f(lambda: a.dwait(f"fr{t}"))
        cc = ACC + 16 * t
        for r in range(4):
            f(f"v_add_f32 v{cc+r}, v{cc+r}, v{cc+4+r}")
            f(f"v_add_f32 v{cc+8+r}, v{cc+8+r}, v{cc+12+r}")
        for r in range(4):
            f(f"v_add_f32 v{cc+r}, v{cc+r}, v{cc+8+r}")
        for r in (0, 2):
            f(f"v_cvt_pk_bf16_f32 v{RD+2*t+r//2}, v{cc+r}, v{cc+r+1}")
    def ostore(pp):
        a.vm(f"buffer_store_dwordx4 v[{RD+4*pp}:{RD+4*pp+3}], v{vO}, s[{ROUT}:{ROUT+3}], s{sUS0} offen offset:{64*pp}{OP[c.opol] if c.osc >> pp & 1 else ''}", "o")
    stored0 = [False]
    for m in range(N2 // 2):
        t, i = m // 6, 2 * (m % 6)
        stamp(f"g2_{m}")
        def tail2():
            if stored0[0]:
                return []
            stored0[0] = True
            return [lambda: ostore(0)]
        ops = plan(m, ust_, w2, uissue, N2, c.ud, tail2)
        if m % 6 == 1 and t >= 1:
            for b in range(1, 4):
                cw = ACC + 16 * (t - 1) + 4 * b
                fl.g.insert(b - 1, lambda cw=cw, b=b, t=t: a.ds(f"ds_write_b128 v{vR}, v[{cw}:{cw+3}] offset:{(b-1)*5120+(t-1)*1024}", "fw"))
        a.wait(f"u{2*m+1}")
        if m < 6:
            need_steps(w2, 2 * m + 1)
        per = spread(c.g2l if m > c.g2b1 else c.g2f)
        for bi, b in enumerate((1, 2, 3, 0)):
            for e0 in range(2):
                e = e0 ^ (bi & 1) if c.serp else e0
                ra = RING + 4 * ((2 * m + e) % NRING)
                cc = ACC + 16 * t + 4 * b
                src = "0" if (i == 0 and e0 == 0 and b) else f"v[{cc}:{cc+3}]"
                rb = 16 * (i + e) + 4 * b
                if not (c.fake & 4):
                    a(f"v_mfma_f32_16x16x32_bf16 v[{cc}:{cc+3}], v[{ra}:{ra+3}], a[{rb}:{rb+3}], {src}")
                if 2 * bi + e0 in ops:
                    ops[2 * bi + e0]()
                if m < 6:
                    w2.reads(2)
                fl.emit(per[2 * bi + e0])
        if m in (c.g2b0, c.g2b1):
            assert not fl.g
            a.dwait()
            if not (c.fake & 16):
                a("s_barrier")
            ts = (0, 1) if m == c.g2b0 else (2, 3)
            fin_reads(fl, ts)
            for tt in ts:
                fin(fl, tt)
            if c.fake & 8:
                fl.g = [x if callable(x) else (lambda: None) for x in fl.g]
            if m == c.g2b1:
                fl(lambda: ostore(1))
            elif c.o0e:
                fl(lambda: ostore(0))
                stored0[0] = True
    stamp(11)
    a("s_nop 1")
    for b in range(1, 4):
        cw = ACC + 64 + 4 * b
        if b > 1:
            a("s_nop 0")
        a.ds(f"ds_write_b128 v{vR}, v[{cw}:{cw+3}] offset:{(b-1)*5120+4096}")
    fl.flush()
    a.dwait()
    a("s_barrier")
    stamp("e2")
    fin_reads(fl, (4,))
    fl.flush()
    if c.stamp:
        a.dwait()
    fin(fl, 4)
    fl.flush()
    a(f"buffer_store_dwordx2 v[{RD+8}:{RD+9}], v{vO+1}, s[{ROUT}:{ROUT+3}], s{sUS0} offen offset:128{OP[c.opol] if c.osc & 4 else ''}")
    a(f"s_or_b32 s{sT0}, s2, s{sW}")
    a("s_cbranch_scc1 L_noepoch")
    a(f"v_mov_b32 v{t5}, {EP_OFF}")
    flag_store(t5, None, "")
    a("L_noepoch:")
    if c.stamp:
        stamp("e3")
        a("s_waitcnt vmcnt(0)")
        stamp(12)
        a(f"s_lshl_b32 s{sT0}, s2, 3")
        a(f"s_add_u32 s{sT0}, s{sT0}, s{sW}")
        a(f"s_lshl_b32 s{sT0}, s{sT0}, 6")
        a(f"s_add_u32 s{sT0}, s{sT0}, {ST_OFF}")
        a(f"v_mov_b32 v{t0}, s{sT0}")
        a("s_waitcnt lgkmcnt(0)")
        for i in range(13):
            a(f"v_mov_b32 v{t1}, s{STB+2*i}")
            a(f"global_store_dword v{t0}, v{t1}, s[{WS}:{WS+1}] offset:{4*i}")
    if c.pad:
        a("s_waitcnt vmcnt(0)")
        stamp("end")
        a("s_waitcnt lgkmcnt(0)")
        a("s_sub_u32 s64, s98, s100")
        if c.padx == -2:
            a(f"v_mov_b32 v{t0}, {ST_OFF}")
            a(f"global_load_dword v{t1}, v{t0}, s[{WS}:{WS+1}] sc1")
            a("s_waitcnt vmcnt(0)")
            a(f"v_readfirstlane_b32 s100, v{t1}")
            a("s_nop 3")
            a("s_sub_u32 s64, s98, s100")
            a("s_min_u32 s64, s64, 4000")
        if c.padx >= 0:
            a(f"s_cmp_lg_u32 s2, {c.padx}")
            a("s_cbranch_scc1 L_end")
            a(f"v_mov_b32 v{t0}, {ST_OFF}")
            a(f"global_load_dword v{t1}, v{t0}, s[{WS}:{WS+1}] sc1")
            a("s_waitcnt vmcnt(0)")
            a(f"v_readfirstlane_b32 s64, v{t1}")
            a("s_nop 3")
            a("s_sub_u32 s64, s100, s64")
            a("s_add_u32 s64, s64, 100")
            a("s_min_u32 s64, s64, 1000")
        a(f"s_mul_i32 s64, s64, {c.mult}")
        a("s_add_u32 s64, s64, 10000")
        a(f"s_mov_b32 s{sCNT}, 0")
        a("L_pad:")
        a("s_memrealtime s[66:67]")
        a("s_waitcnt lgkmcnt(0)")
        a(f"s_add_u32 s{sCNT}, s{sCNT}, 1")
        a(f"s_cmp_ge_u32 s{sCNT}, 200000\ns_cbranch_scc1 L_end")
        a("s_sub_u32 s66, s66, s100")
        a("s_cmp_lt_u32 s66, s64\ns_cbranch_scc1 L_pad")
    a("s_endpgm")
    a("L_idle:")
    if c.hearly:
        srd(a, RW2, W2, S * F * 2)
    else:
        a("s_waitcnt vmcnt(0) lgkmcnt(0)")
    a.q, a.lq = [], []
    if c.pad and c.padat in ("4", "5", "6", "7", "t0", "fe", "g1s"):
        stamp(c.padat)
    if c.stamp:
        for nm in SETS[c.sset]:
            if nm in (4, 5, 6, 7, "t0", "fe", "g1s") or str(nm).startswith(("w1_", "g1_")):
                stamp(nm)
    if c.nh:
        a(f"s_bfe_u32 s{sT1}, s2, 0x10003")
        if c.nh == 4:
            a(f"s_mul_i32 s{sROT2}, s{sT1}, {(12-c.nh)//2}")
        a(f"s_lshl_b32 s{sT1}, s{sT1}, 16")
        a(f"s_mul_i32 s{sT0}, s{sW}, {12*32*4096}")
        a(f"s_add_u32 s{sT0}, s{sT0}, s{sT1}")
        a(f"s_lshr_b32 s{sT1}, s{sST}, 2")
        a(f"s_lshl_b32 s{sT1}, s{sT1}, 9")
        a(f"s_add_u32 s{sT3}, s{sT0}, s{sT1}")
        sh = c.hsec + 1
        a(f"v_lshrrev_b32 v{vH}, {sh}, v{vL}")
        a(f"v_lshlrev_b32 v{vH}, 12, v{vH}")
        a(f"v_and_b32 v{t1}, {(1<<sh)-1}, v{vL}")
        a(f"v_lshl_add_u32 v{vH}, v{t1}, {9-sh}, v{vH}")
        for r in range(c.nh * c.hsec):
            a(f"buffer_load_dword v{vH+1}, v{vH}, s[{RW2}:{RW2+3}], s{sT3} offen")
            inc = 32 if c.hsec == 1 else (8 if r % 2 == 0 else 24)
            a(f"s_add_u32 s{sT3}, s{sT3}, {inc*4096}")
            if c.hearly and r == 0:
                setup_common(a)
                setup_g2(a)
                a("s_waitcnt vmcnt(1)")
                stamp(3)
                flag_add(0)
            a(f"s_waitcnt vmcnt({c.hq-1})")
    elif c.helper:
        a(f"s_bfe_u32 s{sT1}, s2, 0x10003")
        a(f"s_mul_i32 s{sROT2}, s{sT1}, 6")
    w2setup(0)
    wi = W(2)
    while wi.n < join_n:
        wi.issue()
    a("s_waitcnt vmcnt(0)")
    a.q = []
    wi.reads(join_rd - wi.rd)
    assert wi.rd == join_rd, (wi.rd, join_rd)
    a.dwait()
    a("s_branch L_join")
    a("L_end:\ns_endpgm")
    a(f""".section .rodata,"a"
.p2align 6
.amdhsa_kernel {NAME}
  .amdhsa_next_free_vgpr 512
  .amdhsa_next_free_sgpr 102
  .amdhsa_accum_offset 256
  .amdhsa_group_segment_fixed_size 0
  .amdhsa_kernarg_size 64
  .amdhsa_user_sgpr_count 2
  .amdhsa_user_sgpr_kernarg_segment_ptr 1
  .amdhsa_system_sgpr_workgroup_id_x 1
  .amdhsa_float_denorm_mode_32 3
.end_amdhsa_kernel""")
    return a.text()

if __name__ == "__main__":
    c = Cfg()
    out = sys.argv[1]
    for x in sys.argv[2:]:
        k, v = x.split("=")
        assert hasattr(c, k), k
        setattr(c, k, v if k == 'padat' else int(v))
    open(out, "w").write(gen(c))
```

```python
import sys, struct, math

def f32(x):
    return "0x%08x" % struct.unpack("<I", struct.pack("<f", x))[0]

S, D, F = 2048, 640, 1536
H_OFF = 0x1000
U_OFF = 0x282000
FH_OFF = 0x464000
EP_OFF = FH_OFF + (16 << 10)
FU_OFF = FH_OFF + (32 << 10)
WS_USED = FU_OFF + (64 << 10)
ST_OFF = 16 << 20
NAME = "standalone__mixer_token_mlp__prompt_kernel"
SPIN_CAP = 400000
OP = [" sc1", " nt", " sc0", " sc0 nt", " sc1 nt"]

class Cfg:
    stamp = 0
    sset = 0
    pad = 0
    mult = 0
    padx = -1
    padat = "end"
    map1 = 1
    map2 = 1
    rot1 = 10
    rot2 = 8
    cpo = 256
    w1_pre = 0
    w1_x = 2
    w1_ln = 2
    w1_mid = 6
    wd = 7
    hd = 12
    ud = 10
    pe1 = 6
    pe2 = 6
    g1bar = 18
    g1fill = 9
    w2_tail = 2
    w2_mid = 7
    w2_un = 5
    pbl = 8
    helper = 0
    serp = 0
    fillk = 8
    defer1 = 0
    pk1 = 0
    o0b = 1
    defer = 4
    pkfin = 1
    omap = 1
    rm1 = 1
    rm2 = 1
    opol = 0
    o0e = 0
    fast0 = 0
    ov1 = 0
    ov2 = 0
    d0 = 6
    wpp = 4
    n1 = 3
    hearly = 1
    lg0 = 1
    lg1 = 5
    fake = 0
    gap2 = 0
    g2f = 6
    g2l = 16
    g2b0 = 14
    g2b1 = 25
    nh = 4
    hsec = 1
    hq = 1
    osc = 3
    w2e = 0
    egrp = 4
    e0 = 20
    estep = 8
    esh = 3
    tlbw = 0
    w1_first = 4
    xbar = 1
    fhs = 5
    fus = 6
    slowl = 16
    fe_pos = 4

class A:
    def __init__(self):
        self.L = []
        self.q = []
        self.lq = []
    def __call__(self, s):
        for line in s.strip("\n").split("\n"):
            self.L.append(line)
    def vm(self, s, tag=None):
        self(s)
        self.q.append(tag)
    def recent_slow_before(self, tag, window):
        if tag not in self.q:
            return False
        idx = self.q.index(tag)
        return any(t in ("hst", "hfl", "ust0", "ust1", "ufl0", "ufl1", "b1", "b2") and len(self.q) - 1 - i < window
                   for i, t in enumerate(self.q[:idx]))
    def wait(self, tag):
        if tag not in self.q:
            return
        idx = max(i for i, t in enumerate(self.q) if t == tag)
        n = len(self.q) - 1 - idx
        assert n <= 63
        self(f"s_waitcnt vmcnt({n})")
        self.q = self.q[idx + 1:]
    def pending(self, tag):
        return tag in self.q
    def ds(self, s, tag=None):
        if len(self.lq) >= 13:
            self("s_waitcnt lgkmcnt(7)")
            self.lq = self.lq[-7:]
        self(s)
        self.lq.append(tag)
    def dwait(self, tag=None):
        if tag is None:
            self("s_waitcnt lgkmcnt(0)")
            self.lq = []
            return
        if tag not in self.lq:
            return
        idx = max(i for i, t in enumerate(self.lq) if t == tag)
        self(f"s_waitcnt lgkmcnt({len(self.lq)-1-idx})")
        self.lq = self.lq[idx + 1:]
    def text(self):
        return "\n".join(self.L) + "\n"

class Fill:
    def __init__(self, a):
        self.a = a
        self.g = []
    def __call__(self, s):
        self.g.append(s)
    def emit(self, k):
        while k > 0 and self.g:
            x = self.g.pop(0)
            if callable(x):
                x(); k -= 1
            else:
                self.a(x); k -= x.count("\n") + 1
    def flush(self):
        self.emit(1 << 30)

def srd(a, d, b, nbytes):
    a(f"s_mov_b32 s{d}, s{b}")
    a(f"s_mov_b32 s{d+1}, s{b+1}")
    a(f"s_mov_b32 s{d+2}, {nbytes}")
    a(f"s_mov_b32 s{d+3}, 0x00020000")

def gen(c):
    a = A()
    STB = 76
    SETS = {
        0: [0, 1, 2, 3, 4, 5, "t0", 6, 8, 9, 10, 11, 12],
        1: [0, "ka", "iss", 1, "x4", 2, "hsto", 3, "w1_24", "w1_40", 4, 5, "g1s"],
        2: [0, 5, "g1s", "g1_8", "g1_16", "g1_24", "t0", 6, "fe", 7, 8, 9, 10],
        3: [0, 9, 10, "g2s", "g2_6", "pb", "g2_12", "g2_18", "g2_24", 11, "e2", "e3", 12],
    }
    def stamp(name):
        if c.pad and str(name) == c.padat:
            a("s_memrealtime s[98:99]")
        if c.stamp and name in SETS[c.sset]:
            i = SETS[c.sset].index(name)
            a(f"{'s_memtime' if c.stamp == 2 else 's_memrealtime'} s[{STB+2*i}:{STB+2*i+1}]")
    a("; kernarg: x(0) w1(8) b1(16) w2(24) b2(32) out(40) debug(48) ws(56)")
    a("; @launch grid=(256,1,1) block=(256,1,1) lds=163840")
    a('.amdgcn_target "amdgcn-amd-amdhsa--gfx950"')
    a(f".text\n.globl {NAME}\n.p2align 8\n.type {NAME},@function\n{NAME}:")
    X, W1, B1, W2, B2, OUT, DBG, WS = 4, 6, 8, 10, 12, 14, 16, 18
    sMA, sMB = 20, 22
    RW1, RW2, RWS, ROUT = 24, 28, 32, 36
    sW, sLDS, sDT, sFT, sJ, sST = 40, 41, 42, 43, 44, 45
    sWO, sWO0, sWOE, sUS0 = 46, 47, 48, 49
    sT0, sT1, sUS1, sCNT, sROT1, sROT2, sT3, sTAG = 50, 51, 52, 53, 54, 55, 56, 57
    sS = 3
    FB = 4
    sFO = (16, 17, 58)
    sFD = (0, 1, 59)
    sK = 60
    vL = 1
    vD1, vD2, vH, vU, vT1, vT2, vR, vO = 4, 8, 12, 16, 21, 25, 29, 33
    vFH, vFU, vFO, vTAG, vB1, vB2, vHS, vLT, vFHO, vC1 = 35, 36, 37, 39, 40, 44, 45, 46, 49, 50
    t0, t1, t2, t3, t4, t5 = 54, 55, 56, 57, 58, 59
    vP = 60
    ACC, RING, RD = 64, 144, 208
    RED = 114688
    WSLOT = 7
    NRING = 16
    NS1, NS2 = 16, 12

    def poll_load(kind):
        if kind == "h":
            return f"global_load_dwordx4 v[{vP}:{vP+3}], v{vFH}, s[{WS}:{WS+1}] sc1"
        return f"global_load_dword v{vP}, v{vFU if kind == 'a' else vFU+1}, s[{WS}:{WS+1}] sc1"
    def poll_test(kind):
        if kind == "h":
            a(f"v_bitop3_b32 v{vP}, v{vP}, v{vP+1}, v{vTAG} bitop3:0x7e")
            a(f"v_bitop3_b32 v{vP+2}, v{vP+2}, v{vP+3}, v{vTAG} bitop3:0x7e")
            a(f"v_or_b32 v{vP}, v{vP}, v{vP+2}")
            a(f"v_cmp_ne_u32 vcc, 0, v{vP}")
        else:
            a(f"v_cmp_ne_u32 vcc, s{sTAG}, v{vP}")
    def spin(kind):
        label = "L_p" + kind
        poll_test(kind)
        a(f"s_cbranch_vccz {label}_ok")
        a(f"s_mov_b32 s{sCNT}, 0")
        a(f"{label}_l:")
        a(poll_load(kind))
        a(f"s_add_u32 s{sCNT}, s{sCNT}, 1")
        a(f"s_cmp_ge_u32 s{sCNT}, {SPIN_CAP}")
        a(f"s_cbranch_scc1 {label}_ok")
        a("s_waitcnt vmcnt(0)")
        poll_test(kind)
        a(f"s_cbranch_vccnz {label}_l")
        a(f"{label}_ok:")
    def flag_add(k):
        a(f"s_atomic_add s{sFD[k]}, s[{FB}:{FB+1}], s{sFO[k]}")
    def flag_store(vaddr, tag, sc=" sc1"):
        a("s_mov_b64 exec, 1")
        s_ = f"global_store_dword v{vaddr}, v{vTAG}, s[{WS}:{WS+1}]{sc}"
        if tag:
            a.vm(s_, tag)
        else:
            a(s_)
        a("s_mov_b64 exec, -1")

    def step_off(dst, base, i, sh):
        if i < c.n1:
            return f"s_add_u32 s{dst}, s{base}, {i << sh}"
        if c.n1 < i <= c.nh:
            return f"s_add_u32 s{dst}, s{base}, {(i - 1) << sh}"
        k = 0 if i == c.n1 else i - c.nh
        return (f"s_add_u32 s{dst}, s{sROT2}, {k}\ns_and_b32 s{dst}, s{dst}, {12-c.nh-1}\ns_add_u32 s{dst}, s{dst}, {c.nh}\n"
                f"s_lshl_b32 s{dst}, s{dst}, {sh}\ns_add_u32 s{dst}, s{dst}, s{base}")
    class W:
        def __init__(self, kind):
            self.kind = kind
            self.ns = NS1 if kind == 1 else NS2
            self.n = 0
            self.rd = 0
            self.can_read = True
        def left(self):
            return 4 * self.ns - self.n
        def tag(self, n):
            return f"w{self.kind}_{n}"
        def nslot(self):
            return WSLOT - c.w2e if self.kind == 1 else WSLOT
        def slot(self, i):
            return i % self.nslot() if self.kind == 1 else (i + WSLOT - c.w2e) % WSLOT
        def issue(self):
            i, j = self.n >> 2, self.n & 3
            vd, r, step = (vD1, RW1, 32 * 3072) if self.kind == 1 else (vD2, RW2, 32 * 4096)
            if i >= self.nslot() and j == 0:
                old = i - self.nslot()
                if self.rd < 8 * (old + 1):
                    assert self.can_read
                    a.wait(self.tag(4 * old + 3))
                    self.reads(8 * (old + 1) - self.rd)
                a.dwait(f"r{self.kind}_{old}")
            a.vm(f"buffer_load_dwordx4 v{vd+j}, s[{r}:{r+3}], s{sWO} offen offset:{1024*j} lds", self.tag(self.n))
            self.n += 1
            if j == 3 and i + 1 < self.ns:
                if self.slot(i + 1) == 0:
                    a(f"s_mov_b32 m0, s{sLDS}")
                else:
                    a("s_add_u32 m0, m0, 4096")
                if self.kind == 2 and c.nh:
                    a(step_off(sWO, sWO0, i + 1, 17))
                else:
                    a(f"s_add_u32 s{sWO}, s{sWO}, {step}")
                    a(f"s_cmp_eq_u32 s{sWO}, s{sWOE}")
                    a(f"s_cselect_b32 s{sWO}, s{sWO0}, s{sWO}")
        def landed_steps(self):
            k = 0
            while 4 * k + 3 < self.n and not a.pending(self.tag(4 * k + 3)):
                k += 1
            return k
        def reads(self, k):
            vt = vT1 if self.kind == 1 else vT2
            lim = 8 * self.landed_steps() if self.can_read else 0
            while k > 0 and self.rd < lim:
                i, x = self.rd >> 3, self.rd & 7
                b, e = x >> 1, x & 1
                r = 16 * i + 4 * b + 2 * e
                a.ds(f"ds_read_b64_tr_b16 a[{r}:{r+1}], v{vt+b} offset:{self.slot(i)*4096+e*2048}", f"r{self.kind}_{i}")
                self.rd += 1
                k -= 1
        def step(self, fill=None, throttle=True, older_than=None):
            if throttle and self.n >= c.wd:
                tg = self.tag(self.n - c.wd)
                if older_than is not None and a.pending(older_than) and a.pending(tg) and a.q.index(tg) > a.q.index(older_than):
                    pass
                elif not a.recent_slow_before(tg, c.slowl):
                    a.wait(tg)
            stamp(f"w{self.kind}_{self.n}")
            self.issue()
            backlog = 8 * self.landed_steps() - self.rd
            self.reads(4 if backlog > 8 else 2)
            if fill is not None:
                fill.emit(c.fillk)
        def drain(self):
            for i in range(self.rd >> 3, self.ns):
                a.wait(self.tag(4 * i + 3))
                self.reads(8)

    def tile2(f):
        if c.map2 == 0:
            f(f"s_and_b32 s{sT0}, s2, 1\ns_lshl_b32 s{sT0}, s{sT0}, 2\ns_bfe_u32 s{sT1}, s2, 0x20003\ns_add_u32 s{sJ}, s{sT0}, s{sT1}\ns_mul_i32 s{sROT2}, s{sT1}, 3")
            if c.rot2 == 42:
                f(f"s_bfe_u32 s{sT1}, s2, 0x10005\ns_mul_i32 s{sT1}, s{sT1}, 6\ns_add_u32 s{sROT2}, s{sROT2}, s{sT1}\ns_cmp_ge_u32 s{sROT2}, 12\ns_cselect_b32 s{sT1}, 12, 0\ns_sub_u32 s{sROT2}, s{sROT2}, s{sT1}")
            f(f"s_bfe_u32 s{sT0}, s2, 0x20001\ns_lshl_b32 s{sT0}, s{sT0}, 3\ns_lshr_b32 s{sST}, s2, 5\ns_add_u32 s{sST}, s{sST}, s{sT0}")
        else:
            f(f"s_bfe_u32 s{sJ}, s2, 0x30003")
            if c.nh == 4:
                f(f"s_mov_b32 s{sROT2}, s{sJ}")
            elif c.nh == 8:
                f(f"s_lshr_b32 s{sROT2}, s{sJ}, 1")
            elif c.rot2 == 8:
                f(f"s_mul_i32 s{sROT2}, s{sJ}, 3\ns_lshr_b32 s{sROT2}, s{sROT2}, 1")
            elif c.rot2 == 4:
                f(f"s_lshr_b32 s{sROT2}, s{sJ}, 1\ns_mul_i32 s{sROT2}, s{sROT2}, 3")
            else:
                f(f"s_mov_b32 s{sROT2}, 0")
            f(f"s_and_b32 s{sT0}, s2, 7\ns_xor_b32 s{sT0}, s{sT0}, {c.rm2}\ns_lshl_b32 s{sT0}, s{sT0}, 2\ns_lshr_b32 s{sST}, s2, 6\ns_add_u32 s{sST}, s{sST}, s{sT0}")
    a("s_cmp_ge_u32 s2, 256\ns_cbranch_scc1 L_end")
    stamp(0)
    if c.pad:
        a("s_memrealtime s[100:101]")
    a("s_load_dwordx16 s[4:19], s[0:1], 0")
    a(f"v_lshrrev_b32 v{t0}, 6, v0")
    a("s_getpc_b64 s[22:23]")
    a("L_pc:")
    a(f"s_lshr_b32 s{sT0}, s2, 3                 ; idx")
    a(f"s_lshl_b32 s{sT1}, s{sT0}, 9")
    a(f"v_lshl_add_u32 v{t1}, v{t0}, 7, s{sT1}")
    a(f"v_min_u32 v{t1}, (L_end-L_pc-{c.cpo}-4), v{t1}")
    a.vm(f"global_load_dword v{vP}, v{t1}, s[22:23] offset:{c.cpo}", "cpf")
    a(f"v_and_b32 v{vL}, 63, v0")
    a(f"v_readfirstlane_b32 s{sW}, v{t0}")
    a(f"v_lshrrev_b32 v{t0}, 5, v0")
    a(f"v_and_b32 v{t1}, 31, v0")
    a(f"v_lshrrev_b32 v{t2}, 7, v0")
    a(f"v_mul_u32_u24 v{t2}, 12, v{t2}")
    a(f"v_add_u32 v{t2}, v{t2}, v{t0}")
    a(f"v_mul_u32_u24 v2, 1280, v{t2}")
    a(f"v_lshl_add_u32 v2, v{t1}, 3, v2          ; x offset")
    def early_setup():
        a(f"s_lshr_b32 s{sT0}, s2, 3                 ; idx")
        a(f"v_mul_u32_u24 v3, 1344, v{t0}")
        a(f"v_lshl_add_u32 v3, v{t1}, 3, v3")
        a(f"v_add_u32 v3, {RED}, v3")
        if c.map1 == 0:
            a(f"s_mul_i32 s{sFT}, s{sT0}, 205")
            a(f"s_lshr_b32 s{sFT}, s{sFT}, 10            ; idx/5")
            a(f"s_mul_i32 s{sT1}, s{sFT}, 5")
            a(f"s_sub_u32 s{sDT}, s{sT0}, s{sT1}         ; idx%5")
            a(f"s_and_b32 s{sS}, s{sDT}, 3")
            a(f"s_mul_i32 s{sROT1}, s{sDT}, 13")
            a(f"s_lshr_b32 s{sROT1}, s{sROT1}, 2     ; 0,3,6,9,13")
            if c.rot1 == 52:
                a(f"s_and_b32 s{sT1}, s{sFT}, 1")
                a(f"s_lshl_b32 s{sT1}, s{sT1}, 3")
                a(f"s_add_u32 s{sROT1}, s{sROT1}, s{sT1}")
                a(f"s_and_b32 s{sROT1}, s{sROT1}, 15")
            a(f"s_and_b32 s{sT1}, s2, 1")
            a(f"s_mul_i32 s{sT1}, s{sT1}, 5")
            a(f"s_add_u32 s{sDT}, s{sDT}, s{sT1}         ; dtile")
            a(f"s_bfe_u32 s{sT1}, s2, 0x20001")
            a(f"s_mul_i32 s{sT1}, s{sT1}, 6")
            a(f"s_add_u32 s{sFT}, s{sFT}, s{sT1}         ; ftile")
        else:
            a(f"s_mul_i32 s{sFT}, s{sT0}, 205")
            a(f"s_lshr_b32 s{sFT}, s{sFT}, 11            ; idx/10")
            a(f"s_mul_i32 s{sT1}, s{sFT}, 10")
            a(f"s_sub_u32 s{sDT}, s{sT0}, s{sT1}         ; dtile")
            a(f"s_cmp_ge_u32 s{sDT}, 5")
            a(f"s_cselect_b32 s{sS}, 5, 0")
            a(f"s_sub_u32 s{sS}, s{sDT}, s{sS}")
            a(f"s_and_b32 s{sS}, s{sS}, 3")
            if c.rot1 == 10:
                a(f"s_mul_i32 s{sROT1}, s{sDT}, 13")
                a(f"s_lshr_b32 s{sROT1}, s{sROT1}, 3")
            elif c.rot1 == 5:
                a(f"s_lshr_b32 s{sROT1}, s{sDT}, 1")
                a(f"s_mul_i32 s{sROT1}, s{sROT1}, 13")
                a(f"s_lshr_b32 s{sROT1}, s{sROT1}, 2")
            else:
                a(f"s_mov_b32 s{sROT1}, 0")
            a(f"s_and_b32 s{sT1}, s2, 7")
            if c.rm1:
                a(f"s_sub_u32 s{sT0}, 2, s{sFT}")
                a(f"s_cmp_eq_u32 s{sT1}, 3")
                a(f"s_cselect_b32 s{sFT}, s{sT0}, s{sFT}")
                a(f"s_cmp_ge_u32 s{sT1}, 6")
                a(f"s_cselect_b32 s{sT0}, 1, 0")
                a(f"s_xor_b32 s{sT1}, s{sT1}, s{sT0}")
            a(f"s_mul_i32 s{sT1}, s{sT1}, 3")
            a(f"s_add_u32 s{sFT}, s{sFT}, s{sT1}         ; ftile")
        a(f"v_lshrrev_b32 v{t0}, 3, v{vL}            ; rr")
        a(f"v_and_b32 v{t1}, 6, v{t0}")
        a(f"v_and_b32 v{t2}, 7, v{vL}")
        a(f"v_xor_b32 v{t1}, v{t1}, v{t2}")
        a(f"v_lshlrev_b32 v{t1}, 4, v{t1}")
        a(f"v_mul_u32_u24 v{vD1}, 3072, v{t0}")
        a(f"v_add_u32 v{vD1}, v{vD1}, v{t1}")
        a(f"v_lshl_add_u32 v{vD2}, v{t0}, 12, v{t1}")
        for j in range(1, 4):
            a(f"v_add_u32 v{vD1+j}, {j*(8*3072-1024)}, v{vD1}")
        a(f"s_mul_i32 s{sWO0}, s{sW}, {512*3072}")
        a(f"s_lshl_b32 s{sT0}, s{sFT}, 7")
        a(f"s_add_u32 s{sWO0}, s{sWO0}, s{sT0}")
        a(f"s_add_u32 s{sWOE}, s{sWO0}, {512*3072}")
        a(f"s_mul_i32 s{sT0}, s{sROT1}, {32*3072}")
        a(f"s_add_u32 s{sWO}, s{sWO0}, s{sT0}")
        a(f"s_mul_i32 s{sLDS}, s{sW}, {WSLOT*4096}")
        a(f"s_mov_b32 m0, s{sLDS}")
    if not c.fast0:
        early_setup()
    a(f"s_lshr_b32 s{sT0}, s2, 2")
    a(f"s_lshl_b32 s{sT0}, s{sT0}, 3")
    a(f"s_and_b32 s{sT1}, s2, 3")
    a(f"s_add_u32 s{sT0}, s{sT0}, s{sT1}")
    a(f"s_mul_i32 s{sT0}, s{sT0}, 5120")
    a(f"v_lshlrev_b32 v{vU}, 4, v{vL}            ; lane*16")
    a("s_waitcnt lgkmcnt(0)")
    stamp("ka")
    a(f"s_add_u32 s{X}, s{X}, s{sT0}")
    a(f"s_addc_u32 s{X+1}, s{X+1}, 0")
    XR = RING
    for i in range(5):
        a.vm(f"global_load_dwordx2 v[{XR+2*i}:{XR+2*i+1}], v2, s[{X}:{X+1}] offset:{256*i}", f"x{i}")
    if c.fast0:
        early_setup()
    srd(a, RW1, W1, S * F * 2)
    a("s_cmp_ge_u32 s2, 240")
    a(f"s_cselect_b32 s{RW1+2}, 0, s{RW1+2}")
    w1 = W(1)
    w1.can_read = False
    if c.xbar:
        a("s_barrier")
    for _ in range(c.w1_first):
        w1.issue()
    a(f"s_add_u32 s{FB}, s{WS}, {FH_OFF}")
    a(f"s_addc_u32 s{FB+1}, s{WS+1}, 0")
    a(f"s_load_dword s{sTAG}, s[{FB}:{FB+1}], {EP_OFF-FH_OFF}")
    if c.tlbw:
        a(f"v_and_b32 v{t0}, 1, v{vL}")
        a(f"v_mul_u32_u24 v{t1}, 0x281000, v{t0}")
        a(f"v_lshlrev_b32 v{t0}, 21, v{t0}")
        a.vm(f"global_load_dword v{vP+1}, v{t1}, s[{WS}:{WS+1}]", "tl")
        if c.tlbw >= 2:
            a.vm(f"global_load_dword v{vP+2}, v{t0}, s[{OUT}:{OUT+1}]", "tl")
            a(f"v_min_u32 v{t0}, 2, v{vL}")
            a(f"v_lshlrev_b32 v{t0}, 21, v{t0}")
            a.vm(f"global_load_dword v{vP+3}, v{t0}, s[{W2}:{W2+1}]", "tl")
    tile2(a)
    a(f"v_lshrrev_b32 v{t3}, 4, v{vL}            ; g")
    a(f"s_min_u32 s{sT0}, s{sFT}, 23\ns_lshl_b32 s{sT0}, s{sT0}, 1\ns_and_b32 s{sT1}, s{sW}, 1\ns_add_u32 s{sT0}, s{sT0}, s{sT1}\ns_lshl_b32 s{sT0}, s{sT0}, 6\nv_lshl_add_u32 v{t5}, v{t3}, 3, s{sT0}")
    for k in range(2):
        a.vm(f"global_load_dwordx2 v[{vB1+2*k}:{vB1+2*k+1}], v{t5}, s[{B1}:{B1+1}] offset:{32*k}", "b1")
    a(f"v_and_b32 v{t4}, 15, v{vL}")
    a(f"s_lshl_b32 s{sT0}, s{sST}, 6\ns_lshl_b32 s{sT1}, s{sW}, 4\ns_add_u32 s{sT0}, s{sT0}, s{sT1}\nv_add_u32 v{vO}, s{sT0}, v{t4}           ; s")
    a(f"v_lshlrev_b32 v{t2}, 1, v{vO}")
    a.vm(f"global_load_ushort v{vB2}, v{t2}, s[{B2}:{B2+1}]", "b2")
    a(f"s_lshl_b32 s{sT0}, s2, {c.fhs-2}\ns_add_u32 s{sT0}, s{sT0}, s{sW}\ns_lshl_b32 s{sFO[0]}, s{sT0}, 2")
    a(f"s_load_dword s{sFD[0]}, s[{FB}:{FB+1}], s{sFO[0]}")
    for h, su in enumerate((sUS0, sUS1)):
        a(f"s_lshr_b32 s{sT0}, s{sW}, 1\ns_add_u32 s{sT0}, s{sT0}, s{sS}\ns_add_u32 s{sT0}, s{sT0}, {2*h}\ns_and_b32 s{sT0}, s{sT0}, 3\ns_lshl_b32 s{sT1}, s{sDT}, 2\ns_add_u32 s{su}, s{sT0}, s{sT1}")
        a(f"s_mul_i32 s{sT0}, s{su}, 24\ns_add_u32 s{sT0}, s{sT0}, s{sFT}\ns_lshl_b32 s{sT0}, s{sT0}, {c.fus-2}\ns_and_b32 s{sT1}, s{sW}, 1\ns_add_u32 s{sT0}, s{sT0}, s{sT1}\ns_lshl_b32 s{sT0}, s{sT0}, 2\ns_add_u32 s{sFO[1+h]}, s{sT0}, {FU_OFF-FH_OFF}")
        a(f"s_load_dword s{sFD[1+h]}, s[{FB}:{FB+1}], s{sFO[1+h]}")
    srd(a, RWS, WS, WS_USED)
    a(f"v_lshrrev_b32 v{t3}, 4, v{vL}            ; g")
    a(f"v_and_b32 v{t4}, 15, v{vL}")
    a(f"v_lshlrev_b32 v{vHS}, 16, v{t3}")
    a(f"v_lshl_add_u32 v{vHS}, v{t4}, 4, v{vHS}")
    a(f"v_bfe_u32 v{t0}, v{vL}, 2, 2             ; r")
    a(f"v_mul_u32_u24 v{t0}, 1344, v{t0}")
    a(f"v_add_u32 v{t0}, {RED}, v{t0}")
    a(f"v_and_b32 v{t1}, 3, v{vL}                ; c")
    a(f"s_lshl_b32 s{sT0}, s{sW}, 2")
    a(f"v_add_u32 v{t3}, s{sT0}, v{t3}           ; T for m=0")
    for m in range(3):
        a(f"v_mul_u32_u24 v{t2}, 205, v{t3}")
        a(f"v_lshrrev_b32 v{t2}, 10, v{t2}       ; j")
        a(f"v_mul_u32_u24 v{t4}, 5, v{t2}")
        a(f"v_sub_u32 v{t4}, v{t3}, v{t4}        ; t")
        if c.omap:
            a(f"v_lshrrev_b32 v{t5}, 2, v{t4}")
            a(f"v_mul_u32_u24 v{vLT+m}, 896, v{t5}")
            a(f"v_lshlrev_b32 v{t5}, 1, v{t5}")
            a(f"v_sub_u32 v{t5}, 7, v{t5}")
            a(f"v_lshlrev_b32 v{t2}, v{t5}, v{t2}")
            a(f"v_add3_u32 v{t2}, v{t2}, v{t0}, v{vLT+m}")
            a(f"v_lshrrev_b32 v{t5}, 1, v{t4}")
            a(f"v_lshl_add_u32 v{t2}, v{t5}, 6, v{t2}")
        else:
            a(f"v_mul_u32_u24 v{t2}, 160, v{t2}")
            a(f"v_add_u32 v{t2}, v{t2}, v{t0}")
            a(f"v_lshrrev_b32 v{t5}, 1, v{t4}")
            a(f"v_lshl_add_u32 v{t2}, v{t5}, 6, v{t2}")
        a(f"v_and_b32 v{t5}, 1, v{t4}")
        a(f"v_lshl_add_u32 v{t2}, v{t5}, 3, v{t2}")
        a(f"v_lshrrev_b32 v{t4}, 2, v{t4}")
        a(f"v_sub_u32 v{t4}, 4, v{t4}")
        a(f"v_lshlrev_b32 v{t4}, v{t4}, v{t1}")
        a(f"v_add_u32 v{vLT+m}, v{t2}, v{t4}")
        if m < 2:
            a(f"v_add_u32 v{t3}, 16, v{t3}")
    a(f"s_lshl_b32 s{sT3}, s2, 8")
    a(f"s_lshl_b32 s{sT0}, s{sW}, 18")
    a(f"s_add_u32 s{sT3}, s{sT3}, s{sT0}")
    a(f"s_add_u32 s{sT3}, s{sT3}, {H_OFF}")
    for _ in range(c.w1_pre):
        w1.issue()
    stamp("iss")
    XF = RING + 12
    for i in range(5):
        a.wait(f"x{i}")
        if i == 0:
            stamp(1)
        if i == 4:
            stamp("x4")
            for _ in range(c.w1_x):
                w1.issue()
        for k in range(2):
            a(f"v_lshlrev_b32 v{XF+4*i+2*k}, 16, v{XR+2*i+k}")
            a(f"v_and_b32 v{XF+4*i+2*k+1}, 0xffff0000, v{XR+2*i+k}")
        if i == 0:
            a(f"v_pk_add_f32 v[{t0}:{t0+1}], v[{XF}:{XF+1}], v[{XF+2}:{XF+3}]")
        else:
            a(f"v_pk_add_f32 v[{t0}:{t0+1}], v[{t0}:{t0+1}], v[{XF+4*i}:{XF+4*i+1}]")
            a(f"v_pk_add_f32 v[{t0}:{t0+1}], v[{t0}:{t0+1}], v[{XF+4*i+2}:{XF+4*i+3}]")
    def half_sum():
        a(f"v_add_f32 v{t0}, v{t0}, v{t0+1}")
        for r in (8, 4, 2, 1):
            a("s_nop 1")
            a(f"v_add_f32_dpp v{t0}, v{t0}, v{t0} row_ror:{r} row_mask:0xf bank_mask:0xf")
        a(f"v_mov_b32 v{t0+1}, v{t0}")
        a("s_nop 1")
        a(f"v_permlane16_swap_b32 v{t0+1}, v{t0}")
        a(f"v_add_f32 v{t0}, v{t0}, v{t0+1}")
    half_sum()
    a(f"v_mul_f32 v{t0}, {f32(-1.0/D)}, v{t0}    ; -mean")
    a(f"v_mov_b32 v{t0+1}, v{t0}")
    for i in range(10):
        a(f"v_pk_add_f32 v[{XF+2*i}:{XF+2*i+1}], v[{XF+2*i}:{XF+2*i+1}], v[{t0}:{t0+1}]")
    a(f"v_pk_mul_f32 v[{t0}:{t0+1}], v[{XF}:{XF+1}], v[{XF}:{XF+1}]")
    for i in range(1, 10):
        a(f"v_pk_fma_f32 v[{t0}:{t0+1}], v[{XF+2*i}:{XF+2*i+1}], v[{XF+2*i}:{XF+2*i+1}], v[{t0}:{t0+1}]")
    half_sum()
    a(f"v_mov_b32 v{t0+1}, {f32(1e-5)}")
    a(f"v_fmac_f32 v{t0+1}, {f32(1.0/D)}, v{t0}")
    a(f"v_rsq_f32 v{t0}, v{t0+1}")
    a("s_nop 0")
    a(f"v_mov_b32 v{t0+1}, v{t0}")
    for i in range(10):
        a(f"v_pk_mul_f32 v[{XF+2*i}:{XF+2*i+1}], v[{XF+2*i}:{XF+2*i+1}], v[{t0}:{t0+1}]")
    for i in range(5):
        a(f"v_cvt_pk_bf16_f32 v{XR+2*i}, v{XF+4*i}, v{XF+4*i+1}")
        a(f"v_cvt_pk_bf16_f32 v{XR+2*i+1}, v{XF+4*i+2}, v{XF+4*i+3}")
        a(f"ds_write_b64 v3, v[{XR+2*i}:{XR+2*i+1}] offset:{256*i}")
    for _ in range(c.w1_ln):
        w1.issue()
    a("s_waitcnt lgkmcnt(0)")
    a("s_barrier")
    stamp(2)
    HT = RING + 12
    for m in range(3):
        a(f"ds_read_b64_tr_b16 v[{HT+4*m}:{HT+4*m+1}], v{vLT+m}")
        a(f"ds_read_b64_tr_b16 v[{HT+4*m+2}:{HT+4*m+3}], v{vLT+m} offset:{4*1344}")
    a(f"s_add_u32 s{sT0}, s{sT3}, {1<<20}")
    a(f"s_add_u32 s{sT1}, s{sT3}, {2<<20}")
    a(f"s_cmp_ge_u32 s{sW}, 2")
    a(f"s_cselect_b32 s{sT1}, 0x40000000, s{sT1}")
    if c.stamp or c.pad:
        a("s_waitcnt lgkmcnt(0)")
    for m, so in enumerate((sT3, sT0, sT1)):
        a(f"s_waitcnt lgkmcnt({4-2*m})")
        a.vm(f"buffer_store_dwordx4 v[{HT+4*m}:{HT+4*m+3}], v{vHS}, s[{RWS}:{RWS+3}], s{so} offen sc1", "hst")
    stamp("hsto")
    if c.padx != -1:
        a(f"s_or_b32 s{sT0}, s2, s{sW}")
        a("s_cbranch_scc1 L_nopx")
        a(f"v_mov_b32 v{t0}, {ST_OFF}")
        a(f"v_mov_b32 v{t1}, s100")
        a(f"global_store_dword v{t0}, v{t1}, s[{WS}:{WS+1}] sc1")
        a("L_nopx:")
    def setup_common(f):
        f(f"s_mul_i32 s{sTAG}, s{sTAG}, 1664525")
        f(f"s_add_u32 s{sTAG}, s{sTAG}, 1013904223")
        f(f"v_mov_b32 v{vTAG}, s{sTAG}")
        for k in range(3):
            f(f"s_sub_u32 s{sFD[k]}, s{sTAG}, s{sFD[k]}")
        f(f"v_lshrrev_b32 v{t0}, 2, v{vL}            ; row = 4g + r")
        f(f"v_lshlrev_b32 v{vT1}, 7, v{t0}")
        f(f"v_bfe_u32 v{t0}, v{vL}, 3, 2")
        f(f"v_lshl_add_u32 v{vT1}, v{t0}, 5, v{vT1}")
        f(f"v_and_b32 v{t0}, 3, v{vL}")
        f(f"v_lshl_add_u32 v{vT1}, v{t0}, 3, v{vT1}")
        f(f"v_add_u32 v{vT1}, s{sLDS}, v{vT1}")
        f(f"s_lshl_b32 s{sT0}, s{sW}, 5\nv_xor_b32 v{vT2}, s{sT0}, v{vT1}")
        f(f"s_and_b32 s{sT0}, s{sW}, 1\ns_lshl_b32 s{sT0}, s{sT0}, 6\nv_xor_b32 v{vT1}, s{sT0}, v{vT1}")
        for b in range(1, 4):
            f(f"v_xor_b32 v{vT1+b}, {b*32}, v{vT1}")
    def setup_g2(f):
        f(f"v_lshrrev_b32 v{t3}, 4, v{vL}")
        f(f"v_mul_u32_u24 v{vO}, 1280, v{vO}")
        f(f"v_lshl_add_u32 v{vO+1}, v{t3}, 3, v{vO}")
        f(f"v_lshl_add_u32 v{vO}, v{t3}, 4, v{vO}")
        for b in range(1, 4):
            f(f"v_xor_b32 v{vT2+b}, {b*32}, v{vT2}")
        for j in range(1, 4):
            f(f"v_add_u32 v{vD2+j}, {j*(8*4096-1024)}, v{vD2}")
        for t in range(1, 5):
            f(f"v_add_u32 v{vU+t}, {t*49152}, v{vU}")
        for k, (lo, cnt) in enumerate(((0, 24), (24, 36))):
            f(f"v_min_u32 v{t0}, {cnt-1}, v{vL}")
            f(f"v_mul_u32_u24 v{t1}, 43, v{t0}")
            f(f"v_lshrrev_b32 v{t1}, 9, v{t1}            ; n/12")
            f(f"v_mul_u32_u24 v{t1}, 18, v{t1}")
            f(f"v_lshrrev_b32 v{t2}, 1, v{t0}")
            f(f"s_mul_i32 s{sT0}, s{sJ}, 120\ns_mul_i32 s{sT1}, s{sW}, 6\ns_add_u32 s{sT0}, s{sT0}, s{sT1}\nv_add3_u32 v{t1}, v{t1}, v{t2}, s{sT0}")
            f(f"v_and_b32 v{t0}, 1, v{t0}")
            f(f"v_lshlrev_b32 v{t0}, 2, v{t0}")
            f(f"v_lshl_add_u32 v{vFU+k}, v{t1}, {c.fus}, v{t0}")
            f(f"v_add_u32 v{vFU+k}, {FU_OFF + ((lo // 12 * 24) << c.fus)}, v{vFU+k}")
        srd(f, RW2, W2, S * F * 2)
        srd(f, ROUT, OUT, S * D * 2)
    def setup_g1(f):
        f(f"v_lshlrev_b32 v{vFH}, {c.fhs}, v0")
        f(f"v_add_u32 v{vFH}, {FH_OFF}, v{vFH}")
        for p in range(4):
            f(f"s_lshr_b32 s{sT0}, s{sW}, 1\ns_xor_b32 s{sT0}, s{sT0}, {(p&1)^1}\ns_add_u32 s{sT0}, s{sT0}, s{sS}\ns_add_u32 s{sT0}, s{sT0}, {p&2}\ns_and_b32 s{sT0}, s{sT0}, 3\ns_lshl_b32 s{sT1}, s{sT0}, 16\nv_add_u32 v{vH+p}, s{sT1}, v{vU}")
        for h, su in enumerate((sUS0, sUS1)):
            f(f"s_mul_i32 s{su}, s{su}, 48\ns_lshl_b32 s{sT0}, s{sFT}, 1\ns_add_u32 s{su}, s{su}, s{sT0}\ns_and_b32 s{sT1}, s{sW}, 1\ns_add_u32 s{su}, s{su}, s{sT1}\ns_lshl_b32 s{su}, s{su}, 10\ns_add_u32 s{su}, s{su}, {U_OFF}")
        f(f"s_lshl_b32 s{sT3}, {0 if c.fake & 1 else 's%d' % sDT}, 18\ns_lshl_b32 s{sT1}, s{sW}, 14\ns_add_u32 s{sT3}, s{sT3}, s{sT1}\ns_add_u32 s{sT3}, s{sT3}, {H_OFF}")
        for i in range(NS1):
            f(f"s_add_u32 s{sT1}, s{sROT1}, {i}\ns_and_b32 s{sT1}, s{sT1}, 15\ns_lshl_b32 s{sT1}, s{sT1}, 10\ns_add_u32 s{sK+i}, s{sT1}, s{sT3}")
        for k in range(4):
            f(f"s_xor_b32 s{sT0}, s{sW}, {k}\ns_mul_i32 s{sT0}, s{sT0}, 12288\ns_add_u32 s{sT0}, s{sT0}, {RED}\nv_add_u32 v{vR+k}, s{sT0}, v{vU}")
        c1 = -2.0 * math.log2(math.e) * math.sqrt(2.0 / math.pi)
        f(f"v_mov_b32 v{vC1}, {f32(c1)}")
        f(f"v_mov_b32 v{vC1+1}, {f32(c1*0.044715)}")
        f(lambda: a.wait("b1"))
        for p in (1, 3):
            for k in range(4):
                f(f"v_lshlrev_b32 v{ACC+16*p+2*k}, 16, v{vB1+k}")
                f(f"v_and_b32 v{ACC+16*p+2*k+1}, 0xffff0000, v{vB1+k}")
    fl = Fill(a)
    if c.hearly:
        a("s_cmp_ge_u32 s2, 240")
        a("s_cbranch_scc1 L_idle")
    setup_common(fl)
    fl(lambda: setattr(w1, "can_read", True))
    setup_g2(fl)
    for _ in range(c.w1_mid):
        w1.step(fl, older_than="hst")
    fl.flush()
    a.wait("hst")
    stamp(3)
    flag_add(0)
    if not c.hearly:
        a("s_cmp_ge_u32 s2, 240")
        a("s_cbranch_scc1 L_idle")
    setup_g1(fl)
    fl.emit(2)
    sE, sGRP, sM0 = 6, 9, 12
    def w2offs(f):
        f(f"s_mul_i32 s{sT0}, s{sW}, {12*32*4096}\ns_lshl_b32 s{sT1}, s{sST}, 7\ns_add_u32 s{sT0}, s{sT0}, s{sT1}\ns_add_u32 s{sT1}, s{sT0}, {12*32*4096}\n"
          f"s_mul_i32 s{sE}, s{sROT2}, {32*4096}\ns_add_u32 s{sE}, s{sE}, s{sT0}\n"
          + "\n".join(f"s_add_u32 s{sE+k}, s{sE+k-1}, {32*4096}\ns_cmp_eq_u32 s{sE+k}, s{sT1}\ns_cselect_b32 s{sE+k}, s{sT0}, s{sE+k}" for k in range(1, c.w2e + 1)))
    if c.w2e:
        w2offs(a)
        a(f"s_lshr_b32 s{sGRP}, s2, {c.esh}")
        a(f"s_and_b32 s{sGRP}, s{sGRP}, {c.egrp-1}")
    while w1.left() > c.ov1:
        if w1.left() == c.pe1 + c.ov1:
            a.vm(poll_load("h"), "hpoll")
        if c.w2e and w1.n >= c.e0 and (w1.n - c.e0) % c.estep == 0 and (w1.n - c.e0) // c.estep < c.egrp:
            g = (w1.n - c.e0) // c.estep
            a(f"s_cmp_lg_u32 s{sGRP}, {g}")
            a(f"s_cbranch_scc1 L_e{g}")
            a(f"s_mov_b32 s{sM0}, m0")
            for k in range(c.w2e):
                a(f"s_add_u32 m0, s{sLDS}, {(WSLOT-c.w2e+k)*4096}")
                a("s_nop 0")
                for j in range(4):
                    a(f"buffer_load_dwordx4 v{vD2+j}, s[{RW2}:{RW2+3}], s{sE+k} offen offset:{1024*j} lds")
            a(f"s_mov_b32 m0, s{sM0}")
            a("s_nop 0")
            a(f"L_e{g}:")
        w1.step(fl)
    assert not c.w2e or c.e0 + (c.egrp - 1) * c.estep < 64
    if c.pe1 == 0:
        a.vm(poll_load("h"), "hpoll")
    fl.flush()
    a.wait("hpoll")
    stamp(4)
    spin("h")
    stamp(5)
    N1 = 64
    def hissue(n):
        r = RING + 4 * (n % NRING)
        a.vm(f"buffer_load_dwordx4 v[{r}:{r+3}], v{vH+n//16}, s[{RWS}:{RWS+3}], s{sK+n%16} offen sc1", f"h{n}")
    hst_ = [c.d0 if c.ov1 else c.hd]
    for n in range(hst_[0]):
        hissue(n)
        w1.reads(2)
    if not c.ov1:
        w1.drain()
    def w2setup(done):
        a(f"s_mul_i32 s{sWO0}, s{sW}, {12*32*4096}")
        a(f"s_lshl_b32 s{sT0}, s{sST}, 7")
        a(f"s_add_u32 s{sWO0}, s{sWO0}, s{sT0}")
        a(f"s_add_u32 s{sWOE}, s{sWO0}, {12*32*4096}")
        if c.nh:
            a(f"s_mov_b32 m0, s{sLDS}")
            a(step_off(sWO, sWO0, 0, 17))
        elif done:
            a(f"s_mov_b32 m0, s{sLDS}")
            a(f"s_mov_b32 s{sWO}, s{sE+done}")
        else:
            a(f"s_mul_i32 s{sT0}, s{sROT2}, {32*4096}")
            a(f"s_add_u32 m0, s{sLDS}, {((WSLOT-c.w2e)%WSLOT)*4096}")
            a(f"s_add_u32 s{sWO}, s{sWO0}, s{sT0}")
    if not c.ov1:
        w2setup(c.w2e)
        a.dwait()
    stamp("g1s")
    w2 = W(2)
    w2.n = 4 * c.w2e
    w2.can_read = False
    def plan(m, st, w, issue, total, depth, tail):
        ops = []
        nw = min(c.wpp, w.left())
        want = min(total, 2 * m + 2 + (c.d0 if nw else depth))
        na = min(want - st[0], 2 if nw else 4)
        acts = [lambda n=st[0] + k: issue(n) for k in range(na)]
        st[0] += na
        ws_ = [w.issue] * nw
        while acts or ws_:
            for _ in range((c.wpp + 1) // 2):
                if ws_:
                    ops.append(ws_.pop(0))
            if acts:
                ops.append(acts.pop(0))
        if not ops and st[0] == total:
            ops = tail()
        gaps = {0: [], 1: [1], 2: [c.lg0, c.lg1], 3: [1, 3, 5], 4: [0, 2, 4, 6], 5: [0, 1, 3, 4, 6], 6: [0, 1, 2, 4, 5, 6], 7: list(range(7)), 8: list(range(8))}[len(ops)]
        return dict(zip(gaps, ops))
    def need_steps(w, upto):
        if w.rd < 8 * (upto + 1):
            a.wait(w.tag(4 * upto + 3))
            w.reads(8 * (upto + 1) - w.rd)
        for i in range(upto + 1):
            a.dwait(f"r{w.kind}_{i}")
    def spread(nf):
        if c.lg0 >= 0:
            free = [g for g in range(8) if g not in (c.lg0, c.lg1)]
            free.sort(key=lambda g: g == 7)
            per = [0] * 8
            for x in range(nf):
                per[free[x % len(free)]] += 1
            return per
        if c.gap2:
            return [0 if g % 2 == 0 else nf // 4 + (1 if g // 2 < nf % 4 else 0) for g in range(8)]
        return [nf // 8 + (1 if g < nf % 8 else 0) for g in range(8)]
    def red_write(f, p, aa):
        cw = ACC + 16 * p + 4 * aa
        slot = aa if p % 2 == 0 else 2 + aa
        f(lambda: a.ds(f"ds_write_b128 v{vR}, v[{cw}:{cw+3}] offset:{(p//2)*6144+slot*1024}", f"rw{p}"))
    def red_finish(f, h):
        P0, P1, T = ACC + 32 * h, ACC + 32 * h + 16, RD + 12 * h
        for x, (k, slot, dst) in enumerate(((2, 0, P0), (3, 2, P0 + 8), (1, 4, P1 + 8), (2, 1, P0 + 4), (3, 3, P0 + 12), (1, 5, P1 + 12))):
            f(lambda k=k, slot=slot, dst=dst, x=x: a.ds(f"ds_read_b128 v[{dst}:{dst+3}], v{vR+k} offset:{h*6144+slot*1024}", f"rr{h}_{x}"))
        f("s_nop 0") if False else None
        if h == 1 and c.pk1:
            def pk(op, d, *src):
                f(f"v_pk_{op}_f32 v[{d}:{d+1}], " + ", ".join(x if isinstance(x, str) else f"v[{x}:{x+1}]" for x in src))
            for half in range(2):
                f(lambda half=half: a.dwait(f"rr{h}_{3*half+2}"))
                for r in (4 * half, 4 * half + 2):
                    pk("add", P0 + r, P0 + r, P0 + 8 + r)
                    pk("add", P1 + r, P1 + r, P1 + 8 + r)
                for r in (4 * half, 4 * half + 2):
                    pk("add", P1 + r, P1 + r, P0 + r)
            for r in range(0, 8, 2):
                pk("mul", T + r, P1 + r, P1 + r)
            for r in range(0, 8, 2):
                f(f"v_pk_fma_f32 v[{T+r}:{T+r+1}], v[{T+r}:{T+r+1}], v[{vC1}:{vC1+1}], v[{vC1}:{vC1+1}] op_sel:[0,1,0] op_sel_hi:[1,1,0]")
            for r in range(0, 8, 2):
                pk("mul", T + r, T + r, P1 + r)
            for r in range(8):
                f(f"v_exp_f32 v{T+r}, v{T+r}")
            for r in range(0, 8, 2):
                f(f"v_pk_add_f32 v[{T+r}:{T+r+1}], v[{T+r}:{T+r+1}], 1.0 op_sel_hi:[1,0]")
            for r in range(8):
                f(f"v_rcp_f32 v{T+r}, v{T+r}")
            for r in range(0, 8, 2):
                pk("mul", T + r, T + r, P1 + r)
            for r in range(4):
                f(f"v_cvt_pk_bf16_f32 v{T+8+r}, v{T+2*r}, v{T+2*r+1}")
            f(lambda: a.vm(f"buffer_store_dwordx4 v[{T+8}:{T+11}], v{vU}, s[{RWS}:{RWS+3}], s{sUS1} offen sc1", "ust1"))
            return
        for half in range(2):
            f(lambda half=half: a.dwait(f"rr{h}_{3*half+2}"))
            for r in range(4 * half, 4 * half + 4):
                f(f"v_add_f32 v{P0+r}, v{P0+r}, v{P0+8+r}")
                f(f"v_add_f32 v{P1+r}, v{P1+r}, v{P1+8+r}")
            for r in range(4 * half, 4 * half + 4):
                f(f"v_add_f32 v{P1+r}, v{P1+r}, v{P0+r}")
        for r in range(8):
            f(f"v_mul_f32 v{T+r}, v{P1+r}, v{P1+r}")
        for r in range(8):
            f(f"v_fma_f32 v{T+r}, v{T+r}, v{vC1+1}, v{vC1}")
        for r in range(8):
            f(f"v_mul_f32 v{T+r}, v{T+r}, v{P1+r}")
        for r in range(8):
            f(f"v_exp_f32 v{T+r}, v{T+r}")
        for r in range(8):
            f(f"v_add_f32 v{T+r}, 1.0, v{T+r}")
        for r in range(8):
            f(f"v_rcp_f32 v{T+r}, v{T+r}")
        for r in range(8):
            f(f"v_mul_f32 v{T+r}, v{T+r}, v{P1+r}")
        for r in range(4):
            f(f"v_cvt_pk_bf16_f32 v{T+8+r}, v{T+2*r}, v{T+2*r+1}")
        su = sUS0 if h == 0 else sUS1
        f(lambda: a.vm(f"buffer_store_dwordx4 v[{T+8}:{T+11}], v{vU}, s[{RWS}:{RWS+3}], s{su} offen sc1", f"ust{h}"))
    deferred1 = []
    for m in range(N1 // 2):
        p, i = m // 8, 2 * (m % 8)
        stamp(f"g1_{m}")
        if hst_[0] == N1 and w2.n == 4 * c.w2e:
            stamp("t0")
        ops = plan(m, hst_, w1, hissue, N1, c.hd, lambda: [w2.issue] * c.w2_tail)
        if c.ov1 and m == 8:
            assert w1.left() == 0 and w1.rd == 8 * NS1
            w2setup(c.w2e)
        if m % 8 == 1 and p >= 1:
            for aa in (range(4) if p % 2 == 1 else (2, 3)):
                red_write(fl, p - 1, aa)
        a.wait(f"h{2*m+1}")
        if m < 8:
            need_steps(w1, 2 * m + 1)
        per = spread(c.g1fill)
        order = (2, 3, 0, 1) if m == N1 // 2 - 1 else (0, 1, 2, 3)
        for ti, t in enumerate(order):
            for e0 in range(2):
                e = e0 ^ (ti & 1) if c.serp else e0
                rb = RING + 4 * ((2 * m + e) % NRING)
                cc = ACC + 16 * p + 4 * t
                src = "0" if (i == 0 and e0 == 0 and not (p % 2 == 1 and t < 2)) else f"v[{cc}:{cc+3}]"
                ra = 16 * (i + e) + 4 * t
                ins = f"v_mfma_f32_16x16x32_bf16 v[{cc}:{cc+3}], a[{ra}:{ra+3}], v[{rb}:{rb+3}], {src}"
                if t < 2 and m >= N1 // 2 - c.defer1:
                    deferred1.append(ins)
                elif not (c.fake & 4):
                    a(ins)
                if 2 * ti + e0 in ops:
                    ops[2 * ti + e0]()
                if m < 8:
                    w1.reads(2)
                fl.emit(per[2 * ti + e0])
        if m == c.g1bar:
            assert not fl.g
            a.dwait()
            if not (c.fake & 16):
                a("s_barrier")
            red_finish(fl, 0)
            if c.fake & 8:
                fl.g = [x if callable(x) else (lambda: None) for x in fl.g]
    fl.flush()
    stamp(6)
    w2.can_read = True
    if c.defer1:
        for _ in range(6):
            a(deferred1.pop(0) if deferred1 else "s_nop 0")
        red_write(fl, 3, 2)
        fl.flush()
        a(deferred1.pop(0) if deferred1 else "s_nop 0")
        red_write(fl, 3, 3)
        fl.flush()
        for x in deferred1:
            a(x)
    else:
        a("s_nop 3")
        red_write(fl, 3, 2)
        red_write(fl, 3, 3)
        fl.flush()
    w2.issue()
    a.dwait()
    a("s_barrier")
    red_finish(fl, 1)
    fl.emit(6)
    k = 0
    flagged = False
    while fl.g:
        if k == c.fe_pos:
            a.wait("ust0")
            stamp("fe")
            flag_add(1)
            flagged = True
        if k < c.w2_un:
            w2.step(fl, throttle=False)
        else:
            fl.emit(c.fillk)
        k += 1
    stamp(7)
    if not flagged:
        a.wait("ust0")
        stamp("fe")
        flag_add(1)
    for _ in range(c.w2_mid):
        w2.step(None, older_than="ust1")
    a.wait("ust1")
    flag_add(2)
    a("L_join:")
    join_n, join_rd = w2.n, w2.rd
    stamp(8)
    fl(f"s_mul_i32 s{sT3}, {0 if c.fake & 2 else 's%d' % sJ}, {5*49152}\ns_mul_i32 s{sT1}, s{sW}, 12288\ns_add_u32 s{sT3}, s{sT3}, s{sT1}\ns_add_u32 s{sT3}, s{sT3}, {U_OFF}")
    if c.nh:
        for i in range(NS2):
            fl(step_off(sK + i, sT3, i, 10))
    else:
        fl(f"s_add_u32 s{sUS1}, s{sT3}, 12288\ns_lshl_b32 s{sK}, s{sROT2}, 10\ns_add_u32 s{sK}, s{sK}, s{sT3}")
        for i in range(1, NS2):
            fl(f"s_add_u32 s{sK+i}, s{sK+i-1}, 1024\ns_cmp_eq_u32 s{sK+i}, s{sUS1}\ns_cselect_b32 s{sK+i}, s{sT3}, s{sK+i}")
    fl(f"v_lshlrev_b32 v{vB2}, 16, v{vB2}")
    for t in range(5):
        for r in range(4):
            fl(f"v_mov_b32 v{ACC+16*t+r}, v{vB2}")
    for k in range(4):
        fl(f"s_xor_b32 s{sT0}, s{sW}, {k}\ns_mul_i32 s{sT0}, s{sT0}, {WSLOT*4096}\nv_add_u32 v{vR+k}, s{sT0}, v{vU}")
    if c.omap:
        fl(f"s_lshl_b32 s{sUS0}, s{sJ}, 7\ns_lshl_b32 s{sT3}, s{sJ}, 5\ns_add_u32 s{sT3}, s{sT3}, 1024")
    else:
        fl(f"s_mul_i32 s{sUS0}, s{sJ}, 160\ns_add_u32 s{sT3}, s{sUS0}, 128")
    assert w2.left() >= c.pe2 + c.ov2
    while w2.left() > c.ov2:
        if w2.left() == c.pe2 + c.ov2:
            a.vm(poll_load("a"), "apoll")
        w2.step(fl)
    if c.pe2 == 0:
        a.vm(poll_load("a"), "apoll")
    fl.flush()
    a.wait("apoll")
    stamp(9)
    spin("a")
    stamp(10)
    N2 = 60
    def uissue(n):
        if n == 24 - c.pbl:
            a.vm(poll_load("b"), "bpoll")
        if n == 24:
            a.wait("bpoll")
            spin("b")
            stamp("pb")
        r = RING + 4 * (n % NRING)
        a.vm(f"buffer_load_dwordx4 v[{r}:{r+3}], v{vU+n//12}, s[{RWS}:{RWS+3}], s{sK+n%12} offen sc1", f"u{n}")
    ust_ = [c.d0 if c.ov2 else c.ud]
    for n in range(ust_[0]):
        uissue(n)
        w2.reads(2)
    if not c.ov2:
        w2.drain()
        a.dwait()
    stamp("g2s")
    def fin_reads(f, ts):
        for t in ts:
            for k in range(1, 4):
                cr = ACC + 16 * t + 4 * k
                f(lambda t=t, k=k, cr=cr: a.ds(f"ds_read_b128 v[{cr}:{cr+3}], v{vR+k} offset:{(k-1)*5120+t*1024}", f"fr{t}"))
    def fin(f, t):
        f(lambda: a.dwait(f"fr{t}"))
        cc = ACC + 16 * t
        if t == 4 and c.pkfin:
            for r in (0, 2):
                f(f"v_pk_add_f32 v[{cc+r}:{cc+r+1}], v[{cc+r}:{cc+r+1}], v[{cc+4+r}:{cc+5+r}]")
                f(f"v_pk_add_f32 v[{cc+8+r}:{cc+9+r}], v[{cc+8+r}:{cc+9+r}], v[{cc+12+r}:{cc+13+r}]")
            for r in (0, 2):
                f(f"v_pk_add_f32 v[{cc+r}:{cc+r+1}], v[{cc+r}:{cc+r+1}], v[{cc+8+r}:{cc+9+r}]")
            for r in (0, 2):
                f(f"v_cvt_pk_bf16_f32 v{RD+2*t+r//2}, v{cc+r}, v{cc+r+1}")
            return
        for r in range(4):
            f(f"v_add_f32 v{cc+r}, v{cc+r}, v{cc+4+r}")
            f(f"v_add_f32 v{cc+8+r}, v{cc+8+r}, v{cc+12+r}")
        for r in range(4):
            f(f"v_add_f32 v{cc+r}, v{cc+r}, v{cc+8+r}")
        for r in (0, 2):
            f(f"v_cvt_pk_bf16_f32 v{RD+2*t+r//2}, v{cc+r}, v{cc+r+1}")
    def ostore(pp):
        a.vm(f"buffer_store_dwordx4 v[{RD+4*pp}:{RD+4*pp+3}], v{vO}, s[{ROUT}:{ROUT+3}], s{sUS0} offen offset:{64*pp}{OP[c.opol] if c.osc >> pp & 1 else ''}", "o")
    stored0 = [False]
    deferred = []
    for m in range(N2 // 2):
        t, i = m // 6, 2 * (m % 6)
        stamp(f"g2_{m}")
        def tail2():
            if stored0[0] or c.o0b:
                return []
            stored0[0] = True
            return [lambda: ostore(0)]
        ops = plan(m, ust_, w2, uissue, N2, c.ud, tail2)
        if m % 6 == 1 and t >= 1:
            for b in range(1, 4):
                cw = ACC + 16 * (t - 1) + 4 * b
                fl.g.insert(b - 1, lambda cw=cw, b=b, t=t: a.ds(f"ds_write_b128 v{vR}, v[{cw}:{cw+3}] offset:{(b-1)*5120+(t-1)*1024}", "fw"))
        a.wait(f"u{2*m+1}")
        if m < 6:
            need_steps(w2, 2 * m + 1)
        per = spread(c.g2l if m > c.g2b1 else c.g2f)
        for bi, b in enumerate((1, 2, 3, 0)):
            for e0 in range(2):
                e = e0 ^ (bi & 1) if c.serp else e0
                ra = RING + 4 * ((2 * m + e) % NRING)
                cc = ACC + 16 * t + 4 * b
                src = "0" if (i == 0 and e0 == 0 and b) else f"v[{cc}:{cc+3}]"
                rb = 16 * (i + e) + 4 * b
                ins = f"v_mfma_f32_16x16x32_bf16 v[{cc}:{cc+3}], v[{ra}:{ra+3}], a[{rb}:{rb+3}], {src}"
                if b == 0 and m >= N2 // 2 - c.defer:
                    deferred.append(ins)
                elif not (c.fake & 4):
                    a(ins)
                if 2 * bi + e0 in ops:
                    ops[2 * bi + e0]()
                if m < 6:
                    w2.reads(2)
                fl.emit(per[2 * bi + e0])
        if m in (c.g2b0, c.g2b1):
            assert not fl.g
            a.dwait()
            if not (c.fake & 16):
                a("s_barrier")
            nfirst = 3 if c.g2b0 >= 19 else 2
            ts = tuple(range(nfirst)) if m == c.g2b0 else tuple(range(nfirst, 4))
            fin_reads(fl, ts)
            if m == c.g2b1 and c.o0b:
                assert ust_[0] == N2
                fl(lambda: ostore(0))
            for tt in ts:
                fin(fl, tt)
            if c.fake & 8:
                fl.g = [x if callable(x) else (lambda: None) for x in fl.g]
            if m == c.g2b1:
                fl(lambda: ostore(1))
            elif c.o0e:
                fl(lambda: ostore(0))
                stored0[0] = True
    stamp(11)
    def pad_states(k):
        while k > 0 and deferred:
            a(deferred.pop(0)); k -= 1
        if k > 0:
            a(f"s_nop {k-1}")
    pad_states(4 if c.defer else 2)
    for b in range(1, 4):
        cw = ACC + 64 + 4 * b
        if b > 1:
            pad_states(1)
        a.ds(f"ds_write_b128 v{vR}, v[{cw}:{cw+3}] offset:{(b-1)*5120+4096}")
    late = len(deferred)
    pad_states(late)
    fl.flush()
    a.dwait()
    a("s_barrier")
    stamp("e2")
    fin_reads(fl, (4,))
    fl.flush()
    if c.stamp:
        a.dwait()
    if c.defer:
        a("s_nop 1")
    fin(fl, 4)
    fl.flush()
    a(f"buffer_store_dwordx2 v[{RD+8}:{RD+9}], v{vO+1}, s[{ROUT}:{ROUT+3}], s{sT3} offen{OP[c.opol] if c.osc & 4 else ''}")
    a(f"s_or_b32 s{sT0}, s2, s{sW}")
    a("s_cbranch_scc1 L_noepoch")
    a(f"v_mov_b32 v{t5}, {EP_OFF}")
    flag_store(t5, None, "")
    a("L_noepoch:")
    if c.stamp:
        stamp("e3")
        a("s_waitcnt vmcnt(0)")
        stamp(12)
        a(f"s_lshl_b32 s{sT0}, s2, 3")
        a(f"s_add_u32 s{sT0}, s{sT0}, s{sW}")
        a(f"s_lshl_b32 s{sT0}, s{sT0}, 6")
        a(f"s_add_u32 s{sT0}, s{sT0}, {ST_OFF}")
        a(f"v_mov_b32 v{t0}, s{sT0}")
        a("s_waitcnt lgkmcnt(0)")
        for i in range(13):
            a(f"v_mov_b32 v{t1}, s{STB+2*i}")
            a(f"global_store_dword v{t0}, v{t1}, s[{WS}:{WS+1}] offset:{4*i}")
    if c.pad:
        a("s_waitcnt vmcnt(0)")
        stamp("end")
        a("s_waitcnt lgkmcnt(0)")
        a("s_sub_u32 s64, s98, s100")
        if c.padx == -2:
            a(f"v_mov_b32 v{t0}, {ST_OFF}")
            a(f"global_load_dword v{t1}, v{t0}, s[{WS}:{WS+1}] sc1")
            a("s_waitcnt vmcnt(0)")
            a(f"v_readfirstlane_b32 s100, v{t1}")
            a("s_nop 3")
            a("s_sub_u32 s64, s98, s100")
            a("s_min_u32 s64, s64, 4000")
        if c.padx >= 0:
            a(f"s_cmp_lg_u32 s2, {c.padx}")
            a("s_cbranch_scc1 L_end")
            a(f"v_mov_b32 v{t0}, {ST_OFF}")
            a(f"global_load_dword v{t1}, v{t0}, s[{WS}:{WS+1}] sc1")
            a("s_waitcnt vmcnt(0)")
            a(f"v_readfirstlane_b32 s64, v{t1}")
            a("s_nop 3")
            a("s_sub_u32 s64, s100, s64")
            a("s_add_u32 s64, s64, 100")
            a("s_min_u32 s64, s64, 1000")
        a(f"s_mul_i32 s64, s64, {c.mult}")
        a("s_add_u32 s64, s64, 10000")
        a(f"s_mov_b32 s{sCNT}, 0")
        a("L_pad:")
        a("s_memrealtime s[66:67]")
        a("s_waitcnt lgkmcnt(0)")
        a(f"s_add_u32 s{sCNT}, s{sCNT}, 1")
        a(f"s_cmp_ge_u32 s{sCNT}, 200000\ns_cbranch_scc1 L_end")
        a("s_sub_u32 s66, s66, s100")
        a("s_cmp_lt_u32 s66, s64\ns_cbranch_scc1 L_pad")
    a("s_endpgm")
    a("L_idle:")
    if c.hearly:
        srd(a, RW2, W2, S * F * 2)
    else:
        a("s_waitcnt vmcnt(0) lgkmcnt(0)")
    a.q, a.lq = [], []
    if c.pad and c.padat in ("4", "5", "6", "7", "t0", "fe", "g1s"):
        stamp(c.padat)
    if c.stamp:
        for nm in SETS[c.sset]:
            if nm in (4, 5, 6, 7, "t0", "fe", "g1s") or str(nm).startswith(("w1_", "g1_")):
                stamp(nm)
    if c.nh:
        a(f"s_bfe_u32 s{sT1}, s2, 0x10003")
        if c.nh == 4:
            a(f"s_mul_i32 s{sROT2}, s{sT1}, {(12-c.nh)//2}")
        a(f"s_lshl_b32 s{sT1}, s{sT1}, 16")
        a(f"s_mul_i32 s{sT0}, s{sW}, {12*32*4096}")
        a(f"s_add_u32 s{sT0}, s{sT0}, s{sT1}")
        a(f"s_lshr_b32 s{sT1}, s{sST}, 2")
        a(f"s_lshl_b32 s{sT1}, s{sT1}, 9")
        a(f"s_add_u32 s{sT3}, s{sT0}, s{sT1}")
        sh = c.hsec + 1
        a(f"v_lshrrev_b32 v{vH}, {sh}, v{vL}")
        a(f"v_lshlrev_b32 v{vH}, 12, v{vH}")
        a(f"v_and_b32 v{t1}, {(1<<sh)-1}, v{vL}")
        a(f"v_lshl_add_u32 v{vH}, v{t1}, {9-sh}, v{vH}")
        for r in range(c.nh * c.hsec):
            a(f"buffer_load_dword v{vH+1}, v{vH}, s[{RW2}:{RW2+3}], s{sT3} offen")
            inc = 32 if c.hsec == 1 else (8 if r % 2 == 0 else 24)
            a(f"s_add_u32 s{sT3}, s{sT3}, {inc*4096}")
            if c.hearly and r == 0:
                setup_common(a)
                setup_g2(a)
                a("s_waitcnt vmcnt(1)")
                stamp(3)
                flag_add(0)
            a(f"s_waitcnt vmcnt({c.hq-1})")
    elif c.helper:
        a(f"s_bfe_u32 s{sT1}, s2, 0x10003")
        a(f"s_mul_i32 s{sROT2}, s{sT1}, 6")
    w2setup(0)
    wi = W(2)
    while wi.n < join_n:
        wi.issue()
    a("s_waitcnt vmcnt(0)")
    a.q = []
    wi.reads(join_rd - wi.rd)
    assert wi.rd == join_rd, (wi.rd, join_rd)
    a.dwait()
    a("s_branch L_join")
    a("L_end:\ns_endpgm")
    a(f""".section .rodata,"a"
.p2align 6
.amdhsa_kernel {NAME}
  .amdhsa_next_free_vgpr 512
  .amdhsa_next_free_sgpr 102
  .amdhsa_accum_offset 256
  .amdhsa_group_segment_fixed_size 0
  .amdhsa_kernarg_size 64
  .amdhsa_user_sgpr_count 2
  .amdhsa_user_sgpr_kernarg_segment_ptr 1
  .amdhsa_system_sgpr_workgroup_id_x 1
  .amdhsa_float_denorm_mode_32 3
.end_amdhsa_kernel""")
    return a.text()

if __name__ == "__main__":
    c = Cfg()
    out = sys.argv[1]
    for x in sys.argv[2:]:
        k, v = x.split("=")
        assert hasattr(c, k), k
        setattr(c, k, v if k == 'padat' else int(v))
    open(out, "w").write(gen(c))
```

```python
import sys, struct, math

def f32(x):
    return "0x%08x" % struct.unpack("<I", struct.pack("<f", x))[0]

S, D, F = 2048, 640, 1536
FH_OFF = 0
EP_OFF = FH_OFF + (16 << 10)
FU_OFF = FH_OFF + (32 << 10)
ST_OFF = 16 << 20
NAME = "standalone__mixer_token_mlp__prompt_kernel"
SPIN_CAP = 400000
OP = [" sc1", " nt", " sc0", " sc0 nt", " sc1 nt"]

class Cfg:
    stamp = 0
    sset = 0
    pad = 0
    mult = 0
    padx = -1
    padat = "end"
    map1 = 1
    map2 = 1
    rot1 = 10
    rot2 = 8
    cpo = 256
    w1_pre = 0
    w1_x = 2
    w1_ln = 2
    w1_mid = 6
    wd = 7
    hd = 12
    ud = 10
    pe1 = 6
    pe2 = 6
    g1bar = 18
    g1fill = 9
    w2_tail = 2
    w2_mid = 7
    w2_un = 5
    pbl = 10
    helper = 0
    serp = 0
    fillk = 8
    w32 = 0
    cst = 1
    gb1 = 8
    gb2 = 4
    gb3 = 8
    dly = 4
    wsk = 1
    pbo = 1
    wbar = 0
    wbo = 0
    gbar = 0
    hi = 8
    thr = 8
    ramp = 3
    fx = 0
    jit = 0
    slp = 0
    xr1 = 0
    xr2 = 0
    z = 1
    zu = -1
    al8 = 0
    one = 0
    prio = 0
    defer1 = 0
    pk1 = 0
    o0b = 1
    defer = 4
    pkfin = 1
    omap = 1
    rm1 = 1
    rm2 = 1
    opol = 0
    o0e = 0
    fast0 = 0
    ov1 = 0
    ov2 = 0
    d0 = 6
    wpp = 4
    n1 = 3
    hearly = 1
    lg0 = 1
    lg1 = 5
    fake = 0
    gap2 = 0
    g2f = 6
    g2l = 16
    g2b0 = 14
    g2b1 = 25
    nh = 4
    hsec = 1
    hq = 1
    osc = 3
    w2e = 0
    egrp = 4
    e0 = 20
    estep = 8
    esh = 3
    tlbw = 0
    w1_first = 4
    xbar = 1
    fhs = 5
    fus = 6
    slowl = 16
    fe_pos = 4

class A:
    def __init__(self):
        self.L = []
        self.q = []
        self.lq = []
    def __call__(self, s):
        for line in s.strip("\n").split("\n"):
            self.L.append(line)
    def vm(self, s, tag=None):
        self(s)
        self.q.append(tag)
    def recent_slow_before(self, tag, window):
        if tag not in self.q:
            return False
        idx = self.q.index(tag)
        return any(t in ("hst", "hfl", "ust0", "ust1", "ufl0", "ufl1", "b1", "b2") and len(self.q) - 1 - i < window
                   for i, t in enumerate(self.q[:idx]))
    def wait(self, tag):
        if tag not in self.q:
            return
        idx = max(i for i, t in enumerate(self.q) if t == tag)
        n = len(self.q) - 1 - idx
        assert n <= 63
        self(f"s_waitcnt vmcnt({n})")
        self.q = self.q[idx + 1:]
    def pending(self, tag):
        return tag in self.q
    def ds(self, s, tag=None):
        if len(self.lq) >= 13:
            self("s_waitcnt lgkmcnt(7)")
            self.lq = self.lq[-7:]
        self(s)
        self.lq.append(tag)
    def dwait(self, tag=None):
        if tag is None:
            self("s_waitcnt lgkmcnt(0)")
            self.lq = []
            return
        if tag not in self.lq:
            return
        idx = max(i for i, t in enumerate(self.lq) if t == tag)
        self(f"s_waitcnt lgkmcnt({len(self.lq)-1-idx})")
        self.lq = self.lq[idx + 1:]
    def text(self):
        return "\n".join(self.L) + "\n"

class Fill:
    def __init__(self, a):
        self.a = a
        self.g = []
    def __call__(self, s):
        self.g.append(s)
    def emit(self, k):
        while k > 0 and self.g:
            x = self.g.pop(0)
            if callable(x):
                x(); k -= 1
            else:
                self.a(x); k -= x.count("\n") + 1
    def cost(self, x):
        if callable(x):
            return getattr(x, "cost", 4)
        return sum(8 if l.startswith(("v_exp", "v_rcp")) else 4 for l in x.split("\n"))
    def gap(self, budget):
        used = 0
        while self.g and budget > 0:
            x = self.g[0]
            if getattr(x, "skip", 0):
                x.skip -= 1
                if x.skip == 0:
                    self.g.pop(0)
                return
            k = self.cost(x)
            if used and used + k > budget:
                return
            self.g.pop(0)
            x() if callable(x) else self.a(x)
            used += k
            if used >= budget:
                return
    def delay(self, n):
        if n > 0:
            f = lambda: None
            f.skip = n
            self.g.append(f)
    def flush(self):
        self.emit(1 << 30)

def costly(f, k):
    f.cost = k
    return f

def srd(a, d, b, nbytes):
    a(f"s_mov_b32 s{d}, s{b}")
    a(f"s_mov_b32 s{d+1}, s{b+1}")
    a(f"s_mov_b32 s{d+2}, {nbytes}")
    a(f"s_mov_b32 s{d+3}, 0x00020000")

def gen(c):
    a = A()
    z = c.z
    zu = c.z if c.zu < 0 else c.zu
    H_OFF = 0x20000 if z < 2 else (17 << 20)
    U_OFF = H_OFF + (0x280000 << z)
    if H_OFF < ST_OFF and U_OFF + (0x1e0000 << zu) > ST_OFF:
        U_OFF = 17 << 20
    WS_USED = U_OFF + (0x1e0000 << zu)
    STB = 76
    SETS = {
        0: [0, 1, 2, 3, 4, 5, "t0", 6, 8, 9, 10, 11, 12],
        1: [0, "ka", "iss", 1, "x4", 2, "hsto", 3, "w1_24", "w1_40", 4, 5, "g1s"],
        2: [0, 5, "g1s", "g1_8", "g1_16", "g1_24", "t0", 6, "fe", 7, 8, 9, 10],
        4: [0, 5, "g1s", "g1_2", "g1_4", "g1_8", "g1_12", "g1_16", "g1_19", "g1_22", "g1_26", "g1_29", 6],
        5: [0, 10, "g2s", "g2_2", "g2_4", "g2_7", "g2_10", "g2_13", "g2_16", "g2_20", "g2_24", "g2_27", 11],
        6: [0, "t0", 6, "fe", 7, "w2_22", 8, "w2_30", "w2_36", "w2_42", 9, 10, "g2s"],
        3: [0, 9, 10, "g2s", "g2_6", "pb", "g2_12", "g2_18", "g2_24", 11, "e2", "e3", 12],
    }
    def stamp(name):
        if c.pad and str(name) == c.padat:
            a("s_memrealtime s[98:99]")
        if c.stamp and name in SETS[c.sset]:
            i = SETS[c.sset].index(name)
            a(f"{'s_memtime' if c.stamp == 2 else 's_memrealtime'} s[{STB+2*i}:{STB+2*i+1}]")
    a("; kernarg: x(0) w1(8) b1(16) w2(24) b2(32) out(40) debug(48) ws(56)")
    a("; @launch grid=(256,1,1) block=(256,1,1) lds=163840")
    a('.amdgcn_target "amdgcn-amd-amdhsa--gfx950"')
    a(f".text\n.globl {NAME}\n.p2align 8\n.type {NAME},@function\n{NAME}:")
    X, W1, B1, W2, B2, OUT, DBG, WS = 4, 6, 8, 10, 12, 14, 16, 18
    sMA, sMB = 20, 22
    RW1, RW2, RWS, ROUT = 24, 28, 32, 36
    sW, sLDS, sDT, sFT, sJ, sST = 40, 41, 42, 43, 44, 45
    sWO, sWO0, sWOE, sUS0 = 46, 47, 48, 49
    sT0, sT1, sUS1, sCNT, sROT1, sROT2, sT3, sTAG = 50, 51, 52, 53, 54, 55, 56, 57
    sS = 3
    FB = 4
    sFO = (16, 17, 58)
    sFD = (0, 1, 59)
    sK = 60
    vL = 1
    vD1, vD2, vH, vU, vT1, vT2, vR, vO = 4, 8, 12, 16, 21, 25, 29, 33
    vFH, vFU, vFO, vTAG, vB1, vB2, vHS, vLT, vFHO, vC1 = 35, 36, 37, 39, 40, 44, 45, 46, 49, 50
    t0, t1, t2, t3, t4, t5 = 54, 55, 56, 57, 58, 59
    vP = 60
    vL16, vHL = 52, 53
    ACC, RING, RD = 64, 144, 208
    RED = 114688
    WSLOT = 7
    NRING = 16
    NS1, NS2 = 16, 12

    def poll_load(kind):
        if kind == "h":
            return f"global_load_dwordx4 v[{vP}:{vP+3}], v{vFH}, s[{WS}:{WS+1}] sc1"
        return f"global_load_dword v{vP}, v{vFU if kind == 'a' else vFU+1}, s[{WS}:{WS+1}] sc1"
    def poll_test(kind):
        if kind == "h":
            a(f"v_bitop3_b32 v{vP}, v{vP}, v{vP+1}, v{vTAG} bitop3:0x7e")
            a(f"v_bitop3_b32 v{vP+2}, v{vP+2}, v{vP+3}, v{vTAG} bitop3:0x7e")
            a(f"v_or_b32 v{vP}, v{vP}, v{vP+2}")
            a(f"v_cmp_ne_u32 vcc, 0, v{vP}")
        else:
            a(f"v_cmp_ne_u32 vcc, s{sTAG}, v{vP}")
    def spin(kind):
        label = "L_p" + kind
        poll_test(kind)
        a(f"s_cbranch_vccz {label}_ok")
        a(f"s_mov_b32 s{sCNT}, 0")
        a(f"{label}_l:")
        if c.slp and kind == "a":
            a(f"s_sleep {c.slp}")
        a(poll_load(kind))
        a(f"s_add_u32 s{sCNT}, s{sCNT}, 1")
        a(f"s_cmp_ge_u32 s{sCNT}, {SPIN_CAP}")
        a(f"s_cbranch_scc1 {label}_ok")
        a("s_waitcnt vmcnt(0)")
        poll_test(kind)
        a(f"s_cbranch_vccnz {label}_l")
        a(f"{label}_ok:")
    njit = [0]
    def jitter(val):
        if c.jit:
            a(f"s_mul_i32 s{sCNT}, s2, 5\ns_add_u32 s{sCNT}, s{sCNT}, s{sW}\ns_and_b32 s{sCNT}, s{sCNT}, 31\ns_cmp_lg_u32 s{sCNT}, {val}\ns_cbranch_scc1 L_j{njit[0]}\ns_sleep {c.jit}\nL_j{njit[0]}:")
            njit[0] += 1
    def flag_add(k):
        a(f"s_atomic_add s{sFD[k]}, s[{FB}:{FB+1}], s{sFO[k]}")
    def flag_store(vaddr, tag, sc=" sc1"):
        a("s_mov_b64 exec, 1")
        s_ = f"global_store_dword v{vaddr}, v{vTAG}, s[{WS}:{WS+1}]{sc}"
        if tag:
            a.vm(s_, tag)
        else:
            a(s_)
        a("s_mov_b64 exec, -1")

    def step_off(dst, base, i, sh):
        if i < c.n1:
            return f"s_add_u32 s{dst}, s{base}, {i << sh}"
        if c.n1 < i <= c.nh:
            return f"s_add_u32 s{dst}, s{base}, {(i - 1) << sh}"
        k = 0 if i == c.n1 else i - c.nh
        return (f"s_add_u32 s{dst}, s{sROT2}, {k}\ns_and_b32 s{dst}, s{dst}, {12-c.nh-1}\ns_add_u32 s{dst}, s{dst}, {c.nh}\n"
                f"s_lshl_b32 s{dst}, s{dst}, {sh}\ns_add_u32 s{dst}, s{dst}, s{base}")
    class W:
        def __init__(self, kind):
            self.kind = kind
            self.ns = NS1 if kind == 1 else NS2
            self.n = 0
            self.rd = 0
            self.can_read = True
        def left(self):
            return 4 * self.ns - self.n
        def tag(self, n):
            return f"w{self.kind}_{n}"
        def nslot(self):
            return WSLOT - c.w2e if self.kind == 1 else WSLOT
        def slot(self, i):
            return i % self.nslot() if self.kind == 1 else (i + WSLOT - c.w2e) % WSLOT
        def issue(self):
            i, j = self.n >> 2, self.n & 3
            vd, r, step = (vD1, RW1, 32 * 3072) if self.kind == 1 else (vD2, RW2, 32 * 4096)
            if i >= self.nslot() and j == 0:
                old = i - self.nslot()
                if self.rd < 8 * (old + 1):
                    assert self.can_read
                    a.wait(self.tag(4 * old + 3))
                    self.reads(8 * (old + 1) - self.rd)
                a.dwait(f"r{self.kind}_{old}")
            a.vm(f"buffer_load_dwordx4 v{vd+j}, s[{r}:{r+3}], s{sWO} offen offset:{1024*j} lds", self.tag(self.n))
            self.n += 1
            if j == 3 and i + 1 < self.ns:
                if self.slot(i + 1) == 0:
                    a(f"s_mov_b32 m0, s{sLDS}")
                else:
                    a("s_add_u32 m0, m0, 4096")
                if self.kind == 2 and c.nh:
                    a(step_off(sWO, sWO0, i + 1, 17))
                elif self.kind == 1 and c.fake & 32:
                    a(f"s_add_u32 s{sWO}, s{sWO}, {step}")
                    a(f"s_cmp_ge_u32 s{sWO}, s{sWOE}")
                    a(f"s_cselect_b32 s{sCNT}, {480*3072}, 0")
                    a(f"s_sub_u32 s{sWO}, s{sWO}, s{sCNT}")
                else:
                    a(f"s_add_u32 s{sWO}, s{sWO}, {step}")
                    a(f"s_cmp_eq_u32 s{sWO}, s{sWOE}")
                    a(f"s_cselect_b32 s{sWO}, s{sWO0}, s{sWO}")
        def landed_steps(self):
            k = 0
            while 4 * k + 3 < self.n and not a.pending(self.tag(4 * k + 3)):
                k += 1
            return k
        def reads(self, k):
            vt = vT1 if self.kind == 1 else vT2
            lim = 8 * self.landed_steps() if self.can_read else 0
            while k > 0 and self.rd < lim:
                i, x = self.rd >> 3, self.rd & 7
                b, e = x >> 1, x & 1
                r = 16 * i + 4 * b + 2 * e
                a.ds(f"ds_read_b64_tr_b16 a[{r}:{r+1}], v{vt+b} offset:{self.slot(i)*4096+e*2048}", f"r{self.kind}_{i}")
                self.rd += 1
                k -= 1
        def step(self, fill=None, throttle=True, older_than=None):
            if throttle and self.n >= c.wd:
                tg = self.tag(self.n - c.wd)
                if older_than is not None and a.pending(older_than) and a.pending(tg) and a.q.index(tg) > a.q.index(older_than):
                    pass
                elif not a.recent_slow_before(tg, c.slowl):
                    a.wait(tg)
            stamp(f"w{self.kind}_{self.n}")
            self.issue()
            backlog = 8 * self.landed_steps() - self.rd
            self.reads(4 if backlog > 8 else 2)
            if fill is not None:
                fill.emit(c.fillk)
        def drain(self):
            for i in range(self.rd >> 3, self.ns):
                a.wait(self.tag(4 * i + 3))
                self.reads(8)

    def tile2(f):
        if c.map2 == 0:
            f(f"s_and_b32 s{sT0}, s2, 1\ns_lshl_b32 s{sT0}, s{sT0}, 2\ns_bfe_u32 s{sT1}, s2, 0x20003\ns_add_u32 s{sJ}, s{sT0}, s{sT1}\ns_mul_i32 s{sROT2}, s{sT1}, 3")
            if c.rot2 == 42:
                f(f"s_bfe_u32 s{sT1}, s2, 0x10005\ns_mul_i32 s{sT1}, s{sT1}, 6\ns_add_u32 s{sROT2}, s{sROT2}, s{sT1}\ns_cmp_ge_u32 s{sROT2}, 12\ns_cselect_b32 s{sT1}, 12, 0\ns_sub_u32 s{sROT2}, s{sROT2}, s{sT1}")
            f(f"s_bfe_u32 s{sT0}, s2, 0x20001\ns_lshl_b32 s{sT0}, s{sT0}, 3\ns_lshr_b32 s{sST}, s2, 5\ns_add_u32 s{sST}, s{sST}, s{sT0}")
        else:
            f(f"s_bfe_u32 s{sJ}, s2, 0x30003")
            if c.nh == 4:
                f(f"s_mul_i32 s{sROT2}, s2, {c.xr2}\ns_add_u32 s{sROT2}, s{sROT2}, s{sJ}")
            elif c.nh == 8:
                f(f"s_lshr_b32 s{sROT2}, s{sJ}, 1")
            elif c.rot2 == 8:
                f(f"s_mul_i32 s{sROT2}, s{sJ}, 3\ns_lshr_b32 s{sROT2}, s{sROT2}, 1")
            elif c.rot2 == 4:
                f(f"s_lshr_b32 s{sROT2}, s{sJ}, 1\ns_mul_i32 s{sROT2}, s{sROT2}, 3")
            else:
                f(f"s_mov_b32 s{sROT2}, 0")
            f(f"s_and_b32 s{sT0}, s2, 7\ns_xor_b32 s{sT0}, s{sT0}, {c.rm2}\ns_lshl_b32 s{sT0}, s{sT0}, 2\ns_lshr_b32 s{sST}, s2, 6\ns_add_u32 s{sST}, s{sST}, s{sT0}")
    a("s_cmp_ge_u32 s2, 256\ns_cbranch_scc1 L_end")
    stamp(0)
    if c.pad:
        a("s_memrealtime s[100:101]")
    a("s_load_dwordx16 s[4:19], s[0:1], 0")
    a(f"v_lshrrev_b32 v{t0}, 6, v0")
    a("s_getpc_b64 s[22:23]")
    a("L_pc:")
    a(f"s_lshr_b32 s{sT0}, s2, 3                 ; idx")
    a(f"s_lshl_b32 s{sT1}, s{sT0}, 9")
    a(f"v_lshl_add_u32 v{t1}, v{t0}, 7, s{sT1}")
    a(f"v_min_u32 v{t1}, (L_end-L_pc-{c.cpo}-4), v{t1}")
    a.vm(f"global_load_dword v{vP}, v{t1}, s[22:23] offset:{c.cpo}", "cpf")
    a(f"v_and_b32 v{vL}, 63, v0")
    a(f"v_readfirstlane_b32 s{sW}, v{t0}")
    a(f"v_lshrrev_b32 v{t0}, 5, v0")
    a(f"v_and_b32 v{t1}, 31, v0")
    a(f"v_lshrrev_b32 v{t2}, 7, v0")
    a(f"v_mul_u32_u24 v{t2}, 12, v{t2}")
    a(f"v_add_u32 v{t2}, v{t2}, v{t0}")
    a(f"v_mul_u32_u24 v2, 1280, v{t2}")
    a(f"v_lshl_add_u32 v2, v{t1}, 3, v2          ; x offset")
    def early_setup():
        a(f"s_lshr_b32 s{sT0}, s2, 3                 ; idx")
        a(f"v_mul_u32_u24 v3, 1344, v{t0}")
        a(f"v_lshl_add_u32 v3, v{t1}, 3, v3")
        a(f"v_add_u32 v3, {RED}, v3")
        if c.map1 == 0:
            a(f"s_mul_i32 s{sFT}, s{sT0}, 205")
            a(f"s_lshr_b32 s{sFT}, s{sFT}, 10            ; idx/5")
            a(f"s_mul_i32 s{sT1}, s{sFT}, 5")
            a(f"s_sub_u32 s{sDT}, s{sT0}, s{sT1}         ; idx%5")
            a(f"s_and_b32 s{sS}, s{sDT}, 3")
            a(f"s_mul_i32 s{sROT1}, s{sDT}, 13")
            a(f"s_lshr_b32 s{sROT1}, s{sROT1}, 2     ; 0,3,6,9,13")
            if c.rot1 == 52:
                a(f"s_and_b32 s{sT1}, s{sFT}, 1")
                a(f"s_lshl_b32 s{sT1}, s{sT1}, 3")
                a(f"s_add_u32 s{sROT1}, s{sROT1}, s{sT1}")
                a(f"s_and_b32 s{sROT1}, s{sROT1}, 15")
            a(f"s_and_b32 s{sT1}, s2, 1")
            a(f"s_mul_i32 s{sT1}, s{sT1}, 5")
            a(f"s_add_u32 s{sDT}, s{sDT}, s{sT1}         ; dtile")
            a(f"s_bfe_u32 s{sT1}, s2, 0x20001")
            a(f"s_mul_i32 s{sT1}, s{sT1}, 6")
            a(f"s_add_u32 s{sFT}, s{sFT}, s{sT1}         ; ftile")
        else:
            a(f"s_mul_i32 s{sFT}, s{sT0}, 205")
            a(f"s_lshr_b32 s{sFT}, s{sFT}, 11            ; idx/10")
            a(f"s_mul_i32 s{sT1}, s{sFT}, 10")
            a(f"s_sub_u32 s{sDT}, s{sT0}, s{sT1}         ; dtile")
            a(f"s_cmp_ge_u32 s{sDT}, 5")
            a(f"s_cselect_b32 s{sS}, 5, 0")
            a(f"s_sub_u32 s{sS}, s{sDT}, s{sS}")
            a(f"s_and_b32 s{sS}, s{sS}, 3")
            if c.rot1 == 10:
                a(f"s_mul_i32 s{sROT1}, s{sDT}, 13")
                a(f"s_lshr_b32 s{sROT1}, s{sROT1}, 3")
            elif c.rot1 == 5:
                a(f"s_lshr_b32 s{sROT1}, s{sDT}, 1")
                a(f"s_mul_i32 s{sROT1}, s{sROT1}, 13")
                a(f"s_lshr_b32 s{sROT1}, s{sROT1}, 2")
            else:
                a(f"s_mov_b32 s{sROT1}, 0")
            a(f"s_and_b32 s{sT1}, s2, 7")
            if c.xr1:
                a(f"s_mul_i32 s{sT0}, s{sT1}, {c.xr1}")
                a(f"s_add_u32 s{sROT1}, s{sROT1}, s{sT0}")
                a(f"s_and_b32 s{sROT1}, s{sROT1}, 15")
            if c.rm1:
                a(f"s_sub_u32 s{sT0}, 2, s{sFT}")
                a(f"s_cmp_eq_u32 s{sT1}, 3")
                a(f"s_cselect_b32 s{sFT}, s{sT0}, s{sFT}")
                a(f"s_cmp_ge_u32 s{sT1}, 6")
                a(f"s_cselect_b32 s{sT0}, 1, 0")
                a(f"s_xor_b32 s{sT1}, s{sT1}, s{sT0}")
            a(f"s_mul_i32 s{sT1}, s{sT1}, 3")
            a(f"s_add_u32 s{sFT}, s{sFT}, s{sT1}         ; ftile")
        a(f"v_lshrrev_b32 v{t0}, 3, v{vL}            ; rr")
        a(f"v_and_b32 v{t1}, 6, v{t0}")
        a(f"v_and_b32 v{t2}, 7, v{vL}")
        a(f"v_xor_b32 v{t1}, v{t1}, v{t2}")
        a(f"v_lshlrev_b32 v{t1}, 4, v{t1}")
        a(f"v_mul_u32_u24 v{vD1}, 3072, v{t0}")
        a(f"v_add_u32 v{vD1}, v{vD1}, v{t1}")
        a(f"v_lshl_add_u32 v{vD2}, v{t0}, 12, v{t1}")
        for j in range(1, 4):
            a(f"v_add_u32 v{vD1+j}, {j*(8*3072-1024)}, v{vD1}")
        a(f"s_mul_i32 s{sWO0}, s{sW}, {512*3072}")
        a(f"s_lshl_b32 s{sT0}, s{sFT}, 7")
        a(f"s_add_u32 s{sWO0}, s{sWO0}, s{sT0}")
        a(f"s_add_u32 s{sWOE}, s{sWO0}, {(480 if c.fake & 32 else 512)*3072}")
        if c.fake & 32:
            a(f"s_mul_i32 s{sT0}, s{sDT}, {48*3072}")
        else:
            a(f"s_mul_i32 s{sT0}, s{sROT1}, {32*3072}")
        a(f"s_add_u32 s{sWO}, s{sWO0}, s{sT0}")
        a(f"s_mul_i32 s{sLDS}, s{sW}, {WSLOT*4096}")
        a(f"s_mov_b32 m0, s{sLDS}")
    if not c.fast0:
        early_setup()
    a(f"s_lshr_b32 s{sT0}, s2, 2")
    a(f"s_lshl_b32 s{sT0}, s{sT0}, 3")
    a(f"s_and_b32 s{sT1}, s2, 3")
    a(f"s_add_u32 s{sT0}, s{sT0}, s{sT1}")
    a(f"s_mul_i32 s{sT0}, s{sT0}, 5120")
    a(f"v_lshlrev_b32 v{vL16}, 4, v{vL}          ; lane*16")
    a("s_waitcnt lgkmcnt(0)")
    stamp("ka")
    a(f"s_add_u32 s{X}, s{X}, s{sT0}")
    a(f"s_addc_u32 s{X+1}, s{X+1}, 0")
    XR = RING
    if c.fx:
        a(f"s_and_b32 s{sT0}, s2, 7\ns_lshr_b32 s{sT0}, {c.fx}, s{sT0}\ns_and_b32 s{sT0}, s{sT0}, 1\ns_sub_u32 s{sT0}, s{sT0}, 1\nv_and_b32 v2, s{sT0}, v2")
    for i in range(5):
        a.vm(f"global_load_dwordx2 v[{XR+2*i}:{XR+2*i+1}], v2, s[{X}:{X+1}] offset:{256*i}", f"x{i}")
    if c.fast0:
        early_setup()
    srd(a, RW1, W1, S * F * 2)
    a("s_cmp_ge_u32 s2, 240")
    a(f"s_cselect_b32 s{RW1+2}, 0, s{RW1+2}")
    w1 = W(1)
    w1.can_read = False
    if c.xbar:
        a("s_barrier")
    for _ in range(c.w1_first):
        w1.issue()
    a(f"s_add_u32 s{FB}, s{WS}, {FH_OFF}")
    a(f"s_addc_u32 s{FB+1}, s{WS+1}, 0")
    a(f"s_load_dword s{sTAG}, s[{FB}:{FB+1}], {EP_OFF-FH_OFF}")
    if c.tlbw:
        a(f"v_and_b32 v{t0}, 1, v{vL}")
        a(f"v_mul_u32_u24 v{t1}, 0x281000, v{t0}")
        a(f"v_lshlrev_b32 v{t0}, 21, v{t0}")
        a.vm(f"global_load_dword v{vP+1}, v{t1}, s[{WS}:{WS+1}]", "tl")
        if c.tlbw >= 2:
            a.vm(f"global_load_dword v{vP+2}, v{t0}, s[{OUT}:{OUT+1}]", "tl")
            a(f"v_min_u32 v{t0}, 2, v{vL}")
            a(f"v_lshlrev_b32 v{t0}, 21, v{t0}")
            a.vm(f"global_load_dword v{vP+3}, v{t0}, s[{W2}:{W2+1}]", "tl")
    tile2(a)
    a(f"v_lshrrev_b32 v{t3}, 4, v{vL}            ; g")
    a(f"s_min_u32 s{sT0}, s{sFT}, 23\ns_lshl_b32 s{sT0}, s{sT0}, 1\ns_and_b32 s{sT1}, s{sW}, 1\ns_add_u32 s{sT0}, s{sT0}, s{sT1}\ns_lshl_b32 s{sT0}, s{sT0}, 6\nv_lshl_add_u32 v{t5}, v{t3}, 3, s{sT0}")
    for k in range(2):
        a.vm(f"global_load_dwordx2 v[{vB1+2*k}:{vB1+2*k+1}], v{t5}, s[{B1}:{B1+1}] offset:{32*k}", "b1")
    a(f"v_and_b32 v{t4}, 15, v{vL}")
    a(f"s_lshl_b32 s{sT0}, s{sST}, 6\ns_lshl_b32 s{sT1}, s{sW}, 4\ns_add_u32 s{sT0}, s{sT0}, s{sT1}\nv_add_u32 v{vO}, s{sT0}, v{t4}           ; s")
    a(f"v_lshlrev_b32 v{t2}, 1, v{vO}")
    a.vm(f"global_load_ushort v{vB2}, v{t2}, s[{B2}:{B2+1}]", "b2")
    a(f"s_lshl_b32 s{sT0}, s2, {c.fhs-2}\ns_add_u32 s{sT0}, s{sT0}, s{sW}\ns_lshl_b32 s{sFO[0]}, s{sT0}, 2")
    a(f"s_load_dword s{sFD[0]}, s[{FB}:{FB+1}], s{sFO[0]}")
    for h, su in enumerate((sUS0, sUS1)):
        a(f"s_lshr_b32 s{sT0}, s{sW}, 1\ns_add_u32 s{sT0}, s{sT0}, s{sS}\ns_add_u32 s{sT0}, s{sT0}, {2*h}\ns_and_b32 s{sT0}, s{sT0}, 3\ns_lshl_b32 s{sT1}, s{sDT}, 2\ns_add_u32 s{su}, s{sT0}, s{sT1}")
        a(f"s_mul_i32 s{sT0}, s{su}, 24\ns_add_u32 s{sT0}, s{sT0}, s{sFT}\ns_lshl_b32 s{sT0}, s{sT0}, {c.fus-2}\ns_and_b32 s{sT1}, s{sW}, 1\ns_add_u32 s{sT0}, s{sT0}, s{sT1}\ns_lshl_b32 s{sT0}, s{sT0}, 2\ns_add_u32 s{sFO[1+h]}, s{sT0}, {FU_OFF-FH_OFF}")
        a(f"s_load_dword s{sFD[1+h]}, s[{FB}:{FB+1}], s{sFO[1+h]}")
    srd(a, RWS, WS, WS_USED)
    a(f"v_lshrrev_b32 v{t3}, 4, v{vL}            ; g")
    a(f"v_and_b32 v{t4}, 15, v{vL}")
    a(f"v_and_b32 v{vHS}, 0x70, v{vL16}")
    a(f"v_lshl_add_u32 v{vHS}, v{t3}, {16+z}, v{vHS}")
    a(f"v_lshrrev_b32 v{t4}, 3, v{t4}")
    a(f"v_lshl_add_u32 v{vHS}, v{t4}, {7+z}, v{vHS}")
    a(f"v_bfe_u32 v{t0}, v{vL}, 2, 2             ; r")
    a(f"v_mul_u32_u24 v{t0}, 1344, v{t0}")
    a(f"v_add_u32 v{t0}, {RED}, v{t0}")
    a(f"v_and_b32 v{t1}, 3, v{vL}                ; c")
    a(f"s_lshl_b32 s{sT0}, s{sW}, 2")
    a(f"v_add_u32 v{t3}, s{sT0}, v{t3}           ; T for m=0")
    for m in range(3):
        a(f"v_mul_u32_u24 v{t2}, 205, v{t3}")
        a(f"v_lshrrev_b32 v{t2}, 10, v{t2}       ; j")
        a(f"v_mul_u32_u24 v{t4}, 5, v{t2}")
        a(f"v_sub_u32 v{t4}, v{t3}, v{t4}        ; t")
        if c.omap:
            a(f"v_lshrrev_b32 v{t5}, 2, v{t4}")
            a(f"v_mul_u32_u24 v{vLT+m}, 896, v{t5}")
            a(f"v_lshlrev_b32 v{t5}, 1, v{t5}")
            a(f"v_sub_u32 v{t5}, 7, v{t5}")
            a(f"v_lshlrev_b32 v{t2}, v{t5}, v{t2}")
            a(f"v_add3_u32 v{t2}, v{t2}, v{t0}, v{vLT+m}")
            a(f"v_lshrrev_b32 v{t5}, 1, v{t4}")
            a(f"v_lshl_add_u32 v{t2}, v{t5}, 6, v{t2}")
        else:
            a(f"v_mul_u32_u24 v{t2}, 160, v{t2}")
            a(f"v_add_u32 v{t2}, v{t2}, v{t0}")
            a(f"v_lshrrev_b32 v{t5}, 1, v{t4}")
            a(f"v_lshl_add_u32 v{t2}, v{t5}, 6, v{t2}")
        a(f"v_and_b32 v{t5}, 1, v{t4}")
        a(f"v_lshl_add_u32 v{t2}, v{t5}, 3, v{t2}")
        a(f"v_lshrrev_b32 v{t4}, 2, v{t4}")
        a(f"v_sub_u32 v{t4}, 4, v{t4}")
        a(f"v_lshlrev_b32 v{t4}, v{t4}, v{t1}")
        a(f"v_add_u32 v{vLT+m}, v{t2}, v{t4}")
        if m < 2:
            a(f"v_add_u32 v{t3}, 16, v{t3}")
    a(f"s_lshl_b32 s{sT3}, s2, {8+z}")
    a(f"s_lshl_b32 s{sT0}, s{sW}, {18+z}")
    a(f"s_add_u32 s{sT3}, s{sT3}, s{sT0}")
    a(f"s_add_u32 s{sT3}, s{sT3}, {H_OFF}")
    for _ in range(c.w1_pre):
        w1.issue()
    stamp("iss")
    XF = RING + 12
    for i in range(5):
        a.wait(f"x{i}")
        if i == 0:
            stamp(1)
        if i == 4:
            stamp("x4")
            for _ in range(c.w1_x):
                w1.issue()
        for k in range(2):
            a(f"v_lshlrev_b32 v{XF+4*i+2*k}, 16, v{XR+2*i+k}")
            a(f"v_and_b32 v{XF+4*i+2*k+1}, 0xffff0000, v{XR+2*i+k}")
        if i == 0:
            a(f"v_pk_add_f32 v[{t0}:{t0+1}], v[{XF}:{XF+1}], v[{XF+2}:{XF+3}]")
        else:
            a(f"v_pk_add_f32 v[{t0}:{t0+1}], v[{t0}:{t0+1}], v[{XF+4*i}:{XF+4*i+1}]")
            a(f"v_pk_add_f32 v[{t0}:{t0+1}], v[{t0}:{t0+1}], v[{XF+4*i+2}:{XF+4*i+3}]")
    def half_sum():
        a(f"v_add_f32 v{t0}, v{t0}, v{t0+1}")
        for r in (8, 4, 2, 1):
            a("s_nop 1")
            a(f"v_add_f32_dpp v{t0}, v{t0}, v{t0} row_ror:{r} row_mask:0xf bank_mask:0xf")
        a(f"v_mov_b32 v{t0+1}, v{t0}")
        a("s_nop 1")
        a(f"v_permlane16_swap_b32 v{t0+1}, v{t0}")
        a(f"v_add_f32 v{t0}, v{t0}, v{t0+1}")
    half_sum()
    a(f"v_mul_f32 v{t0}, {f32(-1.0/D)}, v{t0}    ; -mean")
    a(f"v_mov_b32 v{t0+1}, v{t0}")
    for i in range(10):
        a(f"v_pk_add_f32 v[{XF+2*i}:{XF+2*i+1}], v[{XF+2*i}:{XF+2*i+1}], v[{t0}:{t0+1}]")
    a(f"v_pk_mul_f32 v[{t0}:{t0+1}], v[{XF}:{XF+1}], v[{XF}:{XF+1}]")
    for i in range(1, 10):
        a(f"v_pk_fma_f32 v[{t0}:{t0+1}], v[{XF+2*i}:{XF+2*i+1}], v[{XF+2*i}:{XF+2*i+1}], v[{t0}:{t0+1}]")
    half_sum()
    a(f"v_mov_b32 v{t0+1}, {f32(1e-5)}")
    a(f"v_fmac_f32 v{t0+1}, {f32(1.0/D)}, v{t0}")
    a(f"v_rsq_f32 v{t0}, v{t0+1}")
    a("s_nop 0")
    a(f"v_mov_b32 v{t0+1}, v{t0}")
    for i in range(10):
        a(f"v_pk_mul_f32 v[{XF+2*i}:{XF+2*i+1}], v[{XF+2*i}:{XF+2*i+1}], v[{t0}:{t0+1}]")
    for i in range(5):
        a(f"v_cvt_pk_bf16_f32 v{XR+2*i}, v{XF+4*i}, v{XF+4*i+1}")
        a(f"v_cvt_pk_bf16_f32 v{XR+2*i+1}, v{XF+4*i+2}, v{XF+4*i+3}")
        a(f"ds_write_b64 v3, v[{XR+2*i}:{XR+2*i+1}] offset:{256*i}")
    for _ in range(c.w1_ln):
        w1.issue()
    a("s_waitcnt lgkmcnt(0)")
    a("s_barrier")
    stamp(2)
    HT = RING + 12
    for m in range(3):
        a(f"ds_read_b64_tr_b16 v[{HT+4*m}:{HT+4*m+1}], v{vLT+m}")
        a(f"ds_read_b64_tr_b16 v[{HT+4*m+2}:{HT+4*m+3}], v{vLT+m} offset:{4*1344}")
    a(f"s_add_u32 s{sT0}, s{sT3}, {1<<(20+z)}")
    a(f"s_add_u32 s{sT1}, s{sT3}, {2<<(20+z)}")
    a(f"s_cmp_ge_u32 s{sW}, 2")
    a(f"s_cselect_b32 s{sT1}, 0x40000000, s{sT1}")
    if c.stamp or c.pad:
        a("s_waitcnt lgkmcnt(0)")
    jitter(5)
    if c.fx:
        a(f"s_and_b32 s{sCNT}, s2, 7\ns_lshr_b32 s{sCNT}, {c.fx}, s{sCNT}\ns_and_b32 s{sCNT}, s{sCNT}, 1")
        for so in (sT3, sT0, sT1):
            a(f"s_cselect_b32 s{so}, 0x40000000, s{so}")
    for m, so in enumerate((sT3, sT0, sT1)):
        a(f"s_waitcnt lgkmcnt({4-2*m})")
        a.vm(f"buffer_store_dwordx4 v[{HT+4*m}:{HT+4*m+3}], v{vHS}, s[{RWS}:{RWS+3}], s{so} offen sc1", "hst")
    stamp("hsto")
    if c.padx != -1:
        a(f"s_or_b32 s{sT0}, s2, s{sW}")
        a("s_cbranch_scc1 L_nopx")
        a(f"v_mov_b32 v{t0}, {ST_OFF}")
        a(f"v_mov_b32 v{t1}, s100")
        a(f"global_store_dword v{t0}, v{t1}, s[{WS}:{WS+1}] sc1")
        a("L_nopx:")
    def setup_common(f):
        f(f"s_mul_i32 s{sTAG}, s{sTAG}, 1664525")
        f(f"s_add_u32 s{sTAG}, s{sTAG}, 1013904223")
        f(f"v_mov_b32 v{vTAG}, s{sTAG}")
        for k in range(3):
            f(f"s_sub_u32 s{sFD[k]}, s{sTAG}, s{sFD[k]}")
        f(f"v_lshrrev_b32 v{t0}, 2, v{vL}            ; row = 4g + r")
        f(f"v_lshlrev_b32 v{vT1}, 7, v{t0}")
        f(f"v_bfe_u32 v{t0}, v{vL}, 3, 2")
        f(f"v_lshl_add_u32 v{vT1}, v{t0}, 5, v{vT1}")
        f(f"v_and_b32 v{t0}, 3, v{vL}")
        f(f"v_lshl_add_u32 v{vT1}, v{t0}, 3, v{vT1}")
        f(f"v_add_u32 v{vT1}, s{sLDS}, v{vT1}")
        f(f"s_lshl_b32 s{sT0}, s{sW}, 5\nv_xor_b32 v{vT2}, s{sT0}, v{vT1}")
        f(f"s_and_b32 s{sT0}, s{sW}, 1\ns_lshl_b32 s{sT0}, s{sT0}, 6\nv_xor_b32 v{vT1}, s{sT0}, v{vT1}")
        for b in range(1, 4):
            f(f"v_xor_b32 v{vT1+b}, {b*32}, v{vT1}")
    def setup_g2(f):
        f(f"v_lshrrev_b32 v{t3}, 4, v{vL}")
        f(f"v_mul_u32_u24 v{vO}, 1280, v{vO}")
        f(f"v_lshl_add_u32 v{vO+1}, v{t3}, 3, v{vO}")
        f(f"v_lshl_add_u32 v{vO}, v{t3}, 4, v{vO}")
        for b in range(1, 4):
            f(f"v_xor_b32 v{vT2+b}, {b*32}, v{vT2}")
        for j in range(1, 4):
            f(f"v_add_u32 v{vD2+j}, {j*(8*4096-1024)}, v{vD2}")
        f(f"v_and_b32 v{vU}, 0x70, v{vL16}")
        f(f"v_lshrrev_b32 v{t0}, 3, v{vL}")
        f(f"v_lshl_add_u32 v{vHL}, v{t0}, {7+z}, v{vU}")
        f(f"v_lshl_add_u32 v{vU}, v{t0}, {7+zu}, v{vU}")
        for t in range(1, 5):
            f(f"v_add_u32 v{vU+t}, {(t*49152) << zu}, v{vU}")
        for k, (lo, cnt) in enumerate(((0, 24), (24, 36))):
            f(f"v_min_u32 v{t0}, {cnt-1}, v{vL}")
            f(f"v_mul_u32_u24 v{t1}, 43, v{t0}")
            f(f"v_lshrrev_b32 v{t1}, 9, v{t1}            ; n/12")
            f(f"v_mul_u32_u24 v{t1}, 18, v{t1}")
            f(f"v_lshrrev_b32 v{t2}, 1, v{t0}")
            f(f"s_mul_i32 s{sT0}, s{sJ}, 120\ns_mul_i32 s{sT1}, s{sW}, 6\ns_add_u32 s{sT0}, s{sT0}, s{sT1}\nv_add3_u32 v{t1}, v{t1}, v{t2}, s{sT0}")
            f(f"v_and_b32 v{t0}, 1, v{t0}")
            f(f"v_lshlrev_b32 v{t0}, 2, v{t0}")
            f(f"v_lshl_add_u32 v{vFU+k}, v{t1}, {c.fus}, v{t0}")
            f(f"v_add_u32 v{vFU+k}, {FU_OFF + ((lo // 12 * 24) << c.fus)}, v{vFU+k}")
        srd(f, RW2, W2, S * F * 2)
        srd(f, ROUT, OUT, S * D * 2)
    def setup_g1(f):
        f(f"v_lshlrev_b32 v{vFH}, {c.fhs}, v0")
        f(f"v_add_u32 v{vFH}, {FH_OFF}, v{vFH}")
        for p in range(4):
            f(f"s_lshr_b32 s{sT0}, s{sW}, 1\ns_xor_b32 s{sT0}, s{sT0}, {(p&1)^1}\ns_add_u32 s{sT0}, s{sT0}, s{sS}\ns_add_u32 s{sT0}, s{sT0}, {p&2}\ns_and_b32 s{sT0}, s{sT0}, 3\ns_lshl_b32 s{sT1}, s{sT0}, {16+z}\nv_add_u32 v{vH+p}, s{sT1}, v{vHL}")
        for h, su in enumerate((sUS0, sUS1)):
            f(f"s_mul_i32 s{su}, s{su}, 48\ns_lshl_b32 s{sT0}, s{sFT}, 1\ns_add_u32 s{su}, s{su}, s{sT0}\ns_and_b32 s{sT1}, s{sW}, 1\ns_add_u32 s{su}, s{su}, s{sT1}\ns_lshl_b32 s{su}, s{su}, {10+zu}\ns_add_u32 s{su}, s{su}, {U_OFF}")
        f(f"s_lshl_b32 s{sT3}, {0 if c.fake & 1 else 's%d' % sDT}, {18+z}\ns_lshl_b32 s{sT1}, s{sW}, {14+z}\ns_add_u32 s{sT3}, s{sT3}, s{sT1}\ns_add_u32 s{sT3}, s{sT3}, {H_OFF}")
        for i in range(NS1):
            f(f"s_add_u32 s{sT1}, s{sROT1}, {i}\ns_and_b32 s{sT1}, s{sT1}, 15\ns_lshl_b32 s{sT1}, s{sT1}, {10+z}\ns_add_u32 s{sK+i}, s{sT1}, s{sT3}")
        for k in range(4):
            f(f"s_xor_b32 s{sT0}, s{sW}, {k}\ns_mul_i32 s{sT0}, s{sT0}, 12288\ns_add_u32 s{sT0}, s{sT0}, {RED}\nv_add_u32 v{vR+k}, s{sT0}, v{vL16}")
        c1 = -2.0 * math.log2(math.e) * math.sqrt(2.0 / math.pi)
        f(f"v_mov_b32 v{vC1}, {f32(c1)}")
        f(f"v_mov_b32 v{vC1+1}, {f32(c1*0.044715)}")
        f(lambda: a.wait("b1"))
        for p in (1, 3):
            for k in range(4):
                f(f"v_lshlrev_b32 v{ACC+16*p+2*k}, 16, v{vB1+k}")
                f(f"v_and_b32 v{ACC+16*p+2*k+1}, 0xffff0000, v{vB1+k}")
    fl = Fill(a)
    if c.hearly:
        a("s_cmp_ge_u32 s2, 240")
        a("s_cbranch_scc1 L_idle")
    setup_common(fl)
    fl(lambda: setattr(w1, "can_read", True))
    setup_g2(fl)
    for _ in range(c.w1_mid):
        w1.step(fl, older_than="hst")
    fl.flush()
    a.wait("hst")
    stamp(3)
    flag_add(0)
    if not c.hearly:
        a("s_cmp_ge_u32 s2, 240")
        a("s_cbranch_scc1 L_idle")
    setup_g1(fl)
    fl.emit(2)
    sE, sGRP, sM0 = 6, 9, 12
    def w2offs(f):
        f(f"s_mul_i32 s{sT0}, s{sW}, {12*32*4096}\ns_lshl_b32 s{sT1}, s{sST}, 7\ns_add_u32 s{sT0}, s{sT0}, s{sT1}\ns_add_u32 s{sT1}, s{sT0}, {12*32*4096}\n"
          f"s_mul_i32 s{sE}, s{sROT2}, {32*4096}\ns_add_u32 s{sE}, s{sE}, s{sT0}\n"
          + "\n".join(f"s_add_u32 s{sE+k}, s{sE+k-1}, {32*4096}\ns_cmp_eq_u32 s{sE+k}, s{sT1}\ns_cselect_b32 s{sE+k}, s{sT0}, s{sE+k}" for k in range(1, c.w2e + 1)))
    if c.w2e:
        w2offs(a)
        a(f"s_lshr_b32 s{sGRP}, s2, {c.esh}")
        a(f"s_and_b32 s{sGRP}, s{sGRP}, {c.egrp-1}")
    while w1.left() > c.ov1:
        if c.wbar and (w1.left() - c.wbo) % c.wbar == 0:
            a("s_barrier")
        if w1.left() == c.pe1 + c.ov1:
            a.vm(poll_load("h"), "hpoll")
        if c.w2e and w1.n >= c.e0 and (w1.n - c.e0) % c.estep == 0 and (w1.n - c.e0) // c.estep < c.egrp:
            g = (w1.n - c.e0) // c.estep
            a(f"s_cmp_lg_u32 s{sGRP}, {g}")
            a(f"s_cbranch_scc1 L_e{g}")
            a(f"s_mov_b32 s{sM0}, m0")
            for k in range(c.w2e):
                a(f"s_add_u32 m0, s{sLDS}, {(WSLOT-c.w2e+k)*4096}")
                a("s_nop 0")
                for j in range(4):
                    a(f"buffer_load_dwordx4 v{vD2+j}, s[{RW2}:{RW2+3}], s{sE+k} offen offset:{1024*j} lds")
            a(f"s_mov_b32 m0, s{sM0}")
            a("s_nop 0")
            a(f"L_e{g}:")
        w1.step(fl)
    assert not c.w2e or c.e0 + (c.egrp - 1) * c.estep < 64
    if c.pe1 == 0:
        a.vm(poll_load("h"), "hpoll")
    fl.flush()
    a.wait("hpoll")
    stamp(4)
    spin("h")
    stamp(5)
    N1 = 64
    def hissue(n):
        r = RING + 4 * (n % NRING)
        a.vm(f"buffer_load_dwordx4 v[{r}:{r+3}], v{vH+n//16}, s[{RWS}:{RWS+3}], s{sK+n%16} offen sc1", f"h{n}")
    def pace():
        if c.thr and len(a.q) >= c.thr:
            tg = a.q[-c.thr]
            if tg.startswith("w"):
                a.wait(tg)
    hst_ = [c.d0 if c.ov1 else (c.hi or c.hd)]
    for n in range(hst_[0]):
        pace()
        hissue(n)
        w1.reads(2)
    if not c.ov1:
        w1.drain()
    def w2setup(done):
        a(f"s_mul_i32 s{sWO0}, s{sW}, {12*32*4096}")
        a(f"s_lshl_b32 s{sT0}, s{sST}, 7")
        a(f"s_add_u32 s{sWO0}, s{sWO0}, s{sT0}")
        a(f"s_add_u32 s{sWOE}, s{sWO0}, {12*32*4096}")
        if c.nh:
            a(f"s_mov_b32 m0, s{sLDS}")
            a(step_off(sWO, sWO0, 0, 17))
        elif done:
            a(f"s_mov_b32 m0, s{sLDS}")
            a(f"s_mov_b32 s{sWO}, s{sE+done}")
        else:
            a(f"s_mul_i32 s{sT0}, s{sROT2}, {32*4096}")
            a(f"s_add_u32 m0, s{sLDS}, {((WSLOT-c.w2e)%WSLOT)*4096}")
            a(f"s_add_u32 s{sWO}, s{sWO0}, s{sT0}")
    if not c.ov1:
        w2setup(c.w2e)
        a.dwait()
    stamp("g1s")
    w2 = W(2)
    w2.n = 4 * c.w2e
    w2.can_read = False
    def plan(m, st, w, issue, total, depth, tail):
        ops = []
        nw = min(c.wpp, w.left())
        want = min(total, 2 * m + 2 + (c.d0 if nw else depth))
        na = min(want - st[0], 2 if nw else c.ramp)
        acts = [lambda n=st[0] + k: issue(n) for k in range(na)]
        st[0] += na
        ws_ = [w.issue] * nw
        while acts or ws_:
            for _ in range((c.wpp + 1) // 2):
                if ws_:
                    ops.append(ws_.pop(0))
            if acts:
                ops.append(acts.pop(0))
        if not ops and st[0] == total:
            ops = tail()
        gaps = {0: [], 1: [1], 2: [c.lg0, c.lg1], 3: [1, 3, 5], 4: [0, 2, 4, 6], 5: [0, 1, 3, 4, 6], 6: [0, 1, 2, 4, 5, 6], 7: list(range(7)), 8: list(range(8))}[len(ops)]
        return dict(zip(gaps, ops))
    def need_steps(w, upto):
        if w.rd < 8 * (upto + 1):
            a.wait(w.tag(4 * upto + 3))
            w.reads(8 * (upto + 1) - w.rd)
        for i in range(upto + 1):
            a.dwait(f"r{w.kind}_{i}")
    def spread(nf):
        if c.lg0 >= 0:
            free = [g for g in range(8) if g not in (c.lg0, c.lg1)]
            free.sort(key=lambda g: g == 7)
            per = [0] * 8
            for x in range(nf):
                per[free[x % len(free)]] += 1
            return per
        if c.gap2:
            return [0 if g % 2 == 0 else nf // 4 + (1 if g // 2 < nf % 4 else 0) for g in range(8)]
        return [nf // 8 + (1 if g < nf % 8 else 0) for g in range(8)]
    def red_write(f, p, aa):
        cw = ACC + 16 * p + 4 * aa
        slot = aa if p % 2 == 0 else 2 + aa
        if p < 3 and c.w32 >> p & 1:
            for r in range(4):
                f(costly(lambda r=r: a.ds(f"ds_write_b32 v{vR}, v{cw+r} offset:{(p//2)*6144+slot*1024+4*r}", f"rw{p}"), 16))
                if r % 2 == 1:
                    f.delay(1)
            return
        f(costly(lambda: a.ds(f"ds_write_b128 v{vR}, v[{cw}:{cw+3}] offset:{(p//2)*6144+slot*1024}", f"rw{p}"), 16))
        if c.cst and p < 3:
            f.delay(c.wsk)
    def red_finish(f, h):
        P0, P1, T = ACC + 32 * h, ACC + 32 * h + 16, RD + 12 * h
        for x, (k, slot, dst) in enumerate(((2, 0, P0), (3, 2, P0 + 8), (1, 4, P1 + 8), (2, 1, P0 + 4), (3, 3, P0 + 12), (1, 5, P1 + 12))):
            f(lambda k=k, slot=slot, dst=dst, x=x: a.ds(f"ds_read_b128 v[{dst}:{dst+3}], v{vR+k} offset:{h*6144+slot*1024}", f"rr{h}_{x}"))
        if c.cst and h == 0:
            f.delay(c.dly)
        if h == 1 and c.pk1:
            def pk(op, d, *src):
                f(f"v_pk_{op}_f32 v[{d}:{d+1}], " + ", ".join(x if isinstance(x, str) else f"v[{x}:{x+1}]" for x in src))
            for half in range(2):
                f(lambda half=half: a.dwait(f"rr{h}_{3*half+2}"))
                for r in (4 * half, 4 * half + 2):
                    pk("add", P0 + r, P0 + r, P0 + 8 + r)
                    pk("add", P1 + r, P1 + r, P1 + 8 + r)
                for r in (4 * half, 4 * half + 2):
                    pk("add", P1 + r, P1 + r, P0 + r)
            for r in range(0, 8, 2):
                pk("mul", T + r, P1 + r, P1 + r)
            for r in range(0, 8, 2):
                f(f"v_pk_fma_f32 v[{T+r}:{T+r+1}], v[{T+r}:{T+r+1}], v[{vC1}:{vC1+1}], v[{vC1}:{vC1+1}] op_sel:[0,1,0] op_sel_hi:[1,1,0]")
            for r in range(0, 8, 2):
                pk("mul", T + r, T + r, P1 + r)
            for r in range(8):
                f(f"v_exp_f32 v{T+r}, v{T+r}")
            for r in range(0, 8, 2):
                f(f"v_pk_add_f32 v[{T+r}:{T+r+1}], v[{T+r}:{T+r+1}], 1.0 op_sel_hi:[1,0]")
            for r in range(8):
                f(f"v_rcp_f32 v{T+r}, v{T+r}")
            for r in range(0, 8, 2):
                pk("mul", T + r, T + r, P1 + r)
            for r in range(4):
                f(f"v_cvt_pk_bf16_f32 v{T+8+r}, v{T+2*r}, v{T+2*r+1}")
            f(lambda: a.vm(f"buffer_store_dwordx4 v[{T+8}:{T+11}], v{vU}, s[{RWS}:{RWS+3}], s{sUS1} offen sc1", "ust1"))
            return
        for half in range(2):
            f(lambda half=half: a.dwait(f"rr{h}_{3*half+2}"))
            for r in range(4 * half, 4 * half + 4):
                f(f"v_add_f32 v{P0+r}, v{P0+r}, v{P0+8+r}")
                f(f"v_add_f32 v{P1+r}, v{P1+r}, v{P1+8+r}")
            for r in range(4 * half, 4 * half + 4):
                f(f"v_add_f32 v{P1+r}, v{P1+r}, v{P0+r}")
        for r in range(8):
            f(f"v_mul_f32 v{T+r}, v{P1+r}, v{P1+r}")
        for r in range(8):
            f(f"v_fma_f32 v{T+r}, v{T+r}, v{vC1+1}, v{vC1}")
        for r in range(8):
            f(f"v_mul_f32 v{T+r}, v{T+r}, v{P1+r}")
        for r in range(8):
            f(f"v_exp_f32 v{T+r}, v{T+r}")
        for r in range(8):
            f(f"v_add_f32 v{T+r}, 1.0, v{T+r}")
        for r in range(8):
            f(f"v_rcp_f32 v{T+r}, v{T+r}")
        for r in range(8):
            f(f"v_mul_f32 v{T+r}, v{T+r}, v{P1+r}")
        for r in range(4):
            f(f"v_cvt_pk_bf16_f32 v{T+8+r}, v{T+2*r}, v{T+2*r+1}")
        su = sUS0 if h == 0 else sUS1
        if c.jit:
            f(lambda: jitter(9 + 2 * h))
        f(lambda: a.vm(f"buffer_store_dwordx4 v[{T+8}:{T+11}], v{vU}, s[{RWS}:{RWS+3}], s{su} offen sc1", f"ust{h}"))
    deferred1 = []
    for m in range(N1 // 2):
        p, i = m // 8, 2 * (m % 8)
        stamp(f"g1_{m}")
        if hst_[0] == N1 and w2.n == 4 * c.w2e:
            stamp("t0")
        ops = plan(m, hst_, w1, hissue, N1, c.hd, lambda: [w2.issue] * c.w2_tail)
        if c.ov1 and m == 8:
            assert w1.left() == 0 and w1.rd == 8 * NS1
            w2setup(c.w2e)
        if m % 8 == 1 and p >= 1:
            rest, fl.g = (fl.g, []) if c.cst == 2 else ([], fl.g)
            for aa in (range(4) if p % 2 == 1 else (2, 3)):
                red_write(fl, p - 1, aa)
            fl.g += rest
        a.wait(f"h{2*m+1}")
        if m < 8:
            need_steps(w1, 2 * m + 1)
        if c.al8:
            a(".p2align 3")
        per = spread(c.g1fill)
        order = (2, 3, 0, 1) if m == N1 // 2 - 1 else (0, 1, 2, 3)
        for ti, t in enumerate(order):
            for e0 in range(2):
                e = e0 ^ (ti & 1) if c.serp else e0
                rb = RING + 4 * ((2 * m + e) % NRING)
                cc = ACC + 16 * p + 4 * t
                src = "0" if (i == 0 and e0 == 0 and not (p % 2 == 1 and t < 2)) else f"v[{cc}:{cc+3}]"
                ra = 16 * (i + e) + 4 * t
                ins = f"v_mfma_f32_16x16x32_bf16 v[{cc}:{cc+3}], a[{ra}:{ra+3}], v[{rb}:{rb+3}], {src}"
                if t < 2 and m >= N1 // 2 - c.defer1:
                    deferred1.append(ins)
                elif not (c.fake & 4):
                    a(ins)
                if 2 * ti + e0 in ops:
                    ops[2 * ti + e0]()
                if m < 8:
                    w1.reads(2)
                if c.cst:
                    fl.gap(0 if 2 * ti + e0 in ops else c.gb1)
                else:
                    fl.emit(per[2 * ti + e0])
        if c.gbar and m % c.gbar == c.gbar - 1 and m != c.g1bar and m < 28:
            a("s_barrier")
        if m == c.g1bar:
            fl.g = [x for x in fl.g if not getattr(x, "skip", 0)]
            assert not fl.g
            a.dwait()
            if not (c.fake & 16):
                a("s_barrier")
            red_finish(fl, 0)
            if c.fake & 8:
                fl.g = [x if callable(x) else (lambda: None) for x in fl.g]
    fl.flush()
    stamp(6)
    w2.can_read = True
    if c.defer1:
        for _ in range(6):
            a(deferred1.pop(0) if deferred1 else "s_nop 0")
        red_write(fl, 3, 2)
        fl.flush()
        a(deferred1.pop(0) if deferred1 else "s_nop 0")
        red_write(fl, 3, 3)
        fl.flush()
        for x in deferred1:
            a(x)
    else:
        a("s_nop 3")
        red_write(fl, 3, 2)
        red_write(fl, 3, 3)
        fl.flush()
    w2.issue()
    a.dwait()
    a("s_barrier")
    red_finish(fl, 1)
    fl.emit(6)
    k = 0
    flagged = False
    while fl.g:
        if k == c.fe_pos:
            a.wait("ust0")
            stamp("fe")
            flag_add(1)
            flagged = True
        if k < c.w2_un:
            w2.step(fl, throttle=False)
        else:
            fl.emit(c.fillk)
        k += 1
    stamp(7)
    if not flagged:
        a.wait("ust0")
        stamp("fe")
        flag_add(1)
    for _ in range(c.w2_mid):
        w2.step(None, older_than="ust1")
    a.wait("ust1")
    flag_add(2)
    a("L_join:")
    join_n, join_rd = w2.n, w2.rd
    stamp(8)
    fl(f"s_mul_i32 s{sT3}, {0 if c.fake & 2 else 's%d' % sJ}, {(5*49152) << zu}\ns_mul_i32 s{sT1}, s{sW}, {12288 << zu}\ns_add_u32 s{sT3}, s{sT3}, s{sT1}\ns_add_u32 s{sT3}, s{sT3}, {U_OFF}")
    if c.nh:
        for i in range(NS2):
            fl(step_off(sK + i, sT3, i, 10 + zu))
    else:
        fl(f"s_add_u32 s{sUS1}, s{sT3}, {12288 << zu}\ns_lshl_b32 s{sK}, s{sROT2}, {10+zu}\ns_add_u32 s{sK}, s{sK}, s{sT3}")
        for i in range(1, NS2):
            fl(f"s_add_u32 s{sK+i}, s{sK+i-1}, {1024 << zu}\ns_cmp_eq_u32 s{sK+i}, s{sUS1}\ns_cselect_b32 s{sK+i}, s{sT3}, s{sK+i}")
    fl(f"v_lshlrev_b32 v{vB2}, 16, v{vB2}")
    for t in range(5):
        for r in range(4):
            fl(f"v_mov_b32 v{ACC+16*t+r}, v{vB2}")
    for k in range(4):
        fl(f"s_xor_b32 s{sT0}, s{sW}, {k}\ns_mul_i32 s{sT0}, s{sT0}, {WSLOT*4096}\nv_add_u32 v{vR+k}, s{sT0}, v{vL16}")
    if c.omap:
        fl(f"s_lshl_b32 s{sUS0}, s{sJ}, 7\ns_lshl_b32 s{sT3}, s{sJ}, 5\ns_add_u32 s{sT3}, s{sT3}, 1024")
    else:
        fl(f"s_mul_i32 s{sUS0}, s{sJ}, 160\ns_add_u32 s{sT3}, s{sUS0}, 128")
    assert w2.left() >= c.pe2 + c.ov2
    while w2.left() > c.ov2:
        if c.wbar and (w2.left() - c.wbo) % c.wbar == 0:
            a("s_barrier")
        if w2.left() == c.pe2 + c.ov2:
            a.vm(poll_load("a"), "apoll")
        w2.step(fl)
    if c.pe2 == 0:
        a.vm(poll_load("a"), "apoll")
    fl.flush()
    a.wait("apoll")
    stamp(9)
    spin("a")
    stamp(10)
    N2 = 60
    def uissue(n):
        if n == 24 - c.pbl:
            a.vm(poll_load("b"), "bpoll")
        if n == 23 and c.pbo:
            a.wait("bpoll")
            poll_test("b")
        if n == 24:
            if c.pbo:
                a("s_cbranch_vccnz L_pb_spin")
                a("L_pb_ok:")
            else:
                a.wait("bpoll")
                spin("b")
            stamp("pb")
        r = RING + 4 * (n % NRING)
        a.vm(f"buffer_load_dwordx4 v[{r}:{r+3}], v{vU+n//12}, s[{RWS}:{RWS+3}], s{sK+n%12} offen sc1", f"u{n}")
    ust_ = [c.d0 if c.ov2 else (c.hi or c.ud)]
    for n in range(ust_[0]):
        pace()
        uissue(n)
        w2.reads(2)
    if not c.ov2:
        w2.drain()
        a.dwait()
    stamp("g2s")
    def fin_reads(f, ts):
        for t in ts:
            for k in range(1, 4):
                cr = ACC + 16 * t + 4 * k
                f(lambda t=t, k=k, cr=cr: a.ds(f"ds_read_b128 v[{cr}:{cr+3}], v{vR+k} offset:{(k-1)*5120+t*1024}", f"fr{t}"))
    def fin(f, t):
        f(lambda: a.dwait(f"fr{t}"))
        cc = ACC + 16 * t
        if t == 4 and c.pkfin:
            for r in (0, 2):
                f(f"v_pk_add_f32 v[{cc+r}:{cc+r+1}], v[{cc+r}:{cc+r+1}], v[{cc+4+r}:{cc+5+r}]")
                f(f"v_pk_add_f32 v[{cc+8+r}:{cc+9+r}], v[{cc+8+r}:{cc+9+r}], v[{cc+12+r}:{cc+13+r}]")
            for r in (0, 2):
                f(f"v_pk_add_f32 v[{cc+r}:{cc+r+1}], v[{cc+r}:{cc+r+1}], v[{cc+8+r}:{cc+9+r}]")
            for r in (0, 2):
                f(f"v_cvt_pk_bf16_f32 v{RD+2*t+r//2}, v{cc+r}, v{cc+r+1}")
            return
        for r in range(4):
            f(f"v_add_f32 v{cc+r}, v{cc+r}, v{cc+4+r}")
            f(f"v_add_f32 v{cc+8+r}, v{cc+8+r}, v{cc+12+r}")
        for r in range(4):
            f(f"v_add_f32 v{cc+r}, v{cc+r}, v{cc+8+r}")
        for r in (0, 2):
            f(f"v_cvt_pk_bf16_f32 v{RD+2*t+r//2}, v{cc+r}, v{cc+r+1}")
    def ostore(pp):
        a.vm(f"buffer_store_dwordx4 v[{RD+4*pp}:{RD+4*pp+3}], v{vO}, s[{ROUT}:{ROUT+3}], s{sUS0} offen offset:{64*pp}{OP[c.opol] if c.osc >> pp & 1 else ''}", "o")
    stored0 = [False]
    deferred = []
    for m in range(N2 // 2):
        t, i = m // 6, 2 * (m % 6)
        stamp(f"g2_{m}")
        def tail2():
            if stored0[0] or c.o0b:
                return []
            stored0[0] = True
            return [lambda: ostore(0)]
        ops = plan(m, ust_, w2, uissue, N2, c.ud, tail2)
        if m % 6 == 1 and t >= 1:
            rest, fl.g = fl.g, []
            for b in range(1, 4):
                cw = ACC + 16 * (t - 1) + 4 * b
                if c.w32 & 8 and t < 4:
                    for r in range(4):
                        fl(costly(lambda cw=cw, b=b, t=t, r=r: a.ds(f"ds_write_b32 v{vR}, v{cw+r} offset:{(b-1)*5120+(t-1)*1024+4*r}", "fw"), 16))
                        if r % 2 == 1:
                            fl.delay(1)
                    continue
                fl(costly(lambda cw=cw, b=b, t=t: a.ds(f"ds_write_b128 v{vR}, v[{cw}:{cw+3}] offset:{(b-1)*5120+(t-1)*1024}", "fw"), 16))
                if c.cst:
                    fl.delay(c.wsk)
            fl.g += rest
        a.wait(f"u{2*m+1}")
        if m < 6:
            need_steps(w2, 2 * m + 1)
        if c.al8:
            a(".p2align 3")
        per = spread(c.g2l if m > c.g2b1 else c.g2f)
        for bi, b in enumerate((1, 2, 3, 0)):
            for e0 in range(2):
                e = e0 ^ (bi & 1) if c.serp else e0
                ra = RING + 4 * ((2 * m + e) % NRING)
                cc = ACC + 16 * t + 4 * b
                src = "0" if (i == 0 and e0 == 0 and b) else f"v[{cc}:{cc+3}]"
                rb = 16 * (i + e) + 4 * b
                ins = f"v_mfma_f32_16x16x32_bf16 v[{cc}:{cc+3}], v[{ra}:{ra+3}], a[{rb}:{rb+3}], {src}"
                if b == 0 and m >= N2 // 2 - c.defer:
                    deferred.append(ins)
                elif not (c.fake & 4):
                    a(ins)
                if 2 * bi + e0 in ops:
                    ops[2 * bi + e0]()
                if m < 6:
                    w2.reads(2)
                if c.cst:
                    gb = c.gb3 if m > c.g2b1 else c.gb2
                    if not (b == 0 and m >= N2 // 2 - c.defer):
                        fl.gap(0 if 2 * bi + e0 in ops else gb)
                else:
                    fl.emit(per[2 * bi + e0])
        if c.gbar and m % c.gbar == c.gbar - 1 and m not in (c.g2b0, c.g2b1) and m < 25:
            a("s_barrier")
        if m in (c.g2b0, c.g2b1):
            fl.g = [x for x in fl.g if not getattr(x, "skip", 0)]
            assert not fl.g
            a.dwait()
            if not (c.fake & 16):
                a("s_barrier")
            nfirst = 3 if c.g2b0 >= 19 else 2
            ts = tuple(range(nfirst)) if m == c.g2b0 else tuple(range(nfirst, 4))
            fin_reads(fl, ts)
            if m == c.g2b1 and c.o0b:
                assert ust_[0] == N2
                fl(lambda: ostore(0))
            if c.cst:
                fl.delay(c.dly if m == c.g2b0 else 2)
            for tt in ts:
                fin(fl, tt)
            if c.fake & 8:
                fl.g = [x if callable(x) else (lambda: None) for x in fl.g]
            if m == c.g2b1:
                fl(lambda: ostore(1))
            elif c.o0e:
                fl(lambda: ostore(0))
                stored0[0] = True
    stamp(11)
    def pad_states(k):
        while k > 0 and deferred:
            a(deferred.pop(0)); k -= 1
        if k > 0:
            a(f"s_nop {k-1}")
    pad_states(4 if c.defer else 2)
    for b in range(1, 4):
        cw = ACC + 64 + 4 * b
        if b > 1:
            pad_states(1)
        a.ds(f"ds_write_b128 v{vR}, v[{cw}:{cw+3}] offset:{(b-1)*5120+4096}")
    late = len(deferred)
    pad_states(late)
    fl.flush()
    a.dwait()
    a("s_barrier")
    stamp("e2")
    fin_reads(fl, (4,))
    fl.flush()
    if c.stamp:
        a.dwait()
    if c.defer:
        a("s_nop 1")
    fin(fl, 4)
    fl.flush()
    a(f"buffer_store_dwordx2 v[{RD+8}:{RD+9}], v{vO+1}, s[{ROUT}:{ROUT+3}], s{sT3} offen{OP[c.opol] if c.osc & 4 else ''}")
    a(f"s_or_b32 s{sT0}, s2, s{sW}")
    a("s_cbranch_scc1 L_noepoch")
    a(f"v_mov_b32 v{t5}, {EP_OFF}")
    flag_store(t5, None, "")
    a("L_noepoch:")
    if c.stamp:
        stamp("e3")
        a("s_waitcnt vmcnt(0)")
        stamp(12)
        a(f"s_lshl_b32 s{sT0}, s2, 3")
        a(f"s_add_u32 s{sT0}, s{sT0}, s{sW}")
        a(f"s_lshl_b32 s{sT0}, s{sT0}, 6")
        a(f"s_add_u32 s{sT0}, s{sT0}, {ST_OFF}")
        a(f"v_mov_b32 v{t0}, s{sT0}")
        a("s_waitcnt lgkmcnt(0)")
        for i in range(13):
            a(f"v_mov_b32 v{t1}, s{STB+2*i}")
            a(f"global_store_dword v{t0}, v{t1}, s[{WS}:{WS+1}] offset:{4*i}")
    if c.pad:
        a("s_waitcnt vmcnt(0)")
        stamp("end")
        a("s_waitcnt lgkmcnt(0)")
        a("s_sub_u32 s64, s98, s100")
        if c.padx == -2:
            a(f"v_mov_b32 v{t0}, {ST_OFF}")
            a(f"global_load_dword v{t1}, v{t0}, s[{WS}:{WS+1}] sc1")
            a("s_waitcnt vmcnt(0)")
            a(f"v_readfirstlane_b32 s100, v{t1}")
            a("s_nop 3")
            a("s_sub_u32 s64, s98, s100")
            a("s_min_u32 s64, s64, 4000")
        if c.padx >= 0:
            a(f"s_cmp_lg_u32 s2, {c.padx}")
            a("s_cbranch_scc1 L_end")
            a(f"v_mov_b32 v{t0}, {ST_OFF}")
            a(f"global_load_dword v{t1}, v{t0}, s[{WS}:{WS+1}] sc1")
            a("s_waitcnt vmcnt(0)")
            a(f"v_readfirstlane_b32 s64, v{t1}")
            a("s_nop 3")
            a("s_sub_u32 s64, s100, s64")
            a("s_add_u32 s64, s64, 100")
            a("s_min_u32 s64, s64, 1000")
        a(f"s_mul_i32 s64, s64, {c.mult}")
        a("s_add_u32 s64, s64, 10000")
        a(f"s_mov_b32 s{sCNT}, 0")
        a("L_pad:")
        a("s_memrealtime s[66:67]")
        a("s_waitcnt lgkmcnt(0)")
        a(f"s_add_u32 s{sCNT}, s{sCNT}, 1")
        a(f"s_cmp_ge_u32 s{sCNT}, 200000\ns_cbranch_scc1 L_end")
        a("s_sub_u32 s66, s66, s100")
        a("s_cmp_lt_u32 s66, s64\ns_cbranch_scc1 L_pad")
    a("s_endpgm")
    if c.pbo:
        a("L_pb_spin:")
        a(f"s_mov_b32 s{sCNT}, 0")
        a("L_pb_l:")
        a(poll_load("b"))
        a(f"s_add_u32 s{sCNT}, s{sCNT}, 1")
        a(f"s_cmp_ge_u32 s{sCNT}, {SPIN_CAP}")
        a("s_cbranch_scc1 L_pb_ok")
        a("s_waitcnt vmcnt(0)")
        poll_test("b")
        a("s_cbranch_vccnz L_pb_l")
        a("s_branch L_pb_ok")
    a("L_idle:")
    if c.hearly:
        srd(a, RW2, W2, S * F * 2)
    else:
        a("s_waitcnt vmcnt(0) lgkmcnt(0)")
    a.q, a.lq = [], []
    if c.pad and c.padat in ("4", "5", "6", "7", "t0", "fe", "g1s"):
        stamp(c.padat)
    if c.stamp:
        for nm in SETS[c.sset]:
            if nm in (4, 5, 6, 7, "t0", "fe", "g1s") or str(nm).startswith(("w1_", "g1_", "w2_22")):
                stamp(nm)
    if c.nh:
        a(f"s_bfe_u32 s{sT1}, s2, 0x10003")
        if c.nh == 4:
            a(f"s_mul_i32 s{sROT2}, s{sT1}, {(12-c.nh)//2}")
        a(f"s_lshl_b32 s{sT1}, s{sT1}, 16")
        a(f"s_mul_i32 s{sT0}, s{sW}, {12*32*4096}")
        a(f"s_add_u32 s{sT0}, s{sT0}, s{sT1}")
        a(f"s_lshr_b32 s{sT1}, s{sST}, 2")
        a(f"s_lshl_b32 s{sT1}, s{sT1}, 9")
        a(f"s_add_u32 s{sT3}, s{sT0}, s{sT1}")
        sh = c.hsec + 1
        a(f"v_lshrrev_b32 v{vH}, {sh}, v{vL}")
        a(f"v_lshlrev_b32 v{vH}, 12, v{vH}")
        a(f"v_and_b32 v{t1}, {(1<<sh)-1}, v{vL}")
        a(f"v_lshl_add_u32 v{vH}, v{t1}, {9-sh}, v{vH}")
        for r in range(c.nh * c.hsec):
            a(f"buffer_load_dword v{vH+1}, v{vH}, s[{RW2}:{RW2+3}], s{sT3} offen")
            inc = 32 if c.hsec == 1 else (8 if r % 2 == 0 else 24)
            a(f"s_add_u32 s{sT3}, s{sT3}, {inc*4096}")
            if c.hearly and r == 0:
                setup_common(a)
                setup_g2(a)
                a("s_waitcnt vmcnt(1)")
                stamp(3)
                flag_add(0)
            a(f"s_waitcnt vmcnt({c.hq-1})")
    elif c.helper:
        a(f"s_bfe_u32 s{sT1}, s2, 0x10003")
        a(f"s_mul_i32 s{sROT2}, s{sT1}, 6")
    w2setup(0)
    wi = W(2)
    while wi.n < join_n:
        wi.issue()
    a("s_waitcnt vmcnt(0)")
    a.q = []
    wi.reads(join_rd - wi.rd)
    assert wi.rd == join_rd, (wi.rd, join_rd)
    a.dwait()
    a("s_branch L_join")
    a("L_end:\ns_endpgm")
    a(f""".section .rodata,"a"
.p2align 6
.amdhsa_kernel {NAME}
  .amdhsa_next_free_vgpr 512
  .amdhsa_next_free_sgpr 102
  .amdhsa_accum_offset 256
  .amdhsa_group_segment_fixed_size 0
  .amdhsa_kernarg_size 64
  .amdhsa_user_sgpr_count 2
  .amdhsa_user_sgpr_kernarg_segment_ptr 1
  .amdhsa_system_sgpr_workgroup_id_x 1
  .amdhsa_float_denorm_mode_32 3
.end_amdhsa_kernel""")
    return a.text()

if __name__ == "__main__":
    c = Cfg()
    out = sys.argv[1]
    for x in sys.argv[2:]:
        k, v = x.split("=")
        assert hasattr(c, k), k
        setattr(c, k, v if k == 'padat' else int(v))
    open(out, "w").write(gen(c))
```

```python
import sys, struct, math

def f32(x):
    return "0x%08x" % struct.unpack("<I", struct.pack("<f", x))[0]

S, D, F = 2048, 640, 1536
FH_OFF = 0
EP_OFF = FH_OFF + (16 << 10)
FU_OFF = FH_OFF + (32 << 10)
ST_OFF = 16 << 20
NAME = "standalone__mixer_token_mlp__prompt_kernel"
SPIN_CAP = 400000
OP = [" sc1", " nt", " sc0", " sc0 nt", " sc1 nt"]

HEADER = """; MLP-Mixer token mixing, one launch:  out = (gelu(LN(x)^T w1 + b1) w2 + b2)^T
; kernarg: x(0) w1(8) b1(16) w2(24) b2(32) out(40) debug(48) ws(56); S=2048 D=640 F=1536, all bf16.
;
; The workgroup -> tile maps only aim at L2 locality; nothing depends on where a workgroup runs."""

class Cfg:
    stamp = 0
    sset = 0
    pad = 0
    mult = 0
    padx = -1
    padat = "end"
    map1 = 1
    map2 = 1
    rot1 = 10
    rot2 = 8
    cpo = 256
    w1_pre = 0
    w1_x = 2
    w1_ln = 2
    w1_mid = 6
    wd = 7
    hd = 12
    ud = 10
    pe1 = 6
    pe2 = 6
    g1bar = 18
    g1fill = 9
    w2_tail = 2
    w2_mid = 7
    w2_un = 5
    pbl = 10
    helper = 0
    serp = 0
    fillk = 8
    xnt = 1
    wnt = 0
    hnt = 0
    ep = 0
    eat = 1
    w32 = 0
    cst = 1
    gb1 = 8
    gb2 = 4
    gb3 = 8
    dly = 4
    wsk = 1
    pbo = 1
    wbar = 0
    wbo = 0
    gbar = 0
    hi = 8
    thr = 8
    ramp = 3
    fx = 0
    jit = 0
    slp = 0
    xr1 = 0
    xr2 = 0
    z = 1
    zu = -1
    al8 = 0
    one = 0
    prio = 0
    defer1 = 0
    pk1 = 0
    o0b = 1
    defer = 4
    pkfin = 1
    omap = 1
    rm1 = 1
    rm2 = 1
    opol = 0
    o0e = 0
    fast0 = 0
    ov1 = 0
    ov2 = 0
    d0 = 6
    wpp = 4
    n1 = 3
    hearly = 1
    lg0 = 1
    lg1 = 5
    fake = 0
    gap2 = 0
    g2f = 6
    g2l = 16
    g2b0 = 14
    g2b1 = 25
    nh = 4
    hsec = 1
    hq = 1
    osc = 3
    w2e = 0
    egrp = 4
    e0 = 20
    estep = 8
    esh = 3
    tlbw = 0
    w1_first = 4
    xbar = 1
    fhs = 5
    fus = 6
    slowl = 16
    fe_pos = 4

class A:
    def __init__(self):
        self.L = []
        self.q = []
        self.lq = []
    def __call__(self, s):
        for line in s.strip("\n").split("\n"):
            self.L.append(line)
    def vm(self, s, tag=None):
        self(s)
        self.q.append(tag)
    def recent_slow_before(self, tag, window):
        if tag not in self.q:
            return False
        idx = self.q.index(tag)
        return any(t in ("hst", "hfl", "ust0", "ust1", "ufl0", "ufl1", "b1", "b2") and len(self.q) - 1 - i < window
                   for i, t in enumerate(self.q[:idx]))
    def wait(self, tag):
        if tag not in self.q:
            return
        idx = max(i for i, t in enumerate(self.q) if t == tag)
        n = len(self.q) - 1 - idx
        assert n <= 63
        self(f"s_waitcnt vmcnt({n})")
        self.q = self.q[idx + 1:]
    def pending(self, tag):
        return tag in self.q
    def ds(self, s, tag=None):
        if len(self.lq) >= 13:
            self("s_waitcnt lgkmcnt(7)")
            self.lq = self.lq[-7:]
        self(s)
        self.lq.append(tag)
    def dwait(self, tag=None):
        if tag is None:
            self("s_waitcnt lgkmcnt(0)")
            self.lq = []
            return
        if tag not in self.lq:
            return
        idx = max(i for i, t in enumerate(self.lq) if t == tag)
        self(f"s_waitcnt lgkmcnt({len(self.lq)-1-idx})")
        self.lq = self.lq[idx + 1:]
    def text(self):
        return "\n".join(self.L) + "\n"

class Fill:
    def __init__(self, a):
        self.a = a
        self.g = []
    def __call__(self, s):
        self.g.append(s)
    def emit(self, k):
        while k > 0 and self.g:
            x = self.g.pop(0)
            if callable(x):
                x(); k -= 1
            else:
                self.a(x); k -= x.count("\n") + 1
    def cost(self, x):
        if callable(x):
            return getattr(x, "cost", 4)
        return sum(8 if l.startswith(("v_exp", "v_rcp")) else 4 for l in x.split("\n"))
    def gap(self, budget):
        used = 0
        while self.g and budget > 0:
            x = self.g[0]
            if getattr(x, "skip", 0):
                x.skip -= 1
                if x.skip == 0:
                    self.g.pop(0)
                return
            k = self.cost(x)
            if used and used + k > budget:
                return
            self.g.pop(0)
            x() if callable(x) else self.a(x)
            used += k
            if used >= budget:
                return
    def delay(self, n):
        if n > 0:
            f = lambda: None
            f.skip = n
            self.g.append(f)
    def flush(self):
        self.emit(1 << 30)

def costly(f, k):
    f.cost = k
    return f

def srd(a, d, b, nbytes):
    a(f"s_mov_b32 s{d}, s{b}")
    a(f"s_mov_b32 s{d+1}, s{b+1}")
    a(f"s_mov_b32 s{d+2}, {nbytes}")
    a(f"s_mov_b32 s{d+3}, 0x00020000")

def gen(c):
    a = A()
    z = c.z
    zu = c.z if c.zu < 0 else c.zu
    H_OFF = 0x20000 if z < 2 else (17 << 20)
    U_OFF = H_OFF + (0x280000 << z)
    if H_OFF < ST_OFF and U_OFF + (0x1e0000 << zu) > ST_OFF:
        U_OFF = 17 << 20
    WS_USED = U_OFF + (0x1e0000 << zu)
    STB = 76
    SETS = {
        0: [0, 1, 2, 3, 4, 5, "t0", 6, 8, 9, 10, 11, 12],
        1: [0, "ka", "iss", 1, "x4", 2, "hsto", 3, "w1_24", "w1_40", 4, 5, "g1s"],
        2: [0, 5, "g1s", "g1_8", "g1_16", "g1_24", "t0", 6, "fe", 7, 8, 9, 10],
        4: [0, 5, "g1s", "g1_2", "g1_4", "g1_8", "g1_12", "g1_16", "g1_19", "g1_22", "g1_26", "g1_29", 6],
        5: [0, 10, "g2s", "g2_2", "g2_4", "g2_7", "g2_10", "g2_13", "g2_16", "g2_20", "g2_24", "g2_27", 11],
        6: [0, "t0", 6, "fe", 7, "w2_22", 8, "w2_30", "w2_36", "w2_42", 9, 10, "g2s"],
        3: [0, 9, 10, "g2s", "g2_6", "pb", "g2_12", "g2_18", "g2_24", 11, "e2", "e3", 12],
    }
    def stamp(name):
        if c.pad and str(name) == c.padat:
            a("s_memrealtime s[98:99]")
        if c.stamp and name in SETS[c.sset]:
            i = SETS[c.sset].index(name)
            a(f"{'s_memtime' if c.stamp == 2 else 's_memrealtime'} s[{STB+2*i}:{STB+2*i+1}]")
    a(HEADER)
    a("; @launch grid=(256,1,1) block=(256,1,1) lds=163840")
    a('.amdgcn_target "amdgcn-amd-amdhsa--gfx950"')
    a(f".text\n.globl {NAME}\n.p2align 8\n.type {NAME},@function\n{NAME}:")
    X, W1, B1, W2, B2, OUT, DBG, WS = 4, 6, 8, 10, 12, 14, 16, 18
    sMA, sMB = 20, 22
    RW1, RW2, RWS, ROUT = 24, 28, 32, 36
    sW, sLDS, sDT, sFT, sJ, sST = 40, 41, 42, 43, 44, 45
    sWO, sWO0, sWOE, sUS0 = 46, 47, 48, 49
    sT0, sT1, sUS1, sCNT, sROT1, sROT2, sT3, sTAG = 50, 51, 52, 53, 54, 55, 56, 57
    sS = 3
    sED = 20
    FB = 4
    sFO = (16, 17, 58)
    sFD = (0, 1, 59)
    sK = 60
    vL = 1
    vD1, vD2, vH, vU, vT1, vT2, vR, vO = 4, 8, 12, 16, 21, 25, 29, 33
    vFH, vFU, vFO, vTAG, vB1, vB2, vHS, vLT, vFHO, vC1 = 35, 36, 37, 39, 40, 44, 45, 46, 49, 50
    t0, t1, t2, t3, t4, t5 = 54, 55, 56, 57, 58, 59
    vP = 60
    vL16, vHL = 52, 53
    ACC, RING, RD = 64, 144, 208
    RED = 114688
    WSLOT = 7
    NRING = 16
    NS1, NS2 = 16, 12

    def poll_load(kind):
        if kind == "h":
            return f"global_load_dwordx4 v[{vP}:{vP+3}], v{vFH}, s[{WS}:{WS+1}] sc1"
        return f"global_load_dword v{vP}, v{vFU if kind == 'a' else vFU+1}, s[{WS}:{WS+1}] sc1"
    def poll_test(kind):
        if kind == "h":
            a(f"v_bitop3_b32 v{vP}, v{vP}, v{vP+1}, v{vTAG} bitop3:0x7e")
            a(f"v_bitop3_b32 v{vP+2}, v{vP+2}, v{vP+3}, v{vTAG} bitop3:0x7e")
            a(f"v_or_b32 v{vP}, v{vP}, v{vP+2}")
            a(f"v_cmp_ne_u32 vcc, 0, v{vP}")
        else:
            a(f"v_cmp_ne_u32 vcc, s{sTAG}, v{vP}")
    def spin(kind):
        label = "L_p" + kind
        poll_test(kind)
        a(f"s_cbranch_vccz {label}_ok")
        a(f"s_mov_b32 s{sCNT}, 0")
        a(f"{label}_l:")
        if c.slp and kind == "a":
            a(f"s_sleep {c.slp}")
        a(poll_load(kind))
        a(f"s_add_u32 s{sCNT}, s{sCNT}, 1")
        a(f"s_cmp_ge_u32 s{sCNT}, {SPIN_CAP}")
        a(f"s_cbranch_scc1 {label}_ok")
        a("s_waitcnt vmcnt(0)")
        poll_test(kind)
        a(f"s_cbranch_vccnz {label}_l")
        a(f"{label}_ok:")
    njit = [0]
    def jitter(val):
        if c.jit:
            a(f"s_mul_i32 s{sCNT}, s2, 5\ns_add_u32 s{sCNT}, s{sCNT}, s{sW}\ns_and_b32 s{sCNT}, s{sCNT}, 31\ns_cmp_lg_u32 s{sCNT}, {val}\ns_cbranch_scc1 L_j{njit[0]}\ns_sleep {c.jit}\nL_j{njit[0]}:")
            njit[0] += 1
    def flag_add(k):
        a(f"s_atomic_add s{sFD[k]}, s[{FB}:{FB+1}], s{sFO[k]}")
    def flag_store(vaddr, tag, sc=" sc1"):
        a("s_mov_b64 exec, 1")
        s_ = f"global_store_dword v{vaddr}, v{vTAG}, s[{WS}:{WS+1}]{sc}"
        if tag:
            a.vm(s_, tag)
        else:
            a(s_)
        a("s_mov_b64 exec, -1")

    def step_off(dst, base, i, sh):
        if i < c.n1:
            return f"s_add_u32 s{dst}, s{base}, {i << sh}"
        if c.n1 < i <= c.nh:
            return f"s_add_u32 s{dst}, s{base}, {(i - 1) << sh}"
        k = 0 if i == c.n1 else i - c.nh
        return (f"s_add_u32 s{dst}, s{sROT2}, {k}\ns_and_b32 s{dst}, s{dst}, {12-c.nh-1}\ns_add_u32 s{dst}, s{dst}, {c.nh}\n"
                f"s_lshl_b32 s{dst}, s{dst}, {sh}\ns_add_u32 s{dst}, s{dst}, s{base}")
    class W:
        def __init__(self, kind):
            self.kind = kind
            self.ns = NS1 if kind == 1 else NS2
            self.n = 0
            self.rd = 0
            self.can_read = True
        def left(self):
            return 4 * self.ns - self.n
        def tag(self, n):
            return f"w{self.kind}_{n}"
        def nslot(self):
            return WSLOT - c.w2e if self.kind == 1 else WSLOT
        def slot(self, i):
            return i % self.nslot() if self.kind == 1 else (i + WSLOT - c.w2e) % WSLOT
        def issue(self):
            i, j = self.n >> 2, self.n & 3
            vd, r, step = (vD1, RW1, 32 * 3072) if self.kind == 1 else (vD2, RW2, 32 * 4096)
            if i >= self.nslot() and j == 0:
                old = i - self.nslot()
                if self.rd < 8 * (old + 1):
                    assert self.can_read
                    a.wait(self.tag(4 * old + 3))
                    self.reads(8 * (old + 1) - self.rd)
                a.dwait(f"r{self.kind}_{old}")
            a.vm(f"buffer_load_dwordx4 v{vd+j}, s[{r}:{r+3}], s{sWO} offen offset:{1024*j}{' nt' if self.kind == 1 and self.n < c.wnt else ''} lds", self.tag(self.n))
            self.n += 1
            if j == 3 and i + 1 < self.ns:
                if self.slot(i + 1) == 0:
                    a(f"s_mov_b32 m0, s{sLDS}")
                else:
                    a("s_add_u32 m0, m0, 4096")
                if self.kind == 2 and c.nh:
                    a(step_off(sWO, sWO0, i + 1, 17))
                elif self.kind == 1 and c.fake & 32:
                    a(f"s_add_u32 s{sWO}, s{sWO}, {step}")
                    a(f"s_cmp_ge_u32 s{sWO}, s{sWOE}")
                    a(f"s_cselect_b32 s{sCNT}, {480*3072}, 0")
                    a(f"s_sub_u32 s{sWO}, s{sWO}, s{sCNT}")
                else:
                    a(f"s_add_u32 s{sWO}, s{sWO}, {step}")
                    a(f"s_cmp_eq_u32 s{sWO}, s{sWOE}")
                    a(f"s_cselect_b32 s{sWO}, s{sWO0}, s{sWO}")
        def landed_steps(self):
            k = 0
            while 4 * k + 3 < self.n and not a.pending(self.tag(4 * k + 3)):
                k += 1
            return k
        def reads(self, k):
            vt = vT1 if self.kind == 1 else vT2
            lim = 8 * self.landed_steps() if self.can_read else 0
            while k > 0 and self.rd < lim:
                i, x = self.rd >> 3, self.rd & 7
                b, e = x >> 1, x & 1
                r = 16 * i + 4 * b + 2 * e
                a.ds(f"ds_read_b64_tr_b16 a[{r}:{r+1}], v{vt+b} offset:{self.slot(i)*4096+e*2048}", f"r{self.kind}_{i}")
                self.rd += 1
                k -= 1
        def step(self, fill=None, throttle=True, older_than=None):
            if throttle and self.n >= c.wd:
                tg = self.tag(self.n - c.wd)
                if older_than is not None and a.pending(older_than) and a.pending(tg) and a.q.index(tg) > a.q.index(older_than):
                    pass
                elif not a.recent_slow_before(tg, c.slowl):
                    a.wait(tg)
            stamp(f"w{self.kind}_{self.n}")
            self.issue()
            backlog = 8 * self.landed_steps() - self.rd
            self.reads(4 if backlog > 8 else 2)
            if fill is not None:
                fill.emit(c.fillk)
        def drain(self):
            for i in range(self.rd >> 3, self.ns):
                a.wait(self.tag(4 * i + 3))
                self.reads(8)

    def tile2(f):
        if c.map2 == 0:
            f(f"s_and_b32 s{sT0}, s2, 1\ns_lshl_b32 s{sT0}, s{sT0}, 2\ns_bfe_u32 s{sT1}, s2, 0x20003\ns_add_u32 s{sJ}, s{sT0}, s{sT1}\ns_mul_i32 s{sROT2}, s{sT1}, 3")
            if c.rot2 == 42:
                f(f"s_bfe_u32 s{sT1}, s2, 0x10005\ns_mul_i32 s{sT1}, s{sT1}, 6\ns_add_u32 s{sROT2}, s{sROT2}, s{sT1}\ns_cmp_ge_u32 s{sROT2}, 12\ns_cselect_b32 s{sT1}, 12, 0\ns_sub_u32 s{sROT2}, s{sROT2}, s{sT1}")
            f(f"s_bfe_u32 s{sT0}, s2, 0x20001\ns_lshl_b32 s{sT0}, s{sT0}, 3\ns_lshr_b32 s{sST}, s2, 5\ns_add_u32 s{sST}, s{sST}, s{sT0}")
        else:
            f(f"s_bfe_u32 s{sJ}, s2, 0x30003")
            if c.nh == 4:
                f(f"s_mul_i32 s{sROT2}, s2, {c.xr2}\ns_add_u32 s{sROT2}, s{sROT2}, s{sJ}")
            elif c.nh == 8:
                f(f"s_lshr_b32 s{sROT2}, s{sJ}, 1")
            elif c.rot2 == 8:
                f(f"s_mul_i32 s{sROT2}, s{sJ}, 3\ns_lshr_b32 s{sROT2}, s{sROT2}, 1")
            elif c.rot2 == 4:
                f(f"s_lshr_b32 s{sROT2}, s{sJ}, 1\ns_mul_i32 s{sROT2}, s{sROT2}, 3")
            else:
                f(f"s_mov_b32 s{sROT2}, 0")
            f(f"s_and_b32 s{sT0}, s2, 7\ns_xor_b32 s{sT0}, s{sT0}, {c.rm2}\ns_lshl_b32 s{sT0}, s{sT0}, 2\ns_lshr_b32 s{sST}, s2, 6\ns_add_u32 s{sST}, s{sST}, s{sT0}")
    a("s_cmp_ge_u32 s2, 256\ns_cbranch_scc1 L_end")
    stamp(0)
    if c.pad:
        a("s_memrealtime s[100:101]")
    a("s_load_dwordx16 s[4:19], s[0:1], 0")
    a(f"v_lshrrev_b32 v{t0}, 6, v0")
    a("; ---- one line of this kernel's code per wave is loaded so that instruction fetches hit L2")
    a("s_getpc_b64 s[22:23]")
    a("L_pc:")
    a(f"s_lshr_b32 s{sT0}, s2, 3                 ; idx")
    a(f"s_lshl_b32 s{sT1}, s{sT0}, 9")
    a(f"v_lshl_add_u32 v{t1}, v{t0}, 7, s{sT1}")
    a(f"v_min_u32 v{t1}, (L_end-L_pc-{c.cpo}-4), v{t1}")
    a.vm(f"global_load_dword v{vP}, v{t1}, s[22:23] offset:{c.cpo}", "cpf")
    a(f"v_and_b32 v{vL}, 63, v0")
    a(f"v_readfirstlane_b32 s{sW}, v{t0}")
    a(f"v_lshrrev_b32 v{t0}, 5, v0")
    a(f"v_and_b32 v{t1}, 31, v0")
    a(f"v_lshrrev_b32 v{t2}, 7, v0")
    a(f"v_mul_u32_u24 v{t2}, 12, v{t2}")
    a(f"v_add_u32 v{t2}, v{t2}, v{t0}")
    a(f"v_mul_u32_u24 v2, 1280, v{t2}")
    a(f"v_lshl_add_u32 v2, v{t1}, 3, v2          ; x offset")
    def early_setup():
        a(f"s_lshr_b32 s{sT0}, s2, 3                 ; idx")
        a(f"v_mul_u32_u24 v3, 1344, v{t0}")
        a(f"v_lshl_add_u32 v3, v{t1}, 3, v3")
        a(f"v_add_u32 v3, {RED}, v3")
        if c.map1 == 0:
            a(f"s_mul_i32 s{sFT}, s{sT0}, 205")
            a(f"s_lshr_b32 s{sFT}, s{sFT}, 10            ; idx/5")
            a(f"s_mul_i32 s{sT1}, s{sFT}, 5")
            a(f"s_sub_u32 s{sDT}, s{sT0}, s{sT1}         ; idx%5")
            a(f"s_and_b32 s{sS}, s{sDT}, 3")
            a(f"s_mul_i32 s{sROT1}, s{sDT}, 13")
            a(f"s_lshr_b32 s{sROT1}, s{sROT1}, 2     ; 0,3,6,9,13")
            if c.rot1 == 52:
                a(f"s_and_b32 s{sT1}, s{sFT}, 1")
                a(f"s_lshl_b32 s{sT1}, s{sT1}, 3")
                a(f"s_add_u32 s{sROT1}, s{sROT1}, s{sT1}")
                a(f"s_and_b32 s{sROT1}, s{sROT1}, 15")
            a(f"s_and_b32 s{sT1}, s2, 1")
            a(f"s_mul_i32 s{sT1}, s{sT1}, 5")
            a(f"s_add_u32 s{sDT}, s{sDT}, s{sT1}         ; dtile")
            a(f"s_bfe_u32 s{sT1}, s2, 0x20001")
            a(f"s_mul_i32 s{sT1}, s{sT1}, 6")
            a(f"s_add_u32 s{sFT}, s{sFT}, s{sT1}         ; ftile")
        else:
            a(f"s_mul_i32 s{sFT}, s{sT0}, 205")
            a(f"s_lshr_b32 s{sFT}, s{sFT}, 11            ; idx/10")
            a(f"s_mul_i32 s{sT1}, s{sFT}, 10")
            a(f"s_sub_u32 s{sDT}, s{sT0}, s{sT1}         ; dtile")
            a(f"s_cmp_ge_u32 s{sDT}, 5")
            a(f"s_cselect_b32 s{sS}, 5, 0")
            a(f"s_sub_u32 s{sS}, s{sDT}, s{sS}")
            a(f"s_and_b32 s{sS}, s{sS}, 3")
            if c.rot1 == 10:
                a(f"s_mul_i32 s{sROT1}, s{sDT}, 13")
                a(f"s_lshr_b32 s{sROT1}, s{sROT1}, 3")
            elif c.rot1 == 5:
                a(f"s_lshr_b32 s{sROT1}, s{sDT}, 1")
                a(f"s_mul_i32 s{sROT1}, s{sROT1}, 13")
                a(f"s_lshr_b32 s{sROT1}, s{sROT1}, 2")
            else:
                a(f"s_mov_b32 s{sROT1}, 0")
            a(f"s_and_b32 s{sT1}, s2, 7")
            if c.xr1:
                a(f"s_mul_i32 s{sT0}, s{sT1}, {c.xr1}")
                a(f"s_add_u32 s{sROT1}, s{sROT1}, s{sT0}")
                a(f"s_and_b32 s{sROT1}, s{sROT1}, 15")
            if c.rm1:
                a(f"s_sub_u32 s{sT0}, 2, s{sFT}")
                a(f"s_cmp_eq_u32 s{sT1}, 3")
                a(f"s_cselect_b32 s{sFT}, s{sT0}, s{sFT}")
                a(f"s_cmp_ge_u32 s{sT1}, 6")
                a(f"s_cselect_b32 s{sT0}, 1, 0")
                a(f"s_xor_b32 s{sT1}, s{sT1}, s{sT0}")
            a(f"s_mul_i32 s{sT1}, s{sT1}, 3")
            a(f"s_add_u32 s{sFT}, s{sFT}, s{sT1}         ; ftile")
        a(f"v_lshrrev_b32 v{t0}, 3, v{vL}            ; rr")
        a(f"v_and_b32 v{t1}, 6, v{t0}")
        a(f"v_and_b32 v{t2}, 7, v{vL}")
        a(f"v_xor_b32 v{t1}, v{t1}, v{t2}")
        a(f"v_lshlrev_b32 v{t1}, 4, v{t1}")
        a(f"v_mul_u32_u24 v{vD1}, 3072, v{t0}")
        a(f"v_add_u32 v{vD1}, v{vD1}, v{t1}")
        a(f"v_lshl_add_u32 v{vD2}, v{t0}, 12, v{t1}")
        for j in range(1, 4):
            a(f"v_add_u32 v{vD1+j}, {j*(8*3072-1024)}, v{vD1}")
        a(f"s_mul_i32 s{sWO0}, s{sW}, {512*3072}")
        a(f"s_lshl_b32 s{sT0}, s{sFT}, 7")
        a(f"s_add_u32 s{sWO0}, s{sWO0}, s{sT0}")
        a(f"s_add_u32 s{sWOE}, s{sWO0}, {(480 if c.fake & 32 else 512)*3072}")
        if c.fake & 32:
            a(f"s_mul_i32 s{sT0}, s{sDT}, {48*3072}")
        else:
            a(f"s_mul_i32 s{sT0}, s{sROT1}, {32*3072}")
        a(f"s_add_u32 s{sWO}, s{sWO0}, s{sT0}")
        a(f"s_mul_i32 s{sLDS}, s{sW}, {WSLOT*4096}")
        a(f"s_mov_b32 m0, s{sLDS}")
    if not c.fast0:
        early_setup()
    a(f"s_lshr_b32 s{sT0}, s2, 2")
    a(f"s_lshl_b32 s{sT0}, s{sT0}, 3")
    a(f"s_and_b32 s{sT1}, s2, 3")
    a(f"s_add_u32 s{sT0}, s{sT0}, s{sT1}")
    a(f"s_mul_i32 s{sT0}, s{sT0}, 5120")
    a(f"v_lshlrev_b32 v{vL16}, 4, v{vL}          ; lane*16")
    a("s_waitcnt lgkmcnt(0)")
    stamp("ka")
    a(f"s_add_u32 s{X}, s{X}, s{sT0}")
    a(f"s_addc_u32 s{X+1}, s{X+1}, 0")
    XR = RING
    if c.fx:
        a(f"s_and_b32 s{sT0}, s2, 7\ns_lshr_b32 s{sT0}, {c.fx}, s{sT0}\ns_and_b32 s{sT0}, s{sT0}, 1\ns_sub_u32 s{sT0}, s{sT0}, 1\nv_and_b32 v2, s{sT0}, v2")
    for i in range(5):
        a.vm(f"global_load_dwordx2 v[{XR+2*i}:{XR+2*i+1}], v2, s[{X}:{X+1}] offset:{256*i}{' nt' if c.xnt else ''}", f"x{i}")
    if c.fast0:
        early_setup()
    srd(a, RW1, W1, S * F * 2)
    a("s_cmp_ge_u32 s2, 240")
    a(f"s_cselect_b32 s{RW1+2}, 0, s{RW1+2}")
    w1 = W(1)
    w1.can_read = False
    if c.xbar:
        a("s_barrier")
    for _ in range(c.w1_first):
        w1.issue()
    a(f"s_add_u32 s{FB}, s{WS}, {FH_OFF}")
    a(f"s_addc_u32 s{FB+1}, s{WS+1}, 0")
    a(f"s_load_dword s{sTAG}, s[{FB}:{FB+1}], {EP_OFF-FH_OFF}")
    if c.tlbw:
        a(f"v_and_b32 v{t0}, 1, v{vL}")
        a(f"v_mul_u32_u24 v{t1}, 0x281000, v{t0}")
        a(f"v_lshlrev_b32 v{t0}, 21, v{t0}")
        a.vm(f"global_load_dword v{vP+1}, v{t1}, s[{WS}:{WS+1}]", "tl")
        if c.tlbw >= 2:
            a.vm(f"global_load_dword v{vP+2}, v{t0}, s[{OUT}:{OUT+1}]", "tl")
            a(f"v_min_u32 v{t0}, 2, v{vL}")
            a(f"v_lshlrev_b32 v{t0}, 21, v{t0}")
            a.vm(f"global_load_dword v{vP+3}, v{t0}, s[{W2}:{W2+1}]", "tl")
    tile2(a)
    a(f"v_lshrrev_b32 v{t3}, 4, v{vL}            ; g")
    a(f"s_min_u32 s{sT0}, s{sFT}, 23\ns_lshl_b32 s{sT0}, s{sT0}, 1\ns_and_b32 s{sT1}, s{sW}, 1\ns_add_u32 s{sT0}, s{sT0}, s{sT1}\ns_lshl_b32 s{sT0}, s{sT0}, 6\nv_lshl_add_u32 v{t5}, v{t3}, 3, s{sT0}")
    for k in range(2):
        a.vm(f"global_load_dwordx2 v[{vB1+2*k}:{vB1+2*k+1}], v{t5}, s[{B1}:{B1+1}] offset:{32*k}", "b1")
    a(f"v_and_b32 v{t4}, 15, v{vL}")
    a(f"s_lshl_b32 s{sT0}, s{sST}, 6\ns_lshl_b32 s{sT1}, s{sW}, 4\ns_add_u32 s{sT0}, s{sT0}, s{sT1}\nv_add_u32 v{vO}, s{sT0}, v{t4}           ; s")
    a(f"v_lshlrev_b32 v{t2}, 1, v{vO}")
    a.vm(f"global_load_ushort v{vB2}, v{t2}, s[{B2}:{B2+1}]", "b2")
    a(f"s_lshl_b32 s{sT0}, s2, {c.fhs-2}\ns_add_u32 s{sT0}, s{sT0}, s{sW}\ns_lshl_b32 s{sFO[0]}, s{sT0}, 2")
    a(f"s_load_dword s{sFD[0]}, s[{FB}:{FB+1}], s{sFO[0]}")
    for h, su in enumerate((sUS0, sUS1)):
        a(f"s_lshr_b32 s{sT0}, s{sW}, 1\ns_add_u32 s{sT0}, s{sT0}, s{sS}\ns_add_u32 s{sT0}, s{sT0}, {2*h}\ns_and_b32 s{sT0}, s{sT0}, 3\ns_lshl_b32 s{sT1}, s{sDT}, 2\ns_add_u32 s{su}, s{sT0}, s{sT1}")
        a(f"s_mul_i32 s{sT0}, s{su}, 24\ns_add_u32 s{sT0}, s{sT0}, s{sFT}\ns_lshl_b32 s{sT0}, s{sT0}, {c.fus-2}\ns_and_b32 s{sT1}, s{sW}, 1\ns_add_u32 s{sT0}, s{sT0}, s{sT1}\ns_lshl_b32 s{sT0}, s{sT0}, 2\ns_add_u32 s{sFO[1+h]}, s{sT0}, {FU_OFF-FH_OFF}")
        a(f"s_load_dword s{sFD[1+h]}, s[{FB}:{FB+1}], s{sFO[1+h]}")
    srd(a, RWS, WS, WS_USED)
    a(f"v_lshrrev_b32 v{t3}, 4, v{vL}            ; g")
    a(f"v_and_b32 v{t4}, 15, v{vL}")
    a(f"v_and_b32 v{vHS}, 0x70, v{vL16}")
    a(f"v_lshl_add_u32 v{vHS}, v{t3}, {16+z}, v{vHS}")
    a(f"v_lshrrev_b32 v{t4}, 3, v{t4}")
    a(f"v_lshl_add_u32 v{vHS}, v{t4}, {7+z}, v{vHS}")
    a(f"v_bfe_u32 v{t0}, v{vL}, 2, 2             ; r")
    a(f"v_mul_u32_u24 v{t0}, 1344, v{t0}")
    a(f"v_add_u32 v{t0}, {RED}, v{t0}")
    a(f"v_and_b32 v{t1}, 3, v{vL}                ; c")
    a(f"s_lshl_b32 s{sT0}, s{sW}, 2")
    a(f"v_add_u32 v{t3}, s{sT0}, v{t3}           ; T for m=0")
    for m in range(3):
        a(f"v_mul_u32_u24 v{t2}, 205, v{t3}")
        a(f"v_lshrrev_b32 v{t2}, 10, v{t2}       ; j")
        a(f"v_mul_u32_u24 v{t4}, 5, v{t2}")
        a(f"v_sub_u32 v{t4}, v{t3}, v{t4}        ; t")
        if c.omap:
            a(f"v_lshrrev_b32 v{t5}, 2, v{t4}")
            a(f"v_mul_u32_u24 v{vLT+m}, 896, v{t5}")
            a(f"v_lshlrev_b32 v{t5}, 1, v{t5}")
            a(f"v_sub_u32 v{t5}, 7, v{t5}")
            a(f"v_lshlrev_b32 v{t2}, v{t5}, v{t2}")
            a(f"v_add3_u32 v{t2}, v{t2}, v{t0}, v{vLT+m}")
            a(f"v_lshrrev_b32 v{t5}, 1, v{t4}")
            a(f"v_lshl_add_u32 v{t2}, v{t5}, 6, v{t2}")
        else:
            a(f"v_mul_u32_u24 v{t2}, 160, v{t2}")
            a(f"v_add_u32 v{t2}, v{t2}, v{t0}")
            a(f"v_lshrrev_b32 v{t5}, 1, v{t4}")
            a(f"v_lshl_add_u32 v{t2}, v{t5}, 6, v{t2}")
        a(f"v_and_b32 v{t5}, 1, v{t4}")
        a(f"v_lshl_add_u32 v{t2}, v{t5}, 3, v{t2}")
        a(f"v_lshrrev_b32 v{t4}, 2, v{t4}")
        a(f"v_sub_u32 v{t4}, 4, v{t4}")
        a(f"v_lshlrev_b32 v{t4}, v{t4}, v{t1}")
        a(f"v_add_u32 v{vLT+m}, v{t2}, v{t4}")
        if m < 2:
            a(f"v_add_u32 v{t3}, 16, v{t3}")
    a(f"s_lshl_b32 s{sT3}, s2, {8+z}")
    a(f"s_lshl_b32 s{sT0}, s{sW}, {18+z}")
    a(f"s_add_u32 s{sT3}, s{sT3}, s{sT0}")
    a(f"s_add_u32 s{sT3}, s{sT3}, {H_OFF}")
    for _ in range(c.w1_pre):
        w1.issue()
    stamp("iss")
    XF = RING + 12
    for i in range(5):
        a.wait(f"x{i}")
        if i == 0:
            stamp(1)
        if i == 4:
            stamp("x4")
            for _ in range(c.w1_x):
                w1.issue()
        for k in range(2):
            a(f"v_lshlrev_b32 v{XF+4*i+2*k}, 16, v{XR+2*i+k}")
            a(f"v_and_b32 v{XF+4*i+2*k+1}, 0xffff0000, v{XR+2*i+k}")
        if i == 0:
            a(f"v_pk_add_f32 v[{t0}:{t0+1}], v[{XF}:{XF+1}], v[{XF+2}:{XF+3}]")
        else:
            a(f"v_pk_add_f32 v[{t0}:{t0+1}], v[{t0}:{t0+1}], v[{XF+4*i}:{XF+4*i+1}]")
            a(f"v_pk_add_f32 v[{t0}:{t0+1}], v[{t0}:{t0+1}], v[{XF+4*i+2}:{XF+4*i+3}]")
    def half_sum():
        a(f"v_add_f32 v{t0}, v{t0}, v{t0+1}")
        for r in (8, 4, 2, 1):
            a("s_nop 1")
            a(f"v_add_f32_dpp v{t0}, v{t0}, v{t0} row_ror:{r} row_mask:0xf bank_mask:0xf")
        a(f"v_mov_b32 v{t0+1}, v{t0}")
        a("s_nop 1")
        a(f"v_permlane16_swap_b32 v{t0+1}, v{t0}")
        a(f"v_add_f32 v{t0}, v{t0}, v{t0+1}")
    half_sum()
    a(f"v_mul_f32 v{t0}, {f32(-1.0/D)}, v{t0}    ; -mean")
    a(f"v_mov_b32 v{t0+1}, v{t0}")
    for i in range(10):
        a(f"v_pk_add_f32 v[{XF+2*i}:{XF+2*i+1}], v[{XF+2*i}:{XF+2*i+1}], v[{t0}:{t0+1}]")
    a(f"v_pk_mul_f32 v[{t0}:{t0+1}], v[{XF}:{XF+1}], v[{XF}:{XF+1}]")
    for i in range(1, 10):
        a(f"v_pk_fma_f32 v[{t0}:{t0+1}], v[{XF+2*i}:{XF+2*i+1}], v[{XF+2*i}:{XF+2*i+1}], v[{t0}:{t0+1}]")
    half_sum()
    a(f"v_mov_b32 v{t0+1}, {f32(1e-5)}")
    a(f"v_fmac_f32 v{t0+1}, {f32(1.0/D)}, v{t0}")
    a(f"v_rsq_f32 v{t0}, v{t0+1}")
    a("s_nop 0")
    a(f"v_mov_b32 v{t0+1}, v{t0}")
    for i in range(10):
        a(f"v_pk_mul_f32 v[{XF+2*i}:{XF+2*i+1}], v[{XF+2*i}:{XF+2*i+1}], v[{t0}:{t0+1}]")
    for i in range(5):
        a(f"v_cvt_pk_bf16_f32 v{XR+2*i}, v{XF+4*i}, v{XF+4*i+1}")
        a(f"v_cvt_pk_bf16_f32 v{XR+2*i+1}, v{XF+4*i+2}, v{XF+4*i+3}")
        a(f"ds_write_b64 v3, v[{XR+2*i}:{XR+2*i+1}] offset:{256*i}")
    for _ in range(c.w1_ln):
        w1.issue()
    a("s_waitcnt lgkmcnt(0)")
    a("s_barrier")
    stamp(2)
    HT = RING + 12
    for m in range(3):
        a(f"ds_read_b64_tr_b16 v[{HT+4*m}:{HT+4*m+1}], v{vLT+m}")
        a(f"ds_read_b64_tr_b16 v[{HT+4*m+2}:{HT+4*m+3}], v{vLT+m} offset:{4*1344}")
    a(f"s_add_u32 s{sT0}, s{sT3}, {1<<(20+z)}")
    a(f"s_add_u32 s{sT1}, s{sT3}, {2<<(20+z)}")
    a(f"s_cmp_ge_u32 s{sW}, 2")
    a(f"s_cselect_b32 s{sT1}, 0x40000000, s{sT1}")
    if c.stamp or c.pad:
        a("s_waitcnt lgkmcnt(0)")
    jitter(5)
    if c.fx:
        a(f"s_and_b32 s{sCNT}, s2, 7\ns_lshr_b32 s{sCNT}, {c.fx}, s{sCNT}\ns_and_b32 s{sCNT}, s{sCNT}, 1")
        for so in (sT3, sT0, sT1):
            a(f"s_cselect_b32 s{so}, 0x40000000, s{so}")
    for m, so in enumerate((sT3, sT0, sT1)):
        a(f"s_waitcnt lgkmcnt({4-2*m})")
        a.vm(f"buffer_store_dwordx4 v[{HT+4*m}:{HT+4*m+3}], v{vHS}, s[{RWS}:{RWS+3}], s{so} offen{' sc0' if c.hnt else ''} sc1", "hst")
    stamp("hsto")
    if c.padx != -1:
        a(f"s_or_b32 s{sT0}, s2, s{sW}")
        a("s_cbranch_scc1 L_nopx")
        a(f"v_mov_b32 v{t0}, {ST_OFF}")
        a(f"v_mov_b32 v{t1}, s100")
        a(f"global_store_dword v{t0}, v{t1}, s[{WS}:{WS+1}] sc1")
        a("L_nopx:")
    def setup_common(f):
        f(f"s_mul_i32 s{sED}, s{sTAG}, 1664524")
        f(f"s_add_u32 s{sED}, s{sED}, 1013904223")
        f(f"s_add_u32 s{sTAG}, s{sTAG}, s{sED}")
        f(f"v_mov_b32 v{vTAG}, s{sTAG}")
        for k in range(3):
            f(f"s_sub_u32 s{sFD[k]}, s{sTAG}, s{sFD[k]}")
        f(f"v_lshrrev_b32 v{t0}, 2, v{vL}            ; row = 4g + r")
        f(f"v_lshlrev_b32 v{vT1}, 7, v{t0}")
        f(f"v_bfe_u32 v{t0}, v{vL}, 3, 2")
        f(f"v_lshl_add_u32 v{vT1}, v{t0}, 5, v{vT1}")
        f(f"v_and_b32 v{t0}, 3, v{vL}")
        f(f"v_lshl_add_u32 v{vT1}, v{t0}, 3, v{vT1}")
        f(f"v_add_u32 v{vT1}, s{sLDS}, v{vT1}")
        f(f"s_lshl_b32 s{sT0}, s{sW}, 5\nv_xor_b32 v{vT2}, s{sT0}, v{vT1}")
        f(f"s_and_b32 s{sT0}, s{sW}, 1\ns_lshl_b32 s{sT0}, s{sT0}, 6\nv_xor_b32 v{vT1}, s{sT0}, v{vT1}")
        for b in range(1, 4):
            f(f"v_xor_b32 v{vT1+b}, {b*32}, v{vT1}")
    def setup_g2(f):
        f(f"v_lshrrev_b32 v{t3}, 4, v{vL}")
        f(f"v_mul_u32_u24 v{vO}, 1280, v{vO}")
        f(f"v_lshl_add_u32 v{vO+1}, v{t3}, 3, v{vO}")
        f(f"v_lshl_add_u32 v{vO}, v{t3}, 4, v{vO}")
        for b in range(1, 4):
            f(f"v_xor_b32 v{vT2+b}, {b*32}, v{vT2}")
        for j in range(1, 4):
            f(f"v_add_u32 v{vD2+j}, {j*(8*4096-1024)}, v{vD2}")
        f(f"v_and_b32 v{vU}, 0x70, v{vL16}")
        f(f"v_lshrrev_b32 v{t0}, 3, v{vL}")
        f(f"v_lshl_add_u32 v{vHL}, v{t0}, {7+z}, v{vU}")
        f(f"v_lshl_add_u32 v{vU}, v{t0}, {7+zu}, v{vU}")
        for t in range(1, 5):
            f(f"v_add_u32 v{vU+t}, {(t*49152) << zu}, v{vU}")
        for k, (lo, cnt) in enumerate(((0, 24), (24, 36))):
            f(f"v_min_u32 v{t0}, {cnt-1}, v{vL}")
            f(f"v_mul_u32_u24 v{t1}, 43, v{t0}")
            f(f"v_lshrrev_b32 v{t1}, 9, v{t1}            ; n/12")
            f(f"v_mul_u32_u24 v{t1}, 18, v{t1}")
            f(f"v_lshrrev_b32 v{t2}, 1, v{t0}")
            f(f"s_mul_i32 s{sT0}, s{sJ}, 120\ns_mul_i32 s{sT1}, s{sW}, 6\ns_add_u32 s{sT0}, s{sT0}, s{sT1}\nv_add3_u32 v{t1}, v{t1}, v{t2}, s{sT0}")
            f(f"v_and_b32 v{t0}, 1, v{t0}")
            f(f"v_lshlrev_b32 v{t0}, 2, v{t0}")
            f(f"v_lshl_add_u32 v{vFU+k}, v{t1}, {c.fus}, v{t0}")
            f(f"v_add_u32 v{vFU+k}, {FU_OFF + ((lo // 12 * 24) << c.fus)}, v{vFU+k}")
        srd(f, RW2, W2, S * F * 2)
        srd(f, ROUT, OUT, S * D * 2)
    def setup_g1(f):
        f(f"v_lshlrev_b32 v{vFH}, {c.fhs}, v0")
        f(f"v_add_u32 v{vFH}, {FH_OFF}, v{vFH}")
        for p in range(4):
            f(f"s_lshr_b32 s{sT0}, s{sW}, 1\ns_xor_b32 s{sT0}, s{sT0}, {(p&1)^1}\ns_add_u32 s{sT0}, s{sT0}, s{sS}\ns_add_u32 s{sT0}, s{sT0}, {p&2}\ns_and_b32 s{sT0}, s{sT0}, 3\ns_lshl_b32 s{sT1}, s{sT0}, {16+z}\nv_add_u32 v{vH+p}, s{sT1}, v{vHL}")
        for h, su in enumerate((sUS0, sUS1)):
            f(f"s_mul_i32 s{su}, s{su}, 48\ns_lshl_b32 s{sT0}, s{sFT}, 1\ns_add_u32 s{su}, s{su}, s{sT0}\ns_and_b32 s{sT1}, s{sW}, 1\ns_add_u32 s{su}, s{su}, s{sT1}\ns_lshl_b32 s{su}, s{su}, {10+zu}\ns_add_u32 s{su}, s{su}, {U_OFF}")
        f(f"s_lshl_b32 s{sT3}, {0 if c.fake & 1 else 's%d' % sDT}, {18+z}\ns_lshl_b32 s{sT1}, s{sW}, {14+z}\ns_add_u32 s{sT3}, s{sT3}, s{sT1}\ns_add_u32 s{sT3}, s{sT3}, {H_OFF}")
        for i in range(NS1):
            f(f"s_add_u32 s{sT1}, s{sROT1}, {i}\ns_and_b32 s{sT1}, s{sT1}, 15\ns_lshl_b32 s{sT1}, s{sT1}, {10+z}\ns_add_u32 s{sK+i}, s{sT1}, s{sT3}")
        for k in range(4):
            f(f"s_xor_b32 s{sT0}, s{sW}, {k}\ns_mul_i32 s{sT0}, s{sT0}, 12288\ns_add_u32 s{sT0}, s{sT0}, {RED}\nv_add_u32 v{vR+k}, s{sT0}, v{vL16}")
        c1 = -2.0 * math.log2(math.e) * math.sqrt(2.0 / math.pi)
        f(f"v_mov_b32 v{vC1}, {f32(c1)}")
        f(f"v_mov_b32 v{vC1+1}, {f32(c1*0.044715)}")
        f(lambda: a.wait("b1"))
        for p in (1, 3):
            for k in range(4):
                f(f"v_lshlrev_b32 v{ACC+16*p+2*k}, 16, v{vB1+k}")
                f(f"v_and_b32 v{ACC+16*p+2*k+1}, 0xffff0000, v{vB1+k}")
    fl = Fill(a)
    if c.hearly:
        a("s_cmp_ge_u32 s2, 240")
        a("s_cbranch_scc1 L_idle")
    setup_common(fl)
    fl(lambda: setattr(w1, "can_read", True))
    setup_g2(fl)
    for _ in range(c.w1_mid):
        w1.step(fl, older_than="hst")
    fl.flush()
    a.wait("hst")
    stamp(3)
    flag_add(0)
    if not c.hearly:
        a("s_cmp_ge_u32 s2, 240")
        a("s_cbranch_scc1 L_idle")
    setup_g1(fl)
    fl.emit(2)
    sE, sGRP, sM0 = 6, 9, 12
    def w2offs(f):
        f(f"s_mul_i32 s{sT0}, s{sW}, {12*32*4096}\ns_lshl_b32 s{sT1}, s{sST}, 7\ns_add_u32 s{sT0}, s{sT0}, s{sT1}\ns_add_u32 s{sT1}, s{sT0}, {12*32*4096}\n"
          f"s_mul_i32 s{sE}, s{sROT2}, {32*4096}\ns_add_u32 s{sE}, s{sE}, s{sT0}\n"
          + "\n".join(f"s_add_u32 s{sE+k}, s{sE+k-1}, {32*4096}\ns_cmp_eq_u32 s{sE+k}, s{sT1}\ns_cselect_b32 s{sE+k}, s{sT0}, s{sE+k}" for k in range(1, c.w2e + 1)))
    if c.w2e:
        w2offs(a)
        a(f"s_lshr_b32 s{sGRP}, s2, {c.esh}")
        a(f"s_and_b32 s{sGRP}, s{sGRP}, {c.egrp-1}")
    while w1.left() > c.ov1:
        if c.wbar and (w1.left() - c.wbo) % c.wbar == 0:
            a("s_barrier")
        if w1.left() == c.pe1 + c.ov1:
            a.vm(poll_load("h"), "hpoll")
        if c.w2e and w1.n >= c.e0 and (w1.n - c.e0) % c.estep == 0 and (w1.n - c.e0) // c.estep < c.egrp:
            g = (w1.n - c.e0) // c.estep
            a(f"s_cmp_lg_u32 s{sGRP}, {g}")
            a(f"s_cbranch_scc1 L_e{g}")
            a(f"s_mov_b32 s{sM0}, m0")
            for k in range(c.w2e):
                a(f"s_add_u32 m0, s{sLDS}, {(WSLOT-c.w2e+k)*4096}")
                a("s_nop 0")
                for j in range(4):
                    a(f"buffer_load_dwordx4 v{vD2+j}, s[{RW2}:{RW2+3}], s{sE+k} offen offset:{1024*j} lds")
            a(f"s_mov_b32 m0, s{sM0}")
            a("s_nop 0")
            a(f"L_e{g}:")
        w1.step(fl)
    assert not c.w2e or c.e0 + (c.egrp - 1) * c.estep < 64
    if c.pe1 == 0:
        a.vm(poll_load("h"), "hpoll")
    fl.flush()
    a.wait("hpoll")
    stamp(4)
    spin("h")
    stamp(5)
    N1 = 64
    def hissue(n):
        r = RING + 4 * (n % NRING)
        a.vm(f"buffer_load_dwordx4 v[{r}:{r+3}], v{vH+n//16}, s[{RWS}:{RWS+3}], s{sK+n%16} offen sc1", f"h{n}")
    def pace():
        if c.thr and len(a.q) >= c.thr:
            tg = a.q[-c.thr]
            if tg.startswith("w"):
                a.wait(tg)
    hst_ = [c.d0 if c.ov1 else (c.hi or c.hd)]
    for n in range(hst_[0]):
        pace()
        hissue(n)
        w1.reads(2)
    if not c.ov1:
        w1.drain()
    def w2setup(done):
        a(f"s_mul_i32 s{sWO0}, s{sW}, {12*32*4096}")
        a(f"s_lshl_b32 s{sT0}, s{sST}, 7")
        a(f"s_add_u32 s{sWO0}, s{sWO0}, s{sT0}")
        a(f"s_add_u32 s{sWOE}, s{sWO0}, {12*32*4096}")
        if c.nh:
            a(f"s_mov_b32 m0, s{sLDS}")
            a(step_off(sWO, sWO0, 0, 17))
        elif done:
            a(f"s_mov_b32 m0, s{sLDS}")
            a(f"s_mov_b32 s{sWO}, s{sE+done}")
        else:
            a(f"s_mul_i32 s{sT0}, s{sROT2}, {32*4096}")
            a(f"s_add_u32 m0, s{sLDS}, {((WSLOT-c.w2e)%WSLOT)*4096}")
            a(f"s_add_u32 s{sWO}, s{sWO0}, s{sT0}")
    if not c.ov1:
        w2setup(c.w2e)
        a.dwait()
    stamp("g1s")
    w2 = W(2)
    w2.n = 4 * c.w2e
    w2.can_read = False
    def plan(m, st, w, issue, total, depth, tail):
        ops = []
        nw = min(c.wpp, w.left())
        want = min(total, 2 * m + 2 + (c.d0 if nw else depth))
        na = min(want - st[0], 2 if nw else c.ramp)
        acts = [lambda n=st[0] + k: issue(n) for k in range(na)]
        st[0] += na
        ws_ = [w.issue] * nw
        while acts or ws_:
            for _ in range((c.wpp + 1) // 2):
                if ws_:
                    ops.append(ws_.pop(0))
            if acts:
                ops.append(acts.pop(0))
        if not ops and st[0] == total:
            ops = tail()
        gaps = {0: [], 1: [1], 2: [c.lg0, c.lg1], 3: [1, 3, 5], 4: [0, 2, 4, 6], 5: [0, 1, 3, 4, 6], 6: [0, 1, 2, 4, 5, 6], 7: list(range(7)), 8: list(range(8))}[len(ops)]
        return dict(zip(gaps, ops))
    def need_steps(w, upto):
        if w.rd < 8 * (upto + 1):
            a.wait(w.tag(4 * upto + 3))
            w.reads(8 * (upto + 1) - w.rd)
        for i in range(upto + 1):
            a.dwait(f"r{w.kind}_{i}")
    def spread(nf):
        if c.lg0 >= 0:
            free = [g for g in range(8) if g not in (c.lg0, c.lg1)]
            free.sort(key=lambda g: g == 7)
            per = [0] * 8
            for x in range(nf):
                per[free[x % len(free)]] += 1
            return per
        if c.gap2:
            return [0 if g % 2 == 0 else nf // 4 + (1 if g // 2 < nf % 4 else 0) for g in range(8)]
        return [nf // 8 + (1 if g < nf % 8 else 0) for g in range(8)]
    def red_write(f, p, aa):
        cw = ACC + 16 * p + 4 * aa
        slot = aa if p % 2 == 0 else 2 + aa
        if p < 3 and c.w32 >> p & 1:
            for r in range(4):
                f(costly(lambda r=r: a.ds(f"ds_write_b32 v{vR}, v{cw+r} offset:{(p//2)*6144+slot*1024+4*r}", f"rw{p}"), 16))
                if r % 2 == 1:
                    f.delay(1)
            return
        f(costly(lambda: a.ds(f"ds_write_b128 v{vR}, v[{cw}:{cw+3}] offset:{(p//2)*6144+slot*1024}", f"rw{p}"), 16))
        if c.cst and p < 3:
            f.delay(c.wsk)
    def red_finish(f, h):
        P0, P1, T = ACC + 32 * h, ACC + 32 * h + 16, RD + 12 * h
        for x, (k, slot, dst) in enumerate(((2, 0, P0), (3, 2, P0 + 8), (1, 4, P1 + 8), (2, 1, P0 + 4), (3, 3, P0 + 12), (1, 5, P1 + 12))):
            f(lambda k=k, slot=slot, dst=dst, x=x: a.ds(f"ds_read_b128 v[{dst}:{dst+3}], v{vR+k} offset:{h*6144+slot*1024}", f"rr{h}_{x}"))
        if c.cst and h == 0:
            f.delay(c.dly)
        if h == 1 and c.pk1:
            def pk(op, d, *src):
                f(f"v_pk_{op}_f32 v[{d}:{d+1}], " + ", ".join(x if isinstance(x, str) else f"v[{x}:{x+1}]" for x in src))
            for half in range(2):
                f(lambda half=half: a.dwait(f"rr{h}_{3*half+2}"))
                for r in (4 * half, 4 * half + 2):
                    pk("add", P0 + r, P0 + r, P0 + 8 + r)
                    pk("add", P1 + r, P1 + r, P1 + 8 + r)
                for r in (4 * half, 4 * half + 2):
                    pk("add", P1 + r, P1 + r, P0 + r)
            for r in range(0, 8, 2):
                pk("mul", T + r, P1 + r, P1 + r)
            for r in range(0, 8, 2):
                f(f"v_pk_fma_f32 v[{T+r}:{T+r+1}], v[{T+r}:{T+r+1}], v[{vC1}:{vC1+1}], v[{vC1}:{vC1+1}] op_sel:[0,1,0] op_sel_hi:[1,1,0]")
            for r in range(0, 8, 2):
                pk("mul", T + r, T + r, P1 + r)
            for r in range(8):
                f(f"v_exp_f32 v{T+r}, v{T+r}")
            for r in range(0, 8, 2):
                f(f"v_pk_add_f32 v[{T+r}:{T+r+1}], v[{T+r}:{T+r+1}], 1.0 op_sel_hi:[1,0]")
            for r in range(8):
                f(f"v_rcp_f32 v{T+r}, v{T+r}")
            for r in range(0, 8, 2):
                pk("mul", T + r, T + r, P1 + r)
            for r in range(4):
                f(f"v_cvt_pk_bf16_f32 v{T+8+r}, v{T+2*r}, v{T+2*r+1}")
            f(lambda: a.vm(f"buffer_store_dwordx4 v[{T+8}:{T+11}], v{vU}, s[{RWS}:{RWS+3}], s{sUS1} offen sc1", "ust1"))
            return
        for half in range(2):
            f(lambda half=half: a.dwait(f"rr{h}_{3*half+2}"))
            for r in range(4 * half, 4 * half + 4):
                f(f"v_add_f32 v{P0+r}, v{P0+r}, v{P0+8+r}")
                f(f"v_add_f32 v{P1+r}, v{P1+r}, v{P1+8+r}")
            for r in range(4 * half, 4 * half + 4):
                f(f"v_add_f32 v{P1+r}, v{P1+r}, v{P0+r}")
        for r in range(8):
            f(f"v_mul_f32 v{T+r}, v{P1+r}, v{P1+r}")
        for r in range(8):
            f(f"v_fma_f32 v{T+r}, v{T+r}, v{vC1+1}, v{vC1}")
        for r in range(8):
            f(f"v_mul_f32 v{T+r}, v{T+r}, v{P1+r}")
        for r in range(8):
            f(f"v_exp_f32 v{T+r}, v{T+r}")
        for r in range(8):
            f(f"v_add_f32 v{T+r}, 1.0, v{T+r}")
        for r in range(8):
            f(f"v_rcp_f32 v{T+r}, v{T+r}")
        for r in range(8):
            f(f"v_mul_f32 v{T+r}, v{T+r}, v{P1+r}")
        for r in range(4):
            f(f"v_cvt_pk_bf16_f32 v{T+8+r}, v{T+2*r}, v{T+2*r+1}")
        su = sUS0 if h == 0 else sUS1
        if c.jit:
            f(lambda: jitter(9 + 2 * h))
        f(lambda: a.vm(f"buffer_store_dwordx4 v[{T+8}:{T+11}], v{vU}, s[{RWS}:{RWS+3}], s{su} offen sc1", f"ust{h}"))
    deferred1 = []
    for m in range(N1 // 2):
        p, i = m // 8, 2 * (m % 8)
        stamp(f"g1_{m}")
        if hst_[0] == N1 and w2.n == 4 * c.w2e:
            stamp("t0")
        ops = plan(m, hst_, w1, hissue, N1, c.hd, lambda: [w2.issue] * c.w2_tail)
        if c.ov1 and m == 8:
            assert w1.left() == 0 and w1.rd == 8 * NS1
            w2setup(c.w2e)
        if m % 8 == 1 and p >= 1:
            rest, fl.g = (fl.g, []) if c.cst == 2 else ([], fl.g)
            for aa in (range(4) if p % 2 == 1 else (2, 3)):
                red_write(fl, p - 1, aa)
            fl.g += rest
        a.wait(f"h{2*m+1}")
        if m < 8:
            need_steps(w1, 2 * m + 1)
        if c.al8:
            a(".p2align 3")
        per = spread(c.g1fill)
        order = (2, 3, 0, 1) if m == N1 // 2 - 1 else (0, 1, 2, 3)
        for ti, t in enumerate(order):
            for e0 in range(2):
                e = e0 ^ (ti & 1) if c.serp else e0
                rb = RING + 4 * ((2 * m + e) % NRING)
                cc = ACC + 16 * p + 4 * t
                src = "0" if (i == 0 and e0 == 0 and not (p % 2 == 1 and t < 2)) else f"v[{cc}:{cc+3}]"
                ra = 16 * (i + e) + 4 * t
                ins = f"v_mfma_f32_16x16x32_bf16 v[{cc}:{cc+3}], a[{ra}:{ra+3}], v[{rb}:{rb+3}], {src}"
                if t < 2 and m >= N1 // 2 - c.defer1:
                    deferred1.append(ins)
                elif not (c.fake & 4):
                    a(ins)
                if 2 * ti + e0 in ops:
                    ops[2 * ti + e0]()
                if m < 8:
                    w1.reads(2)
                if c.cst:
                    fl.gap(0 if 2 * ti + e0 in ops else c.gb1)
                else:
                    fl.emit(per[2 * ti + e0])
        if c.gbar and m % c.gbar == c.gbar - 1 and m != c.g1bar and m < 28:
            a("s_barrier")
        if m == c.g1bar:
            fl.g = [x for x in fl.g if not getattr(x, "skip", 0)]
            assert not fl.g
            a.dwait()
            if not (c.fake & 16):
                a("s_barrier")
            red_finish(fl, 0)
            if c.fake & 8:
                fl.g = [x if callable(x) else (lambda: None) for x in fl.g]
    fl.flush()
    stamp(6)
    w2.can_read = True
    if c.defer1:
        for _ in range(6):
            a(deferred1.pop(0) if deferred1 else "s_nop 0")
        red_write(fl, 3, 2)
        fl.flush()
        a(deferred1.pop(0) if deferred1 else "s_nop 0")
        red_write(fl, 3, 3)
        fl.flush()
        for x in deferred1:
            a(x)
    else:
        a("s_nop 3")
        red_write(fl, 3, 2)
        red_write(fl, 3, 3)
        fl.flush()
    w2.issue()
    a.dwait()
    a("s_barrier")
    red_finish(fl, 1)
    fl.emit(6)
    k = 0
    flagged = False
    while fl.g:
        if k == c.fe_pos:
            a.wait("ust0")
            stamp("fe")
            flag_add(1)
            flagged = True
        if k < c.w2_un:
            w2.step(fl, throttle=False)
        else:
            fl.emit(c.fillk)
        k += 1
    stamp(7)
    if not flagged:
        a.wait("ust0")
        stamp("fe")
        flag_add(1)
    if c.ep:
        a.vm(poll_load("a"), "apoll0")
    for _ in range(c.w2_mid):
        w2.step(None, older_than="ust1")
    a.wait("ust1")
    flag_add(2)
    if c.eat:
        a(f"s_or_b32 s{sT0}, s2, s{sW}")
        a("s_cbranch_scc1 L_join")
        a(f"s_atomic_add s{sED}, s[{FB}:{FB+1}], {EP_OFF-FH_OFF}")
    a("L_join:")
    join_n, join_rd = w2.n, w2.rd
    stamp(8)
    fl(f"s_mul_i32 s{sT3}, {0 if c.fake & 2 else 's%d' % sJ}, {(5*49152) << zu}\ns_mul_i32 s{sT1}, s{sW}, {12288 << zu}\ns_add_u32 s{sT3}, s{sT3}, s{sT1}\ns_add_u32 s{sT3}, s{sT3}, {U_OFF}")
    if c.nh:
        for i in range(NS2):
            fl(step_off(sK + i, sT3, i, 10 + zu))
    else:
        fl(f"s_add_u32 s{sUS1}, s{sT3}, {12288 << zu}\ns_lshl_b32 s{sK}, s{sROT2}, {10+zu}\ns_add_u32 s{sK}, s{sK}, s{sT3}")
        for i in range(1, NS2):
            fl(f"s_add_u32 s{sK+i}, s{sK+i-1}, {1024 << zu}\ns_cmp_eq_u32 s{sK+i}, s{sUS1}\ns_cselect_b32 s{sK+i}, s{sT3}, s{sK+i}")
    fl(f"v_lshlrev_b32 v{vB2}, 16, v{vB2}")
    for t in range(5):
        for r in range(4):
            fl(f"v_mov_b32 v{ACC+16*t+r}, v{vB2}")
    for k in range(4):
        fl(f"s_xor_b32 s{sT0}, s{sW}, {k}\ns_mul_i32 s{sT0}, s{sT0}, {WSLOT*4096}\nv_add_u32 v{vR+k}, s{sT0}, v{vL16}")
    if c.omap:
        fl(f"s_lshl_b32 s{sUS0}, s{sJ}, 7\ns_lshl_b32 s{sT3}, s{sJ}, 5\ns_add_u32 s{sT3}, s{sT3}, 1024")
    else:
        fl(f"s_mul_i32 s{sUS0}, s{sJ}, 160\ns_add_u32 s{sT3}, s{sUS0}, 128")
    assert w2.left() >= c.pe2 + c.ov2
    while w2.left() > c.ov2:
        if c.wbar and (w2.left() - c.wbo) % c.wbar == 0:
            a("s_barrier")
        if w2.left() == c.pe2 + c.ov2 + 1 and c.ep:
            assert not a.pending("apoll0")
            poll_test("a")
        if w2.left() == c.pe2 + c.ov2:
            if c.ep:
                a("s_cbranch_vccz L_noa")
                a(poll_load("a"))
                a("L_noa:")
            else:
                a.vm(poll_load("a"), "apoll")
        w2.step(fl)
    if c.pe2 == 0:
        a.vm(poll_load("a"), "apoll")
    fl.flush()
    if c.ep:
        a(f"s_waitcnt vmcnt({c.pe2})")
        a.q = a.q[-c.pe2:]
    a.wait("apoll")
    stamp(9)
    spin("a")
    stamp(10)
    N2 = 60
    def uissue(n):
        if n == 24 - c.pbl:
            a.vm(poll_load("b"), "bpoll")
        if n == 23 and c.pbo:
            a.wait("bpoll")
            poll_test("b")
        if n == 24:
            if c.pbo:
                a("s_cbranch_vccnz L_pb_spin")
                a("L_pb_ok:")
            else:
                a.wait("bpoll")
                spin("b")
            stamp("pb")
        r = RING + 4 * (n % NRING)
        a.vm(f"buffer_load_dwordx4 v[{r}:{r+3}], v{vU+n//12}, s[{RWS}:{RWS+3}], s{sK+n%12} offen sc1", f"u{n}")
    ust_ = [c.d0 if c.ov2 else (c.hi or c.ud)]
    for n in range(ust_[0]):
        pace()
        uissue(n)
        w2.reads(2)
    if not c.ov2:
        w2.drain()
        a.dwait()
    stamp("g2s")
    def fin_reads(f, ts):
        for t in ts:
            for k in range(1, 4):
                cr = ACC + 16 * t + 4 * k
                f(lambda t=t, k=k, cr=cr: a.ds(f"ds_read_b128 v[{cr}:{cr+3}], v{vR+k} offset:{(k-1)*5120+t*1024}", f"fr{t}"))
    def fin(f, t):
        f(lambda: a.dwait(f"fr{t}"))
        cc = ACC + 16 * t
        if t == 4 and c.pkfin:
            for r in (0, 2):
                f(f"v_pk_add_f32 v[{cc+r}:{cc+r+1}], v[{cc+r}:{cc+r+1}], v[{cc+4+r}:{cc+5+r}]")
                f(f"v_pk_add_f32 v[{cc+8+r}:{cc+9+r}], v[{cc+8+r}:{cc+9+r}], v[{cc+12+r}:{cc+13+r}]")
            for r in (0, 2):
                f(f"v_pk_add_f32 v[{cc+r}:{cc+r+1}], v[{cc+r}:{cc+r+1}], v[{cc+8+r}:{cc+9+r}]")
            for r in (0, 2):
                f(f"v_cvt_pk_bf16_f32 v{RD+2*t+r//2}, v{cc+r}, v{cc+r+1}")
            return
        for r in range(4):
            f(f"v_add_f32 v{cc+r}, v{cc+r}, v{cc+4+r}")
            f(f"v_add_f32 v{cc+8+r}, v{cc+8+r}, v{cc+12+r}")
        for r in range(4):
            f(f"v_add_f32 v{cc+r}, v{cc+r}, v{cc+8+r}")
        for r in (0, 2):
            f(f"v_cvt_pk_bf16_f32 v{RD+2*t+r//2}, v{cc+r}, v{cc+r+1}")
    def ostore(pp):
        a.vm(f"buffer_store_dwordx4 v[{RD+4*pp}:{RD+4*pp+3}], v{vO}, s[{ROUT}:{ROUT+3}], s{sUS0} offen offset:{64*pp}{OP[c.opol] if c.osc >> pp & 1 else ''}", "o")
    stored0 = [False]
    deferred = []
    for m in range(N2 // 2):
        t, i = m // 6, 2 * (m % 6)
        stamp(f"g2_{m}")
        def tail2():
            if stored0[0] or c.o0b:
                return []
            stored0[0] = True
            return [lambda: ostore(0)]
        ops = plan(m, ust_, w2, uissue, N2, c.ud, tail2)
        if m % 6 == 1 and t >= 1:
            rest, fl.g = fl.g, []
            for b in range(1, 4):
                cw = ACC + 16 * (t - 1) + 4 * b
                if c.w32 & 8 and t < 4:
                    for r in range(4):
                        fl(costly(lambda cw=cw, b=b, t=t, r=r: a.ds(f"ds_write_b32 v{vR}, v{cw+r} offset:{(b-1)*5120+(t-1)*1024+4*r}", "fw"), 16))
                        if r % 2 == 1:
                            fl.delay(1)
                    continue
                fl(costly(lambda cw=cw, b=b, t=t: a.ds(f"ds_write_b128 v{vR}, v[{cw}:{cw+3}] offset:{(b-1)*5120+(t-1)*1024}", "fw"), 16))
                if c.cst:
                    fl.delay(c.wsk)
            fl.g += rest
        a.wait(f"u{2*m+1}")
        if m < 6:
            need_steps(w2, 2 * m + 1)
        if c.al8:
            a(".p2align 3")
        per = spread(c.g2l if m > c.g2b1 else c.g2f)
        for bi, b in enumerate((1, 2, 3, 0)):
            for e0 in range(2):
                e = e0 ^ (bi & 1) if c.serp else e0
                ra = RING + 4 * ((2 * m + e) % NRING)
                cc = ACC + 16 * t + 4 * b
                src = "0" if (i == 0 and e0 == 0 and b) else f"v[{cc}:{cc+3}]"
                rb = 16 * (i + e) + 4 * b
                ins = f"v_mfma_f32_16x16x32_bf16 v[{cc}:{cc+3}], v[{ra}:{ra+3}], a[{rb}:{rb+3}], {src}"
                if b == 0 and m >= N2 // 2 - c.defer:
                    deferred.append(ins)
                elif not (c.fake & 4):
                    a(ins)
                if 2 * bi + e0 in ops:
                    ops[2 * bi + e0]()
                if m < 6:
                    w2.reads(2)
                if c.cst:
                    gb = c.gb3 if m > c.g2b1 else c.gb2
                    if not (b == 0 and m >= N2 // 2 - c.defer):
                        fl.gap(0 if 2 * bi + e0 in ops else gb)
                else:
                    fl.emit(per[2 * bi + e0])
        if c.gbar and m % c.gbar == c.gbar - 1 and m not in (c.g2b0, c.g2b1) and m < 25:
            a("s_barrier")
        if m in (c.g2b0, c.g2b1):
            fl.g = [x for x in fl.g if not getattr(x, "skip", 0)]
            assert not fl.g
            a.dwait()
            if not (c.fake & 16):
                a("s_barrier")
            nfirst = 3 if c.g2b0 >= 19 else 2
            ts = tuple(range(nfirst)) if m == c.g2b0 else tuple(range(nfirst, 4))
            fin_reads(fl, ts)
            if m == c.g2b1 and c.o0b:
                assert ust_[0] == N2
                fl(lambda: ostore(0))
            if c.cst:
                fl.delay(c.dly if m == c.g2b0 else 2)
            for tt in ts:
                fin(fl, tt)
            if c.fake & 8:
                fl.g = [x if callable(x) else (lambda: None) for x in fl.g]
            if m == c.g2b1:
                fl(lambda: ostore(1))
            elif c.o0e:
                fl(lambda: ostore(0))
                stored0[0] = True
    stamp(11)
    def pad_states(k):
        while k > 0 and deferred:
            a(deferred.pop(0)); k -= 1
        if k > 0:
            a(f"s_nop {k-1}")
    pad_states(4 if c.defer else 2)
    for b in range(1, 4):
        cw = ACC + 64 + 4 * b
        if b > 1:
            pad_states(1)
        a.ds(f"ds_write_b128 v{vR}, v[{cw}:{cw+3}] offset:{(b-1)*5120+4096}")
    late = len(deferred)
    pad_states(late)
    fl.flush()
    a.dwait()
    a("s_barrier")
    stamp("e2")
    fin_reads(fl, (4,))
    fl.flush()
    if c.stamp:
        a.dwait()
    if c.defer:
        a("s_nop 1")
    fin(fl, 4)
    fl.flush()
    a(f"buffer_store_dwordx2 v[{RD+8}:{RD+9}], v{vO+1}, s[{ROUT}:{ROUT+3}], s{sT3} offen{OP[c.opol] if c.osc & 4 else ''}")
    if not c.eat:
        a(f"s_or_b32 s{sT0}, s2, s{sW}")
        a("s_cbranch_scc1 L_noepoch")
        a(f"v_mov_b32 v{t5}, {EP_OFF}")
        flag_store(t5, None, "")
        a("L_noepoch:")
    if c.stamp:
        stamp("e3")
        a("s_waitcnt vmcnt(0)")
        stamp(12)
        a(f"s_lshl_b32 s{sT0}, s2, 3")
        a(f"s_add_u32 s{sT0}, s{sT0}, s{sW}")
        a(f"s_lshl_b32 s{sT0}, s{sT0}, 6")
        a(f"s_add_u32 s{sT0}, s{sT0}, {ST_OFF}")
        a(f"v_mov_b32 v{t0}, s{sT0}")
        a("s_waitcnt lgkmcnt(0)")
        for i in range(13):
            a(f"v_mov_b32 v{t1}, s{STB+2*i}")
            a(f"global_store_dword v{t0}, v{t1}, s[{WS}:{WS+1}] offset:{4*i}")
    if c.pad:
        a("s_waitcnt vmcnt(0)")
        stamp("end")
        a("s_waitcnt lgkmcnt(0)")
        a("s_sub_u32 s64, s98, s100")
        if c.padx == -2:
            a(f"v_mov_b32 v{t0}, {ST_OFF}")
            a(f"global_load_dword v{t1}, v{t0}, s[{WS}:{WS+1}] sc1")
            a("s_waitcnt vmcnt(0)")
            a(f"v_readfirstlane_b32 s100, v{t1}")
            a("s_nop 3")
            a("s_sub_u32 s64, s98, s100")
            a("s_min_u32 s64, s64, 4000")
        if c.padx >= 0:
            a(f"s_cmp_lg_u32 s2, {c.padx}")
            a("s_cbranch_scc1 L_end")
            a(f"v_mov_b32 v{t0}, {ST_OFF}")
            a(f"global_load_dword v{t1}, v{t0}, s[{WS}:{WS+1}] sc1")
            a("s_waitcnt vmcnt(0)")
            a(f"v_readfirstlane_b32 s64, v{t1}")
            a("s_nop 3")
            a("s_sub_u32 s64, s100, s64")
            a("s_add_u32 s64, s64, 100")
            a("s_min_u32 s64, s64, 1000")
        a(f"s_mul_i32 s64, s64, {c.mult}")
        a("s_add_u32 s64, s64, 10000")
        a(f"s_mov_b32 s{sCNT}, 0")
        a("L_pad:")
        a("s_memrealtime s[66:67]")
        a("s_waitcnt lgkmcnt(0)")
        a(f"s_add_u32 s{sCNT}, s{sCNT}, 1")
        a(f"s_cmp_ge_u32 s{sCNT}, 200000\ns_cbranch_scc1 L_end")
        a("s_sub_u32 s66, s66, s100")
        a("s_cmp_lt_u32 s66, s64\ns_cbranch_scc1 L_pad")
    a("s_endpgm")
    if c.pbo:
        a("L_pb_spin:")
        a(f"s_mov_b32 s{sCNT}, 0")
        a("L_pb_l:")
        a(poll_load("b"))
        a(f"s_add_u32 s{sCNT}, s{sCNT}, 1")
        a(f"s_cmp_ge_u32 s{sCNT}, {SPIN_CAP}")
        a("s_cbranch_scc1 L_pb_ok")
        a("s_waitcnt vmcnt(0)")
        poll_test("b")
        a("s_cbranch_vccnz L_pb_l")
        a("s_branch L_pb_ok")
    a("L_idle:")
    if c.hearly:
        srd(a, RW2, W2, S * F * 2)
    else:
        a("s_waitcnt vmcnt(0) lgkmcnt(0)")
    a.q, a.lq = [], []
    if c.pad and c.padat in ("4", "5", "6", "7", "t0", "fe", "g1s"):
        stamp(c.padat)
    if c.stamp:
        for nm in SETS[c.sset]:
            if nm in (4, 5, 6, 7, "t0", "fe", "g1s") or str(nm).startswith(("w1_", "g1_", "w2_22")):
                stamp(nm)
    if c.nh:
        a(f"s_bfe_u32 s{sT1}, s2, 0x10003")
        if c.nh == 4:
            a(f"s_mul_i32 s{sROT2}, s{sT1}, {(12-c.nh)//2}")
        a(f"s_lshl_b32 s{sT1}, s{sT1}, 16")
        a(f"s_mul_i32 s{sT0}, s{sW}, {12*32*4096}")
        a(f"s_add_u32 s{sT0}, s{sT0}, s{sT1}")
        a(f"s_lshr_b32 s{sT1}, s{sST}, 2")
        a(f"s_lshl_b32 s{sT1}, s{sT1}, 9")
        a(f"s_add_u32 s{sT3}, s{sT0}, s{sT1}")
        sh = c.hsec + 1
        a(f"v_lshrrev_b32 v{vH}, {sh}, v{vL}")
        a(f"v_lshlrev_b32 v{vH}, 12, v{vH}")
        a(f"v_and_b32 v{t1}, {(1<<sh)-1}, v{vL}")
        a(f"v_lshl_add_u32 v{vH}, v{t1}, {9-sh}, v{vH}")
        for r in range(c.nh * c.hsec):
            a(f"buffer_load_dword v{vH+1}, v{vH}, s[{RW2}:{RW2+3}], s{sT3} offen")
            inc = 32 if c.hsec == 1 else (8 if r % 2 == 0 else 24)
            a(f"s_add_u32 s{sT3}, s{sT3}, {inc*4096}")
            if c.hearly and r == 0:
                setup_common(a)
                setup_g2(a)
                a("s_waitcnt vmcnt(1)")
                stamp(3)
                flag_add(0)
            a(f"s_waitcnt vmcnt({c.hq-1})")
    elif c.helper:
        a(f"s_bfe_u32 s{sT1}, s2, 0x10003")
        a(f"s_mul_i32 s{sROT2}, s{sT1}, 6")
    w2setup(0)
    wi = W(2)
    while wi.n < join_n:
        wi.issue()
    if c.ep:
        a(f"v_not_b32 v{vP}, v{vTAG}")
    a("s_waitcnt vmcnt(0)")
    a.q = []
    wi.reads(join_rd - wi.rd)
    assert wi.rd == join_rd, (wi.rd, join_rd)
    a.dwait()
    a("s_branch L_join")
    a("L_end:\ns_endpgm")
    a(f""".section .rodata,"a"
.p2align 6
.amdhsa_kernel {NAME}
  .amdhsa_next_free_vgpr 512
  .amdhsa_next_free_sgpr 102
  .amdhsa_accum_offset 256
  .amdhsa_group_segment_fixed_size 0
  .amdhsa_kernarg_size 64
  .amdhsa_user_sgpr_count 2
  .amdhsa_user_sgpr_kernarg_segment_ptr 1
  .amdhsa_system_sgpr_workgroup_id_x 1
  .amdhsa_float_denorm_mode_32 3
.end_amdhsa_kernel""")
    return a.text()

if __name__ == "__main__":
    c = Cfg()
    out = sys.argv[1]
    for x in sys.argv[2:]:
        k, v = x.split("=")
        assert hasattr(c, k), k
        setattr(c, k, v if k == 'padat' else int(v))
    open(out, "w").write(gen(c))
```

```python
import sys, struct, math

def f32(x):
    return "0x%08x" % struct.unpack("<I", struct.pack("<f", x))[0]

S, D, F = 2048, 640, 1536
FH_OFF = 0
EP_OFF = FH_OFF + (16 << 10)
FU_OFF = FH_OFF + (32 << 10)
ST_OFF = 16 << 20
NAME = "standalone__mixer_token_mlp__prompt_kernel"
SPIN_CAP = 400000
OP = [" sc1", " nt", " sc0", " sc0 nt", " sc1 nt"]

HEADER = """; MLP-Mixer token mixing, one launch:  out = (gelu(LN(x)^T w1 + b1) w2 + b2)^T
; kernarg: x(0) w1(8) b1(16) w2(24) b2(32) out(40) debug(48) ws(56); S=2048 D=640 F=1536, all bf16.
;
; The workgroup -> tile maps only aim at L2 locality; nothing depends on where a workgroup runs."""

class Cfg:
    stamp = 0
    sset = 0
    pad = 0
    mult = 0
    padx = -1
    padat = "end"
    map1 = 1
    map2 = 1
    rot1 = 10
    rot2 = 8
    cpo = 256
    w1_pre = 0
    w1_x = 2
    w1_ln = 2
    w1_mid = 6
    wd = 7
    hd = 12
    ud = 10
    pe1 = 6
    pe2 = 6
    g1bar = 18
    g1fill = 9
    w2_tail = 2
    w2_mid = 7
    w2_un = 5
    pbl = 10
    helper = 0
    serp = 0
    fillk = 8
    lead = 0
    l1 = 5
    l2 = 3
    f1 = 0
    f2 = 5
    iw = 0
    islp = 0
    xnt = 1
    wnt = 0
    hnt = 0
    ep = 0
    eat = 1
    w32 = 0
    cst = 1
    gb1 = 8
    gb2 = 4
    gb3 = 8
    dly = 4
    wsk = 1
    pbo = 1
    wbar = 0
    wbo = 0
    gbar = 0
    hi = 8
    thr = 8
    ramp = 3
    fx = 0
    jit = 0
    slp = 0
    xr1 = 0
    xr2 = 0
    z = 1
    zu = -1
    al8 = 0
    one = 0
    prio = 0
    defer1 = 0
    pk1 = 0
    o0b = 1
    defer = 4
    pkfin = 1
    omap = 1
    rm1 = 1
    rm2 = 1
    opol = 0
    o0e = 0
    fast0 = 0
    ov1 = 0
    ov2 = 0
    d0 = 6
    wpp = 4
    n1 = 3
    hearly = 1
    lg0 = 1
    lg1 = 5
    fake = 0
    gap2 = 0
    g2f = 6
    g2l = 16
    g2b0 = 14
    g2b1 = 25
    nh = 4
    hsec = 1
    hq = 1
    osc = 3
    w2e = 0
    egrp = 4
    e0 = 20
    estep = 8
    esh = 3
    tlbw = 0
    w1_first = 4
    xbar = 1
    fhs = 5
    fus = 6
    slowl = 16
    fe_pos = 4

class A:
    def __init__(self):
        self.L = []
        self.q = []
        self.lq = []
    def __call__(self, s):
        for line in s.strip("\n").split("\n"):
            self.L.append(line)
    def vm(self, s, tag=None):
        self(s)
        self.q.append(tag)
    def recent_slow_before(self, tag, window):
        if tag not in self.q:
            return False
        idx = self.q.index(tag)
        return any(t in ("hst", "hfl", "ust0", "ust1", "ufl0", "ufl1", "b1", "b2") and len(self.q) - 1 - i < window
                   for i, t in enumerate(self.q[:idx]))
    def wait(self, tag):
        if tag not in self.q:
            return
        idx = max(i for i, t in enumerate(self.q) if t == tag)
        n = len(self.q) - 1 - idx
        assert n <= 63
        self(f"s_waitcnt vmcnt({n})")
        self.q = self.q[idx + 1:]
    def pending(self, tag):
        return tag in self.q
    def ds(self, s, tag=None):
        if len(self.lq) >= 13:
            self("s_waitcnt lgkmcnt(7)")
            self.lq = self.lq[-7:]
        self(s)
        self.lq.append(tag)
    def dwait(self, tag=None):
        if tag is None:
            self("s_waitcnt lgkmcnt(0)")
            self.lq = []
            return
        if tag not in self.lq:
            return
        idx = max(i for i, t in enumerate(self.lq) if t == tag)
        self(f"s_waitcnt lgkmcnt({len(self.lq)-1-idx})")
        self.lq = self.lq[idx + 1:]
    def text(self):
        return "\n".join(self.L) + "\n"

class Fill:
    def __init__(self, a):
        self.a = a
        self.g = []
    def __call__(self, s):
        self.g.append(s)
    def emit(self, k):
        while k > 0 and self.g:
            x = self.g.pop(0)
            if callable(x):
                x(); k -= 1
            else:
                self.a(x); k -= x.count("\n") + 1
    def cost(self, x):
        if callable(x):
            return getattr(x, "cost", 4)
        return sum(8 if l.startswith(("v_exp", "v_rcp")) else 4 for l in x.split("\n"))
    def gap(self, budget):
        used = 0
        while self.g and budget > 0:
            x = self.g[0]
            if getattr(x, "skip", 0):
                x.skip -= 1
                if x.skip == 0:
                    self.g.pop(0)
                return
            k = self.cost(x)
            if used and used + k > budget:
                return
            self.g.pop(0)
            x() if callable(x) else self.a(x)
            used += k
            if used >= budget:
                return
    def delay(self, n):
        if n > 0:
            f = lambda: None
            f.skip = n
            self.g.append(f)
    def flush(self):
        self.emit(1 << 30)

def costly(f, k):
    f.cost = k
    return f

def srd(a, d, b, nbytes):
    a(f"s_mov_b32 s{d}, s{b}")
    a(f"s_mov_b32 s{d+1}, s{b+1}")
    a(f"s_mov_b32 s{d+2}, {nbytes}")
    a(f"s_mov_b32 s{d+3}, 0x00020000")

def gen(c):
    a = A()
    z = c.z
    zu = c.z if c.zu < 0 else c.zu
    H_OFF = 0x20000 if z < 2 else (17 << 20)
    U_OFF = H_OFF + (0x280000 << z)
    if H_OFF < ST_OFF and U_OFF + (0x1e0000 << zu) > ST_OFF:
        U_OFF = 17 << 20
    WS_USED = U_OFF + (0x1e0000 << zu)
    STB = 76
    SETS = {
        0: [0, 1, 2, 3, 4, 5, "t0", 6, 8, 9, 10, 11, 12],
        1: [0, "ka", "iss", 1, "x4", 2, "hsto", 3, "w1_24", "w1_40", 4, 5, "g1s"],
        2: [0, 5, "g1s", "g1_8", "g1_16", "g1_24", "t0", 6, "fe", 7, 8, 9, 10],
        4: [0, 5, "g1s", "g1_2", "g1_4", "g1_8", "g1_12", "g1_16", "g1_19", "g1_22", "g1_26", "g1_29", 6],
        5: [0, 10, "g2s", "g2_2", "g2_4", "g2_7", "g2_10", "g2_13", "g2_16", "g2_20", "g2_24", "g2_27", 11],
        6: [0, "t0", 6, "fe", 7, "w2_22", 8, "w2_30", "w2_36", "w2_42", 9, 10, "g2s"],
        3: [0, 9, 10, "g2s", "g2_6", "pb", "g2_12", "g2_18", "g2_24", 11, "e2", "e3", 12],
    }
    def stamp(name):
        if c.pad and str(name) == c.padat:
            a("s_memrealtime s[98:99]")
        if c.stamp and name in SETS[c.sset]:
            i = SETS[c.sset].index(name)
            a(f"{'s_memtime' if c.stamp == 2 else 's_memrealtime'} s[{STB+2*i}:{STB+2*i+1}]")
    a(HEADER)
    a("; @launch grid=(256,1,1) block=(256,1,1) lds=163840")
    a('.amdgcn_target "amdgcn-amd-amdhsa--gfx950"')
    a(f".text\n.globl {NAME}\n.p2align 8\n.type {NAME},@function\n{NAME}:")
    X, W1, B1, W2, B2, OUT, DBG, WS = 4, 6, 8, 10, 12, 14, 16, 18
    sMA, sMB = 20, 22
    RW1, RW2, RWS, ROUT = 24, 28, 32, 36
    sW, sLDS, sDT, sFT, sJ, sST = 40, 41, 42, 43, 44, 45
    sWO, sWO0, sWOE, sUS0 = 46, 47, 48, 49
    sT0, sT1, sUS1, sCNT, sROT1, sROT2, sT3, sTAG = 50, 51, 52, 53, 54, 55, 56, 57
    sS = 3
    sED = 20
    FB = 4
    sFO = (16, 17, 58)
    sFD = (0, 1, 59)
    sK = 60
    vL = 1
    vD1, vD2, vH, vU, vT1, vT2, vR, vO = 4, 8, 12, 16, 21, 25, 29, 33
    vFH, vFU, vFO, vTAG, vB1, vB2, vHS, vLT, vFHO, vC1 = 35, 36, 37, 39, 40, 44, 45, 46, 49, 50
    t0, t1, t2, t3, t4, t5 = 54, 55, 56, 57, 58, 59
    vP = 60
    vL16, vHL = 52, 53
    ACC, RING, RD = 64, 144, 208
    RED = 114688
    WSLOT = 7
    NRING = 16
    NS1, NS2 = 16, 12

    def poll_load(kind):
        if kind == "h":
            return f"global_load_dwordx4 v[{vP}:{vP+3}], v{vFH}, s[{WS}:{WS+1}] sc1"
        return f"global_load_dword v{vP}, v{vFU if kind == 'a' else vFU+1}, s[{WS}:{WS+1}] sc1"
    def poll_test(kind):
        if kind == "h":
            a(f"v_bitop3_b32 v{vP}, v{vP}, v{vP+1}, v{vTAG} bitop3:0x7e")
            a(f"v_bitop3_b32 v{vP+2}, v{vP+2}, v{vP+3}, v{vTAG} bitop3:0x7e")
            a(f"v_or_b32 v{vP}, v{vP}, v{vP+2}")
            a(f"v_cmp_ne_u32 vcc, 0, v{vP}")
        else:
            a(f"v_cmp_ne_u32 vcc, s{sTAG}, v{vP}")
    def spin(kind):
        label = "L_p" + kind
        poll_test(kind)
        a(f"s_cbranch_vccz {label}_ok")
        a(f"s_mov_b32 s{sCNT}, 0")
        a(f"{label}_l:")
        if c.slp and kind == "a":
            a(f"s_sleep {c.slp}")
        a(poll_load(kind))
        a(f"s_add_u32 s{sCNT}, s{sCNT}, 1")
        a(f"s_cmp_ge_u32 s{sCNT}, {SPIN_CAP}")
        a(f"s_cbranch_scc1 {label}_ok")
        a("s_waitcnt vmcnt(0)")
        poll_test(kind)
        a(f"s_cbranch_vccnz {label}_l")
        a(f"{label}_ok:")
    njit = [0]
    def jitter(val):
        if c.jit:
            a(f"s_mul_i32 s{sCNT}, s2, 5\ns_add_u32 s{sCNT}, s{sCNT}, s{sW}\ns_and_b32 s{sCNT}, s{sCNT}, 31\ns_cmp_lg_u32 s{sCNT}, {val}\ns_cbranch_scc1 L_j{njit[0]}\ns_sleep {c.jit}\nL_j{njit[0]}:")
            njit[0] += 1
    def flag_add(k):
        a(f"s_atomic_add s{sFD[k]}, s[{FB}:{FB+1}], s{sFO[k]}")
    def flag_store(vaddr, tag, sc=" sc1"):
        a("s_mov_b64 exec, 1")
        s_ = f"global_store_dword v{vaddr}, v{vTAG}, s[{WS}:{WS+1}]{sc}"
        if tag:
            a.vm(s_, tag)
        else:
            a(s_)
        a("s_mov_b64 exec, -1")

    def step_off(dst, base, i, sh):
        if i < c.n1:
            return f"s_add_u32 s{dst}, s{base}, {i << sh}"
        if c.n1 < i <= c.nh:
            return f"s_add_u32 s{dst}, s{base}, {(i - 1) << sh}"
        k = 0 if i == c.n1 else i - c.nh
        return (f"s_add_u32 s{dst}, s{sROT2}, {k}\ns_and_b32 s{dst}, s{dst}, {12-c.nh-1}\ns_add_u32 s{dst}, s{dst}, {c.nh}\n"
                f"s_lshl_b32 s{dst}, s{dst}, {sh}\ns_add_u32 s{dst}, s{dst}, s{base}")
    class W:
        def __init__(self, kind):
            self.kind = kind
            self.ns = NS1 if kind == 1 else NS2
            self.n = 0
            self.rd = 0
            self.can_read = True
        def left(self):
            return 4 * self.ns - self.n
        def tag(self, n):
            return f"w{self.kind}_{n}"
        def nslot(self):
            return WSLOT - c.w2e if self.kind == 1 else WSLOT
        def slot(self, i):
            return i % self.nslot() if self.kind == 1 else (i + WSLOT - c.w2e) % WSLOT
        def issue(self):
            i, j = self.n >> 2, self.n & 3
            vd, r, step = (vD1, RW1, 32 * 3072) if self.kind == 1 else (vD2, RW2, 32 * 4096)
            if i >= self.nslot() and j == 0:
                old = i - self.nslot()
                if self.rd < 8 * (old + 1):
                    assert self.can_read
                    a.wait(self.tag(4 * old + 3))
                    self.reads(8 * (old + 1) - self.rd)
                a.dwait(f"r{self.kind}_{old}")
            a.vm(f"buffer_load_dwordx4 v{vd+j}, s[{r}:{r+3}], s{sWO} offen offset:{1024*j}{' nt' if self.kind == 1 and self.n < c.wnt else ''} lds", self.tag(self.n))
            self.n += 1
            if j == 3 and i + 1 < self.ns:
                if self.slot(i + 1) == 0:
                    a(f"s_mov_b32 m0, s{sLDS}")
                else:
                    a("s_add_u32 m0, m0, 4096")
                if self.kind == 2 and c.nh:
                    a(step_off(sWO, sWO0, i + 1, 17))
                elif self.kind == 1 and c.fake & 32:
                    a(f"s_add_u32 s{sWO}, s{sWO}, {step}")
                    a(f"s_cmp_ge_u32 s{sWO}, s{sWOE}")
                    a(f"s_cselect_b32 s{sCNT}, {480*3072}, 0")
                    a(f"s_sub_u32 s{sWO}, s{sWO}, s{sCNT}")
                else:
                    a(f"s_add_u32 s{sWO}, s{sWO}, {step}")
                    a(f"s_cmp_eq_u32 s{sWO}, s{sWOE}")
                    a(f"s_cselect_b32 s{sWO}, s{sWO0}, s{sWO}")
        def landed_steps(self):
            k = 0
            while 4 * k + 3 < self.n and not a.pending(self.tag(4 * k + 3)):
                k += 1
            return k
        def reads(self, k):
            vt = vT1 if self.kind == 1 else vT2
            lim = 8 * self.landed_steps() if self.can_read else 0
            while k > 0 and self.rd < lim:
                i, x = self.rd >> 3, self.rd & 7
                b, e = x >> 1, x & 1
                r = 16 * i + 4 * b + 2 * e
                a.ds(f"ds_read_b64_tr_b16 a[{r}:{r+1}], v{vt+b} offset:{self.slot(i)*4096+e*2048}", f"r{self.kind}_{i}")
                self.rd += 1
                k -= 1
        def step(self, fill=None, throttle=True, older_than=None):
            if throttle and self.n >= c.wd:
                tg = self.tag(self.n - c.wd)
                if older_than is not None and a.pending(older_than) and a.pending(tg) and a.q.index(tg) > a.q.index(older_than):
                    pass
                elif not a.recent_slow_before(tg, c.slowl):
                    a.wait(tg)
            stamp(f"w{self.kind}_{self.n}")
            self.issue()
            backlog = 8 * self.landed_steps() - self.rd
            self.reads(4 if backlog > 8 else 2)
            if fill is not None:
                fill.emit(c.fillk)
        def drain(self):
            for i in range(self.rd >> 3, self.ns):
                a.wait(self.tag(4 * i + 3))
                self.reads(8)

    def tile2(f):
        if c.map2 == 0:
            f(f"s_and_b32 s{sT0}, s2, 1\ns_lshl_b32 s{sT0}, s{sT0}, 2\ns_bfe_u32 s{sT1}, s2, 0x20003\ns_add_u32 s{sJ}, s{sT0}, s{sT1}\ns_mul_i32 s{sROT2}, s{sT1}, 3")
            if c.rot2 == 42:
                f(f"s_bfe_u32 s{sT1}, s2, 0x10005\ns_mul_i32 s{sT1}, s{sT1}, 6\ns_add_u32 s{sROT2}, s{sROT2}, s{sT1}\ns_cmp_ge_u32 s{sROT2}, 12\ns_cselect_b32 s{sT1}, 12, 0\ns_sub_u32 s{sROT2}, s{sROT2}, s{sT1}")
            f(f"s_bfe_u32 s{sT0}, s2, 0x20001\ns_lshl_b32 s{sT0}, s{sT0}, 3\ns_lshr_b32 s{sST}, s2, 5\ns_add_u32 s{sST}, s{sST}, s{sT0}")
        else:
            f(f"s_bfe_u32 s{sJ}, s2, 0x30003")
            if c.nh == 4:
                f(f"s_mul_i32 s{sROT2}, s2, {c.xr2}\ns_add_u32 s{sROT2}, s{sROT2}, s{sJ}")
            elif c.nh == 8:
                f(f"s_lshr_b32 s{sROT2}, s{sJ}, 1")
            elif c.rot2 == 8:
                f(f"s_mul_i32 s{sROT2}, s{sJ}, 3\ns_lshr_b32 s{sROT2}, s{sROT2}, 1")
            elif c.rot2 == 4:
                f(f"s_lshr_b32 s{sROT2}, s{sJ}, 1\ns_mul_i32 s{sROT2}, s{sROT2}, 3")
            else:
                f(f"s_mov_b32 s{sROT2}, 0")
            f(f"s_and_b32 s{sT0}, s2, 7\ns_xor_b32 s{sT0}, s{sT0}, {c.rm2}\ns_lshl_b32 s{sT0}, s{sT0}, 2\ns_lshr_b32 s{sST}, s2, 6\ns_add_u32 s{sST}, s{sST}, s{sT0}")
    a("s_cmp_ge_u32 s2, 256\ns_cbranch_scc1 L_end")
    stamp(0)
    if c.pad:
        a("s_memrealtime s[100:101]")
    a("s_load_dwordx16 s[4:19], s[0:1], 0")
    a(f"v_lshrrev_b32 v{t0}, 6, v0")
    a("; ---- one line of this kernel's code per wave is loaded so that instruction fetches hit L2")
    a("s_getpc_b64 s[22:23]")
    a("L_pc:")
    a(f"s_lshr_b32 s{sT0}, s2, 3                 ; idx")
    a(f"s_lshl_b32 s{sT1}, s{sT0}, 9")
    a(f"v_lshl_add_u32 v{t1}, v{t0}, 7, s{sT1}")
    a(f"v_min_u32 v{t1}, (L_end-L_pc-{c.cpo}-4), v{t1}")
    a.vm(f"global_load_dword v{vP}, v{t1}, s[22:23] offset:{c.cpo}", "cpf")
    a(f"v_and_b32 v{vL}, 63, v0")
    a(f"v_readfirstlane_b32 s{sW}, v{t0}")
    a(f"v_lshrrev_b32 v{t0}, 5, v0")
    a(f"v_and_b32 v{t1}, 31, v0")
    a(f"v_lshrrev_b32 v{t2}, 7, v0")
    a(f"v_mul_u32_u24 v{t2}, 12, v{t2}")
    a(f"v_add_u32 v{t2}, v{t2}, v{t0}")
    a(f"v_mul_u32_u24 v2, 1280, v{t2}")
    a(f"v_lshl_add_u32 v2, v{t1}, 3, v2          ; x offset")
    def early_setup():
        a(f"s_lshr_b32 s{sT0}, s2, 3                 ; idx")
        a(f"v_mul_u32_u24 v3, 1344, v{t0}")
        a(f"v_lshl_add_u32 v3, v{t1}, 3, v3")
        a(f"v_add_u32 v3, {RED}, v3")
        if c.map1 == 0:
            a(f"s_mul_i32 s{sFT}, s{sT0}, 205")
            a(f"s_lshr_b32 s{sFT}, s{sFT}, 10            ; idx/5")
            a(f"s_mul_i32 s{sT1}, s{sFT}, 5")
            a(f"s_sub_u32 s{sDT}, s{sT0}, s{sT1}         ; idx%5")
            a(f"s_and_b32 s{sS}, s{sDT}, 3")
            a(f"s_mul_i32 s{sROT1}, s{sDT}, 13")
            a(f"s_lshr_b32 s{sROT1}, s{sROT1}, 2     ; 0,3,6,9,13")
            if c.rot1 == 52:
                a(f"s_and_b32 s{sT1}, s{sFT}, 1")
                a(f"s_lshl_b32 s{sT1}, s{sT1}, 3")
                a(f"s_add_u32 s{sROT1}, s{sROT1}, s{sT1}")
                a(f"s_and_b32 s{sROT1}, s{sROT1}, 15")
            a(f"s_and_b32 s{sT1}, s2, 1")
            a(f"s_mul_i32 s{sT1}, s{sT1}, 5")
            a(f"s_add_u32 s{sDT}, s{sDT}, s{sT1}         ; dtile")
            a(f"s_bfe_u32 s{sT1}, s2, 0x20001")
            a(f"s_mul_i32 s{sT1}, s{sT1}, 6")
            a(f"s_add_u32 s{sFT}, s{sFT}, s{sT1}         ; ftile")
        else:
            a(f"s_mul_i32 s{sFT}, s{sT0}, 205")
            a(f"s_lshr_b32 s{sFT}, s{sFT}, 11            ; idx/10")
            a(f"s_mul_i32 s{sT1}, s{sFT}, 10")
            a(f"s_sub_u32 s{sDT}, s{sT0}, s{sT1}         ; dtile")
            a(f"s_cmp_ge_u32 s{sDT}, 5")
            a(f"s_cselect_b32 s{sS}, 5, 0")
            a(f"s_sub_u32 s{sS}, s{sDT}, s{sS}")
            a(f"s_and_b32 s{sS}, s{sS}, 3")
            if c.rot1 == 10:
                a(f"s_mul_i32 s{sROT1}, s{sDT}, 13")
                a(f"s_lshr_b32 s{sROT1}, s{sROT1}, 3")
            elif c.rot1 == 5:
                a(f"s_lshr_b32 s{sROT1}, s{sDT}, 1")
                a(f"s_mul_i32 s{sROT1}, s{sROT1}, 13")
                a(f"s_lshr_b32 s{sROT1}, s{sROT1}, 2")
            else:
                a(f"s_mov_b32 s{sROT1}, 0")
            a(f"s_and_b32 s{sT1}, s2, 7")
            if c.xr1:
                a(f"s_mul_i32 s{sT0}, s{sT1}, {c.xr1}")
                a(f"s_add_u32 s{sROT1}, s{sROT1}, s{sT0}")
                a(f"s_and_b32 s{sROT1}, s{sROT1}, 15")
            if c.rm1:
                a(f"s_sub_u32 s{sT0}, 2, s{sFT}")
                a(f"s_cmp_eq_u32 s{sT1}, 3")
                a(f"s_cselect_b32 s{sFT}, s{sT0}, s{sFT}")
                a(f"s_cmp_ge_u32 s{sT1}, 6")
                a(f"s_cselect_b32 s{sT0}, 1, 0")
                a(f"s_xor_b32 s{sT1}, s{sT1}, s{sT0}")
            a(f"s_mul_i32 s{sT1}, s{sT1}, 3")
            a(f"s_add_u32 s{sFT}, s{sFT}, s{sT1}         ; ftile")
        a(f"v_lshrrev_b32 v{t0}, 3, v{vL}            ; rr")
        a(f"v_and_b32 v{t1}, 6, v{t0}")
        a(f"v_and_b32 v{t2}, 7, v{vL}")
        a(f"v_xor_b32 v{t1}, v{t1}, v{t2}")
        a(f"v_lshlrev_b32 v{t1}, 4, v{t1}")
        a(f"v_mul_u32_u24 v{vD1}, 3072, v{t0}")
        a(f"v_add_u32 v{vD1}, v{vD1}, v{t1}")
        a(f"v_lshl_add_u32 v{vD2}, v{t0}, 12, v{t1}")
        for j in range(1, 4):
            a(f"v_add_u32 v{vD1+j}, {j*(8*3072-1024)}, v{vD1}")
        a(f"s_mul_i32 s{sWO0}, s{sW}, {512*3072}")
        a(f"s_lshl_b32 s{sT0}, s{sFT}, 7")
        a(f"s_add_u32 s{sWO0}, s{sWO0}, s{sT0}")
        a(f"s_add_u32 s{sWOE}, s{sWO0}, {(480 if c.fake & 32 else 512)*3072}")
        if c.fake & 32:
            a(f"s_mul_i32 s{sT0}, s{sDT}, {48*3072}")
        else:
            a(f"s_mul_i32 s{sT0}, s{sROT1}, {32*3072}")
        a(f"s_add_u32 s{sWO}, s{sWO0}, s{sT0}")
        a(f"s_mul_i32 s{sLDS}, s{sW}, {WSLOT*4096}")
        a(f"s_mov_b32 m0, s{sLDS}")
    if not c.fast0:
        early_setup()
    a(f"s_lshr_b32 s{sT0}, s2, 2")
    a(f"s_lshl_b32 s{sT0}, s{sT0}, 3")
    a(f"s_and_b32 s{sT1}, s2, 3")
    a(f"s_add_u32 s{sT0}, s{sT0}, s{sT1}")
    a(f"s_mul_i32 s{sT0}, s{sT0}, 5120")
    a(f"v_lshlrev_b32 v{vL16}, 4, v{vL}          ; lane*16")
    a("s_waitcnt lgkmcnt(0)")
    stamp("ka")
    a(f"s_add_u32 s{X}, s{X}, s{sT0}")
    a(f"s_addc_u32 s{X+1}, s{X+1}, 0")
    XR = RING
    if c.fx:
        a(f"s_and_b32 s{sT0}, s2, 7\ns_lshr_b32 s{sT0}, {c.fx}, s{sT0}\ns_and_b32 s{sT0}, s{sT0}, 1\ns_sub_u32 s{sT0}, s{sT0}, 1\nv_and_b32 v2, s{sT0}, v2")
    for i in range(5):
        a.vm(f"global_load_dwordx2 v[{XR+2*i}:{XR+2*i+1}], v2, s[{X}:{X+1}] offset:{256*i}{' nt' if c.xnt else ''}", f"x{i}")
    if c.fast0:
        early_setup()
    srd(a, RW1, W1, S * F * 2)
    a("s_cmp_ge_u32 s2, 240")
    a(f"s_cselect_b32 s{RW1+2}, 0, s{RW1+2}")
    w1 = W(1)
    w1.can_read = False
    if c.xbar:
        a("s_barrier")
    nrole = [0]
    role_n = [0, 0]
    def role_issue(kl, kf, pre=None):
        k = nrole[0]; nrole[0] += 1
        q = a.q
        a(f"s_cmp_lt_u32 s2, {c.lead}")
        a(f"s_cbranch_scc1 L_rf{k}")
        for r, cnt in ((0, kl), (1, kf)):
            if r == 1:
                a(f"s_branch L_re{k}")
                a(f"L_rf{k}:")
            if pre:
                pre(role_n[r])
            w1.n = role_n[r]
            a.q = []
            for _ in range(cnt):
                w1.issue()
            role_n[r] = w1.n
        a(f"L_re{k}:")
        a.q = q
    if c.lead:
        role_issue(c.l1, c.f1)
    else:
        for _ in range(c.w1_first):
            w1.issue()
    a(f"s_add_u32 s{FB}, s{WS}, {FH_OFF}")
    a(f"s_addc_u32 s{FB+1}, s{WS+1}, 0")
    a(f"s_load_dword s{sTAG}, s[{FB}:{FB+1}], {EP_OFF-FH_OFF}")
    if c.tlbw:
        a(f"v_and_b32 v{t0}, 1, v{vL}")
        a(f"v_mul_u32_u24 v{t1}, 0x281000, v{t0}")
        a(f"v_lshlrev_b32 v{t0}, 21, v{t0}")
        a.vm(f"global_load_dword v{vP+1}, v{t1}, s[{WS}:{WS+1}]", "tl")
        if c.tlbw >= 2:
            a.vm(f"global_load_dword v{vP+2}, v{t0}, s[{OUT}:{OUT+1}]", "tl")
            a(f"v_min_u32 v{t0}, 2, v{vL}")
            a(f"v_lshlrev_b32 v{t0}, 21, v{t0}")
            a.vm(f"global_load_dword v{vP+3}, v{t0}, s[{W2}:{W2+1}]", "tl")
    tile2(a)
    a(f"v_lshrrev_b32 v{t3}, 4, v{vL}            ; g")
    a(f"s_min_u32 s{sT0}, s{sFT}, 23\ns_lshl_b32 s{sT0}, s{sT0}, 1\ns_and_b32 s{sT1}, s{sW}, 1\ns_add_u32 s{sT0}, s{sT0}, s{sT1}\ns_lshl_b32 s{sT0}, s{sT0}, 6\nv_lshl_add_u32 v{t5}, v{t3}, 3, s{sT0}")
    for k in range(2):
        a.vm(f"global_load_dwordx2 v[{vB1+2*k}:{vB1+2*k+1}], v{t5}, s[{B1}:{B1+1}] offset:{32*k}", "b1")
    a(f"v_and_b32 v{t4}, 15, v{vL}")
    a(f"s_lshl_b32 s{sT0}, s{sST}, 6\ns_lshl_b32 s{sT1}, s{sW}, 4\ns_add_u32 s{sT0}, s{sT0}, s{sT1}\nv_add_u32 v{vO}, s{sT0}, v{t4}           ; s")
    a(f"v_lshlrev_b32 v{t2}, 1, v{vO}")
    a.vm(f"global_load_ushort v{vB2}, v{t2}, s[{B2}:{B2+1}]", "b2")
    a(f"s_lshl_b32 s{sT0}, s2, {c.fhs-2}\ns_add_u32 s{sT0}, s{sT0}, s{sW}\ns_lshl_b32 s{sFO[0]}, s{sT0}, 2")
    a(f"s_load_dword s{sFD[0]}, s[{FB}:{FB+1}], s{sFO[0]}")
    for h, su in enumerate((sUS0, sUS1)):
        a(f"s_lshr_b32 s{sT0}, s{sW}, 1\ns_add_u32 s{sT0}, s{sT0}, s{sS}\ns_add_u32 s{sT0}, s{sT0}, {2*h}\ns_and_b32 s{sT0}, s{sT0}, 3\ns_lshl_b32 s{sT1}, s{sDT}, 2\ns_add_u32 s{su}, s{sT0}, s{sT1}")
        a(f"s_mul_i32 s{sT0}, s{su}, 24\ns_add_u32 s{sT0}, s{sT0}, s{sFT}\ns_lshl_b32 s{sT0}, s{sT0}, {c.fus-2}\ns_and_b32 s{sT1}, s{sW}, 1\ns_add_u32 s{sT0}, s{sT0}, s{sT1}\ns_lshl_b32 s{sT0}, s{sT0}, 2\ns_add_u32 s{sFO[1+h]}, s{sT0}, {FU_OFF-FH_OFF}")
        a(f"s_load_dword s{sFD[1+h]}, s[{FB}:{FB+1}], s{sFO[1+h]}")
    srd(a, RWS, WS, WS_USED)
    a(f"v_lshrrev_b32 v{t3}, 4, v{vL}            ; g")
    a(f"v_and_b32 v{t4}, 15, v{vL}")
    a(f"v_and_b32 v{vHS}, 0x70, v{vL16}")
    a(f"v_lshl_add_u32 v{vHS}, v{t3}, {16+z}, v{vHS}")
    a(f"v_lshrrev_b32 v{t4}, 3, v{t4}")
    a(f"v_lshl_add_u32 v{vHS}, v{t4}, {7+z}, v{vHS}")
    a(f"v_bfe_u32 v{t0}, v{vL}, 2, 2             ; r")
    a(f"v_mul_u32_u24 v{t0}, 1344, v{t0}")
    a(f"v_add_u32 v{t0}, {RED}, v{t0}")
    a(f"v_and_b32 v{t1}, 3, v{vL}                ; c")
    a(f"s_lshl_b32 s{sT0}, s{sW}, 2")
    a(f"v_add_u32 v{t3}, s{sT0}, v{t3}           ; T for m=0")
    for m in range(3):
        a(f"v_mul_u32_u24 v{t2}, 205, v{t3}")
        a(f"v_lshrrev_b32 v{t2}, 10, v{t2}       ; j")
        a(f"v_mul_u32_u24 v{t4}, 5, v{t2}")
        a(f"v_sub_u32 v{t4}, v{t3}, v{t4}        ; t")
        if c.omap:
            a(f"v_lshrrev_b32 v{t5}, 2, v{t4}")
            a(f"v_mul_u32_u24 v{vLT+m}, 896, v{t5}")
            a(f"v_lshlrev_b32 v{t5}, 1, v{t5}")
            a(f"v_sub_u32 v{t5}, 7, v{t5}")
            a(f"v_lshlrev_b32 v{t2}, v{t5}, v{t2}")
            a(f"v_add3_u32 v{t2}, v{t2}, v{t0}, v{vLT+m}")
            a(f"v_lshrrev_b32 v{t5}, 1, v{t4}")
            a(f"v_lshl_add_u32 v{t2}, v{t5}, 6, v{t2}")
        else:
            a(f"v_mul_u32_u24 v{t2}, 160, v{t2}")
            a(f"v_add_u32 v{t2}, v{t2}, v{t0}")
            a(f"v_lshrrev_b32 v{t5}, 1, v{t4}")
            a(f"v_lshl_add_u32 v{t2}, v{t5}, 6, v{t2}")
        a(f"v_and_b32 v{t5}, 1, v{t4}")
        a(f"v_lshl_add_u32 v{t2}, v{t5}, 3, v{t2}")
        a(f"v_lshrrev_b32 v{t4}, 2, v{t4}")
        a(f"v_sub_u32 v{t4}, 4, v{t4}")
        a(f"v_lshlrev_b32 v{t4}, v{t4}, v{t1}")
        a(f"v_add_u32 v{vLT+m}, v{t2}, v{t4}")
        if m < 2:
            a(f"v_add_u32 v{t3}, 16, v{t3}")
    a(f"s_lshl_b32 s{sT3}, s2, {8+z}")
    a(f"s_lshl_b32 s{sT0}, s{sW}, {18+z}")
    a(f"s_add_u32 s{sT3}, s{sT3}, s{sT0}")
    a(f"s_add_u32 s{sT3}, s{sT3}, {H_OFF}")
    for _ in range(c.w1_pre):
        w1.issue()
    stamp("iss")
    XF = RING + 12
    if c.lead:
        nb = len(a.q) - 1 - a.q.index("x4")
        role_issue(c.l2, c.f2, lambda n: a(f"s_waitcnt vmcnt({n + nb})"))
        a.q = a.q[a.q.index("x4") + 1:]
    for i in range(5):
        a.wait(f"x{i}")
        if i == 0:
            stamp(1)
        if i == 4:
            stamp("x4")
            for _ in range(0 if c.lead else c.w1_x):
                w1.issue()
        for k in range(2):
            a(f"v_lshlrev_b32 v{XF+4*i+2*k}, 16, v{XR+2*i+k}")
            a(f"v_and_b32 v{XF+4*i+2*k+1}, 0xffff0000, v{XR+2*i+k}")
        if i == 0:
            a(f"v_pk_add_f32 v[{t0}:{t0+1}], v[{XF}:{XF+1}], v[{XF+2}:{XF+3}]")
        else:
            a(f"v_pk_add_f32 v[{t0}:{t0+1}], v[{t0}:{t0+1}], v[{XF+4*i}:{XF+4*i+1}]")
            a(f"v_pk_add_f32 v[{t0}:{t0+1}], v[{t0}:{t0+1}], v[{XF+4*i+2}:{XF+4*i+3}]")
    def half_sum():
        a(f"v_add_f32 v{t0}, v{t0}, v{t0+1}")
        for r in (8, 4, 2, 1):
            a("s_nop 1")
            a(f"v_add_f32_dpp v{t0}, v{t0}, v{t0} row_ror:{r} row_mask:0xf bank_mask:0xf")
        a(f"v_mov_b32 v{t0+1}, v{t0}")
        a("s_nop 1")
        a(f"v_permlane16_swap_b32 v{t0+1}, v{t0}")
        a(f"v_add_f32 v{t0}, v{t0}, v{t0+1}")
    half_sum()
    a(f"v_mul_f32 v{t0}, {f32(-1.0/D)}, v{t0}    ; -mean")
    a(f"v_mov_b32 v{t0+1}, v{t0}")
    for i in range(10):
        a(f"v_pk_add_f32 v[{XF+2*i}:{XF+2*i+1}], v[{XF+2*i}:{XF+2*i+1}], v[{t0}:{t0+1}]")
    a(f"v_pk_mul_f32 v[{t0}:{t0+1}], v[{XF}:{XF+1}], v[{XF}:{XF+1}]")
    for i in range(1, 10):
        a(f"v_pk_fma_f32 v[{t0}:{t0+1}], v[{XF+2*i}:{XF+2*i+1}], v[{XF+2*i}:{XF+2*i+1}], v[{t0}:{t0+1}]")
    half_sum()
    a(f"v_mov_b32 v{t0+1}, {f32(1e-5)}")
    a(f"v_fmac_f32 v{t0+1}, {f32(1.0/D)}, v{t0}")
    a(f"v_rsq_f32 v{t0}, v{t0+1}")
    a("s_nop 0")
    a(f"v_mov_b32 v{t0+1}, v{t0}")
    for i in range(10):
        a(f"v_pk_mul_f32 v[{XF+2*i}:{XF+2*i+1}], v[{XF+2*i}:{XF+2*i+1}], v[{t0}:{t0+1}]")
    for i in range(5):
        a(f"v_cvt_pk_bf16_f32 v{XR+2*i}, v{XF+4*i}, v{XF+4*i+1}")
        a(f"v_cvt_pk_bf16_f32 v{XR+2*i+1}, v{XF+4*i+2}, v{XF+4*i+3}")
        a(f"ds_write_b64 v3, v[{XR+2*i}:{XR+2*i+1}] offset:{256*i}")
    if c.lead:
        role_issue(8 - role_n[0], 8 - role_n[1])
        a.q = [w1.tag(n) for n in range(8)]
        bias_wait = w1.tag(7)
    else:
        for _ in range(c.w1_ln):
            w1.issue()
    a("s_waitcnt lgkmcnt(0)")
    a("s_barrier")
    stamp(2)
    HT = RING + 12
    for m in range(3):
        a(f"ds_read_b64_tr_b16 v[{HT+4*m}:{HT+4*m+1}], v{vLT+m}")
        a(f"ds_read_b64_tr_b16 v[{HT+4*m+2}:{HT+4*m+3}], v{vLT+m} offset:{4*1344}")
    a(f"s_add_u32 s{sT0}, s{sT3}, {1<<(20+z)}")
    a(f"s_add_u32 s{sT1}, s{sT3}, {2<<(20+z)}")
    a(f"s_cmp_ge_u32 s{sW}, 2")
    a(f"s_cselect_b32 s{sT1}, 0x40000000, s{sT1}")
    if c.stamp or c.pad:
        a("s_waitcnt lgkmcnt(0)")
    jitter(5)
    if c.fx:
        a(f"s_and_b32 s{sCNT}, s2, 7\ns_lshr_b32 s{sCNT}, {c.fx}, s{sCNT}\ns_and_b32 s{sCNT}, s{sCNT}, 1")
        for so in (sT3, sT0, sT1):
            a(f"s_cselect_b32 s{so}, 0x40000000, s{so}")
    for m, so in enumerate((sT3, sT0, sT1)):
        a(f"s_waitcnt lgkmcnt({4-2*m})")
        a.vm(f"buffer_store_dwordx4 v[{HT+4*m}:{HT+4*m+3}], v{vHS}, s[{RWS}:{RWS+3}], s{so} offen{' sc0' if c.hnt else ''} sc1", "hst")
    stamp("hsto")
    if c.padx != -1:
        a(f"s_or_b32 s{sT0}, s2, s{sW}")
        a("s_cbranch_scc1 L_nopx")
        a(f"v_mov_b32 v{t0}, {ST_OFF}")
        a(f"v_mov_b32 v{t1}, s100")
        a(f"global_store_dword v{t0}, v{t1}, s[{WS}:{WS+1}] sc1")
        a("L_nopx:")
    def setup_common(f):
        f(f"s_mul_i32 s{sED}, s{sTAG}, 1664524")
        f(f"s_add_u32 s{sED}, s{sED}, 1013904223")
        f(f"s_add_u32 s{sTAG}, s{sTAG}, s{sED}")
        f(f"v_mov_b32 v{vTAG}, s{sTAG}")
        for k in range(3):
            f(f"s_sub_u32 s{sFD[k]}, s{sTAG}, s{sFD[k]}")
        f(f"v_lshrrev_b32 v{t0}, 2, v{vL}            ; row = 4g + r")
        f(f"v_lshlrev_b32 v{vT1}, 7, v{t0}")
        f(f"v_bfe_u32 v{t0}, v{vL}, 3, 2")
        f(f"v_lshl_add_u32 v{vT1}, v{t0}, 5, v{vT1}")
        f(f"v_and_b32 v{t0}, 3, v{vL}")
        f(f"v_lshl_add_u32 v{vT1}, v{t0}, 3, v{vT1}")
        f(f"v_add_u32 v{vT1}, s{sLDS}, v{vT1}")
        f(f"s_lshl_b32 s{sT0}, s{sW}, 5\nv_xor_b32 v{vT2}, s{sT0}, v{vT1}")
        f(f"s_and_b32 s{sT0}, s{sW}, 1\ns_lshl_b32 s{sT0}, s{sT0}, 6\nv_xor_b32 v{vT1}, s{sT0}, v{vT1}")
        for b in range(1, 4):
            f(f"v_xor_b32 v{vT1+b}, {b*32}, v{vT1}")
    def setup_g2(f):
        f(f"v_lshrrev_b32 v{t3}, 4, v{vL}")
        f(f"v_mul_u32_u24 v{vO}, 1280, v{vO}")
        f(f"v_lshl_add_u32 v{vO+1}, v{t3}, 3, v{vO}")
        f(f"v_lshl_add_u32 v{vO}, v{t3}, 4, v{vO}")
        for b in range(1, 4):
            f(f"v_xor_b32 v{vT2+b}, {b*32}, v{vT2}")
        for j in range(1, 4):
            f(f"v_add_u32 v{vD2+j}, {j*(8*4096-1024)}, v{vD2}")
        f(f"v_and_b32 v{vU}, 0x70, v{vL16}")
        f(f"v_lshrrev_b32 v{t0}, 3, v{vL}")
        f(f"v_lshl_add_u32 v{vHL}, v{t0}, {7+z}, v{vU}")
        f(f"v_lshl_add_u32 v{vU}, v{t0}, {7+zu}, v{vU}")
        for t in range(1, 5):
            f(f"v_add_u32 v{vU+t}, {(t*49152) << zu}, v{vU}")
        for k, (lo, cnt) in enumerate(((0, 24), (24, 36))):
            f(f"v_min_u32 v{t0}, {cnt-1}, v{vL}")
            f(f"v_mul_u32_u24 v{t1}, 43, v{t0}")
            f(f"v_lshrrev_b32 v{t1}, 9, v{t1}            ; n/12")
            f(f"v_mul_u32_u24 v{t1}, 18, v{t1}")
            f(f"v_lshrrev_b32 v{t2}, 1, v{t0}")
            f(f"s_mul_i32 s{sT0}, s{sJ}, 120\ns_mul_i32 s{sT1}, s{sW}, 6\ns_add_u32 s{sT0}, s{sT0}, s{sT1}\nv_add3_u32 v{t1}, v{t1}, v{t2}, s{sT0}")
            f(f"v_and_b32 v{t0}, 1, v{t0}")
            f(f"v_lshlrev_b32 v{t0}, 2, v{t0}")
            f(f"v_lshl_add_u32 v{vFU+k}, v{t1}, {c.fus}, v{t0}")
            f(f"v_add_u32 v{vFU+k}, {FU_OFF + ((lo // 12 * 24) << c.fus)}, v{vFU+k}")
        srd(f, RW2, W2, S * F * 2)
        srd(f, ROUT, OUT, S * D * 2)
    def setup_g1(f):
        f(f"v_lshlrev_b32 v{vFH}, {c.fhs}, v0")
        f(f"v_add_u32 v{vFH}, {FH_OFF}, v{vFH}")
        for p in range(4):
            f(f"s_lshr_b32 s{sT0}, s{sW}, 1\ns_xor_b32 s{sT0}, s{sT0}, {(p&1)^1}\ns_add_u32 s{sT0}, s{sT0}, s{sS}\ns_add_u32 s{sT0}, s{sT0}, {p&2}\ns_and_b32 s{sT0}, s{sT0}, 3\ns_lshl_b32 s{sT1}, s{sT0}, {16+z}\nv_add_u32 v{vH+p}, s{sT1}, v{vHL}")
        for h, su in enumerate((sUS0, sUS1)):
            f(f"s_mul_i32 s{su}, s{su}, 48\ns_lshl_b32 s{sT0}, s{sFT}, 1\ns_add_u32 s{su}, s{su}, s{sT0}\ns_and_b32 s{sT1}, s{sW}, 1\ns_add_u32 s{su}, s{su}, s{sT1}\ns_lshl_b32 s{su}, s{su}, {10+zu}\ns_add_u32 s{su}, s{su}, {U_OFF}")
        f(f"s_lshl_b32 s{sT3}, {0 if c.fake & 1 else 's%d' % sDT}, {18+z}\ns_lshl_b32 s{sT1}, s{sW}, {14+z}\ns_add_u32 s{sT3}, s{sT3}, s{sT1}\ns_add_u32 s{sT3}, s{sT3}, {H_OFF}")
        for i in range(NS1):
            f(f"s_add_u32 s{sT1}, s{sROT1}, {i}\ns_and_b32 s{sT1}, s{sT1}, 15\ns_lshl_b32 s{sT1}, s{sT1}, {10+z}\ns_add_u32 s{sK+i}, s{sT1}, s{sT3}")
        for k in range(4):
            f(f"s_xor_b32 s{sT0}, s{sW}, {k}\ns_mul_i32 s{sT0}, s{sT0}, 12288\ns_add_u32 s{sT0}, s{sT0}, {RED}\nv_add_u32 v{vR+k}, s{sT0}, v{vL16}")
        c1 = -2.0 * math.log2(math.e) * math.sqrt(2.0 / math.pi)
        f(f"v_mov_b32 v{vC1}, {f32(c1)}")
        f(f"v_mov_b32 v{vC1+1}, {f32(c1*0.044715)}")
        f(lambda: a.wait("b1"))
        for p in (1, 3):
            for k in range(4):
                f(f"v_lshlrev_b32 v{ACC+16*p+2*k}, 16, v{vB1+k}")
                f(f"v_and_b32 v{ACC+16*p+2*k+1}, 0xffff0000, v{vB1+k}")
    fl = Fill(a)
    if c.hearly:
        a("s_cmp_ge_u32 s2, 240")
        a("s_cbranch_scc1 L_idle")
    setup_common(fl)
    fl(lambda: setattr(w1, "can_read", True))
    setup_g2(fl)
    for _ in range(c.w1_mid):
        w1.step(fl, older_than="hst")
    fl.flush()
    a.wait("hst")
    stamp(3)
    flag_add(0)
    if not c.hearly:
        a("s_cmp_ge_u32 s2, 240")
        a("s_cbranch_scc1 L_idle")
    setup_g1(fl)
    fl.emit(2)
    sE, sGRP, sM0 = 6, 9, 12
    def w2offs(f):
        f(f"s_mul_i32 s{sT0}, s{sW}, {12*32*4096}\ns_lshl_b32 s{sT1}, s{sST}, 7\ns_add_u32 s{sT0}, s{sT0}, s{sT1}\ns_add_u32 s{sT1}, s{sT0}, {12*32*4096}\n"
          f"s_mul_i32 s{sE}, s{sROT2}, {32*4096}\ns_add_u32 s{sE}, s{sE}, s{sT0}\n"
          + "\n".join(f"s_add_u32 s{sE+k}, s{sE+k-1}, {32*4096}\ns_cmp_eq_u32 s{sE+k}, s{sT1}\ns_cselect_b32 s{sE+k}, s{sT0}, s{sE+k}" for k in range(1, c.w2e + 1)))
    if c.w2e:
        w2offs(a)
        a(f"s_lshr_b32 s{sGRP}, s2, {c.esh}")
        a(f"s_and_b32 s{sGRP}, s{sGRP}, {c.egrp-1}")
    while w1.left() > c.ov1:
        if c.wbar and (w1.left() - c.wbo) % c.wbar == 0:
            a("s_barrier")
        if w1.left() == c.pe1 + c.ov1:
            a.vm(poll_load("h"), "hpoll")
        if c.w2e and w1.n >= c.e0 and (w1.n - c.e0) % c.estep == 0 and (w1.n - c.e0) // c.estep < c.egrp:
            g = (w1.n - c.e0) // c.estep
            a(f"s_cmp_lg_u32 s{sGRP}, {g}")
            a(f"s_cbranch_scc1 L_e{g}")
            a(f"s_mov_b32 s{sM0}, m0")
            for k in range(c.w2e):
                a(f"s_add_u32 m0, s{sLDS}, {(WSLOT-c.w2e+k)*4096}")
                a("s_nop 0")
                for j in range(4):
                    a(f"buffer_load_dwordx4 v{vD2+j}, s[{RW2}:{RW2+3}], s{sE+k} offen offset:{1024*j} lds")
            a(f"s_mov_b32 m0, s{sM0}")
            a("s_nop 0")
            a(f"L_e{g}:")
        w1.step(fl)
    assert not c.w2e or c.e0 + (c.egrp - 1) * c.estep < 64
    if c.pe1 == 0:
        a.vm(poll_load("h"), "hpoll")
    fl.flush()
    a.wait("hpoll")
    stamp(4)
    spin("h")
    stamp(5)
    N1 = 64
    def hissue(n):
        r = RING + 4 * (n % NRING)
        a.vm(f"buffer_load_dwordx4 v[{r}:{r+3}], v{vH+n//16}, s[{RWS}:{RWS+3}], s{sK+n%16} offen sc1", f"h{n}")
    def pace():
        if c.thr and len(a.q) >= c.thr:
            tg = a.q[-c.thr]
            if tg.startswith("w"):
                a.wait(tg)
    hst_ = [c.d0 if c.ov1 else (c.hi or c.hd)]
    for n in range(hst_[0]):
        pace()
        hissue(n)
        w1.reads(2)
    if not c.ov1:
        w1.drain()
    def w2setup(done):
        a(f"s_mul_i32 s{sWO0}, s{sW}, {12*32*4096}")
        a(f"s_lshl_b32 s{sT0}, s{sST}, 7")
        a(f"s_add_u32 s{sWO0}, s{sWO0}, s{sT0}")
        a(f"s_add_u32 s{sWOE}, s{sWO0}, {12*32*4096}")
        if c.nh:
            a(f"s_mov_b32 m0, s{sLDS}")
            a(step_off(sWO, sWO0, 0, 17))
        elif done:
            a(f"s_mov_b32 m0, s{sLDS}")
            a(f"s_mov_b32 s{sWO}, s{sE+done}")
        else:
            a(f"s_mul_i32 s{sT0}, s{sROT2}, {32*4096}")
            a(f"s_add_u32 m0, s{sLDS}, {((WSLOT-c.w2e)%WSLOT)*4096}")
            a(f"s_add_u32 s{sWO}, s{sWO0}, s{sT0}")
    if not c.ov1:
        w2setup(c.w2e)
        a.dwait()
    stamp("g1s")
    w2 = W(2)
    w2.n = 4 * c.w2e
    w2.can_read = False
    def plan(m, st, w, issue, total, depth, tail):
        ops = []
        nw = min(c.wpp, w.left())
        want = min(total, 2 * m + 2 + (c.d0 if nw else depth))
        na = min(want - st[0], 2 if nw else c.ramp)
        acts = [lambda n=st[0] + k: issue(n) for k in range(na)]
        st[0] += na
        ws_ = [w.issue] * nw
        while acts or ws_:
            for _ in range((c.wpp + 1) // 2):
                if ws_:
                    ops.append(ws_.pop(0))
            if acts:
                ops.append(acts.pop(0))
        if not ops and st[0] == total:
            ops = tail()
        gaps = {0: [], 1: [1], 2: [c.lg0, c.lg1], 3: [1, 3, 5], 4: [0, 2, 4, 6], 5: [0, 1, 3, 4, 6], 6: [0, 1, 2, 4, 5, 6], 7: list(range(7)), 8: list(range(8))}[len(ops)]
        return dict(zip(gaps, ops))
    def need_steps(w, upto):
        if w.rd < 8 * (upto + 1):
            a.wait(w.tag(4 * upto + 3))
            w.reads(8 * (upto + 1) - w.rd)
        for i in range(upto + 1):
            a.dwait(f"r{w.kind}_{i}")
    def spread(nf):
        if c.lg0 >= 0:
            free = [g for g in range(8) if g not in (c.lg0, c.lg1)]
            free.sort(key=lambda g: g == 7)
            per = [0] * 8
            for x in range(nf):
                per[free[x % len(free)]] += 1
            return per
        if c.gap2:
            return [0 if g % 2 == 0 else nf // 4 + (1 if g // 2 < nf % 4 else 0) for g in range(8)]
        return [nf // 8 + (1 if g < nf % 8 else 0) for g in range(8)]
    def red_write(f, p, aa):
        cw = ACC + 16 * p + 4 * aa
        slot = aa if p % 2 == 0 else 2 + aa
        if p < 3 and c.w32 >> p & 1:
            for r in range(4):
                f(costly(lambda r=r: a.ds(f"ds_write_b32 v{vR}, v{cw+r} offset:{(p//2)*6144+slot*1024+4*r}", f"rw{p}"), 16))
                if r % 2 == 1:
                    f.delay(1)
            return
        f(costly(lambda: a.ds(f"ds_write_b128 v{vR}, v[{cw}:{cw+3}] offset:{(p//2)*6144+slot*1024}", f"rw{p}"), 16))
        if c.cst and p < 3:
            f.delay(c.wsk)
    def red_finish(f, h):
        P0, P1, T = ACC + 32 * h, ACC + 32 * h + 16, RD + 12 * h
        for x, (k, slot, dst) in enumerate(((2, 0, P0), (3, 2, P0 + 8), (1, 4, P1 + 8), (2, 1, P0 + 4), (3, 3, P0 + 12), (1, 5, P1 + 12))):
            f(lambda k=k, slot=slot, dst=dst, x=x: a.ds(f"ds_read_b128 v[{dst}:{dst+3}], v{vR+k} offset:{h*6144+slot*1024}", f"rr{h}_{x}"))
        if c.cst and h == 0:
            f.delay(c.dly)
        if h == 1 and c.pk1:
            def pk(op, d, *src):
                f(f"v_pk_{op}_f32 v[{d}:{d+1}], " + ", ".join(x if isinstance(x, str) else f"v[{x}:{x+1}]" for x in src))
            for half in range(2):
                f(lambda half=half: a.dwait(f"rr{h}_{3*half+2}"))
                for r in (4 * half, 4 * half + 2):
                    pk("add", P0 + r, P0 + r, P0 + 8 + r)
                    pk("add", P1 + r, P1 + r, P1 + 8 + r)
                for r in (4 * half, 4 * half + 2):
                    pk("add", P1 + r, P1 + r, P0 + r)
            for r in range(0, 8, 2):
                pk("mul", T + r, P1 + r, P1 + r)
            for r in range(0, 8, 2):
                f(f"v_pk_fma_f32 v[{T+r}:{T+r+1}], v[{T+r}:{T+r+1}], v[{vC1}:{vC1+1}], v[{vC1}:{vC1+1}] op_sel:[0,1,0] op_sel_hi:[1,1,0]")
            for r in range(0, 8, 2):
                pk("mul", T + r, T + r, P1 + r)
            for r in range(8):
                f(f"v_exp_f32 v{T+r}, v{T+r}")
            for r in range(0, 8, 2):
                f(f"v_pk_add_f32 v[{T+r}:{T+r+1}], v[{T+r}:{T+r+1}], 1.0 op_sel_hi:[1,0]")
            for r in range(8):
                f(f"v_rcp_f32 v{T+r}, v{T+r}")
            for r in range(0, 8, 2):
                pk("mul", T + r, T + r, P1 + r)
            for r in range(4):
                f(f"v_cvt_pk_bf16_f32 v{T+8+r}, v{T+2*r}, v{T+2*r+1}")
            f(lambda: a.vm(f"buffer_store_dwordx4 v[{T+8}:{T+11}], v{vU}, s[{RWS}:{RWS+3}], s{sUS1} offen sc1", "ust1"))
            return
        for half in range(2):
            f(lambda half=half: a.dwait(f"rr{h}_{3*half+2}"))
            for r in range(4 * half, 4 * half + 4):
                f(f"v_add_f32 v{P0+r}, v{P0+r}, v{P0+8+r}")
                f(f"v_add_f32 v{P1+r}, v{P1+r}, v{P1+8+r}")
            for r in range(4 * half, 4 * half + 4):
                f(f"v_add_f32 v{P1+r}, v{P1+r}, v{P0+r}")
        for r in range(8):
            f(f"v_mul_f32 v{T+r}, v{P1+r}, v{P1+r}")
        for r in range(8):
            f(f"v_fma_f32 v{T+r}, v{T+r}, v{vC1+1}, v{vC1}")
        for r in range(8):
            f(f"v_mul_f32 v{T+r}, v{T+r}, v{P1+r}")
        for r in range(8):
            f(f"v_exp_f32 v{T+r}, v{T+r}")
        for r in range(8):
            f(f"v_add_f32 v{T+r}, 1.0, v{T+r}")
        for r in range(8):
            f(f"v_rcp_f32 v{T+r}, v{T+r}")
        for r in range(8):
            f(f"v_mul_f32 v{T+r}, v{T+r}, v{P1+r}")
        for r in range(4):
            f(f"v_cvt_pk_bf16_f32 v{T+8+r}, v{T+2*r}, v{T+2*r+1}")
        su = sUS0 if h == 0 else sUS1
        if c.jit:
            f(lambda: jitter(9 + 2 * h))
        f(lambda: a.vm(f"buffer_store_dwordx4 v[{T+8}:{T+11}], v{vU}, s[{RWS}:{RWS+3}], s{su} offen sc1", f"ust{h}"))
    deferred1 = []
    for m in range(N1 // 2):
        p, i = m // 8, 2 * (m % 8)
        stamp(f"g1_{m}")
        if hst_[0] == N1 and w2.n == 4 * c.w2e:
            stamp("t0")
        ops = plan(m, hst_, w1, hissue, N1, c.hd, lambda: [w2.issue] * c.w2_tail)
        if c.ov1 and m == 8:
            assert w1.left() == 0 and w1.rd == 8 * NS1
            w2setup(c.w2e)
        if m % 8 == 1 and p >= 1:
            rest, fl.g = (fl.g, []) if c.cst == 2 else ([], fl.g)
            for aa in (range(4) if p % 2 == 1 else (2, 3)):
                red_write(fl, p - 1, aa)
            fl.g += rest
        a.wait(f"h{2*m+1}")
        if m < 8:
            need_steps(w1, 2 * m + 1)
        if c.al8:
            a(".p2align 3")
        per = spread(c.g1fill)
        order = (2, 3, 0, 1) if m == N1 // 2 - 1 else (0, 1, 2, 3)
        for ti, t in enumerate(order):
            for e0 in range(2):
                e = e0 ^ (ti & 1) if c.serp else e0
                rb = RING + 4 * ((2 * m + e) % NRING)
                cc = ACC + 16 * p + 4 * t
                src = "0" if (i == 0 and e0 == 0 and not (p % 2 == 1 and t < 2)) else f"v[{cc}:{cc+3}]"
                ra = 16 * (i + e) + 4 * t
                ins = f"v_mfma_f32_16x16x32_bf16 v[{cc}:{cc+3}], a[{ra}:{ra+3}], v[{rb}:{rb+3}], {src}"
                if t < 2 and m >= N1 // 2 - c.defer1:
                    deferred1.append(ins)
                elif not (c.fake & 4):
                    a(ins)
                if 2 * ti + e0 in ops:
                    ops[2 * ti + e0]()
                if m < 8:
                    w1.reads(2)
                if c.cst:
                    fl.gap(0 if 2 * ti + e0 in ops else c.gb1)
                else:
                    fl.emit(per[2 * ti + e0])
        if c.gbar and m % c.gbar == c.gbar - 1 and m != c.g1bar and m < 28:
            a("s_barrier")
        if m == c.g1bar:
            fl.g = [x for x in fl.g if not getattr(x, "skip", 0)]
            assert not fl.g
            a.dwait()
            if not (c.fake & 16):
                a("s_barrier")
            red_finish(fl, 0)
            if c.fake & 8:
                fl.g = [x if callable(x) else (lambda: None) for x in fl.g]
    fl.flush()
    stamp(6)
    w2.can_read = True
    if c.defer1:
        for _ in range(6):
            a(deferred1.pop(0) if deferred1 else "s_nop 0")
        red_write(fl, 3, 2)
        fl.flush()
        a(deferred1.pop(0) if deferred1 else "s_nop 0")
        red_write(fl, 3, 3)
        fl.flush()
        for x in deferred1:
            a(x)
    else:
        a("s_nop 3")
        red_write(fl, 3, 2)
        red_write(fl, 3, 3)
        fl.flush()
    w2.issue()
    a.dwait()
    a("s_barrier")
    red_finish(fl, 1)
    fl.emit(6)
    k = 0
    flagged = False
    while fl.g:
        if k == c.fe_pos:
            a.wait("ust0")
            stamp("fe")
            flag_add(1)
            flagged = True
        if k < c.w2_un:
            w2.step(fl, throttle=False)
        else:
            fl.emit(c.fillk)
        k += 1
    stamp(7)
    if not flagged:
        a.wait("ust0")
        stamp("fe")
        flag_add(1)
    if c.ep:
        a.vm(poll_load("a"), "apoll0")
    for _ in range(c.w2_mid):
        w2.step(None, older_than="ust1")
    a.wait("ust1")
    flag_add(2)
    if c.eat:
        a(f"s_or_b32 s{sT0}, s2, s{sW}")
        a("s_cbranch_scc1 L_join")
        a(f"s_atomic_add s{sED}, s[{FB}:{FB+1}], {EP_OFF-FH_OFF}")
    a("L_join:")
    join_n, join_rd = w2.n, w2.rd
    stamp(8)
    fl(f"s_mul_i32 s{sT3}, {0 if c.fake & 2 else 's%d' % sJ}, {(5*49152) << zu}\ns_mul_i32 s{sT1}, s{sW}, {12288 << zu}\ns_add_u32 s{sT3}, s{sT3}, s{sT1}\ns_add_u32 s{sT3}, s{sT3}, {U_OFF}")
    if c.nh:
        for i in range(NS2):
            fl(step_off(sK + i, sT3, i, 10 + zu))
    else:
        fl(f"s_add_u32 s{sUS1}, s{sT3}, {12288 << zu}\ns_lshl_b32 s{sK}, s{sROT2}, {10+zu}\ns_add_u32 s{sK}, s{sK}, s{sT3}")
        for i in range(1, NS2):
            fl(f"s_add_u32 s{sK+i}, s{sK+i-1}, {1024 << zu}\ns_cmp_eq_u32 s{sK+i}, s{sUS1}\ns_cselect_b32 s{sK+i}, s{sT3}, s{sK+i}")
    fl(f"v_lshlrev_b32 v{vB2}, 16, v{vB2}")
    for t in range(5):
        for r in range(4):
            fl(f"v_mov_b32 v{ACC+16*t+r}, v{vB2}")
    for k in range(4):
        fl(f"s_xor_b32 s{sT0}, s{sW}, {k}\ns_mul_i32 s{sT0}, s{sT0}, {WSLOT*4096}\nv_add_u32 v{vR+k}, s{sT0}, v{vL16}")
    if c.omap:
        fl(f"s_lshl_b32 s{sUS0}, s{sJ}, 7\ns_lshl_b32 s{sT3}, s{sJ}, 5\ns_add_u32 s{sT3}, s{sT3}, 1024")
    else:
        fl(f"s_mul_i32 s{sUS0}, s{sJ}, 160\ns_add_u32 s{sT3}, s{sUS0}, 128")
    assert w2.left() >= c.pe2 + c.ov2
    while w2.left() > c.ov2:
        if c.wbar and (w2.left() - c.wbo) % c.wbar == 0:
            a("s_barrier")
        if w2.left() == c.pe2 + c.ov2 + 1 and c.ep:
            assert not a.pending("apoll0")
            poll_test("a")
        if w2.left() == c.pe2 + c.ov2:
            if c.ep:
                a("s_cbranch_vccz L_noa")
                a(poll_load("a"))
                a("L_noa:")
            else:
                a.vm(poll_load("a"), "apoll")
        w2.step(fl)
    if c.pe2 == 0:
        a.vm(poll_load("a"), "apoll")
    fl.flush()
    if c.ep:
        a(f"s_waitcnt vmcnt({c.pe2})")
        a.q = a.q[-c.pe2:]
    a.wait("apoll")
    stamp(9)
    spin("a")
    stamp(10)
    N2 = 60
    def uissue(n):
        if n == 24 - c.pbl:
            a.vm(poll_load("b"), "bpoll")
        if n == 23 and c.pbo:
            a.wait("bpoll")
            poll_test("b")
        if n == 24:
            if c.pbo:
                a("s_cbranch_vccnz L_pb_spin")
                a("L_pb_ok:")
            else:
                a.wait("bpoll")
                spin("b")
            stamp("pb")
        r = RING + 4 * (n % NRING)
        a.vm(f"buffer_load_dwordx4 v[{r}:{r+3}], v{vU+n//12}, s[{RWS}:{RWS+3}], s{sK+n%12} offen sc1", f"u{n}")
    ust_ = [c.d0 if c.ov2 else (c.hi or c.ud)]
    for n in range(ust_[0]):
        pace()
        uissue(n)
        w2.reads(2)
    if not c.ov2:
        w2.drain()
        a.dwait()
    stamp("g2s")
    def fin_reads(f, ts):
        for t in ts:
            for k in range(1, 4):
                cr = ACC + 16 * t + 4 * k
                f(lambda t=t, k=k, cr=cr: a.ds(f"ds_read_b128 v[{cr}:{cr+3}], v{vR+k} offset:{(k-1)*5120+t*1024}", f"fr{t}"))
    def fin(f, t):
        f(lambda: a.dwait(f"fr{t}"))
        cc = ACC + 16 * t
        if t == 4 and c.pkfin:
            for r in (0, 2):
                f(f"v_pk_add_f32 v[{cc+r}:{cc+r+1}], v[{cc+r}:{cc+r+1}], v[{cc+4+r}:{cc+5+r}]")
                f(f"v_pk_add_f32 v[{cc+8+r}:{cc+9+r}], v[{cc+8+r}:{cc+9+r}], v[{cc+12+r}:{cc+13+r}]")
            for r in (0, 2):
                f(f"v_pk_add_f32 v[{cc+r}:{cc+r+1}], v[{cc+r}:{cc+r+1}], v[{cc+8+r}:{cc+9+r}]")
            for r in (0, 2):
                f(f"v_cvt_pk_bf16_f32 v{RD+2*t+r//2}, v{cc+r}, v{cc+r+1}")
            return
        for r in range(4):
            f(f"v_add_f32 v{cc+r}, v{cc+r}, v{cc+4+r}")
            f(f"v_add_f32 v{cc+8+r}, v{cc+8+r}, v{cc+12+r}")
        for r in range(4):
            f(f"v_add_f32 v{cc+r}, v{cc+r}, v{cc+8+r}")
        for r in (0, 2):
            f(f"v_cvt_pk_bf16_f32 v{RD+2*t+r//2}, v{cc+r}, v{cc+r+1}")
    def ostore(pp):
        a.vm(f"buffer_store_dwordx4 v[{RD+4*pp}:{RD+4*pp+3}], v{vO}, s[{ROUT}:{ROUT+3}], s{sUS0} offen offset:{64*pp}{OP[c.opol] if c.osc >> pp & 1 else ''}", "o")
    stored0 = [False]
    deferred = []
    for m in range(N2 // 2):
        t, i = m // 6, 2 * (m % 6)
        stamp(f"g2_{m}")
        def tail2():
            if stored0[0] or c.o0b:
                return []
            stored0[0] = True
            return [lambda: ostore(0)]
        ops = plan(m, ust_, w2, uissue, N2, c.ud, tail2)
        if m % 6 == 1 and t >= 1:
            rest, fl.g = fl.g, []
            for b in range(1, 4):
                cw = ACC + 16 * (t - 1) + 4 * b
                if c.w32 & 8 and t < 4:
                    for r in range(4):
                        fl(costly(lambda cw=cw, b=b, t=t, r=r: a.ds(f"ds_write_b32 v{vR}, v{cw+r} offset:{(b-1)*5120+(t-1)*1024+4*r}", "fw"), 16))
                        if r % 2 == 1:
                            fl.delay(1)
                    continue
                fl(costly(lambda cw=cw, b=b, t=t: a.ds(f"ds_write_b128 v{vR}, v[{cw}:{cw+3}] offset:{(b-1)*5120+(t-1)*1024}", "fw"), 16))
                if c.cst:
                    fl.delay(c.wsk)
            fl.g += rest
        a.wait(f"u{2*m+1}")
        if m < 6:
            need_steps(w2, 2 * m + 1)
        if c.al8:
            a(".p2align 3")
        per = spread(c.g2l if m > c.g2b1 else c.g2f)
        for bi, b in enumerate((1, 2, 3, 0)):
            for e0 in range(2):
                e = e0 ^ (bi & 1) if c.serp else e0
                ra = RING + 4 * ((2 * m + e) % NRING)
                cc = ACC + 16 * t + 4 * b
                src = "0" if (i == 0 and e0 == 0 and b) else f"v[{cc}:{cc+3}]"
                rb = 16 * (i + e) + 4 * b
                ins = f"v_mfma_f32_16x16x32_bf16 v[{cc}:{cc+3}], v[{ra}:{ra+3}], a[{rb}:{rb+3}], {src}"
                if b == 0 and m >= N2 // 2 - c.defer:
                    deferred.append(ins)
                elif not (c.fake & 4):
                    a(ins)
                if 2 * bi + e0 in ops:
                    ops[2 * bi + e0]()
                if m < 6:
                    w2.reads(2)
                if c.cst:
                    gb = c.gb3 if m > c.g2b1 else c.gb2
                    if not (b == 0 and m >= N2 // 2 - c.defer):
                        fl.gap(0 if 2 * bi + e0 in ops else gb)
                else:
                    fl.emit(per[2 * bi + e0])
        if c.gbar and m % c.gbar == c.gbar - 1 and m not in (c.g2b0, c.g2b1) and m < 25:
            a("s_barrier")
        if m in (c.g2b0, c.g2b1):
            fl.g = [x for x in fl.g if not getattr(x, "skip", 0)]
            assert not fl.g
            a.dwait()
            if not (c.fake & 16):
                a("s_barrier")
            nfirst = 3 if c.g2b0 >= 19 else 2
            ts = tuple(range(nfirst)) if m == c.g2b0 else tuple(range(nfirst, 4))
            fin_reads(fl, ts)
            if m == c.g2b1 and c.o0b:
                assert ust_[0] == N2
                fl(lambda: ostore(0))
            if c.cst:
                fl.delay(c.dly if m == c.g2b0 else 2)
            for tt in ts:
                fin(fl, tt)
            if c.fake & 8:
                fl.g = [x if callable(x) else (lambda: None) for x in fl.g]
            if m == c.g2b1:
                fl(lambda: ostore(1))
            elif c.o0e:
                fl(lambda: ostore(0))
                stored0[0] = True
    stamp(11)
    def pad_states(k):
        while k > 0 and deferred:
            a(deferred.pop(0)); k -= 1
        if k > 0:
            a(f"s_nop {k-1}")
    pad_states(4 if c.defer else 2)
    for b in range(1, 4):
        cw = ACC + 64 + 4 * b
        if b > 1:
            pad_states(1)
        a.ds(f"ds_write_b128 v{vR}, v[{cw}:{cw+3}] offset:{(b-1)*5120+4096}")
    late = len(deferred)
    pad_states(late)
    fl.flush()
    a.dwait()
    a("s_barrier")
    stamp("e2")
    fin_reads(fl, (4,))
    fl.flush()
    if c.stamp:
        a.dwait()
    if c.defer:
        a("s_nop 1")
    fin(fl, 4)
    fl.flush()
    a(f"buffer_store_dwordx2 v[{RD+8}:{RD+9}], v{vO+1}, s[{ROUT}:{ROUT+3}], s{sT3} offen{OP[c.opol] if c.osc & 4 else ''}")
    if not c.eat:
        a(f"s_or_b32 s{sT0}, s2, s{sW}")
        a("s_cbranch_scc1 L_noepoch")
        a(f"v_mov_b32 v{t5}, {EP_OFF}")
        flag_store(t5, None, "")
        a("L_noepoch:")
    if c.stamp:
        stamp("e3")
        a("s_waitcnt vmcnt(0)")
        stamp(12)
        a(f"s_lshl_b32 s{sT0}, s2, 3")
        a(f"s_add_u32 s{sT0}, s{sT0}, s{sW}")
        a(f"s_lshl_b32 s{sT0}, s{sT0}, 6")
        a(f"s_add_u32 s{sT0}, s{sT0}, {ST_OFF}")
        a(f"v_mov_b32 v{t0}, s{sT0}")
        a("s_waitcnt lgkmcnt(0)")
        for i in range(13):
            a(f"v_mov_b32 v{t1}, s{STB+2*i}")
            a(f"global_store_dword v{t0}, v{t1}, s[{WS}:{WS+1}] offset:{4*i}")
    if c.pad:
        a("s_waitcnt vmcnt(0)")
        stamp("end")
        a("s_waitcnt lgkmcnt(0)")
        a("s_sub_u32 s64, s98, s100")
        if c.padx == -2:
            a(f"v_mov_b32 v{t0}, {ST_OFF}")
            a(f"global_load_dword v{t1}, v{t0}, s[{WS}:{WS+1}] sc1")
            a("s_waitcnt vmcnt(0)")
            a(f"v_readfirstlane_b32 s100, v{t1}")
            a("s_nop 3")
            a("s_sub_u32 s64, s98, s100")
            a("s_min_u32 s64, s64, 4000")
        if c.padx >= 0:
            a(f"s_cmp_lg_u32 s2, {c.padx}")
            a("s_cbranch_scc1 L_end")
            a(f"v_mov_b32 v{t0}, {ST_OFF}")
            a(f"global_load_dword v{t1}, v{t0}, s[{WS}:{WS+1}] sc1")
            a("s_waitcnt vmcnt(0)")
            a(f"v_readfirstlane_b32 s64, v{t1}")
            a("s_nop 3")
            a("s_sub_u32 s64, s100, s64")
            a("s_add_u32 s64, s64, 100")
            a("s_min_u32 s64, s64, 1000")
        a(f"s_mul_i32 s64, s64, {c.mult}")
        a("s_add_u32 s64, s64, 10000")
        a(f"s_mov_b32 s{sCNT}, 0")
        a("L_pad:")
        a("s_memrealtime s[66:67]")
        a("s_waitcnt lgkmcnt(0)")
        a(f"s_add_u32 s{sCNT}, s{sCNT}, 1")
        a(f"s_cmp_ge_u32 s{sCNT}, 200000\ns_cbranch_scc1 L_end")
        a("s_sub_u32 s66, s66, s100")
        a("s_cmp_lt_u32 s66, s64\ns_cbranch_scc1 L_pad")
    a("s_endpgm")
    if c.pbo:
        a("L_pb_spin:")
        a(f"s_mov_b32 s{sCNT}, 0")
        a("L_pb_l:")
        a(poll_load("b"))
        a(f"s_add_u32 s{sCNT}, s{sCNT}, 1")
        a(f"s_cmp_ge_u32 s{sCNT}, {SPIN_CAP}")
        a("s_cbranch_scc1 L_pb_ok")
        a("s_waitcnt vmcnt(0)")
        poll_test("b")
        a("s_cbranch_vccnz L_pb_l")
        a("s_branch L_pb_ok")
    a("L_idle:")
    if c.hearly:
        srd(a, RW2, W2, S * F * 2)
    else:
        a("s_waitcnt vmcnt(0) lgkmcnt(0)")
    a.q, a.lq = [], []
    if c.pad and c.padat in ("4", "5", "6", "7", "t0", "fe", "g1s"):
        stamp(c.padat)
    if c.stamp:
        for nm in SETS[c.sset]:
            if nm in (4, 5, 6, 7, "t0", "fe", "g1s") or str(nm).startswith(("w1_", "g1_", "w2_22")):
                stamp(nm)
    if c.nh:
        a(f"s_bfe_u32 s{sT1}, s2, 0x10003")
        if c.nh == 4 and c.iw == 0:
            a(f"s_mul_i32 s{sROT2}, s{sT1}, {(12-c.nh)//2}")
        if c.nh == 4 and c.iw == 2:
            a(f"s_lshl_b32 s{sT0}, s{sT1}, 2")
            a(f"s_bitcmp0_b32 s{sST}, 2")
            a(f"s_cselect_b32 s{sROT2}, s{sT0}, s{sROT2}")
        a(f"s_lshl_b32 s{sT1}, s{sT1}, 16")
        a(f"s_mul_i32 s{sT0}, s{sW}, {12*32*4096}")
        a(f"s_add_u32 s{sT0}, s{sT0}, s{sT1}")
        a(f"s_lshr_b32 s{sT1}, s{sST}, 2")
        a(f"s_lshl_b32 s{sT1}, s{sT1}, 9")
        a(f"s_add_u32 s{sT3}, s{sT0}, s{sT1}")
        sh = c.hsec + 1
        a(f"v_lshrrev_b32 v{vH}, {sh}, v{vL}")
        a(f"v_lshlrev_b32 v{vH}, 12, v{vH}")
        a(f"v_and_b32 v{t1}, {(1<<sh)-1}, v{vL}")
        a(f"v_lshl_add_u32 v{vH}, v{t1}, {9-sh}, v{vH}")
        for r in range(c.nh * c.hsec):
            a(f"buffer_load_dword v{vH+1}, v{vH}, s[{RW2}:{RW2+3}], s{sT3} offen")
            inc = 32 if c.hsec == 1 else (8 if r % 2 == 0 else 24)
            a(f"s_add_u32 s{sT3}, s{sT3}, {inc*4096}")
            if c.hearly and r == 0:
                setup_common(a)
                setup_g2(a)
                a("s_waitcnt vmcnt(1)")
                stamp(3)
                flag_add(0)
            a(f"s_waitcnt vmcnt({c.hq-1})")
    elif c.helper:
        a(f"s_bfe_u32 s{sT1}, s2, 0x10003")
        a(f"s_mul_i32 s{sROT2}, s{sT1}, 6")
    w2setup(0)
    wi = W(2)
    while wi.n < join_n:
        if c.iw and wi.n == 4 * (c.nh + 1):
            if c.iw == 2:
                a(f"s_bitcmp0_b32 s{sST}, 2")
                a("s_cbranch_scc1 L_iw_ok")
            a(f"s_mov_b32 s{sCNT}, 0")
            a("L_iw:")
            if c.islp:
                a(f"s_sleep {c.islp}")
            a(poll_load("a"))
            a(f"s_add_u32 s{sCNT}, s{sCNT}, 1")
            a(f"s_cmp_ge_u32 s{sCNT}, {SPIN_CAP}")
            a("s_cbranch_scc1 L_iw_ok")
            a("s_waitcnt vmcnt(0)")
            poll_test("a")
            a("s_cbranch_vccnz L_iw")
            a("L_iw_ok:")
        wi.issue()
    if c.ep:
        a(f"v_not_b32 v{vP}, v{vTAG}")
    a("s_waitcnt vmcnt(0)")
    a.q = []
    wi.reads(join_rd - wi.rd)
    assert wi.rd == join_rd, (wi.rd, join_rd)
    a.dwait()
    a("s_branch L_join")
    a("L_end:\ns_endpgm")
    a(f""".section .rodata,"a"
.p2align 6
.amdhsa_kernel {NAME}
  .amdhsa_next_free_vgpr 512
  .amdhsa_next_free_sgpr 102
  .amdhsa_accum_offset 256
  .amdhsa_group_segment_fixed_size 0
  .amdhsa_kernarg_size 64
  .amdhsa_user_sgpr_count 2
  .amdhsa_user_sgpr_kernarg_segment_ptr 1
  .amdhsa_system_sgpr_workgroup_id_x 1
  .amdhsa_float_denorm_mode_32 3
.end_amdhsa_kernel""")
    return a.text()

if __name__ == "__main__":
    c = Cfg()
    out = sys.argv[1]
    for x in sys.argv[2:]:
        k, v = x.split("=")
        assert hasattr(c, k), k
        setattr(c, k, v if k == 'padat' else int(v))
    open(out, "w").write(gen(c))
```

```python
import sys, struct, math

def f32(x):
    return "0x%08x" % struct.unpack("<I", struct.pack("<f", x))[0]

S, D, F = 2048, 640, 1536
FH_OFF = 0
EP_OFF = FH_OFF + (16 << 10)
FU_OFF = FH_OFF + (32 << 10)
ST_OFF = 16 << 20
NAME = "standalone__mixer_token_mlp__prompt_kernel"
SPIN_CAP = 400000
OP = [" sc1", " nt", " sc0", " sc0 nt", " sc1 nt"]

HEADER = """; MLP-Mixer token mixing, one launch:  out = (gelu(LN(x)^T w1 + b1) w2 + b2)^T
; kernarg: x(0) w1(8) b1(16) w2(24) b2(32) out(40) debug(48) ws(56); S=2048 D=640 F=1536, all bf16.
;
; The workgroup -> tile maps only aim at L2 locality; nothing depends on where a workgroup runs."""

class Cfg:
    stamp = 0
    sset = 0
    pad = 0
    mult = 0
    padx = -1
    padat = "end"
    map1 = 1
    map2 = 1
    rot1 = 10
    rot2 = 8
    cpo = 256
    w1_pre = 0
    w1_x = 2
    w1_ln = 2
    w1_mid = 6
    wd = 7
    hd = 12
    ud = 10
    pe1 = 6
    pe2 = 6
    g1bar = 18
    g1fill = 9
    w2_tail = 2
    w2_mid = 7
    w2_un = 5
    pbl = 10
    helper = 0
    serp = 0
    fillk = 8
    irot = 0
    iro = 2
    ird = 0
    lut1 = 0x76534120
    lead = 160
    lmask = 0
    l1 = 4
    l2 = 0
    lp = 4
    fp = 0
    f1 = 0
    f2 = 6
    iw = 0
    islp = 0
    xnt = 1
    wnt = 0
    hnt = 0
    ep = 0
    eat = 1
    w32 = 0
    cst = 1
    gb1 = 8
    gb2 = 4
    gb3 = 8
    dly = 4
    wsk = 1
    pbo = 1
    wbar = 0
    wbo = 0
    gbar = 0
    hi = 8
    thr = 8
    ramp = 3
    fx = 0
    jit = 0
    slp = 0
    xr1 = 0
    xr2 = 0
    z = 1
    zu = -1
    al8 = 0
    one = 0
    prio = 0
    defer1 = 0
    pk1 = 0
    o0b = 1
    defer = 4
    pkfin = 1
    omap = 1
    rm1 = 1
    rm2 = 1
    opol = 0
    o0e = 0
    fast0 = 0
    ov1 = 0
    ov2 = 0
    d0 = 6
    wpp = 4
    n1 = 3
    hearly = 1
    lg0 = 1
    lg1 = 5
    fake = 0
    gap2 = 0
    g2f = 6
    g2l = 16
    g2b0 = 14
    g2b1 = 25
    nh = 4
    hsec = 1
    hq = 1
    osc = 3
    w2e = 0
    egrp = 4
    e0 = 20
    estep = 8
    esh = 3
    tlbw = 0
    w1_first = 4
    xbar = 1
    fhs = 5
    fus = 6
    slowl = 16
    fe_pos = 4

class A:
    def __init__(self):
        self.L = []
        self.q = []
        self.lq = []
    def __call__(self, s):
        for line in s.strip("\n").split("\n"):
            self.L.append(line)
    def vm(self, s, tag=None):
        self(s)
        self.q.append(tag)
    def recent_slow_before(self, tag, window):
        if tag not in self.q:
            return False
        idx = self.q.index(tag)
        return any(t in ("hst", "hfl", "ust0", "ust1", "ufl0", "ufl1", "b1", "b2") and len(self.q) - 1 - i < window
                   for i, t in enumerate(self.q[:idx]))
    def wait(self, tag):
        if tag not in self.q:
            return
        idx = max(i for i, t in enumerate(self.q) if t == tag)
        n = len(self.q) - 1 - idx
        assert n <= 63
        self(f"s_waitcnt vmcnt({n})")
        self.q = self.q[idx + 1:]
    def pending(self, tag):
        return tag in self.q
    def ds(self, s, tag=None):
        if len(self.lq) >= 13:
            self("s_waitcnt lgkmcnt(7)")
            self.lq = self.lq[-7:]
        self(s)
        self.lq.append(tag)
    def dwait(self, tag=None):
        if tag is None:
            self("s_waitcnt lgkmcnt(0)")
            self.lq = []
            return
        if tag not in self.lq:
            return
        idx = max(i for i, t in enumerate(self.lq) if t == tag)
        self(f"s_waitcnt lgkmcnt({len(self.lq)-1-idx})")
        self.lq = self.lq[idx + 1:]
    def text(self):
        return "\n".join(self.L) + "\n"

class Fill:
    def __init__(self, a):
        self.a = a
        self.g = []
    def __call__(self, s):
        self.g.append(s)
    def emit(self, k):
        while k > 0 and self.g:
            x = self.g.pop(0)
            if callable(x):
                x(); k -= 1
            else:
                self.a(x); k -= x.count("\n") + 1
    def cost(self, x):
        if callable(x):
            return getattr(x, "cost", 4)
        return sum(8 if l.startswith(("v_exp", "v_rcp")) else 4 for l in x.split("\n"))
    def gap(self, budget):
        used = 0
        while self.g and budget > 0:
            x = self.g[0]
            if getattr(x, "skip", 0):
                x.skip -= 1
                if x.skip == 0:
                    self.g.pop(0)
                return
            k = self.cost(x)
            if used and used + k > budget:
                return
            self.g.pop(0)
            x() if callable(x) else self.a(x)
            used += k
            if used >= budget:
                return
    def delay(self, n):
        if n > 0:
            f = lambda: None
            f.skip = n
            self.g.append(f)
    def flush(self):
        self.emit(1 << 30)

def costly(f, k):
    f.cost = k
    return f

def srd(a, d, b, nbytes):
    a(f"s_mov_b32 s{d}, s{b}")
    a(f"s_mov_b32 s{d+1}, s{b+1}")
    a(f"s_mov_b32 s{d+2}, {nbytes}")
    a(f"s_mov_b32 s{d+3}, 0x00020000")

def gen(c):
    a = A()
    z = c.z
    zu = c.z if c.zu < 0 else c.zu
    H_OFF = 0x20000 if z < 2 else (17 << 20)
    U_OFF = H_OFF + (0x280000 << z)
    if H_OFF < ST_OFF and U_OFF + (0x1e0000 << zu) > ST_OFF:
        U_OFF = 17 << 20
    WS_USED = U_OFF + (0x1e0000 << zu)
    STB = 76
    SETS = {
        0: [0, 1, 2, 3, 4, 5, "t0", 6, 8, 9, 10, 11, 12],
        1: [0, "ka", "iss", 1, "x4", 2, "hsto", 3, "w1_24", "w1_40", 4, 5, "g1s"],
        2: [0, 5, "g1s", "g1_8", "g1_16", "g1_24", "t0", 6, "fe", 7, 8, 9, 10],
        4: [0, 5, "g1s", "g1_2", "g1_4", "g1_8", "g1_12", "g1_16", "g1_19", "g1_22", "g1_26", "g1_29", 6],
        5: [0, 10, "g2s", "g2_2", "g2_4", "g2_7", "g2_10", "g2_13", "g2_16", "g2_20", "g2_24", "g2_27", 11],
        6: [0, "t0", 6, "fe", 7, "w2_22", 8, "w2_30", "w2_36", "w2_42", 9, 10, "g2s"],
        3: [0, 9, 10, "g2s", "g2_6", "pb", "g2_12", "g2_18", "g2_24", 11, "e2", "e3", 12],
    }
    def stamp(name):
        if c.pad and str(name) == c.padat:
            a("s_memrealtime s[98:99]")
        if c.stamp and name in SETS[c.sset]:
            i = SETS[c.sset].index(name)
            a(f"{'s_memtime' if c.stamp == 2 else 's_memrealtime'} s[{STB+2*i}:{STB+2*i+1}]")
    a(HEADER)
    a("; @launch grid=(256,1,1) block=(256,1,1) lds=163840")
    a('.amdgcn_target "amdgcn-amd-amdhsa--gfx950"')
    a(f".text\n.globl {NAME}\n.p2align 8\n.type {NAME},@function\n{NAME}:")
    X, W1, B1, W2, B2, OUT, DBG, WS = 4, 6, 8, 10, 12, 14, 16, 18
    sMA, sMB = 20, 22
    RW1, RW2, RWS, ROUT = 24, 28, 32, 36
    sW, sLDS, sDT, sFT, sJ, sST = 40, 41, 42, 43, 44, 45
    sWO, sWO0, sWOE, sUS0 = 46, 47, 48, 49
    sT0, sT1, sUS1, sCNT, sROT1, sROT2, sT3, sTAG = 50, 51, 52, 53, 54, 55, 56, 57
    sS = 3
    sED = 20
    FB = 4
    sFO = (16, 17, 58)
    sFD = (0, 1, 59)
    sK = 60
    vL = 1
    vD1, vD2, vH, vU, vT1, vT2, vR, vO = 4, 8, 12, 16, 21, 25, 29, 33
    vFH, vFU, vFO, vTAG, vB1, vB2, vHS, vLT, vFHO, vC1 = 35, 36, 37, 39, 40, 44, 45, 46, 49, 50
    t0, t1, t2, t3, t4, t5 = 54, 55, 56, 57, 58, 59
    vP = 60
    vL16, vHL = 52, 53
    ACC, RING, RD = 64, 144, 208
    RED = 114688
    WSLOT = 7
    NRING = 16
    NS1, NS2 = 16, 12

    def poll_load(kind):
        if kind == "h":
            return f"global_load_dwordx4 v[{vP}:{vP+3}], v{vFH}, s[{WS}:{WS+1}] sc1"
        return f"global_load_dword v{vP}, v{vFU if kind == 'a' else vFU+1}, s[{WS}:{WS+1}] sc1"
    def poll_test(kind):
        if kind == "h":
            a(f"v_bitop3_b32 v{vP}, v{vP}, v{vP+1}, v{vTAG} bitop3:0x7e")
            a(f"v_bitop3_b32 v{vP+2}, v{vP+2}, v{vP+3}, v{vTAG} bitop3:0x7e")
            a(f"v_or_b32 v{vP}, v{vP}, v{vP+2}")
            a(f"v_cmp_ne_u32 vcc, 0, v{vP}")
        else:
            a(f"v_cmp_ne_u32 vcc, s{sTAG}, v{vP}")
    def spin(kind):
        label = "L_p" + kind
        poll_test(kind)
        a(f"s_cbranch_vccz {label}_ok")
        a(f"s_mov_b32 s{sCNT}, 0")
        a(f"{label}_l:")
        if c.slp and kind == "a":
            a(f"s_sleep {c.slp}")
        a(poll_load(kind))
        a(f"s_add_u32 s{sCNT}, s{sCNT}, 1")
        a(f"s_cmp_ge_u32 s{sCNT}, {SPIN_CAP}")
        a(f"s_cbranch_scc1 {label}_ok")
        a("s_waitcnt vmcnt(0)")
        poll_test(kind)
        a(f"s_cbranch_vccnz {label}_l")
        a(f"{label}_ok:")
    njit = [0]
    def jitter(val):
        if c.jit:
            a(f"s_mul_i32 s{sCNT}, s2, 5\ns_add_u32 s{sCNT}, s{sCNT}, s{sW}\ns_and_b32 s{sCNT}, s{sCNT}, 31\ns_cmp_lg_u32 s{sCNT}, {val}\ns_cbranch_scc1 L_j{njit[0]}\ns_sleep {c.jit}\nL_j{njit[0]}:")
            njit[0] += 1
    def flag_add(k):
        a(f"s_atomic_add s{sFD[k]}, s[{FB}:{FB+1}], s{sFO[k]}")
    def flag_store(vaddr, tag, sc=" sc1"):
        a("s_mov_b64 exec, 1")
        s_ = f"global_store_dword v{vaddr}, v{vTAG}, s[{WS}:{WS+1}]{sc}"
        if tag:
            a.vm(s_, tag)
        else:
            a(s_)
        a("s_mov_b64 exec, -1")

    def step_off(dst, base, i, sh):
        if i < c.n1:
            return f"s_add_u32 s{dst}, s{base}, {i << sh}"
        if c.n1 < i <= c.nh:
            return f"s_add_u32 s{dst}, s{base}, {(i - 1) << sh}"
        k = 0 if i == c.n1 else i - c.nh
        md = 12 - c.nh
        if md & (md - 1):
            return (f"s_add_u32 s{dst}, s{sROT2}, {k+c.nh}\ns_cmp_ge_u32 s{dst}, 12\ns_cselect_b32 s{sCNT}, {md}, 0\ns_sub_u32 s{dst}, s{dst}, s{sCNT}\n"
                    f"s_lshl_b32 s{dst}, s{dst}, {sh}\ns_add_u32 s{dst}, s{dst}, s{base}")
        return (f"s_add_u32 s{dst}, s{sROT2}, {k}\ns_and_b32 s{dst}, s{dst}, {12-c.nh-1}\ns_add_u32 s{dst}, s{dst}, {c.nh}\n"
                f"s_lshl_b32 s{dst}, s{dst}, {sh}\ns_add_u32 s{dst}, s{dst}, s{base}")
    class W:
        def __init__(self, kind):
            self.kind = kind
            self.ns = NS1 if kind == 1 else NS2
            self.n = 0
            self.rd = 0
            self.can_read = True
        def left(self):
            return 4 * self.ns - self.n
        def tag(self, n):
            return f"w{self.kind}_{n}"
        def nslot(self):
            return WSLOT - c.w2e if self.kind == 1 else WSLOT
        def slot(self, i):
            return i % self.nslot() if self.kind == 1 else (i + WSLOT - c.w2e) % WSLOT
        def issue(self):
            i, j = self.n >> 2, self.n & 3
            vd, r, step = (vD1, RW1, 32 * 3072) if self.kind == 1 else (vD2, RW2, 32 * 4096)
            if i >= self.nslot() and j == 0:
                old = i - self.nslot()
                if self.rd < 8 * (old + 1):
                    assert self.can_read
                    a.wait(self.tag(4 * old + 3))
                    self.reads(8 * (old + 1) - self.rd)
                a.dwait(f"r{self.kind}_{old}")
            a.vm(f"buffer_load_dwordx4 v{vd+j}, s[{r}:{r+3}], s{sWO} offen offset:{1024*j}{' nt' if self.kind == 1 and self.n < c.wnt else ''} lds", self.tag(self.n))
            self.n += 1
            if j == 3 and i + 1 < self.ns:
                if self.slot(i + 1) == 0:
                    a(f"s_mov_b32 m0, s{sLDS}")
                else:
                    a("s_add_u32 m0, m0, 4096")
                if self.kind == 2 and c.nh:
                    a(step_off(sWO, sWO0, i + 1, 17))
                elif self.kind == 1 and c.fake & 32:
                    a(f"s_add_u32 s{sWO}, s{sWO}, {step}")
                    a(f"s_cmp_ge_u32 s{sWO}, s{sWOE}")
                    a(f"s_cselect_b32 s{sCNT}, {480*3072}, 0")
                    a(f"s_sub_u32 s{sWO}, s{sWO}, s{sCNT}")
                else:
                    a(f"s_add_u32 s{sWO}, s{sWO}, {step}")
                    a(f"s_cmp_eq_u32 s{sWO}, s{sWOE}")
                    a(f"s_cselect_b32 s{sWO}, s{sWO0}, s{sWO}")
        def landed_steps(self):
            k = 0
            while 4 * k + 3 < self.n and not a.pending(self.tag(4 * k + 3)):
                k += 1
            return k
        def reads(self, k):
            vt = vT1 if self.kind == 1 else vT2
            lim = 8 * self.landed_steps() if self.can_read else 0
            while k > 0 and self.rd < lim:
                i, x = self.rd >> 3, self.rd & 7
                b, e = x >> 1, x & 1
                r = 16 * i + 4 * b + 2 * e
                a.ds(f"ds_read_b64_tr_b16 a[{r}:{r+1}], v{vt+b} offset:{self.slot(i)*4096+e*2048}", f"r{self.kind}_{i}")
                self.rd += 1
                k -= 1
        def step(self, fill=None, throttle=True, older_than=None):
            if throttle and self.n >= c.wd:
                tg = self.tag(self.n - c.wd)
                if older_than is not None and a.pending(older_than) and a.pending(tg) and a.q.index(tg) > a.q.index(older_than):
                    pass
                elif not a.recent_slow_before(tg, c.slowl):
                    a.wait(tg)
            stamp(f"w{self.kind}_{self.n}")
            self.issue()
            backlog = 8 * self.landed_steps() - self.rd
            self.reads(4 if backlog > 8 else 2)
            if fill is not None:
                fill.emit(c.fillk)
        def drain(self):
            for i in range(self.rd >> 3, self.ns):
                a.wait(self.tag(4 * i + 3))
                self.reads(8)

    def tile2(f):
        if c.map2 == 0:
            f(f"s_and_b32 s{sT0}, s2, 1\ns_lshl_b32 s{sT0}, s{sT0}, 2\ns_bfe_u32 s{sT1}, s2, 0x20003\ns_add_u32 s{sJ}, s{sT0}, s{sT1}\ns_mul_i32 s{sROT2}, s{sT1}, 3")
            if c.rot2 == 42:
                f(f"s_bfe_u32 s{sT1}, s2, 0x10005\ns_mul_i32 s{sT1}, s{sT1}, 6\ns_add_u32 s{sROT2}, s{sROT2}, s{sT1}\ns_cmp_ge_u32 s{sROT2}, 12\ns_cselect_b32 s{sT1}, 12, 0\ns_sub_u32 s{sROT2}, s{sROT2}, s{sT1}")
            f(f"s_bfe_u32 s{sT0}, s2, 0x20001\ns_lshl_b32 s{sT0}, s{sT0}, 3\ns_lshr_b32 s{sST}, s2, 5\ns_add_u32 s{sST}, s{sST}, s{sT0}")
        else:
            f(f"s_bfe_u32 s{sJ}, s2, 0x30003")
            if c.nh == 4:
                f(f"s_mul_i32 s{sROT2}, s2, {c.xr2}\ns_add_u32 s{sROT2}, s{sROT2}, s{sJ}")
            elif c.nh in (5, 6, 7):
                f(f"s_mul_i32 s{sROT2}, s{sJ}, {12-c.nh}\ns_lshr_b32 s{sROT2}, s{sROT2}, 3")
            elif c.nh == 8:
                f(f"s_lshr_b32 s{sROT2}, s{sJ}, 1")
            elif c.rot2 == 8:
                f(f"s_mul_i32 s{sROT2}, s{sJ}, 3\ns_lshr_b32 s{sROT2}, s{sROT2}, 1")
            elif c.rot2 == 4:
                f(f"s_lshr_b32 s{sROT2}, s{sJ}, 1\ns_mul_i32 s{sROT2}, s{sROT2}, 3")
            else:
                f(f"s_mov_b32 s{sROT2}, 0")
            f(f"s_and_b32 s{sT0}, s2, 7\ns_xor_b32 s{sT0}, s{sT0}, {c.rm2}\ns_lshl_b32 s{sT0}, s{sT0}, 2\ns_lshr_b32 s{sST}, s2, 6\ns_add_u32 s{sST}, s{sST}, s{sT0}")
    a("s_cmp_ge_u32 s2, 256\ns_cbranch_scc1 L_end")
    stamp(0)
    if c.pad:
        a("s_memrealtime s[100:101]")
    a("s_load_dwordx16 s[4:19], s[0:1], 0")
    a(f"v_lshrrev_b32 v{t0}, 6, v0")
    a("; ---- one line of this kernel's code per wave is loaded so that instruction fetches hit L2")
    a("s_getpc_b64 s[22:23]")
    a("L_pc:")
    a(f"s_lshr_b32 s{sT0}, s2, 3                 ; idx")
    a(f"s_lshl_b32 s{sT1}, s{sT0}, 9")
    a(f"v_lshl_add_u32 v{t1}, v{t0}, 7, s{sT1}")
    a(f"v_min_u32 v{t1}, (L_end-L_pc-{c.cpo}-4), v{t1}")
    a.vm(f"global_load_dword v{vP}, v{t1}, s[22:23] offset:{c.cpo}", "cpf")
    a(f"v_and_b32 v{vL}, 63, v0")
    a(f"v_readfirstlane_b32 s{sW}, v{t0}")
    a(f"v_lshrrev_b32 v{t0}, 5, v0")
    a(f"v_and_b32 v{t1}, 31, v0")
    a(f"v_lshrrev_b32 v{t2}, 7, v0")
    a(f"v_mul_u32_u24 v{t2}, 12, v{t2}")
    a(f"v_add_u32 v{t2}, v{t2}, v{t0}")
    a(f"v_mul_u32_u24 v2, 1280, v{t2}")
    a(f"v_lshl_add_u32 v2, v{t1}, 3, v2          ; x offset")
    def early_setup():
        a(f"s_lshr_b32 s{sT0}, s2, 3                 ; idx")
        a(f"v_mul_u32_u24 v3, 1344, v{t0}")
        a(f"v_lshl_add_u32 v3, v{t1}, 3, v3")
        a(f"v_add_u32 v3, {RED}, v3")
        if c.map1 == 0:
            a(f"s_mul_i32 s{sFT}, s{sT0}, 205")
            a(f"s_lshr_b32 s{sFT}, s{sFT}, 10            ; idx/5")
            a(f"s_mul_i32 s{sT1}, s{sFT}, 5")
            a(f"s_sub_u32 s{sDT}, s{sT0}, s{sT1}         ; idx%5")
            a(f"s_and_b32 s{sS}, s{sDT}, 3")
            a(f"s_mul_i32 s{sROT1}, s{sDT}, 13")
            a(f"s_lshr_b32 s{sROT1}, s{sROT1}, 2     ; 0,3,6,9,13")
            if c.rot1 == 52:
                a(f"s_and_b32 s{sT1}, s{sFT}, 1")
                a(f"s_lshl_b32 s{sT1}, s{sT1}, 3")
                a(f"s_add_u32 s{sROT1}, s{sROT1}, s{sT1}")
                a(f"s_and_b32 s{sROT1}, s{sROT1}, 15")
            a(f"s_and_b32 s{sT1}, s2, 1")
            a(f"s_mul_i32 s{sT1}, s{sT1}, 5")
            a(f"s_add_u32 s{sDT}, s{sDT}, s{sT1}         ; dtile")
            a(f"s_bfe_u32 s{sT1}, s2, 0x20001")
            a(f"s_mul_i32 s{sT1}, s{sT1}, 6")
            a(f"s_add_u32 s{sFT}, s{sFT}, s{sT1}         ; ftile")
        else:
            a(f"s_mul_i32 s{sFT}, s{sT0}, 205")
            a(f"s_lshr_b32 s{sFT}, s{sFT}, 11            ; idx/10")
            a(f"s_mul_i32 s{sT1}, s{sFT}, 10")
            a(f"s_sub_u32 s{sDT}, s{sT0}, s{sT1}         ; dtile")
            a(f"s_cmp_ge_u32 s{sDT}, 5")
            a(f"s_cselect_b32 s{sS}, 5, 0")
            a(f"s_sub_u32 s{sS}, s{sDT}, s{sS}")
            a(f"s_and_b32 s{sS}, s{sS}, 3")
            if c.rot1 == 10:
                a(f"s_mul_i32 s{sROT1}, s{sDT}, 13")
                a(f"s_lshr_b32 s{sROT1}, s{sROT1}, 3")
            elif c.rot1 == 5:
                a(f"s_lshr_b32 s{sROT1}, s{sDT}, 1")
                a(f"s_mul_i32 s{sROT1}, s{sROT1}, 13")
                a(f"s_lshr_b32 s{sROT1}, s{sROT1}, 2")
            else:
                a(f"s_mov_b32 s{sROT1}, 0")
            a(f"s_and_b32 s{sT1}, s2, 7")
            if c.xr1:
                a(f"s_mul_i32 s{sT0}, s{sT1}, {c.xr1}")
                a(f"s_add_u32 s{sROT1}, s{sROT1}, s{sT0}")
                a(f"s_and_b32 s{sROT1}, s{sROT1}, 15")
            if c.rm1 >= 2:
                a(f"s_lshl_b32 s{sT1}, s{sT1}, 2")
                a(f"s_lshr_b32 s{sT1}, {hex(c.lut1)}, s{sT1}")
                a(f"s_and_b32 s{sT1}, s{sT1}, 7")
                a(f"s_sub_u32 s{sT0}, 2, s{sFT}")
                a(f"s_cmp_eq_u32 s{sT1}, 3")
                a(f"s_cselect_b32 s{sFT}, s{sT0}, s{sFT}")
            elif c.rm1:
                a(f"s_sub_u32 s{sT0}, 2, s{sFT}")
                a(f"s_cmp_eq_u32 s{sT1}, 3")
                a(f"s_cselect_b32 s{sFT}, s{sT0}, s{sFT}")
                a(f"s_cmp_ge_u32 s{sT1}, 6")
                a(f"s_cselect_b32 s{sT0}, 1, 0")
                a(f"s_xor_b32 s{sT1}, s{sT1}, s{sT0}")
            a(f"s_mul_i32 s{sT1}, s{sT1}, 3")
            a(f"s_add_u32 s{sFT}, s{sFT}, s{sT1}         ; ftile")
        a(f"v_lshrrev_b32 v{t0}, 3, v{vL}            ; rr")
        a(f"v_and_b32 v{t1}, 6, v{t0}")
        a(f"v_and_b32 v{t2}, 7, v{vL}")
        a(f"v_xor_b32 v{t1}, v{t1}, v{t2}")
        a(f"v_lshlrev_b32 v{t1}, 4, v{t1}")
        a(f"v_mul_u32_u24 v{vD1}, 3072, v{t0}")
        a(f"v_add_u32 v{vD1}, v{vD1}, v{t1}")
        a(f"v_lshl_add_u32 v{vD2}, v{t0}, 12, v{t1}")
        for j in range(1, 4):
            a(f"v_add_u32 v{vD1+j}, {j*(8*3072-1024)}, v{vD1}")
        a(f"s_mul_i32 s{sWO0}, s{sW}, {512*3072}")
        a(f"s_lshl_b32 s{sT0}, s{sFT}, 7")
        a(f"s_add_u32 s{sWO0}, s{sWO0}, s{sT0}")
        a(f"s_add_u32 s{sWOE}, s{sWO0}, {(480 if c.fake & 32 else 512)*3072}")
        if c.fake & 32:
            a(f"s_mul_i32 s{sT0}, s{sDT}, {48*3072}")
        else:
            a(f"s_mul_i32 s{sT0}, s{sROT1}, {32*3072}")
        a(f"s_add_u32 s{sWO}, s{sWO0}, s{sT0}")
        a(f"s_mul_i32 s{sLDS}, s{sW}, {WSLOT*4096}")
        a(f"s_mov_b32 m0, s{sLDS}")
    if not c.fast0:
        early_setup()
    a(f"s_lshr_b32 s{sT0}, s2, 2")
    a(f"s_lshl_b32 s{sT0}, s{sT0}, 3")
    a(f"s_and_b32 s{sT1}, s2, 3")
    a(f"s_add_u32 s{sT0}, s{sT0}, s{sT1}")
    a(f"s_mul_i32 s{sT0}, s{sT0}, 5120")
    a(f"v_lshlrev_b32 v{vL16}, 4, v{vL}          ; lane*16")
    a("s_waitcnt lgkmcnt(0)")
    stamp("ka")
    a(f"s_add_u32 s{X}, s{X}, s{sT0}")
    a(f"s_addc_u32 s{X+1}, s{X+1}, 0")
    XR = RING
    if c.fx:
        a(f"s_and_b32 s{sT0}, s2, 7\ns_lshr_b32 s{sT0}, {c.fx}, s{sT0}\ns_and_b32 s{sT0}, s{sT0}, 1\ns_sub_u32 s{sT0}, s{sT0}, 1\nv_and_b32 v2, s{sT0}, v2")
    for i in range(5):
        a.vm(f"global_load_dwordx2 v[{XR+2*i}:{XR+2*i+1}], v2, s[{X}:{X+1}] offset:{256*i}{' nt' if c.xnt else ''}", f"x{i}")
    if c.fast0:
        early_setup()
    srd(a, RW1, W1, S * F * 2)
    a("s_cmp_ge_u32 s2, 240")
    a(f"s_cselect_b32 s{RW1+2}, 0, s{RW1+2}")
    w1 = W(1)
    w1.can_read = False
    if c.xbar:
        a("s_barrier")
    nrole = [0]
    role_n = [0, 0]
    def role_issue(kl, kf, pre=None):
        k = nrole[0]; nrole[0] += 1
        q = a.q
        if c.lmask:
            a(f"s_and_b32 s{sCNT}, s2, 7")
            a(f"s_bitcmp0_b32 {c.lmask}, s{sCNT}")
        else:
            a(f"s_cmp_lt_u32 s2, {c.lead}")
        a(f"s_cbranch_scc1 L_rf{k}")
        for r, cnt in ((0, kl), (1, kf)):
            if r == 1:
                a(f"s_branch L_re{k}")
                a(f"L_rf{k}:")
            if pre:
                pre(role_n[r])
            w1.n = role_n[r]
            a.q = []
            for _ in range(cnt):
                w1.issue()
            role_n[r] = w1.n
        a(f"L_re{k}:")
        a.q = q
    if c.lead:
        role_issue(c.l1, c.f1)
    else:
        for _ in range(c.w1_first):
            w1.issue()
    a(f"s_add_u32 s{FB}, s{WS}, {FH_OFF}")
    a(f"s_addc_u32 s{FB+1}, s{WS+1}, 0")
    a(f"s_load_dword s{sTAG}, s[{FB}:{FB+1}], {EP_OFF-FH_OFF}")
    if c.tlbw:
        a(f"v_and_b32 v{t0}, 1, v{vL}")
        a(f"v_mul_u32_u24 v{t1}, 0x281000, v{t0}")
        a(f"v_lshlrev_b32 v{t0}, 21, v{t0}")
        a.vm(f"global_load_dword v{vP+1}, v{t1}, s[{WS}:{WS+1}]", "tl")
        if c.tlbw >= 2:
            a.vm(f"global_load_dword v{vP+2}, v{t0}, s[{OUT}:{OUT+1}]", "tl")
            a(f"v_min_u32 v{t0}, 2, v{vL}")
            a(f"v_lshlrev_b32 v{t0}, 21, v{t0}")
            a.vm(f"global_load_dword v{vP+3}, v{t0}, s[{W2}:{W2+1}]", "tl")
    tile2(a)
    a(f"v_lshrrev_b32 v{t3}, 4, v{vL}            ; g")
    a(f"s_min_u32 s{sT0}, s{sFT}, 23\ns_lshl_b32 s{sT0}, s{sT0}, 1\ns_and_b32 s{sT1}, s{sW}, 1\ns_add_u32 s{sT0}, s{sT0}, s{sT1}\ns_lshl_b32 s{sT0}, s{sT0}, 6\nv_lshl_add_u32 v{t5}, v{t3}, 3, s{sT0}")
    for k in range(2):
        a.vm(f"global_load_dwordx2 v[{vB1+2*k}:{vB1+2*k+1}], v{t5}, s[{B1}:{B1+1}] offset:{32*k}", "b1")
    a(f"v_and_b32 v{t4}, 15, v{vL}")
    a(f"s_lshl_b32 s{sT0}, s{sST}, 6\ns_lshl_b32 s{sT1}, s{sW}, 4\ns_add_u32 s{sT0}, s{sT0}, s{sT1}\nv_add_u32 v{vO}, s{sT0}, v{t4}           ; s")
    a(f"v_lshlrev_b32 v{t2}, 1, v{vO}")
    a.vm(f"global_load_ushort v{vB2}, v{t2}, s[{B2}:{B2+1}]", "b2")
    a(f"s_lshl_b32 s{sT0}, s2, {c.fhs-2}\ns_add_u32 s{sT0}, s{sT0}, s{sW}\ns_lshl_b32 s{sFO[0]}, s{sT0}, 2")
    a(f"s_load_dword s{sFD[0]}, s[{FB}:{FB+1}], s{sFO[0]}")
    for h, su in enumerate((sUS0, sUS1)):
        a(f"s_lshr_b32 s{sT0}, s{sW}, 1\ns_add_u32 s{sT0}, s{sT0}, s{sS}\ns_add_u32 s{sT0}, s{sT0}, {2*h}\ns_and_b32 s{sT0}, s{sT0}, 3\ns_lshl_b32 s{sT1}, s{sDT}, 2\ns_add_u32 s{su}, s{sT0}, s{sT1}")
        a(f"s_mul_i32 s{sT0}, s{su}, 24\ns_add_u32 s{sT0}, s{sT0}, s{sFT}\ns_lshl_b32 s{sT0}, s{sT0}, {c.fus-2}\ns_and_b32 s{sT1}, s{sW}, 1\ns_add_u32 s{sT0}, s{sT0}, s{sT1}\ns_lshl_b32 s{sT0}, s{sT0}, 2\ns_add_u32 s{sFO[1+h]}, s{sT0}, {FU_OFF-FH_OFF}")
        a(f"s_load_dword s{sFD[1+h]}, s[{FB}:{FB+1}], s{sFO[1+h]}")
    srd(a, RWS, WS, WS_USED)
    a(f"v_lshrrev_b32 v{t3}, 4, v{vL}            ; g")
    a(f"v_and_b32 v{t4}, 15, v{vL}")
    a(f"v_and_b32 v{vHS}, 0x70, v{vL16}")
    a(f"v_lshl_add_u32 v{vHS}, v{t3}, {16+z}, v{vHS}")
    a(f"v_lshrrev_b32 v{t4}, 3, v{t4}")
    a(f"v_lshl_add_u32 v{vHS}, v{t4}, {7+z}, v{vHS}")
    a(f"v_bfe_u32 v{t0}, v{vL}, 2, 2             ; r")
    a(f"v_mul_u32_u24 v{t0}, 1344, v{t0}")
    a(f"v_add_u32 v{t0}, {RED}, v{t0}")
    a(f"v_and_b32 v{t1}, 3, v{vL}                ; c")
    a(f"s_lshl_b32 s{sT0}, s{sW}, 2")
    a(f"v_add_u32 v{t3}, s{sT0}, v{t3}           ; T for m=0")
    for m in range(3):
        a(f"v_mul_u32_u24 v{t2}, 205, v{t3}")
        a(f"v_lshrrev_b32 v{t2}, 10, v{t2}       ; j")
        a(f"v_mul_u32_u24 v{t4}, 5, v{t2}")
        a(f"v_sub_u32 v{t4}, v{t3}, v{t4}        ; t")
        if c.omap:
            a(f"v_lshrrev_b32 v{t5}, 2, v{t4}")
            a(f"v_mul_u32_u24 v{vLT+m}, 896, v{t5}")
            a(f"v_lshlrev_b32 v{t5}, 1, v{t5}")
            a(f"v_sub_u32 v{t5}, 7, v{t5}")
            a(f"v_lshlrev_b32 v{t2}, v{t5}, v{t2}")
            a(f"v_add3_u32 v{t2}, v{t2}, v{t0}, v{vLT+m}")
            a(f"v_lshrrev_b32 v{t5}, 1, v{t4}")
            a(f"v_lshl_add_u32 v{t2}, v{t5}, 6, v{t2}")
        else:
            a(f"v_mul_u32_u24 v{t2}, 160, v{t2}")
            a(f"v_add_u32 v{t2}, v{t2}, v{t0}")
            a(f"v_lshrrev_b32 v{t5}, 1, v{t4}")
            a(f"v_lshl_add_u32 v{t2}, v{t5}, 6, v{t2}")
        a(f"v_and_b32 v{t5}, 1, v{t4}")
        a(f"v_lshl_add_u32 v{t2}, v{t5}, 3, v{t2}")
        a(f"v_lshrrev_b32 v{t4}, 2, v{t4}")
        a(f"v_sub_u32 v{t4}, 4, v{t4}")
        a(f"v_lshlrev_b32 v{t4}, v{t4}, v{t1}")
        a(f"v_add_u32 v{vLT+m}, v{t2}, v{t4}")
        if m < 2:
            a(f"v_add_u32 v{t3}, 16, v{t3}")
    a(f"s_lshl_b32 s{sT3}, s2, {8+z}")
    a(f"s_lshl_b32 s{sT0}, s{sW}, {18+z}")
    a(f"s_add_u32 s{sT3}, s{sT3}, s{sT0}")
    a(f"s_add_u32 s{sT3}, s{sT3}, {H_OFF}")
    if c.lead and (c.lp or c.fp):
        role_issue(c.lp, c.fp)
    for _ in range(c.w1_pre):
        w1.issue()
    stamp("iss")
    XF = RING + 12
    if c.lead:
        nb = len(a.q) - 1 - a.q.index("x4")
        role_issue(c.l2, c.f2, lambda n: a(f"s_waitcnt vmcnt({n + nb})"))
        a.q = a.q[a.q.index("x4") + 1:]
    for i in range(5):
        a.wait(f"x{i}")
        if i == 0:
            stamp(1)
        if i == 4:
            stamp("x4")
            for _ in range(0 if c.lead else c.w1_x):
                w1.issue()
        for k in range(2):
            a(f"v_lshlrev_b32 v{XF+4*i+2*k}, 16, v{XR+2*i+k}")
            a(f"v_and_b32 v{XF+4*i+2*k+1}, 0xffff0000, v{XR+2*i+k}")
        if i == 0:
            a(f"v_pk_add_f32 v[{t0}:{t0+1}], v[{XF}:{XF+1}], v[{XF+2}:{XF+3}]")
        else:
            a(f"v_pk_add_f32 v[{t0}:{t0+1}], v[{t0}:{t0+1}], v[{XF+4*i}:{XF+4*i+1}]")
            a(f"v_pk_add_f32 v[{t0}:{t0+1}], v[{t0}:{t0+1}], v[{XF+4*i+2}:{XF+4*i+3}]")
    def half_sum():
        a(f"v_add_f32 v{t0}, v{t0}, v{t0+1}")
        for r in (8, 4, 2, 1):
            a("s_nop 1")
            a(f"v_add_f32_dpp v{t0}, v{t0}, v{t0} row_ror:{r} row_mask:0xf bank_mask:0xf")
        a(f"v_mov_b32 v{t0+1}, v{t0}")
        a("s_nop 1")
        a(f"v_permlane16_swap_b32 v{t0+1}, v{t0}")
        a(f"v_add_f32 v{t0}, v{t0}, v{t0+1}")
    half_sum()
    a(f"v_mul_f32 v{t0}, {f32(-1.0/D)}, v{t0}    ; -mean")
    a(f"v_mov_b32 v{t0+1}, v{t0}")
    for i in range(10):
        a(f"v_pk_add_f32 v[{XF+2*i}:{XF+2*i+1}], v[{XF+2*i}:{XF+2*i+1}], v[{t0}:{t0+1}]")
    a(f"v_pk_mul_f32 v[{t0}:{t0+1}], v[{XF}:{XF+1}], v[{XF}:{XF+1}]")
    for i in range(1, 10):
        a(f"v_pk_fma_f32 v[{t0}:{t0+1}], v[{XF+2*i}:{XF+2*i+1}], v[{XF+2*i}:{XF+2*i+1}], v[{t0}:{t0+1}]")
    half_sum()
    a(f"v_mov_b32 v{t0+1}, {f32(1e-5)}")
    a(f"v_fmac_f32 v{t0+1}, {f32(1.0/D)}, v{t0}")
    a(f"v_rsq_f32 v{t0}, v{t0+1}")
    a("s_nop 0")
    a(f"v_mov_b32 v{t0+1}, v{t0}")
    for i in range(10):
        a(f"v_pk_mul_f32 v[{XF+2*i}:{XF+2*i+1}], v[{XF+2*i}:{XF+2*i+1}], v[{t0}:{t0+1}]")
    for i in range(5):
        a(f"v_cvt_pk_bf16_f32 v{XR+2*i}, v{XF+4*i}, v{XF+4*i+1}")
        a(f"v_cvt_pk_bf16_f32 v{XR+2*i+1}, v{XF+4*i+2}, v{XF+4*i+3}")
        a(f"ds_write_b64 v3, v[{XR+2*i}:{XR+2*i+1}] offset:{256*i}")
    if c.lead:
        role_issue(8 - role_n[0], 8 - role_n[1])
        a.q = [w1.tag(n) for n in range(8)]
        bias_wait = w1.tag(7)
    else:
        for _ in range(c.w1_ln):
            w1.issue()
    a("s_waitcnt lgkmcnt(0)")
    a("s_barrier")
    stamp(2)
    HT = RING + 12
    for m in range(3):
        a(f"ds_read_b64_tr_b16 v[{HT+4*m}:{HT+4*m+1}], v{vLT+m}")
        a(f"ds_read_b64_tr_b16 v[{HT+4*m+2}:{HT+4*m+3}], v{vLT+m} offset:{4*1344}")
    a(f"s_add_u32 s{sT0}, s{sT3}, {1<<(20+z)}")
    a(f"s_add_u32 s{sT1}, s{sT3}, {2<<(20+z)}")
    a(f"s_cmp_ge_u32 s{sW}, 2")
    a(f"s_cselect_b32 s{sT1}, 0x40000000, s{sT1}")
    if c.stamp or c.pad:
        a("s_waitcnt lgkmcnt(0)")
    jitter(5)
    if c.fx:
        a(f"s_and_b32 s{sCNT}, s2, 7\ns_lshr_b32 s{sCNT}, {c.fx}, s{sCNT}\ns_and_b32 s{sCNT}, s{sCNT}, 1")
        for so in (sT3, sT0, sT1):
            a(f"s_cselect_b32 s{so}, 0x40000000, s{so}")
    for m, so in enumerate((sT3, sT0, sT1)):
        a(f"s_waitcnt lgkmcnt({4-2*m})")
        a.vm(f"buffer_store_dwordx4 v[{HT+4*m}:{HT+4*m+3}], v{vHS}, s[{RWS}:{RWS+3}], s{so} offen{' sc0' if c.hnt else ''} sc1", "hst")
    stamp("hsto")
    if c.padx != -1:
        a(f"s_or_b32 s{sT0}, s2, s{sW}")
        a("s_cbranch_scc1 L_nopx")
        a(f"v_mov_b32 v{t0}, {ST_OFF}")
        a(f"v_mov_b32 v{t1}, s100")
        a(f"global_store_dword v{t0}, v{t1}, s[{WS}:{WS+1}] sc1")
        a("L_nopx:")
    def setup_common(f):
        f(f"s_mul_i32 s{sED}, s{sTAG}, 1664524")
        f(f"s_add_u32 s{sED}, s{sED}, 1013904223")
        f(f"s_add_u32 s{sTAG}, s{sTAG}, s{sED}")
        f(f"v_mov_b32 v{vTAG}, s{sTAG}")
        for k in range(3):
            f(f"s_sub_u32 s{sFD[k]}, s{sTAG}, s{sFD[k]}")
        f(f"v_lshrrev_b32 v{t0}, 2, v{vL}            ; row = 4g + r")
        f(f"v_lshlrev_b32 v{vT1}, 7, v{t0}")
        f(f"v_bfe_u32 v{t0}, v{vL}, 3, 2")
        f(f"v_lshl_add_u32 v{vT1}, v{t0}, 5, v{vT1}")
        f(f"v_and_b32 v{t0}, 3, v{vL}")
        f(f"v_lshl_add_u32 v{vT1}, v{t0}, 3, v{vT1}")
        f(f"v_add_u32 v{vT1}, s{sLDS}, v{vT1}")
        f(f"s_lshl_b32 s{sT0}, s{sW}, 5\nv_xor_b32 v{vT2}, s{sT0}, v{vT1}")
        f(f"s_and_b32 s{sT0}, s{sW}, 1\ns_lshl_b32 s{sT0}, s{sT0}, 6\nv_xor_b32 v{vT1}, s{sT0}, v{vT1}")
        for b in range(1, 4):
            f(f"v_xor_b32 v{vT1+b}, {b*32}, v{vT1}")
    def setup_g2(f):
        f(f"v_lshrrev_b32 v{t3}, 4, v{vL}")
        f(f"v_mul_u32_u24 v{vO}, 1280, v{vO}")
        f(f"v_lshl_add_u32 v{vO+1}, v{t3}, 3, v{vO}")
        f(f"v_lshl_add_u32 v{vO}, v{t3}, 4, v{vO}")
        for b in range(1, 4):
            f(f"v_xor_b32 v{vT2+b}, {b*32}, v{vT2}")
        for j in range(1, 4):
            f(f"v_add_u32 v{vD2+j}, {j*(8*4096-1024)}, v{vD2}")
        f(f"v_and_b32 v{vU}, 0x70, v{vL16}")
        f(f"v_lshrrev_b32 v{t0}, 3, v{vL}")
        f(f"v_lshl_add_u32 v{vHL}, v{t0}, {7+z}, v{vU}")
        f(f"v_lshl_add_u32 v{vU}, v{t0}, {7+zu}, v{vU}")
        for t in range(1, 5):
            f(f"v_add_u32 v{vU+t}, {(t*49152) << zu}, v{vU}")
        for k, (lo, cnt) in enumerate(((0, 24), (24, 36))):
            f(f"v_min_u32 v{t0}, {cnt-1}, v{vL}")
            f(f"v_mul_u32_u24 v{t1}, 43, v{t0}")
            f(f"v_lshrrev_b32 v{t1}, 9, v{t1}            ; n/12")
            f(f"v_mul_u32_u24 v{t1}, 18, v{t1}")
            f(f"v_lshrrev_b32 v{t2}, 1, v{t0}")
            f(f"s_mul_i32 s{sT0}, s{sJ}, 120\ns_mul_i32 s{sT1}, s{sW}, 6\ns_add_u32 s{sT0}, s{sT0}, s{sT1}\nv_add3_u32 v{t1}, v{t1}, v{t2}, s{sT0}")
            f(f"v_and_b32 v{t0}, 1, v{t0}")
            f(f"v_lshlrev_b32 v{t0}, 2, v{t0}")
            f(f"v_lshl_add_u32 v{vFU+k}, v{t1}, {c.fus}, v{t0}")
            f(f"v_add_u32 v{vFU+k}, {FU_OFF + ((lo // 12 * 24) << c.fus)}, v{vFU+k}")
        srd(f, RW2, W2, S * F * 2)
        srd(f, ROUT, OUT, S * D * 2)
    def setup_g1(f):
        f(f"v_lshlrev_b32 v{vFH}, {c.fhs}, v0")
        f(f"v_add_u32 v{vFH}, {FH_OFF}, v{vFH}")
        for p in range(4):
            f(f"s_lshr_b32 s{sT0}, s{sW}, 1\ns_xor_b32 s{sT0}, s{sT0}, {(p&1)^1}\ns_add_u32 s{sT0}, s{sT0}, s{sS}\ns_add_u32 s{sT0}, s{sT0}, {p&2}\ns_and_b32 s{sT0}, s{sT0}, 3\ns_lshl_b32 s{sT1}, s{sT0}, {16+z}\nv_add_u32 v{vH+p}, s{sT1}, v{vHL}")
        for h, su in enumerate((sUS0, sUS1)):
            f(f"s_mul_i32 s{su}, s{su}, 48\ns_lshl_b32 s{sT0}, s{sFT}, 1\ns_add_u32 s{su}, s{su}, s{sT0}\ns_and_b32 s{sT1}, s{sW}, 1\ns_add_u32 s{su}, s{su}, s{sT1}\ns_lshl_b32 s{su}, s{su}, {10+zu}\ns_add_u32 s{su}, s{su}, {U_OFF}")
        f(f"s_lshl_b32 s{sT3}, {0 if c.fake & 1 else 's%d' % sDT}, {18+z}\ns_lshl_b32 s{sT1}, s{sW}, {14+z}\ns_add_u32 s{sT3}, s{sT3}, s{sT1}\ns_add_u32 s{sT3}, s{sT3}, {H_OFF}")
        for i in range(NS1):
            f(f"s_add_u32 s{sT1}, s{sROT1}, {i}\ns_and_b32 s{sT1}, s{sT1}, 15\ns_lshl_b32 s{sT1}, s{sT1}, {10+z}\ns_add_u32 s{sK+i}, s{sT1}, s{sT3}")
        for k in range(4):
            f(f"s_xor_b32 s{sT0}, s{sW}, {k}\ns_mul_i32 s{sT0}, s{sT0}, 12288\ns_add_u32 s{sT0}, s{sT0}, {RED}\nv_add_u32 v{vR+k}, s{sT0}, v{vL16}")
        c1 = -2.0 * math.log2(math.e) * math.sqrt(2.0 / math.pi)
        f(f"v_mov_b32 v{vC1}, {f32(c1)}")
        f(f"v_mov_b32 v{vC1+1}, {f32(c1*0.044715)}")
        f(lambda: a.wait("b1"))
        for p in (1, 3):
            for k in range(4):
                f(f"v_lshlrev_b32 v{ACC+16*p+2*k}, 16, v{vB1+k}")
                f(f"v_and_b32 v{ACC+16*p+2*k+1}, 0xffff0000, v{vB1+k}")
    fl = Fill(a)
    if c.hearly:
        a("s_cmp_ge_u32 s2, 240")
        a("s_cbranch_scc1 L_idle")
    setup_common(fl)
    fl(lambda: setattr(w1, "can_read", True))
    setup_g2(fl)
    for _ in range(c.w1_mid):
        w1.step(fl, older_than="hst")
    fl.flush()
    a.wait("hst")
    stamp(3)
    flag_add(0)
    if not c.hearly:
        a("s_cmp_ge_u32 s2, 240")
        a("s_cbranch_scc1 L_idle")
    setup_g1(fl)
    fl.emit(2)
    sE, sGRP, sM0 = 6, 9, 12
    def w2offs(f):
        f(f"s_mul_i32 s{sT0}, s{sW}, {12*32*4096}\ns_lshl_b32 s{sT1}, s{sST}, 7\ns_add_u32 s{sT0}, s{sT0}, s{sT1}\ns_add_u32 s{sT1}, s{sT0}, {12*32*4096}\n"
          f"s_mul_i32 s{sE}, s{sROT2}, {32*4096}\ns_add_u32 s{sE}, s{sE}, s{sT0}\n"
          + "\n".join(f"s_add_u32 s{sE+k}, s{sE+k-1}, {32*4096}\ns_cmp_eq_u32 s{sE+k}, s{sT1}\ns_cselect_b32 s{sE+k}, s{sT0}, s{sE+k}" for k in range(1, c.w2e + 1)))
    if c.w2e:
        w2offs(a)
        a(f"s_lshr_b32 s{sGRP}, s2, {c.esh}")
        a(f"s_and_b32 s{sGRP}, s{sGRP}, {c.egrp-1}")
    while w1.left() > c.ov1:
        if c.wbar and (w1.left() - c.wbo) % c.wbar == 0:
            a("s_barrier")
        if w1.left() == c.pe1 + c.ov1:
            a.vm(poll_load("h"), "hpoll")
        if c.w2e and w1.n >= c.e0 and (w1.n - c.e0) % c.estep == 0 and (w1.n - c.e0) // c.estep < c.egrp:
            g = (w1.n - c.e0) // c.estep
            a(f"s_cmp_lg_u32 s{sGRP}, {g}")
            a(f"s_cbranch_scc1 L_e{g}")
            a(f"s_mov_b32 s{sM0}, m0")
            for k in range(c.w2e):
                a(f"s_add_u32 m0, s{sLDS}, {(WSLOT-c.w2e+k)*4096}")
                a("s_nop 0")
                for j in range(4):
                    a(f"buffer_load_dwordx4 v{vD2+j}, s[{RW2}:{RW2+3}], s{sE+k} offen offset:{1024*j} lds")
            a(f"s_mov_b32 m0, s{sM0}")
            a("s_nop 0")
            a(f"L_e{g}:")
        w1.step(fl)
    assert not c.w2e or c.e0 + (c.egrp - 1) * c.estep < 64
    if c.pe1 == 0:
        a.vm(poll_load("h"), "hpoll")
    fl.flush()
    a.wait("hpoll")
    stamp(4)
    spin("h")
    stamp(5)
    N1 = 64
    def hissue(n):
        r = RING + 4 * (n % NRING)
        a.vm(f"buffer_load_dwordx4 v[{r}:{r+3}], v{vH+n//16}, s[{RWS}:{RWS+3}], s{sK+n%16} offen sc1", f"h{n}")
    def pace():
        if c.thr and len(a.q) >= c.thr:
            tg = a.q[-c.thr]
            if tg.startswith("w"):
                a.wait(tg)
    hst_ = [c.d0 if c.ov1 else (c.hi or c.hd)]
    for n in range(hst_[0]):
        pace()
        hissue(n)
        w1.reads(2)
    if not c.ov1:
        w1.drain()
    def w2setup(done):
        a(f"s_mul_i32 s{sWO0}, s{sW}, {12*32*4096}")
        a(f"s_lshl_b32 s{sT0}, s{sST}, 7")
        a(f"s_add_u32 s{sWO0}, s{sWO0}, s{sT0}")
        a(f"s_add_u32 s{sWOE}, s{sWO0}, {12*32*4096}")
        if c.nh:
            a(f"s_mov_b32 m0, s{sLDS}")
            a(step_off(sWO, sWO0, 0, 17))
        elif done:
            a(f"s_mov_b32 m0, s{sLDS}")
            a(f"s_mov_b32 s{sWO}, s{sE+done}")
        else:
            a(f"s_mul_i32 s{sT0}, s{sROT2}, {32*4096}")
            a(f"s_add_u32 m0, s{sLDS}, {((WSLOT-c.w2e)%WSLOT)*4096}")
            a(f"s_add_u32 s{sWO}, s{sWO0}, s{sT0}")
    if not c.ov1:
        w2setup(c.w2e)
        a.dwait()
    stamp("g1s")
    w2 = W(2)
    w2.n = 4 * c.w2e
    w2.can_read = False
    def plan(m, st, w, issue, total, depth, tail):
        ops = []
        nw = min(c.wpp, w.left())
        want = min(total, 2 * m + 2 + (c.d0 if nw else depth))
        na = min(want - st[0], 2 if nw else c.ramp)
        acts = [lambda n=st[0] + k: issue(n) for k in range(na)]
        st[0] += na
        ws_ = [w.issue] * nw
        while acts or ws_:
            for _ in range((c.wpp + 1) // 2):
                if ws_:
                    ops.append(ws_.pop(0))
            if acts:
                ops.append(acts.pop(0))
        if not ops and st[0] == total:
            ops = tail()
        gaps = {0: [], 1: [1], 2: [c.lg0, c.lg1], 3: [1, 3, 5], 4: [0, 2, 4, 6], 5: [0, 1, 3, 4, 6], 6: [0, 1, 2, 4, 5, 6], 7: list(range(7)), 8: list(range(8))}[len(ops)]
        return dict(zip(gaps, ops))
    def need_steps(w, upto):
        if w.rd < 8 * (upto + 1):
            a.wait(w.tag(4 * upto + 3))
            w.reads(8 * (upto + 1) - w.rd)
        for i in range(upto + 1):
            a.dwait(f"r{w.kind}_{i}")
    def spread(nf):
        if c.lg0 >= 0:
            free = [g for g in range(8) if g not in (c.lg0, c.lg1)]
            free.sort(key=lambda g: g == 7)
            per = [0] * 8
            for x in range(nf):
                per[free[x % len(free)]] += 1
            return per
        if c.gap2:
            return [0 if g % 2 == 0 else nf // 4 + (1 if g // 2 < nf % 4 else 0) for g in range(8)]
        return [nf // 8 + (1 if g < nf % 8 else 0) for g in range(8)]
    def red_write(f, p, aa):
        cw = ACC + 16 * p + 4 * aa
        slot = aa if p % 2 == 0 else 2 + aa
        if p < 3 and c.w32 >> p & 1:
            for r in range(4):
                f(costly(lambda r=r: a.ds(f"ds_write_b32 v{vR}, v{cw+r} offset:{(p//2)*6144+slot*1024+4*r}", f"rw{p}"), 16))
                if r % 2 == 1:
                    f.delay(1)
            return
        f(costly(lambda: a.ds(f"ds_write_b128 v{vR}, v[{cw}:{cw+3}] offset:{(p//2)*6144+slot*1024}", f"rw{p}"), 16))
        if c.cst and p < 3:
            f.delay(c.wsk)
    def red_finish(f, h):
        P0, P1, T = ACC + 32 * h, ACC + 32 * h + 16, RD + 12 * h
        for x, (k, slot, dst) in enumerate(((2, 0, P0), (3, 2, P0 + 8), (1, 4, P1 + 8), (2, 1, P0 + 4), (3, 3, P0 + 12), (1, 5, P1 + 12))):
            f(lambda k=k, slot=slot, dst=dst, x=x: a.ds(f"ds_read_b128 v[{dst}:{dst+3}], v{vR+k} offset:{h*6144+slot*1024}", f"rr{h}_{x}"))
        if c.cst and h == 0:
            f.delay(c.dly)
        if h == 1 and c.pk1:
            def pk(op, d, *src):
                f(f"v_pk_{op}_f32 v[{d}:{d+1}], " + ", ".join(x if isinstance(x, str) else f"v[{x}:{x+1}]" for x in src))
            for half in range(2):
                f(lambda half=half: a.dwait(f"rr{h}_{3*half+2}"))
                for r in (4 * half, 4 * half + 2):
                    pk("add", P0 + r, P0 + r, P0 + 8 + r)
                    pk("add", P1 + r, P1 + r, P1 + 8 + r)
                for r in (4 * half, 4 * half + 2):
                    pk("add", P1 + r, P1 + r, P0 + r)
            for r in range(0, 8, 2):
                pk("mul", T + r, P1 + r, P1 + r)
            for r in range(0, 8, 2):
                f(f"v_pk_fma_f32 v[{T+r}:{T+r+1}], v[{T+r}:{T+r+1}], v[{vC1}:{vC1+1}], v[{vC1}:{vC1+1}] op_sel:[0,1,0] op_sel_hi:[1,1,0]")
            for r in range(0, 8, 2):
                pk("mul", T + r, T + r, P1 + r)
            for r in range(8):
                f(f"v_exp_f32 v{T+r}, v{T+r}")
            for r in range(0, 8, 2):
                f(f"v_pk_add_f32 v[{T+r}:{T+r+1}], v[{T+r}:{T+r+1}], 1.0 op_sel_hi:[1,0]")
            for r in range(8):
                f(f"v_rcp_f32 v{T+r}, v{T+r}")
            for r in range(0, 8, 2):
                pk("mul", T + r, T + r, P1 + r)
            for r in range(4):
                f(f"v_cvt_pk_bf16_f32 v{T+8+r}, v{T+2*r}, v{T+2*r+1}")
            f(lambda: a.vm(f"buffer_store_dwordx4 v[{T+8}:{T+11}], v{vU}, s[{RWS}:{RWS+3}], s{sUS1} offen sc1", "ust1"))
            return
        for half in range(2):
            f(lambda half=half: a.dwait(f"rr{h}_{3*half+2}"))
            for r in range(4 * half, 4 * half + 4):
                f(f"v_add_f32 v{P0+r}, v{P0+r}, v{P0+8+r}")
                f(f"v_add_f32 v{P1+r}, v{P1+r}, v{P1+8+r}")
            for r in range(4 * half, 4 * half + 4):
                f(f"v_add_f32 v{P1+r}, v{P1+r}, v{P0+r}")
        for r in range(8):
            f(f"v_mul_f32 v{T+r}, v{P1+r}, v{P1+r}")
        for r in range(8):
            f(f"v_fma_f32 v{T+r}, v{T+r}, v{vC1+1}, v{vC1}")
        for r in range(8):
            f(f"v_mul_f32 v{T+r}, v{T+r}, v{P1+r}")
        for r in range(8):
            f(f"v_exp_f32 v{T+r}, v{T+r}")
        for r in range(8):
            f(f"v_add_f32 v{T+r}, 1.0, v{T+r}")
        for r in range(8):
            f(f"v_rcp_f32 v{T+r}, v{T+r}")
        for r in range(8):
            f(f"v_mul_f32 v{T+r}, v{T+r}, v{P1+r}")
        for r in range(4):
            f(f"v_cvt_pk_bf16_f32 v{T+8+r}, v{T+2*r}, v{T+2*r+1}")
        su = sUS0 if h == 0 else sUS1
        if c.jit:
            f(lambda: jitter(9 + 2 * h))
        f(lambda: a.vm(f"buffer_store_dwordx4 v[{T+8}:{T+11}], v{vU}, s[{RWS}:{RWS+3}], s{su} offen sc1", f"ust{h}"))
    deferred1 = []
    for m in range(N1 // 2):
        p, i = m // 8, 2 * (m % 8)
        stamp(f"g1_{m}")
        if hst_[0] == N1 and w2.n == 4 * c.w2e:
            stamp("t0")
        ops = plan(m, hst_, w1, hissue, N1, c.hd, lambda: [w2.issue] * c.w2_tail)
        if c.ov1 and m == 8:
            assert w1.left() == 0 and w1.rd == 8 * NS1
            w2setup(c.w2e)
        if m % 8 == 1 and p >= 1:
            rest, fl.g = (fl.g, []) if c.cst == 2 else ([], fl.g)
            for aa in (range(4) if p % 2 == 1 else (2, 3)):
                red_write(fl, p - 1, aa)
            fl.g += rest
        a.wait(f"h{2*m+1}")
        if m < 8:
            need_steps(w1, 2 * m + 1)
        if c.al8:
            a(".p2align 3")
        per = spread(c.g1fill)
        order = (2, 3, 0, 1) if m == N1 // 2 - 1 else (0, 1, 2, 3)
        for ti, t in enumerate(order):
            for e0 in range(2):
                e = e0 ^ (ti & 1) if c.serp else e0
                rb = RING + 4 * ((2 * m + e) % NRING)
                cc = ACC + 16 * p + 4 * t
                src = "0" if (i == 0 and e0 == 0 and not (p % 2 == 1 and t < 2)) else f"v[{cc}:{cc+3}]"
                ra = 16 * (i + e) + 4 * t
                ins = f"v_mfma_f32_16x16x32_bf16 v[{cc}:{cc+3}], a[{ra}:{ra+3}], v[{rb}:{rb+3}], {src}"
                if t < 2 and m >= N1 // 2 - c.defer1:
                    deferred1.append(ins)
                elif not (c.fake & 4):
                    a(ins)
                if 2 * ti + e0 in ops:
                    ops[2 * ti + e0]()
                if m < 8:
                    w1.reads(2)
                if c.cst:
                    fl.gap(0 if 2 * ti + e0 in ops else c.gb1)
                else:
                    fl.emit(per[2 * ti + e0])
        if c.gbar and m % c.gbar == c.gbar - 1 and m != c.g1bar and m < 28:
            a("s_barrier")
        if m == c.g1bar:
            fl.g = [x for x in fl.g if not getattr(x, "skip", 0)]
            assert not fl.g
            a.dwait()
            if not (c.fake & 16):
                a("s_barrier")
            red_finish(fl, 0)
            if c.fake & 8:
                fl.g = [x if callable(x) else (lambda: None) for x in fl.g]
    fl.flush()
    stamp(6)
    w2.can_read = True
    if c.defer1:
        for _ in range(6):
            a(deferred1.pop(0) if deferred1 else "s_nop 0")
        red_write(fl, 3, 2)
        fl.flush()
        a(deferred1.pop(0) if deferred1 else "s_nop 0")
        red_write(fl, 3, 3)
        fl.flush()
        for x in deferred1:
            a(x)
    else:
        a("s_nop 3")
        red_write(fl, 3, 2)
        red_write(fl, 3, 3)
        fl.flush()
    w2.issue()
    a.dwait()
    a("s_barrier")
    red_finish(fl, 1)
    fl.emit(6)
    k = 0
    flagged = False
    while fl.g:
        if k == c.fe_pos:
            a.wait("ust0")
            stamp("fe")
            flag_add(1)
            flagged = True
        if k < c.w2_un:
            w2.step(fl, throttle=False)
        else:
            fl.emit(c.fillk)
        k += 1
    stamp(7)
    if not flagged:
        a.wait("ust0")
        stamp("fe")
        flag_add(1)
    if c.ep:
        a.vm(poll_load("a"), "apoll0")
    for _ in range(c.w2_mid):
        w2.step(None, older_than="ust1")
    a.wait("ust1")
    flag_add(2)
    if c.eat:
        a(f"s_or_b32 s{sT0}, s2, s{sW}")
        a("s_cbranch_scc1 L_join")
        a(f"s_atomic_add s{sED}, s[{FB}:{FB+1}], {EP_OFF-FH_OFF}")
    a("L_join:")
    join_n, join_rd = w2.n, w2.rd
    stamp(8)
    fl(f"s_mul_i32 s{sT3}, {0 if c.fake & 2 else 's%d' % sJ}, {(5*49152) << zu}\ns_mul_i32 s{sT1}, s{sW}, {12288 << zu}\ns_add_u32 s{sT3}, s{sT3}, s{sT1}\ns_add_u32 s{sT3}, s{sT3}, {U_OFF}")
    if c.nh:
        for i in range(NS2):
            fl(step_off(sK + i, sT3, i, 10 + zu))
    else:
        fl(f"s_add_u32 s{sUS1}, s{sT3}, {12288 << zu}\ns_lshl_b32 s{sK}, s{sROT2}, {10+zu}\ns_add_u32 s{sK}, s{sK}, s{sT3}")
        for i in range(1, NS2):
            fl(f"s_add_u32 s{sK+i}, s{sK+i-1}, {1024 << zu}\ns_cmp_eq_u32 s{sK+i}, s{sUS1}\ns_cselect_b32 s{sK+i}, s{sT3}, s{sK+i}")
    fl(f"v_lshlrev_b32 v{vB2}, 16, v{vB2}")
    for t in range(5):
        for r in range(4):
            fl(f"v_mov_b32 v{ACC+16*t+r}, v{vB2}")
    for k in range(4):
        fl(f"s_xor_b32 s{sT0}, s{sW}, {k}\ns_mul_i32 s{sT0}, s{sT0}, {WSLOT*4096}\nv_add_u32 v{vR+k}, s{sT0}, v{vL16}")
    if c.omap:
        fl(f"s_lshl_b32 s{sUS0}, s{sJ}, 7\ns_lshl_b32 s{sT3}, s{sJ}, 5\ns_add_u32 s{sT3}, s{sT3}, 1024")
    else:
        fl(f"s_mul_i32 s{sUS0}, s{sJ}, 160\ns_add_u32 s{sT3}, s{sUS0}, 128")
    assert w2.left() >= c.pe2 + c.ov2
    while w2.left() > c.ov2:
        if c.wbar and (w2.left() - c.wbo) % c.wbar == 0:
            a("s_barrier")
        if w2.left() == c.pe2 + c.ov2 + 1 and c.ep:
            assert not a.pending("apoll0")
            poll_test("a")
        if w2.left() == c.pe2 + c.ov2:
            if c.ep:
                a("s_cbranch_vccz L_noa")
                a(poll_load("a"))
                a("L_noa:")
            else:
                a.vm(poll_load("a"), "apoll")
        w2.step(fl)
    if c.pe2 == 0:
        a.vm(poll_load("a"), "apoll")
    fl.flush()
    if c.ep:
        a(f"s_waitcnt vmcnt({c.pe2})")
        a.q = a.q[-c.pe2:]
    a.wait("apoll")
    stamp(9)
    spin("a")
    stamp(10)
    N2 = 60
    def uissue(n):
        if n == 24 - c.pbl:
            a.vm(poll_load("b"), "bpoll")
        if n == 23 and c.pbo:
            a.wait("bpoll")
            poll_test("b")
        if n == 24:
            if c.pbo:
                a("s_cbranch_vccnz L_pb_spin")
                a("L_pb_ok:")
            else:
                a.wait("bpoll")
                spin("b")
            stamp("pb")
        r = RING + 4 * (n % NRING)
        a.vm(f"buffer_load_dwordx4 v[{r}:{r+3}], v{vU+n//12}, s[{RWS}:{RWS+3}], s{sK+n%12} offen sc1", f"u{n}")
    ust_ = [c.d0 if c.ov2 else (c.hi or c.ud)]
    for n in range(ust_[0]):
        pace()
        uissue(n)
        w2.reads(2)
    if not c.ov2:
        w2.drain()
        a.dwait()
    stamp("g2s")
    def fin_reads(f, ts):
        for t in ts:
            for k in range(1, 4):
                cr = ACC + 16 * t + 4 * k
                f(lambda t=t, k=k, cr=cr: a.ds(f"ds_read_b128 v[{cr}:{cr+3}], v{vR+k} offset:{(k-1)*5120+t*1024}", f"fr{t}"))
    def fin(f, t):
        f(lambda: a.dwait(f"fr{t}"))
        cc = ACC + 16 * t
        if t == 4 and c.pkfin:
            for r in (0, 2):
                f(f"v_pk_add_f32 v[{cc+r}:{cc+r+1}], v[{cc+r}:{cc+r+1}], v[{cc+4+r}:{cc+5+r}]")
                f(f"v_pk_add_f32 v[{cc+8+r}:{cc+9+r}], v[{cc+8+r}:{cc+9+r}], v[{cc+12+r}:{cc+13+r}]")
            for r in (0, 2):
                f(f"v_pk_add_f32 v[{cc+r}:{cc+r+1}], v[{cc+r}:{cc+r+1}], v[{cc+8+r}:{cc+9+r}]")
            for r in (0, 2):
                f(f"v_cvt_pk_bf16_f32 v{RD+2*t+r//2}, v{cc+r}, v{cc+r+1}")
            return
        for r in range(4):
            f(f"v_add_f32 v{cc+r}, v{cc+r}, v{cc+4+r}")
            f(f"v_add_f32 v{cc+8+r}, v{cc+8+r}, v{cc+12+r}")
        for r in range(4):
            f(f"v_add_f32 v{cc+r}, v{cc+r}, v{cc+8+r}")
        for r in (0, 2):
            f(f"v_cvt_pk_bf16_f32 v{RD+2*t+r//2}, v{cc+r}, v{cc+r+1}")
    def ostore(pp):
        a.vm(f"buffer_store_dwordx4 v[{RD+4*pp}:{RD+4*pp+3}], v{vO}, s[{ROUT}:{ROUT+3}], s{sUS0} offen offset:{64*pp}{OP[c.opol] if c.osc >> pp & 1 else ''}", "o")
    stored0 = [False]
    deferred = []
    for m in range(N2 // 2):
        t, i = m // 6, 2 * (m % 6)
        stamp(f"g2_{m}")
        def tail2():
            if stored0[0] or c.o0b:
                return []
            stored0[0] = True
            return [lambda: ostore(0)]
        ops = plan(m, ust_, w2, uissue, N2, c.ud, tail2)
        if m % 6 == 1 and t >= 1:
            rest, fl.g = fl.g, []
            for b in range(1, 4):
                cw = ACC + 16 * (t - 1) + 4 * b
                if c.w32 & 8 and t < 4:
                    for r in range(4):
                        fl(costly(lambda cw=cw, b=b, t=t, r=r: a.ds(f"ds_write_b32 v{vR}, v{cw+r} offset:{(b-1)*5120+(t-1)*1024+4*r}", "fw"), 16))
                        if r % 2 == 1:
                            fl.delay(1)
                    continue
                fl(costly(lambda cw=cw, b=b, t=t: a.ds(f"ds_write_b128 v{vR}, v[{cw}:{cw+3}] offset:{(b-1)*5120+(t-1)*1024}", "fw"), 16))
                if c.cst:
                    fl.delay(c.wsk)
            fl.g += rest
        a.wait(f"u{2*m+1}")
        if m < 6:
            need_steps(w2, 2 * m + 1)
        if c.al8:
            a(".p2align 3")
        per = spread(c.g2l if m > c.g2b1 else c.g2f)
        for bi, b in enumerate((1, 2, 3, 0)):
            for e0 in range(2):
                e = e0 ^ (bi & 1) if c.serp else e0
                ra = RING + 4 * ((2 * m + e) % NRING)
                cc = ACC + 16 * t + 4 * b
                src = "0" if (i == 0 and e0 == 0 and b) else f"v[{cc}:{cc+3}]"
                rb = 16 * (i + e) + 4 * b
                ins = f"v_mfma_f32_16x16x32_bf16 v[{cc}:{cc+3}], v[{ra}:{ra+3}], a[{rb}:{rb+3}], {src}"
                if b == 0 and m >= N2 // 2 - c.defer:
                    deferred.append(ins)
                elif not (c.fake & 4):
                    a(ins)
                if 2 * bi + e0 in ops:
                    ops[2 * bi + e0]()
                if m < 6:
                    w2.reads(2)
                if c.cst:
                    gb = c.gb3 if m > c.g2b1 else c.gb2
                    if not (b == 0 and m >= N2 // 2 - c.defer):
                        fl.gap(0 if 2 * bi + e0 in ops else gb)
                else:
                    fl.emit(per[2 * bi + e0])
        if c.gbar and m % c.gbar == c.gbar - 1 and m not in (c.g2b0, c.g2b1) and m < 25:
            a("s_barrier")
        if m in (c.g2b0, c.g2b1):
            fl.g = [x for x in fl.g if not getattr(x, "skip", 0)]
            assert not fl.g
            a.dwait()
            if not (c.fake & 16):
                a("s_barrier")
            nfirst = 3 if c.g2b0 >= 19 else 2
            ts = tuple(range(nfirst)) if m == c.g2b0 else tuple(range(nfirst, 4))
            fin_reads(fl, ts)
            if m == c.g2b1 and c.o0b:
                assert ust_[0] == N2
                fl(lambda: ostore(0))
            if c.cst:
                fl.delay(c.dly if m == c.g2b0 else 2)
            for tt in ts:
                fin(fl, tt)
            if c.fake & 8:
                fl.g = [x if callable(x) else (lambda: None) for x in fl.g]
            if m == c.g2b1:
                fl(lambda: ostore(1))
            elif c.o0e:
                fl(lambda: ostore(0))
                stored0[0] = True
    stamp(11)
    def pad_states(k):
        while k > 0 and deferred:
            a(deferred.pop(0)); k -= 1
        if k > 0:
            a(f"s_nop {k-1}")
    pad_states(4 if c.defer else 2)
    for b in range(1, 4):
        cw = ACC + 64 + 4 * b
        if b > 1:
            pad_states(1)
        a.ds(f"ds_write_b128 v{vR}, v[{cw}:{cw+3}] offset:{(b-1)*5120+4096}")
    late = len(deferred)
    pad_states(late)
    fl.flush()
    a.dwait()
    a("s_barrier")
    stamp("e2")
    fin_reads(fl, (4,))
    fl.flush()
    if c.stamp:
        a.dwait()
    if c.defer:
        a("s_nop 1")
    fin(fl, 4)
    fl.flush()
    a(f"buffer_store_dwordx2 v[{RD+8}:{RD+9}], v{vO+1}, s[{ROUT}:{ROUT+3}], s{sT3} offen{OP[c.opol] if c.osc & 4 else ''}")
    if not c.eat:
        a(f"s_or_b32 s{sT0}, s2, s{sW}")
        a("s_cbranch_scc1 L_noepoch")
        a(f"v_mov_b32 v{t5}, {EP_OFF}")
        flag_store(t5, None, "")
        a("L_noepoch:")
    if c.stamp:
        stamp("e3")
        a("s_waitcnt vmcnt(0)")
        stamp(12)
        a(f"s_lshl_b32 s{sT0}, s2, 3")
        a(f"s_add_u32 s{sT0}, s{sT0}, s{sW}")
        a(f"s_lshl_b32 s{sT0}, s{sT0}, 6")
        a(f"s_add_u32 s{sT0}, s{sT0}, {ST_OFF}")
        a(f"v_mov_b32 v{t0}, s{sT0}")
        a("s_waitcnt lgkmcnt(0)")
        for i in range(13):
            a(f"v_mov_b32 v{t1}, s{STB+2*i}")
            a(f"global_store_dword v{t0}, v{t1}, s[{WS}:{WS+1}] offset:{4*i}")
    if c.pad:
        a("s_waitcnt vmcnt(0)")
        stamp("end")
        a("s_waitcnt lgkmcnt(0)")
        a("s_sub_u32 s64, s98, s100")
        if c.padx == -2:
            a(f"v_mov_b32 v{t0}, {ST_OFF}")
            a(f"global_load_dword v{t1}, v{t0}, s[{WS}:{WS+1}] sc1")
            a("s_waitcnt vmcnt(0)")
            a(f"v_readfirstlane_b32 s100, v{t1}")
            a("s_nop 3")
            a("s_sub_u32 s64, s98, s100")
            a("s_min_u32 s64, s64, 4000")
        if c.padx >= 0:
            a(f"s_cmp_lg_u32 s2, {c.padx}")
            a("s_cbranch_scc1 L_end")
            a(f"v_mov_b32 v{t0}, {ST_OFF}")
            a(f"global_load_dword v{t1}, v{t0}, s[{WS}:{WS+1}] sc1")
            a("s_waitcnt vmcnt(0)")
            a(f"v_readfirstlane_b32 s64, v{t1}")
            a("s_nop 3")
            a("s_sub_u32 s64, s100, s64")
            a("s_add_u32 s64, s64, 100")
            a("s_min_u32 s64, s64, 1000")
        a(f"s_mul_i32 s64, s64, {c.mult}")
        a("s_add_u32 s64, s64, 10000")
        a(f"s_mov_b32 s{sCNT}, 0")
        a("L_pad:")
        a("s_memrealtime s[66:67]")
        a("s_waitcnt lgkmcnt(0)")
        a(f"s_add_u32 s{sCNT}, s{sCNT}, 1")
        a(f"s_cmp_ge_u32 s{sCNT}, 200000\ns_cbranch_scc1 L_end")
        a("s_sub_u32 s66, s66, s100")
        a("s_cmp_lt_u32 s66, s64\ns_cbranch_scc1 L_pad")
    a("s_endpgm")
    if c.pbo:
        a("L_pb_spin:")
        a(f"s_mov_b32 s{sCNT}, 0")
        a("L_pb_l:")
        a(poll_load("b"))
        a(f"s_add_u32 s{sCNT}, s{sCNT}, 1")
        a(f"s_cmp_ge_u32 s{sCNT}, {SPIN_CAP}")
        a("s_cbranch_scc1 L_pb_ok")
        a("s_waitcnt vmcnt(0)")
        poll_test("b")
        a("s_cbranch_vccnz L_pb_l")
        a("s_branch L_pb_ok")
    a("L_idle:")
    if c.hearly:
        srd(a, RW2, W2, S * F * 2)
    else:
        a("s_waitcnt vmcnt(0) lgkmcnt(0)")
    a.q, a.lq = [], []
    if c.pad and c.padat in ("4", "5", "6", "7", "t0", "fe", "g1s"):
        stamp(c.padat)
    if c.stamp:
        for nm in SETS[c.sset]:
            if nm in (4, 5, 6, 7, "t0", "fe", "g1s") or str(nm).startswith(("w1_", "g1_", "w2_22")):
                stamp(nm)
    if c.nh:
        a(f"s_bfe_u32 s{sT1}, s2, 0x10003")
        if (c.nh == 4 or c.irot) and c.iw == 0 and c.irot != 2:
            a(f"s_mul_i32 s{sROT2}, s{sT1}, {c.ird or (12-c.nh)//2}")
            if c.iro:
                a(f"s_add_u32 s{sROT2}, s{sROT2}, {c.iro}")
        if c.nh == 4 and c.iw == 2:
            a(f"s_lshl_b32 s{sT0}, s{sT1}, 2")
            a(f"s_bitcmp0_b32 s{sST}, 2")
            a(f"s_cselect_b32 s{sROT2}, s{sT0}, s{sROT2}")
        a(f"s_lshl_b32 s{sT1}, s{sT1}, 16")
        a(f"s_mul_i32 s{sT0}, s{sW}, {12*32*4096}")
        a(f"s_add_u32 s{sT0}, s{sT0}, s{sT1}")
        a(f"s_lshr_b32 s{sT1}, s{sST}, 2")
        a(f"s_lshl_b32 s{sT1}, s{sT1}, 9")
        a(f"s_add_u32 s{sT3}, s{sT0}, s{sT1}")
        sh = c.hsec + 1
        a(f"v_lshrrev_b32 v{vH}, {sh}, v{vL}")
        a(f"v_lshlrev_b32 v{vH}, 12, v{vH}")
        a(f"v_and_b32 v{t1}, {(1<<sh)-1}, v{vL}")
        a(f"v_lshl_add_u32 v{vH}, v{t1}, {9-sh}, v{vH}")
        for r in range(c.nh * c.hsec):
            a(f"buffer_load_dword v{vH+1}, v{vH}, s[{RW2}:{RW2+3}], s{sT3} offen")
            inc = 32 if c.hsec == 1 else (8 if r % 2 == 0 else 24)
            a(f"s_add_u32 s{sT3}, s{sT3}, {inc*4096}")
            if c.hearly and r == 0:
                setup_common(a)
                setup_g2(a)
                a("s_waitcnt vmcnt(1)")
                stamp(3)
                flag_add(0)
            a(f"s_waitcnt vmcnt({c.hq-1})")
    elif c.helper:
        a(f"s_bfe_u32 s{sT1}, s2, 0x10003")
        a(f"s_mul_i32 s{sROT2}, s{sT1}, 6")
    w2setup(0)
    wi = W(2)
    while wi.n < join_n:
        if c.iw and wi.n == 4 * (c.nh + 1):
            if c.iw == 2:
                a(f"s_bitcmp0_b32 s{sST}, 2")
                a("s_cbranch_scc1 L_iw_ok")
            a(f"s_mov_b32 s{sCNT}, 0")
            a("L_iw:")
            if c.islp:
                a(f"s_sleep {c.islp}")
            a(poll_load("a"))
            a(f"s_add_u32 s{sCNT}, s{sCNT}, 1")
            a(f"s_cmp_ge_u32 s{sCNT}, {SPIN_CAP}")
            a("s_cbranch_scc1 L_iw_ok")
            a("s_waitcnt vmcnt(0)")
            poll_test("a")
            a("s_cbranch_vccnz L_iw")
            a("L_iw_ok:")
        wi.issue()
    if c.ep:
        a(f"v_not_b32 v{vP}, v{vTAG}")
    a("s_waitcnt vmcnt(0)")
    a.q = []
    wi.reads(join_rd - wi.rd)
    assert wi.rd == join_rd, (wi.rd, join_rd)
    a.dwait()
    a("s_branch L_join")
    a("L_end:\ns_endpgm")
    a(f""".section .rodata,"a"
.p2align 6
.amdhsa_kernel {NAME}
  .amdhsa_next_free_vgpr 512
  .amdhsa_next_free_sgpr 102
  .amdhsa_accum_offset 256
  .amdhsa_group_segment_fixed_size 0
  .amdhsa_kernarg_size 64
  .amdhsa_user_sgpr_count 2
  .amdhsa_user_sgpr_kernarg_segment_ptr 1
  .amdhsa_system_sgpr_workgroup_id_x 1
  .amdhsa_float_denorm_mode_32 3
.end_amdhsa_kernel""")
    return a.text()

if __name__ == "__main__":
    c = Cfg()
    out = sys.argv[1]
    for x in sys.argv[2:]:
        k, v = x.split("=")
        assert hasattr(c, k), k
        setattr(c, k, v if k == 'padat' else int(v, 0))
    open(out, "w").write(gen(c))
```

```python
import sys, struct, math

def f32(x):
    return "0x%08x" % struct.unpack("<I", struct.pack("<f", x))[0]

S, D, F = 2048, 640, 1536
FH_OFF = 0
EP_OFF = FH_OFF + (16 << 10)
FU_OFF = FH_OFF + (32 << 10)
ST_OFF = 16 << 20
NAME = "standalone__mixer_token_mlp__prompt_kernel"
SPIN_CAP = 400000
OP = [" sc1", " nt", " sc0", " sc0 nt", " sc1 nt"]

HEADER = """; MLP-Mixer token mixing, one launch:  out = (gelu(LN(x)^T w1 + b1) w2 + b2)^T
; kernarg: x(0) w1(8) b1(16) w2(24) b2(32) out(40) debug(48) ws(56); S=2048 D=640 F=1536, all bf16.
;
; workgroup -> tile maps, that only aims at cache behaviour; no result depends on where a workgroup runs."""

class Cfg:
    stamp = 0
    sset = 0
    pad = 0
    mult = 0
    padx = -1
    padat = "end"
    map1 = 1
    map2 = 1
    rot1 = 10
    rot2 = 8
    cpo = 256
    w1_pre = 0
    w1_x = 2
    w1_ln = 2
    w1_mid = 6
    wd = 7
    hd = 12
    ud = 10
    pe1 = 6
    pe2 = 6
    g1bar = 18
    g1fill = 9
    w2_tail = 2
    w2_mid = 7
    w2_un = 5
    pbl = 10
    helper = 0
    serp = 0
    fillk = 8
    irot = 0
    iro = 2
    ird = 0
    lut1 = 0x76534120
    lead = 160
    lmask = 0
    l1 = 4
    l2 = 0
    lp = 4
    fp = 0
    f1 = 0
    f2 = 6
    iw = 0
    islp = 0
    xnt = 1
    wnt = 0
    hnt = 0
    ep = 0
    eat = 1
    w32 = 0
    cst = 1
    gb1 = 8
    gb2 = 4
    gb3 = 8
    dly = 4
    wsk = 1
    pbo = 1
    wbar = 0
    wbo = 0
    gbar = 0
    hi = 8
    thr = 8
    ramp = 3
    fx = 0
    jit = 0
    slp = 0
    xr1 = 0
    xr2 = 0
    z = 1
    zu = -1
    al8 = 0
    one = 0
    prio = 0
    defer1 = 0
    pk1 = 0
    o0b = 1
    defer = 4
    pkfin = 1
    omap = 1
    rm1 = 1
    rm2 = 1
    opol = 0
    o0e = 0
    fast0 = 0
    ov1 = 0
    ov2 = 0
    d0 = 6
    wpp = 4
    n1 = 3
    hearly = 1
    lg0 = 1
    lg1 = 5
    fake = 0
    gap2 = 0
    g2f = 6
    g2l = 16
    g2b0 = 14
    g2b1 = 25
    nh = 4
    hsec = 1
    hq = 1
    osc = 3
    w2e = 0
    egrp = 4
    e0 = 20
    estep = 8
    esh = 3
    tlbw = 0
    w1_first = 4
    xbar = 1
    fhs = 5
    fus = 6
    slowl = 16
    fe_pos = 4

class A:
    def __init__(self):
        self.L = []
        self.q = []
        self.lq = []
    def __call__(self, s):
        for line in s.strip("\n").split("\n"):
            self.L.append(line)
    def vm(self, s, tag=None):
        self(s)
        self.q.append(tag)
    def recent_slow_before(self, tag, window):
        if tag not in self.q:
            return False
        idx = self.q.index(tag)
        return any(t in ("hst", "hfl", "ust0", "ust1", "ufl0", "ufl1", "b1", "b2") and len(self.q) - 1 - i < window
                   for i, t in enumerate(self.q[:idx]))
    def wait(self, tag):
        if tag not in self.q:
            return
        idx = max(i for i, t in enumerate(self.q) if t == tag)
        n = len(self.q) - 1 - idx
        assert n <= 63
        self(f"s_waitcnt vmcnt({n})")
        self.q = self.q[idx + 1:]
    def pending(self, tag):
        return tag in self.q
    def ds(self, s, tag=None):
        if len(self.lq) >= 13:
            self("s_waitcnt lgkmcnt(7)")
            self.lq = self.lq[-7:]
        self(s)
        self.lq.append(tag)
    def dwait(self, tag=None):
        if tag is None:
            self("s_waitcnt lgkmcnt(0)")
            self.lq = []
            return
        if tag not in self.lq:
            return
        idx = max(i for i, t in enumerate(self.lq) if t == tag)
        self(f"s_waitcnt lgkmcnt({len(self.lq)-1-idx})")
        self.lq = self.lq[idx + 1:]
    def text(self):
        import re
        L = self.L
        out = []
        for i, l in enumerate(L):
            nxt = L[i + 1] if i + 1 < len(L) else ""
            code = l.split(";")[0].strip()
            if re.fullmatch(r"s_(add_u32|xor_b32) (s\d+), \2, 0", code) and not nxt.startswith(("s_addc", "s_cselect", "s_cbranch")):
                continue
            if re.fullmatch(r"v_add_u32 (v\d+), 0, \1", code):
                continue
            m = re.fullmatch(r"s_branch (\w+)", code)
            if m and nxt.endswith(":") and L[i + 2] == m.group(1) + ":":
                continue
            out.append(l if l.startswith((";", ".")) or l.endswith(":") or l.startswith("  ") else "    " + l)
        return "\n".join(out) + "\n"

class Fill:
    def __init__(self, a):
        self.a = a
        self.g = []
    def __call__(self, s):
        self.g.append(s)
    def emit(self, k):
        while k > 0 and self.g:
            x = self.g.pop(0)
            if callable(x):
                x(); k -= 1
            else:
                self.a(x); k -= x.count("\n") + 1
    def cost(self, x):
        if callable(x):
            return getattr(x, "cost", 4)
        return sum(8 if l.startswith(("v_exp", "v_rcp")) else 4 for l in x.split("\n"))
    def gap(self, budget):
        used = 0
        while self.g and budget > 0:
            x = self.g[0]
            if getattr(x, "skip", 0):
                x.skip -= 1
                if x.skip == 0:
                    self.g.pop(0)
                return
            k = self.cost(x)
            if used and used + k > budget:
                return
            self.g.pop(0)
            x() if callable(x) else self.a(x)
            used += k
            if used >= budget:
                return
    def delay(self, n):
        if n > 0:
            f = lambda: None
            f.skip = n
            self.g.append(f)
    def flush(self):
        self.emit(1 << 30)

def costly(f, k):
    f.cost = k
    return f

def srd(a, d, b, nbytes):
    a(f"s_mov_b32 s{d}, s{b}")
    a(f"s_mov_b32 s{d+1}, s{b+1}")
    a(f"s_mov_b32 s{d+2}, {nbytes}")
    a(f"s_mov_b32 s{d+3}, 0x00020000")

def gen(c):
    a = A()
    z = c.z
    zu = c.z if c.zu < 0 else c.zu
    H_OFF = 0x20000 if z < 2 else (17 << 20)
    U_OFF = H_OFF + (0x280000 << z)
    if H_OFF < ST_OFF and U_OFF + (0x1e0000 << zu) > ST_OFF:
        U_OFF = 17 << 20
    WS_USED = U_OFF + (0x1e0000 << zu)
    STB = 76
    SETS = {
        0: [0, 1, 2, 3, 4, 5, "t0", 6, 8, 9, 10, 11, 12],
        1: [0, "ka", "iss", 1, "x4", 2, "hsto", 3, "w1_24", "w1_40", 4, 5, "g1s"],
        2: [0, 5, "g1s", "g1_8", "g1_16", "g1_24", "t0", 6, "fe", 7, 8, 9, 10],
        4: [0, 5, "g1s", "g1_2", "g1_4", "g1_8", "g1_12", "g1_16", "g1_19", "g1_22", "g1_26", "g1_29", 6],
        5: [0, 10, "g2s", "g2_2", "g2_4", "g2_7", "g2_10", "g2_13", "g2_16", "g2_20", "g2_24", "g2_27", 11],
        6: [0, "t0", 6, "fe", 7, "w2_22", 8, "w2_30", "w2_36", "w2_42", 9, 10, "g2s"],
        3: [0, 9, 10, "g2s", "g2_6", "pb", "g2_12", "g2_18", "g2_24", 11, "e2", "e3", 12],
    }
    def stamp(name):
        if c.pad and str(name) == c.padat:
            a("s_memrealtime s[98:99]")
        if c.stamp and name in SETS[c.sset]:
            i = SETS[c.sset].index(name)
            a(f"{'s_memtime' if c.stamp == 2 else 's_memrealtime'} s[{STB+2*i}:{STB+2*i+1}]")
    a(HEADER)
    a("; @launch grid=(256,1,1) block=(256,1,1) lds=163840")
    a('.amdgcn_target "amdgcn-amd-amdhsa--gfx950"')
    a(f".text\n.globl {NAME}\n.p2align 8\n.type {NAME},@function\n{NAME}:")
    X, W1, B1, W2, B2, OUT, DBG, WS = 4, 6, 8, 10, 12, 14, 16, 18
    sMA, sMB = 20, 22
    RW1, RW2, RWS, ROUT = 24, 28, 32, 36
    sW, sLDS, sDT, sFT, sJ, sST = 40, 41, 42, 43, 44, 45
    sWO, sWO0, sWOE, sUS0 = 46, 47, 48, 49
    sT0, sT1, sUS1, sCNT, sROT1, sROT2, sT3, sTAG = 50, 51, 52, 53, 54, 55, 56, 57
    sS = 3
    sED = 20
    FB = 4
    sFO = (16, 17, 58)
    sFD = (0, 1, 59)
    sK = 60
    vL = 1
    vD1, vD2, vH, vU, vT1, vT2, vR, vO = 4, 8, 12, 16, 21, 25, 29, 33
    vFH, vFU, vFO, vTAG, vB1, vB2, vHS, vLT, vFHO, vC1 = 35, 36, 37, 39, 40, 44, 45, 46, 49, 50
    t0, t1, t2, t3, t4, t5 = 54, 55, 56, 57, 58, 59
    vP = 60
    vL16, vHL = 52, 53
    ACC, RING, RD = 64, 144, 208
    RED = 114688
    WSLOT = 7
    NRING = 16
    NS1, NS2 = 16, 12

    def poll_load(kind):
        if kind == "h":
            return f"global_load_dwordx4 v[{vP}:{vP+3}], v{vFH}, s[{WS}:{WS+1}] sc1"
        return f"global_load_dword v{vP}, v{vFU if kind == 'a' else vFU+1}, s[{WS}:{WS+1}] sc1"
    def poll_test(kind):
        if kind == "h":
            a(f"v_bitop3_b32 v{vP}, v{vP}, v{vP+1}, v{vTAG} bitop3:0x7e")
            a(f"v_bitop3_b32 v{vP+2}, v{vP+2}, v{vP+3}, v{vTAG} bitop3:0x7e")
            a(f"v_or_b32 v{vP}, v{vP}, v{vP+2}")
            a(f"v_cmp_ne_u32 vcc, 0, v{vP}")
        else:
            a(f"v_cmp_ne_u32 vcc, s{sTAG}, v{vP}")
    def spin(kind):
        label = "L_p" + kind
        poll_test(kind)
        a(f"s_cbranch_vccz {label}_ok")
        a(f"s_mov_b32 s{sCNT}, 0")
        a(f"{label}_l:")
        if c.slp and kind == "a":
            a(f"s_sleep {c.slp}")
        a(poll_load(kind))
        a(f"s_add_u32 s{sCNT}, s{sCNT}, 1")
        a(f"s_cmp_ge_u32 s{sCNT}, {SPIN_CAP}")
        a(f"s_cbranch_scc1 {label}_ok")
        a("s_waitcnt vmcnt(0)")
        poll_test(kind)
        a(f"s_cbranch_vccnz {label}_l")
        a(f"{label}_ok:")
    njit = [0]
    def jitter(val):
        if c.jit:
            a(f"s_mul_i32 s{sCNT}, s2, 5\ns_add_u32 s{sCNT}, s{sCNT}, s{sW}\ns_and_b32 s{sCNT}, s{sCNT}, 31\ns_cmp_lg_u32 s{sCNT}, {val}\ns_cbranch_scc1 L_j{njit[0]}\ns_sleep {c.jit}\nL_j{njit[0]}:")
            njit[0] += 1
    def flag_add(k):
        a(f"s_atomic_add s{sFD[k]}, s[{FB}:{FB+1}], s{sFO[k]}")
    def flag_store(vaddr, tag, sc=" sc1"):
        a("s_mov_b64 exec, 1")
        s_ = f"global_store_dword v{vaddr}, v{vTAG}, s[{WS}:{WS+1}]{sc}"
        if tag:
            a.vm(s_, tag)
        else:
            a(s_)
        a("s_mov_b64 exec, -1")

    def step_off(dst, base, i, sh):
        if i < c.n1:
            return f"s_add_u32 s{dst}, s{base}, {i << sh}"
        if c.n1 < i <= c.nh:
            return f"s_add_u32 s{dst}, s{base}, {(i - 1) << sh}"
        k = 0 if i == c.n1 else i - c.nh
        md = 12 - c.nh
        if md & (md - 1):
            return (f"s_add_u32 s{dst}, s{sROT2}, {k+c.nh}\ns_cmp_ge_u32 s{dst}, 12\ns_cselect_b32 s{sCNT}, {md}, 0\ns_sub_u32 s{dst}, s{dst}, s{sCNT}\n"
                    f"s_lshl_b32 s{dst}, s{dst}, {sh}\ns_add_u32 s{dst}, s{dst}, s{base}")
        return (f"s_add_u32 s{dst}, s{sROT2}, {k}\ns_and_b32 s{dst}, s{dst}, {12-c.nh-1}\ns_add_u32 s{dst}, s{dst}, {c.nh}\n"
                f"s_lshl_b32 s{dst}, s{dst}, {sh}\ns_add_u32 s{dst}, s{dst}, s{base}")
    class W:
        def __init__(self, kind):
            self.kind = kind
            self.ns = NS1 if kind == 1 else NS2
            self.n = 0
            self.rd = 0
            self.can_read = True
        def left(self):
            return 4 * self.ns - self.n
        def tag(self, n):
            return f"w{self.kind}_{n}"
        def nslot(self):
            return WSLOT - c.w2e if self.kind == 1 else WSLOT
        def slot(self, i):
            return i % self.nslot() if self.kind == 1 else (i + WSLOT - c.w2e) % WSLOT
        def issue(self):
            i, j = self.n >> 2, self.n & 3
            vd, r, step = (vD1, RW1, 32 * 3072) if self.kind == 1 else (vD2, RW2, 32 * 4096)
            if i >= self.nslot() and j == 0:
                old = i - self.nslot()
                if self.rd < 8 * (old + 1):
                    assert self.can_read
                    a.wait(self.tag(4 * old + 3))
                    self.reads(8 * (old + 1) - self.rd)
                a.dwait(f"r{self.kind}_{old}")
            a.vm(f"buffer_load_dwordx4 v{vd+j}, s[{r}:{r+3}], s{sWO} offen offset:{1024*j}{' nt' if self.kind == 1 and self.n < c.wnt else ''} lds", self.tag(self.n))
            self.n += 1
            if j == 3 and i + 1 < self.ns:
                if self.slot(i + 1) == 0:
                    a(f"s_mov_b32 m0, s{sLDS}")
                else:
                    a("s_add_u32 m0, m0, 4096")
                if self.kind == 2 and c.nh:
                    a(step_off(sWO, sWO0, i + 1, 17))
                elif self.kind == 1 and c.fake & 32:
                    a(f"s_add_u32 s{sWO}, s{sWO}, {step}")
                    a(f"s_cmp_ge_u32 s{sWO}, s{sWOE}")
                    a(f"s_cselect_b32 s{sCNT}, {480*3072}, 0")
                    a(f"s_sub_u32 s{sWO}, s{sWO}, s{sCNT}")
                else:
                    a(f"s_add_u32 s{sWO}, s{sWO}, {step}")
                    a(f"s_cmp_eq_u32 s{sWO}, s{sWOE}")
                    a(f"s_cselect_b32 s{sWO}, s{sWO0}, s{sWO}")
        def landed_steps(self):
            k = 0
            while 4 * k + 3 < self.n and not a.pending(self.tag(4 * k + 3)):
                k += 1
            return k
        def reads(self, k):
            vt = vT1 if self.kind == 1 else vT2
            lim = 8 * self.landed_steps() if self.can_read else 0
            while k > 0 and self.rd < lim:
                i, x = self.rd >> 3, self.rd & 7
                b, e = x >> 1, x & 1
                r = 16 * i + 4 * b + 2 * e
                a.ds(f"ds_read_b64_tr_b16 a[{r}:{r+1}], v{vt+b} offset:{self.slot(i)*4096+e*2048}", f"r{self.kind}_{i}")
                self.rd += 1
                k -= 1
        def step(self, fill=None, throttle=True, older_than=None):
            if throttle and self.n >= c.wd:
                tg = self.tag(self.n - c.wd)
                if older_than is not None and a.pending(older_than) and a.pending(tg) and a.q.index(tg) > a.q.index(older_than):
                    pass
                elif not a.recent_slow_before(tg, c.slowl):
                    a.wait(tg)
            stamp(f"w{self.kind}_{self.n}")
            self.issue()
            backlog = 8 * self.landed_steps() - self.rd
            self.reads(4 if backlog > 8 else 2)
            if fill is not None:
                fill.emit(c.fillk)
        def drain(self):
            for i in range(self.rd >> 3, self.ns):
                a.wait(self.tag(4 * i + 3))
                self.reads(8)

    def tile2(f):
        if c.map2 == 0:
            f(f"s_and_b32 s{sT0}, s2, 1\ns_lshl_b32 s{sT0}, s{sT0}, 2\ns_bfe_u32 s{sT1}, s2, 0x20003\ns_add_u32 s{sJ}, s{sT0}, s{sT1}\ns_mul_i32 s{sROT2}, s{sT1}, 3")
            if c.rot2 == 42:
                f(f"s_bfe_u32 s{sT1}, s2, 0x10005\ns_mul_i32 s{sT1}, s{sT1}, 6\ns_add_u32 s{sROT2}, s{sROT2}, s{sT1}\ns_cmp_ge_u32 s{sROT2}, 12\ns_cselect_b32 s{sT1}, 12, 0\ns_sub_u32 s{sROT2}, s{sROT2}, s{sT1}")
            f(f"s_bfe_u32 s{sT0}, s2, 0x20001\ns_lshl_b32 s{sT0}, s{sT0}, 3\ns_lshr_b32 s{sST}, s2, 5\ns_add_u32 s{sST}, s{sST}, s{sT0}")
        else:
            f(f"s_bfe_u32 s{sJ}, s2, 0x30003")
            if c.nh == 4:
                f(f"s_mul_i32 s{sROT2}, s2, {c.xr2}\ns_add_u32 s{sROT2}, s{sROT2}, s{sJ}" if c.xr2 else f"s_mov_b32 s{sROT2}, s{sJ}")
            elif c.nh in (5, 6, 7):
                f(f"s_mul_i32 s{sROT2}, s{sJ}, {12-c.nh}\ns_lshr_b32 s{sROT2}, s{sROT2}, 3")
            elif c.nh == 8:
                f(f"s_lshr_b32 s{sROT2}, s{sJ}, 1")
            elif c.rot2 == 8:
                f(f"s_mul_i32 s{sROT2}, s{sJ}, 3\ns_lshr_b32 s{sROT2}, s{sROT2}, 1")
            elif c.rot2 == 4:
                f(f"s_lshr_b32 s{sROT2}, s{sJ}, 1\ns_mul_i32 s{sROT2}, s{sROT2}, 3")
            else:
                f(f"s_mov_b32 s{sROT2}, 0")
            f(f"s_and_b32 s{sT0}, s2, 7\ns_xor_b32 s{sT0}, s{sT0}, {c.rm2}\ns_lshl_b32 s{sT0}, s{sT0}, 2\ns_lshr_b32 s{sST}, s2, 6\ns_add_u32 s{sST}, s{sST}, s{sT0}")
    a("s_cmp_ge_u32 s2, 256\ns_cbranch_scc1 L_end")
    stamp(0)
    if c.pad:
        a("s_memrealtime s[100:101]")
    a("s_load_dwordx16 s[4:19], s[0:1], 0")
    a(f"v_lshrrev_b32 v{t0}, 6, v0")
    a("; ---- one line of this kernel's code per wave is loaded so that instruction fetches hit L2")
    a("s_getpc_b64 s[22:23]")
    a("L_pc:")
    a(f"s_lshr_b32 s{sT0}, s2, 3                 ; idx")
    a(f"s_lshl_b32 s{sT1}, s{sT0}, 9")
    a(f"v_lshl_add_u32 v{t1}, v{t0}, 7, s{sT1}")
    a(f"v_min_u32 v{t1}, (L_end-L_pc-{c.cpo}-4), v{t1}")
    a.vm(f"global_load_dword v{vP}, v{t1}, s[22:23] offset:{c.cpo}", "cpf")
    a(f"v_and_b32 v{vL}, 63, v0")
    a(f"v_readfirstlane_b32 s{sW}, v{t0}")
    a(f"v_lshrrev_b32 v{t0}, 5, v0")
    a(f"v_and_b32 v{t1}, 31, v0")
    a(f"v_lshrrev_b32 v{t2}, 7, v0")
    a(f"v_mul_u32_u24 v{t2}, 12, v{t2}")
    a(f"v_add_u32 v{t2}, v{t2}, v{t0}")
    a(f"v_mul_u32_u24 v2, 1280, v{t2}")
    a(f"v_lshl_add_u32 v2, v{t1}, 3, v2          ; x offset")
    def early_setup():
        a(f"s_lshr_b32 s{sT0}, s2, 3                 ; idx")
        a(f"v_mul_u32_u24 v3, 1344, v{t0}")
        a(f"v_lshl_add_u32 v3, v{t1}, 3, v3")
        a(f"v_add_u32 v3, {RED}, v3")
        if c.map1 == 0:
            a(f"s_mul_i32 s{sFT}, s{sT0}, 205")
            a(f"s_lshr_b32 s{sFT}, s{sFT}, 10            ; idx/5")
            a(f"s_mul_i32 s{sT1}, s{sFT}, 5")
            a(f"s_sub_u32 s{sDT}, s{sT0}, s{sT1}         ; idx%5")
            a(f"s_and_b32 s{sS}, s{sDT}, 3")
            a(f"s_mul_i32 s{sROT1}, s{sDT}, 13")
            a(f"s_lshr_b32 s{sROT1}, s{sROT1}, 2     ; 0,3,6,9,13")
            if c.rot1 == 52:
                a(f"s_and_b32 s{sT1}, s{sFT}, 1")
                a(f"s_lshl_b32 s{sT1}, s{sT1}, 3")
                a(f"s_add_u32 s{sROT1}, s{sROT1}, s{sT1}")
                a(f"s_and_b32 s{sROT1}, s{sROT1}, 15")
            a(f"s_and_b32 s{sT1}, s2, 1")
            a(f"s_mul_i32 s{sT1}, s{sT1}, 5")
            a(f"s_add_u32 s{sDT}, s{sDT}, s{sT1}         ; dtile")
            a(f"s_bfe_u32 s{sT1}, s2, 0x20001")
            a(f"s_mul_i32 s{sT1}, s{sT1}, 6")
            a(f"s_add_u32 s{sFT}, s{sFT}, s{sT1}         ; ftile")
        else:
            a(f"s_mul_i32 s{sFT}, s{sT0}, 205")
            a(f"s_lshr_b32 s{sFT}, s{sFT}, 11            ; idx/10")
            a(f"s_mul_i32 s{sT1}, s{sFT}, 10")
            a(f"s_sub_u32 s{sDT}, s{sT0}, s{sT1}         ; dtile")
            a(f"s_cmp_ge_u32 s{sDT}, 5")
            a(f"s_cselect_b32 s{sS}, 5, 0")
            a(f"s_sub_u32 s{sS}, s{sDT}, s{sS}")
            a(f"s_and_b32 s{sS}, s{sS}, 3")
            if c.rot1 == 10:
                a(f"s_mul_i32 s{sROT1}, s{sDT}, 13")
                a(f"s_lshr_b32 s{sROT1}, s{sROT1}, 3")
            elif c.rot1 == 5:
                a(f"s_lshr_b32 s{sROT1}, s{sDT}, 1")
                a(f"s_mul_i32 s{sROT1}, s{sROT1}, 13")
                a(f"s_lshr_b32 s{sROT1}, s{sROT1}, 2")
            else:
                a(f"s_mov_b32 s{sROT1}, 0")
            a(f"s_and_b32 s{sT1}, s2, 7")
            if c.xr1:
                a(f"s_mul_i32 s{sT0}, s{sT1}, {c.xr1}")
                a(f"s_add_u32 s{sROT1}, s{sROT1}, s{sT0}")
                a(f"s_and_b32 s{sROT1}, s{sROT1}, 15")
            if c.rm1 >= 2:
                a(f"s_lshl_b32 s{sT1}, s{sT1}, 2")
                a(f"s_lshr_b32 s{sT1}, {hex(c.lut1)}, s{sT1}")
                a(f"s_and_b32 s{sT1}, s{sT1}, 7")
                a(f"s_sub_u32 s{sT0}, 2, s{sFT}")
                a(f"s_cmp_eq_u32 s{sT1}, 3")
                a(f"s_cselect_b32 s{sFT}, s{sT0}, s{sFT}")
            elif c.rm1:
                a(f"s_sub_u32 s{sT0}, 2, s{sFT}")
                a(f"s_cmp_eq_u32 s{sT1}, 3")
                a(f"s_cselect_b32 s{sFT}, s{sT0}, s{sFT}")
                a(f"s_cmp_ge_u32 s{sT1}, 6")
                a(f"s_cselect_b32 s{sT0}, 1, 0")
                a(f"s_xor_b32 s{sT1}, s{sT1}, s{sT0}")
            a(f"s_mul_i32 s{sT1}, s{sT1}, 3")
            a(f"s_add_u32 s{sFT}, s{sFT}, s{sT1}         ; ftile")
        a(f"v_lshrrev_b32 v{t0}, 3, v{vL}            ; rr")
        a(f"v_and_b32 v{t1}, 6, v{t0}")
        a(f"v_and_b32 v{t2}, 7, v{vL}")
        a(f"v_xor_b32 v{t1}, v{t1}, v{t2}")
        a(f"v_lshlrev_b32 v{t1}, 4, v{t1}")
        a(f"v_mul_u32_u24 v{vD1}, 3072, v{t0}")
        a(f"v_add_u32 v{vD1}, v{vD1}, v{t1}")
        a(f"v_lshl_add_u32 v{vD2}, v{t0}, 12, v{t1}")
        for j in range(1, 4):
            a(f"v_add_u32 v{vD1+j}, {j*(8*3072-1024)}, v{vD1}")
        a(f"s_mul_i32 s{sWO0}, s{sW}, {512*3072}")
        a(f"s_lshl_b32 s{sT0}, s{sFT}, 7")
        a(f"s_add_u32 s{sWO0}, s{sWO0}, s{sT0}")
        a(f"s_add_u32 s{sWOE}, s{sWO0}, {(480 if c.fake & 32 else 512)*3072}")
        if c.fake & 32:
            a(f"s_mul_i32 s{sT0}, s{sDT}, {48*3072}")
        else:
            a(f"s_mul_i32 s{sT0}, s{sROT1}, {32*3072}")
        a(f"s_add_u32 s{sWO}, s{sWO0}, s{sT0}")
        a(f"s_mul_i32 s{sLDS}, s{sW}, {WSLOT*4096}")
        a(f"s_mov_b32 m0, s{sLDS}")
    if not c.fast0:
        early_setup()
    a(f"s_lshr_b32 s{sT0}, s2, 2")
    a(f"s_lshl_b32 s{sT0}, s{sT0}, 3")
    a(f"s_and_b32 s{sT1}, s2, 3")
    a(f"s_add_u32 s{sT0}, s{sT0}, s{sT1}")
    a(f"s_mul_i32 s{sT0}, s{sT0}, 5120")
    a(f"v_lshlrev_b32 v{vL16}, 4, v{vL}          ; lane*16")
    a("s_waitcnt lgkmcnt(0)")
    stamp("ka")
    a(f"s_add_u32 s{X}, s{X}, s{sT0}")
    a(f"s_addc_u32 s{X+1}, s{X+1}, 0")
    XR = RING
    if c.fx:
        a(f"s_and_b32 s{sT0}, s2, 7\ns_lshr_b32 s{sT0}, {c.fx}, s{sT0}\ns_and_b32 s{sT0}, s{sT0}, 1\ns_sub_u32 s{sT0}, s{sT0}, 1\nv_and_b32 v2, s{sT0}, v2")
    for i in range(5):
        a.vm(f"global_load_dwordx2 v[{XR+2*i}:{XR+2*i+1}], v2, s[{X}:{X+1}] offset:{256*i}{' nt' if c.xnt else ''}", f"x{i}")
    if c.fast0:
        early_setup()
    srd(a, RW1, W1, S * F * 2)
    a("s_cmp_ge_u32 s2, 240")
    a(f"s_cselect_b32 s{RW1+2}, 0, s{RW1+2}")
    w1 = W(1)
    w1.can_read = False
    if c.xbar:
        a("s_barrier")
    nrole = [0]
    role_n = [0, 0]
    def role_issue(kl, kf, pre=None):
        k = nrole[0]; nrole[0] += 1
        q = a.q
        if c.lmask:
            a(f"s_and_b32 s{sCNT}, s2, 7")
            a(f"s_bitcmp0_b32 {c.lmask}, s{sCNT}")
        else:
            a(f"s_cmp_lt_u32 s2, {c.lead}")
        a(f"s_cbranch_scc1 L_rf{k}")
        for r, cnt in ((0, kl), (1, kf)):
            if r == 1:
                a(f"s_branch L_re{k}")
                a(f"L_rf{k}:")
            if pre:
                pre(role_n[r])
            w1.n = role_n[r]
            a.q = []
            for _ in range(cnt):
                w1.issue()
            role_n[r] = w1.n
        a(f"L_re{k}:")
        a.q = q
    if c.lead:
        role_issue(c.l1, c.f1)
    else:
        for _ in range(c.w1_first):
            w1.issue()
    a(f"s_add_u32 s{FB}, s{WS}, {FH_OFF}")
    a(f"s_addc_u32 s{FB+1}, s{WS+1}, 0")
    a(f"s_load_dword s{sTAG}, s[{FB}:{FB+1}], {EP_OFF-FH_OFF}")
    if c.tlbw:
        a(f"v_and_b32 v{t0}, 1, v{vL}")
        a(f"v_mul_u32_u24 v{t1}, 0x281000, v{t0}")
        a(f"v_lshlrev_b32 v{t0}, 21, v{t0}")
        a.vm(f"global_load_dword v{vP+1}, v{t1}, s[{WS}:{WS+1}]", "tl")
        if c.tlbw >= 2:
            a.vm(f"global_load_dword v{vP+2}, v{t0}, s[{OUT}:{OUT+1}]", "tl")
            a(f"v_min_u32 v{t0}, 2, v{vL}")
            a(f"v_lshlrev_b32 v{t0}, 21, v{t0}")
            a.vm(f"global_load_dword v{vP+3}, v{t0}, s[{W2}:{W2+1}]", "tl")
    tile2(a)
    a(f"v_lshrrev_b32 v{t3}, 4, v{vL}            ; g")
    a(f"s_min_u32 s{sT0}, s{sFT}, 23\ns_lshl_b32 s{sT0}, s{sT0}, 1\ns_and_b32 s{sT1}, s{sW}, 1\ns_add_u32 s{sT0}, s{sT0}, s{sT1}\ns_lshl_b32 s{sT0}, s{sT0}, 6\nv_lshl_add_u32 v{t5}, v{t3}, 3, s{sT0}")
    for k in range(2):
        a.vm(f"global_load_dwordx2 v[{vB1+2*k}:{vB1+2*k+1}], v{t5}, s[{B1}:{B1+1}] offset:{32*k}", "b1")
    a(f"v_and_b32 v{t4}, 15, v{vL}")
    a(f"s_lshl_b32 s{sT0}, s{sST}, 6\ns_lshl_b32 s{sT1}, s{sW}, 4\ns_add_u32 s{sT0}, s{sT0}, s{sT1}\nv_add_u32 v{vO}, s{sT0}, v{t4}           ; s")
    a(f"v_lshlrev_b32 v{t2}, 1, v{vO}")
    a.vm(f"global_load_ushort v{vB2}, v{t2}, s[{B2}:{B2+1}]", "b2")
    a(f"s_lshl_b32 s{sT0}, s2, {c.fhs-2}\ns_add_u32 s{sT0}, s{sT0}, s{sW}\ns_lshl_b32 s{sFO[0]}, s{sT0}, 2")
    a(f"s_load_dword s{sFD[0]}, s[{FB}:{FB+1}], s{sFO[0]}")
    for h, su in enumerate((sUS0, sUS1)):
        a(f"s_lshr_b32 s{sT0}, s{sW}, 1\ns_add_u32 s{sT0}, s{sT0}, s{sS}\ns_add_u32 s{sT0}, s{sT0}, {2*h}\ns_and_b32 s{sT0}, s{sT0}, 3\ns_lshl_b32 s{sT1}, s{sDT}, 2\ns_add_u32 s{su}, s{sT0}, s{sT1}")
        a(f"s_mul_i32 s{sT0}, s{su}, 24\ns_add_u32 s{sT0}, s{sT0}, s{sFT}\ns_lshl_b32 s{sT0}, s{sT0}, {c.fus-2}\ns_and_b32 s{sT1}, s{sW}, 1\ns_add_u32 s{sT0}, s{sT0}, s{sT1}\ns_lshl_b32 s{sT0}, s{sT0}, 2\ns_add_u32 s{sFO[1+h]}, s{sT0}, {FU_OFF-FH_OFF}")
        a(f"s_load_dword s{sFD[1+h]}, s[{FB}:{FB+1}], s{sFO[1+h]}")
    srd(a, RWS, WS, WS_USED)
    a(f"v_lshrrev_b32 v{t3}, 4, v{vL}            ; g")
    a(f"v_and_b32 v{t4}, 15, v{vL}")
    a(f"v_and_b32 v{vHS}, 0x70, v{vL16}")
    a(f"v_lshl_add_u32 v{vHS}, v{t3}, {16+z}, v{vHS}")
    a(f"v_lshrrev_b32 v{t4}, 3, v{t4}")
    a(f"v_lshl_add_u32 v{vHS}, v{t4}, {7+z}, v{vHS}")
    a(f"v_bfe_u32 v{t0}, v{vL}, 2, 2             ; r")
    a(f"v_mul_u32_u24 v{t0}, 1344, v{t0}")
    a(f"v_add_u32 v{t0}, {RED}, v{t0}")
    a(f"v_and_b32 v{t1}, 3, v{vL}                ; c")
    a(f"s_lshl_b32 s{sT0}, s{sW}, 2")
    a(f"v_add_u32 v{t3}, s{sT0}, v{t3}           ; T for m=0")
    for m in range(3):
        a(f"v_mul_u32_u24 v{t2}, 205, v{t3}")
        a(f"v_lshrrev_b32 v{t2}, 10, v{t2}       ; j")
        a(f"v_mul_u32_u24 v{t4}, 5, v{t2}")
        a(f"v_sub_u32 v{t4}, v{t3}, v{t4}        ; t")
        if c.omap:
            a(f"v_lshrrev_b32 v{t5}, 2, v{t4}")
            a(f"v_mul_u32_u24 v{vLT+m}, 896, v{t5}")
            a(f"v_lshlrev_b32 v{t5}, 1, v{t5}")
            a(f"v_sub_u32 v{t5}, 7, v{t5}")
            a(f"v_lshlrev_b32 v{t2}, v{t5}, v{t2}")
            a(f"v_add3_u32 v{t2}, v{t2}, v{t0}, v{vLT+m}")
            a(f"v_lshrrev_b32 v{t5}, 1, v{t4}")
            a(f"v_lshl_add_u32 v{t2}, v{t5}, 6, v{t2}")
        else:
            a(f"v_mul_u32_u24 v{t2}, 160, v{t2}")
            a(f"v_add_u32 v{t2}, v{t2}, v{t0}")
            a(f"v_lshrrev_b32 v{t5}, 1, v{t4}")
            a(f"v_lshl_add_u32 v{t2}, v{t5}, 6, v{t2}")
        a(f"v_and_b32 v{t5}, 1, v{t4}")
        a(f"v_lshl_add_u32 v{t2}, v{t5}, 3, v{t2}")
        a(f"v_lshrrev_b32 v{t4}, 2, v{t4}")
        a(f"v_sub_u32 v{t4}, 4, v{t4}")
        a(f"v_lshlrev_b32 v{t4}, v{t4}, v{t1}")
        a(f"v_add_u32 v{vLT+m}, v{t2}, v{t4}")
        if m < 2:
            a(f"v_add_u32 v{t3}, 16, v{t3}")
    a(f"s_lshl_b32 s{sT3}, s2, {8+z}")
    a(f"s_lshl_b32 s{sT0}, s{sW}, {18+z}")
    a(f"s_add_u32 s{sT3}, s{sT3}, s{sT0}")
    a(f"s_add_u32 s{sT3}, s{sT3}, {H_OFF}")
    if c.lead and (c.lp or c.fp):
        role_issue(c.lp, c.fp)
    for _ in range(c.w1_pre):
        w1.issue()
    stamp("iss")
    XF = RING + 12
    if c.lead:
        nb = len(a.q) - 1 - a.q.index("x4")
        role_issue(c.l2, c.f2, lambda n: a(f"s_waitcnt vmcnt({n + nb})"))
        a.q = a.q[a.q.index("x4") + 1:]
    for i in range(5):
        a.wait(f"x{i}")
        if i == 0:
            stamp(1)
        if i == 4:
            stamp("x4")
            for _ in range(0 if c.lead else c.w1_x):
                w1.issue()
        for k in range(2):
            a(f"v_lshlrev_b32 v{XF+4*i+2*k}, 16, v{XR+2*i+k}")
            a(f"v_and_b32 v{XF+4*i+2*k+1}, 0xffff0000, v{XR+2*i+k}")
        if i == 0:
            a(f"v_pk_add_f32 v[{t0}:{t0+1}], v[{XF}:{XF+1}], v[{XF+2}:{XF+3}]")
        else:
            a(f"v_pk_add_f32 v[{t0}:{t0+1}], v[{t0}:{t0+1}], v[{XF+4*i}:{XF+4*i+1}]")
            a(f"v_pk_add_f32 v[{t0}:{t0+1}], v[{t0}:{t0+1}], v[{XF+4*i+2}:{XF+4*i+3}]")
    def half_sum():
        a(f"v_add_f32 v{t0}, v{t0}, v{t0+1}")
        for r in (8, 4, 2, 1):
            a("s_nop 1")
            a(f"v_add_f32_dpp v{t0}, v{t0}, v{t0} row_ror:{r} row_mask:0xf bank_mask:0xf")
        a(f"v_mov_b32 v{t0+1}, v{t0}")
        a("s_nop 1")
        a(f"v_permlane16_swap_b32 v{t0+1}, v{t0}")
        a(f"v_add_f32 v{t0}, v{t0}, v{t0+1}")
    half_sum()
    a(f"v_mul_f32 v{t0}, {f32(-1.0/D)}, v{t0}    ; -mean")
    a(f"v_mov_b32 v{t0+1}, v{t0}")
    for i in range(10):
        a(f"v_pk_add_f32 v[{XF+2*i}:{XF+2*i+1}], v[{XF+2*i}:{XF+2*i+1}], v[{t0}:{t0+1}]")
    a(f"v_pk_mul_f32 v[{t0}:{t0+1}], v[{XF}:{XF+1}], v[{XF}:{XF+1}]")
    for i in range(1, 10):
        a(f"v_pk_fma_f32 v[{t0}:{t0+1}], v[{XF+2*i}:{XF+2*i+1}], v[{XF+2*i}:{XF+2*i+1}], v[{t0}:{t0+1}]")
    half_sum()
    a(f"v_mov_b32 v{t0+1}, {f32(1e-5)}")
    a(f"v_fmac_f32 v{t0+1}, {f32(1.0/D)}, v{t0}")
    a(f"v_rsq_f32 v{t0}, v{t0+1}")
    a("s_nop 0")
    a(f"v_mov_b32 v{t0+1}, v{t0}")
    for i in range(10):
        a(f"v_pk_mul_f32 v[{XF+2*i}:{XF+2*i+1}], v[{XF+2*i}:{XF+2*i+1}], v[{t0}:{t0+1}]")
    for i in range(5):
        a(f"v_cvt_pk_bf16_f32 v{XR+2*i}, v{XF+4*i}, v{XF+4*i+1}")
        a(f"v_cvt_pk_bf16_f32 v{XR+2*i+1}, v{XF+4*i+2}, v{XF+4*i+3}")
        a(f"ds_write_b64 v3, v[{XR+2*i}:{XR+2*i+1}] offset:{256*i}")
    if c.lead:
        role_issue(8 - role_n[0], 8 - role_n[1])
        a.q = [w1.tag(n) for n in range(8)]
        bias_wait = w1.tag(7)
    else:
        for _ in range(c.w1_ln):
            w1.issue()
    a("s_waitcnt lgkmcnt(0)")
    a("s_barrier")
    stamp(2)
    HT = RING + 12
    for m in range(3):
        a(f"ds_read_b64_tr_b16 v[{HT+4*m}:{HT+4*m+1}], v{vLT+m}")
        a(f"ds_read_b64_tr_b16 v[{HT+4*m+2}:{HT+4*m+3}], v{vLT+m} offset:{4*1344}")
    a(f"s_add_u32 s{sT0}, s{sT3}, {1<<(20+z)}")
    a(f"s_add_u32 s{sT1}, s{sT3}, {2<<(20+z)}")
    a(f"s_cmp_ge_u32 s{sW}, 2")
    a(f"s_cselect_b32 s{sT1}, 0x40000000, s{sT1}")
    if c.stamp or c.pad:
        a("s_waitcnt lgkmcnt(0)")
    jitter(5)
    if c.fx:
        a(f"s_and_b32 s{sCNT}, s2, 7\ns_lshr_b32 s{sCNT}, {c.fx}, s{sCNT}\ns_and_b32 s{sCNT}, s{sCNT}, 1")
        for so in (sT3, sT0, sT1):
            a(f"s_cselect_b32 s{so}, 0x40000000, s{so}")
    for m, so in enumerate((sT3, sT0, sT1)):
        a(f"s_waitcnt lgkmcnt({4-2*m})")
        a.vm(f"buffer_store_dwordx4 v[{HT+4*m}:{HT+4*m+3}], v{vHS}, s[{RWS}:{RWS+3}], s{so} offen{' sc0' if c.hnt else ''} sc1", "hst")
    stamp("hsto")
    if c.padx != -1:
        a(f"s_or_b32 s{sT0}, s2, s{sW}")
        a("s_cbranch_scc1 L_nopx")
        a(f"v_mov_b32 v{t0}, {ST_OFF}")
        a(f"v_mov_b32 v{t1}, s100")
        a(f"global_store_dword v{t0}, v{t1}, s[{WS}:{WS+1}] sc1")
        a("L_nopx:")
    def setup_common(f):
        f(f"s_mul_i32 s{sED}, s{sTAG}, 1664524")
        f(f"s_add_u32 s{sED}, s{sED}, 1013904223")
        f(f"s_add_u32 s{sTAG}, s{sTAG}, s{sED}")
        f(f"v_mov_b32 v{vTAG}, s{sTAG}")
        for k in range(3):
            f(f"s_sub_u32 s{sFD[k]}, s{sTAG}, s{sFD[k]}")
        f(f"v_lshrrev_b32 v{t0}, 2, v{vL}            ; row = 4g + r")
        f(f"v_lshlrev_b32 v{vT1}, 7, v{t0}")
        f(f"v_bfe_u32 v{t0}, v{vL}, 3, 2")
        f(f"v_lshl_add_u32 v{vT1}, v{t0}, 5, v{vT1}")
        f(f"v_and_b32 v{t0}, 3, v{vL}")
        f(f"v_lshl_add_u32 v{vT1}, v{t0}, 3, v{vT1}")
        f(f"v_add_u32 v{vT1}, s{sLDS}, v{vT1}")
        f(f"s_lshl_b32 s{sT0}, s{sW}, 5\nv_xor_b32 v{vT2}, s{sT0}, v{vT1}")
        f(f"s_and_b32 s{sT0}, s{sW}, 1\ns_lshl_b32 s{sT0}, s{sT0}, 6\nv_xor_b32 v{vT1}, s{sT0}, v{vT1}")
        for b in range(1, 4):
            f(f"v_xor_b32 v{vT1+b}, {b*32}, v{vT1}")
    def setup_g2(f):
        f(f"v_lshrrev_b32 v{t3}, 4, v{vL}")
        f(f"v_mul_u32_u24 v{vO}, 1280, v{vO}")
        f(f"v_lshl_add_u32 v{vO+1}, v{t3}, 3, v{vO}")
        f(f"v_lshl_add_u32 v{vO}, v{t3}, 4, v{vO}")
        for b in range(1, 4):
            f(f"v_xor_b32 v{vT2+b}, {b*32}, v{vT2}")
        for j in range(1, 4):
            f(f"v_add_u32 v{vD2+j}, {j*(8*4096-1024)}, v{vD2}")
        f(f"v_and_b32 v{vU}, 0x70, v{vL16}")
        f(f"v_lshrrev_b32 v{t0}, 3, v{vL}")
        f(f"v_lshl_add_u32 v{vHL}, v{t0}, {7+z}, v{vU}")
        f(f"v_lshl_add_u32 v{vU}, v{t0}, {7+zu}, v{vU}")
        for t in range(1, 5):
            f(f"v_add_u32 v{vU+t}, {(t*49152) << zu}, v{vU}")
        for k, (lo, cnt) in enumerate(((0, 24), (24, 36))):
            f(f"v_min_u32 v{t0}, {cnt-1}, v{vL}")
            f(f"v_mul_u32_u24 v{t1}, 43, v{t0}")
            f(f"v_lshrrev_b32 v{t1}, 9, v{t1}            ; n/12")
            f(f"v_mul_u32_u24 v{t1}, 18, v{t1}")
            f(f"v_lshrrev_b32 v{t2}, 1, v{t0}")
            f(f"s_mul_i32 s{sT0}, s{sJ}, 120\ns_mul_i32 s{sT1}, s{sW}, 6\ns_add_u32 s{sT0}, s{sT0}, s{sT1}\nv_add3_u32 v{t1}, v{t1}, v{t2}, s{sT0}")
            f(f"v_and_b32 v{t0}, 1, v{t0}")
            f(f"v_lshlrev_b32 v{t0}, 2, v{t0}")
            f(f"v_lshl_add_u32 v{vFU+k}, v{t1}, {c.fus}, v{t0}")
            f(f"v_add_u32 v{vFU+k}, {FU_OFF + ((lo // 12 * 24) << c.fus)}, v{vFU+k}")
        srd(f, RW2, W2, S * F * 2)
        srd(f, ROUT, OUT, S * D * 2)
    def setup_g1(f):
        f(f"v_lshlrev_b32 v{vFH}, {c.fhs}, v0")
        f(f"v_add_u32 v{vFH}, {FH_OFF}, v{vFH}")
        for p in range(4):
            f(f"s_lshr_b32 s{sT0}, s{sW}, 1\ns_xor_b32 s{sT0}, s{sT0}, {(p&1)^1}\ns_add_u32 s{sT0}, s{sT0}, s{sS}\ns_add_u32 s{sT0}, s{sT0}, {p&2}\ns_and_b32 s{sT0}, s{sT0}, 3\ns_lshl_b32 s{sT1}, s{sT0}, {16+z}\nv_add_u32 v{vH+p}, s{sT1}, v{vHL}")
        for h, su in enumerate((sUS0, sUS1)):
            f(f"s_mul_i32 s{su}, s{su}, 48\ns_lshl_b32 s{sT0}, s{sFT}, 1\ns_add_u32 s{su}, s{su}, s{sT0}\ns_and_b32 s{sT1}, s{sW}, 1\ns_add_u32 s{su}, s{su}, s{sT1}\ns_lshl_b32 s{su}, s{su}, {10+zu}\ns_add_u32 s{su}, s{su}, {U_OFF}")
        f(f"s_lshl_b32 s{sT3}, {0 if c.fake & 1 else 's%d' % sDT}, {18+z}\ns_lshl_b32 s{sT1}, s{sW}, {14+z}\ns_add_u32 s{sT3}, s{sT3}, s{sT1}\ns_add_u32 s{sT3}, s{sT3}, {H_OFF}")
        for i in range(NS1):
            f(f"s_add_u32 s{sT1}, s{sROT1}, {i}\ns_and_b32 s{sT1}, s{sT1}, 15\ns_lshl_b32 s{sT1}, s{sT1}, {10+z}\ns_add_u32 s{sK+i}, s{sT1}, s{sT3}")
        for k in range(4):
            f(f"s_xor_b32 s{sT0}, s{sW}, {k}\ns_mul_i32 s{sT0}, s{sT0}, 12288\ns_add_u32 s{sT0}, s{sT0}, {RED}\nv_add_u32 v{vR+k}, s{sT0}, v{vL16}")
        c1 = -2.0 * math.log2(math.e) * math.sqrt(2.0 / math.pi)
        f(f"v_mov_b32 v{vC1}, {f32(c1)}")
        f(f"v_mov_b32 v{vC1+1}, {f32(c1*0.044715)}")
        f(lambda: a.wait("b1"))
        for p in (1, 3):
            for k in range(4):
                f(f"v_lshlrev_b32 v{ACC+16*p+2*k}, 16, v{vB1+k}")
                f(f"v_and_b32 v{ACC+16*p+2*k+1}, 0xffff0000, v{vB1+k}")
    fl = Fill(a)
    if c.hearly:
        a("s_cmp_ge_u32 s2, 240")
        a("s_cbranch_scc1 L_idle")
    setup_common(fl)
    fl(lambda: setattr(w1, "can_read", True))
    setup_g2(fl)
    for _ in range(c.w1_mid):
        w1.step(fl, older_than="hst")
    fl.flush()
    a.wait("hst")
    stamp(3)
    flag_add(0)
    if not c.hearly:
        a("s_cmp_ge_u32 s2, 240")
        a("s_cbranch_scc1 L_idle")
    setup_g1(fl)
    fl.emit(2)
    sE, sGRP, sM0 = 6, 9, 12
    def w2offs(f):
        f(f"s_mul_i32 s{sT0}, s{sW}, {12*32*4096}\ns_lshl_b32 s{sT1}, s{sST}, 7\ns_add_u32 s{sT0}, s{sT0}, s{sT1}\ns_add_u32 s{sT1}, s{sT0}, {12*32*4096}\n"
          f"s_mul_i32 s{sE}, s{sROT2}, {32*4096}\ns_add_u32 s{sE}, s{sE}, s{sT0}\n"
          + "\n".join(f"s_add_u32 s{sE+k}, s{sE+k-1}, {32*4096}\ns_cmp_eq_u32 s{sE+k}, s{sT1}\ns_cselect_b32 s{sE+k}, s{sT0}, s{sE+k}" for k in range(1, c.w2e + 1)))
    if c.w2e:
        w2offs(a)
        a(f"s_lshr_b32 s{sGRP}, s2, {c.esh}")
        a(f"s_and_b32 s{sGRP}, s{sGRP}, {c.egrp-1}")
    while w1.left() > c.ov1:
        if c.wbar and (w1.left() - c.wbo) % c.wbar == 0:
            a("s_barrier")
        if w1.left() == c.pe1 + c.ov1:
            a.vm(poll_load("h"), "hpoll")
        if c.w2e and w1.n >= c.e0 and (w1.n - c.e0) % c.estep == 0 and (w1.n - c.e0) // c.estep < c.egrp:
            g = (w1.n - c.e0) // c.estep
            a(f"s_cmp_lg_u32 s{sGRP}, {g}")
            a(f"s_cbranch_scc1 L_e{g}")
            a(f"s_mov_b32 s{sM0}, m0")
            for k in range(c.w2e):
                a(f"s_add_u32 m0, s{sLDS}, {(WSLOT-c.w2e+k)*4096}")
                a("s_nop 0")
                for j in range(4):
                    a(f"buffer_load_dwordx4 v{vD2+j}, s[{RW2}:{RW2+3}], s{sE+k} offen offset:{1024*j} lds")
            a(f"s_mov_b32 m0, s{sM0}")
            a("s_nop 0")
            a(f"L_e{g}:")
        w1.step(fl)
    assert not c.w2e or c.e0 + (c.egrp - 1) * c.estep < 64
    if c.pe1 == 0:
        a.vm(poll_load("h"), "hpoll")
    fl.flush()
    a.wait("hpoll")
    stamp(4)
    spin("h")
    stamp(5)
    N1 = 64
    def hissue(n):
        r = RING + 4 * (n % NRING)
        a.vm(f"buffer_load_dwordx4 v[{r}:{r+3}], v{vH+n//16}, s[{RWS}:{RWS+3}], s{sK+n%16} offen sc1", f"h{n}")
    def pace():
        if c.thr and len(a.q) >= c.thr:
            tg = a.q[-c.thr]
            if tg.startswith("w"):
                a.wait(tg)
    hst_ = [c.d0 if c.ov1 else (c.hi or c.hd)]
    for n in range(hst_[0]):
        pace()
        hissue(n)
        w1.reads(2)
    if not c.ov1:
        w1.drain()
    def w2setup(done):
        a(f"s_mul_i32 s{sWO0}, s{sW}, {12*32*4096}")
        a(f"s_lshl_b32 s{sT0}, s{sST}, 7")
        a(f"s_add_u32 s{sWO0}, s{sWO0}, s{sT0}")
        a(f"s_add_u32 s{sWOE}, s{sWO0}, {12*32*4096}")
        if c.nh:
            a(f"s_mov_b32 m0, s{sLDS}")
            a(step_off(sWO, sWO0, 0, 17))
        elif done:
            a(f"s_mov_b32 m0, s{sLDS}")
            a(f"s_mov_b32 s{sWO}, s{sE+done}")
        else:
            a(f"s_mul_i32 s{sT0}, s{sROT2}, {32*4096}")
            a(f"s_add_u32 m0, s{sLDS}, {((WSLOT-c.w2e)%WSLOT)*4096}")
            a(f"s_add_u32 s{sWO}, s{sWO0}, s{sT0}")
    if not c.ov1:
        w2setup(c.w2e)
        a.dwait()
    stamp("g1s")
    w2 = W(2)
    w2.n = 4 * c.w2e
    w2.can_read = False
    def plan(m, st, w, issue, total, depth, tail):
        ops = []
        nw = min(c.wpp, w.left())
        want = min(total, 2 * m + 2 + (c.d0 if nw else depth))
        na = min(want - st[0], 2 if nw else c.ramp)
        acts = [lambda n=st[0] + k: issue(n) for k in range(na)]
        st[0] += na
        ws_ = [w.issue] * nw
        while acts or ws_:
            for _ in range((c.wpp + 1) // 2):
                if ws_:
                    ops.append(ws_.pop(0))
            if acts:
                ops.append(acts.pop(0))
        if not ops and st[0] == total:
            ops = tail()
        gaps = {0: [], 1: [1], 2: [c.lg0, c.lg1], 3: [1, 3, 5], 4: [0, 2, 4, 6], 5: [0, 1, 3, 4, 6], 6: [0, 1, 2, 4, 5, 6], 7: list(range(7)), 8: list(range(8))}[len(ops)]
        return dict(zip(gaps, ops))
    def need_steps(w, upto):
        if w.rd < 8 * (upto + 1):
            a.wait(w.tag(4 * upto + 3))
            w.reads(8 * (upto + 1) - w.rd)
        for i in range(upto + 1):
            a.dwait(f"r{w.kind}_{i}")
    def spread(nf):
        if c.lg0 >= 0:
            free = [g for g in range(8) if g not in (c.lg0, c.lg1)]
            free.sort(key=lambda g: g == 7)
            per = [0] * 8
            for x in range(nf):
                per[free[x % len(free)]] += 1
            return per
        if c.gap2:
            return [0 if g % 2 == 0 else nf // 4 + (1 if g // 2 < nf % 4 else 0) for g in range(8)]
        return [nf // 8 + (1 if g < nf % 8 else 0) for g in range(8)]
    def red_write(f, p, aa):
        cw = ACC + 16 * p + 4 * aa
        slot = aa if p % 2 == 0 else 2 + aa
        if p < 3 and c.w32 >> p & 1:
            for r in range(4):
                f(costly(lambda r=r: a.ds(f"ds_write_b32 v{vR}, v{cw+r} offset:{(p//2)*6144+slot*1024+4*r}", f"rw{p}"), 16))
                if r % 2 == 1:
                    f.delay(1)
            return
        f(costly(lambda: a.ds(f"ds_write_b128 v{vR}, v[{cw}:{cw+3}] offset:{(p//2)*6144+slot*1024}", f"rw{p}"), 16))
        if c.cst and p < 3:
            f.delay(c.wsk)
    def red_finish(f, h):
        P0, P1, T = ACC + 32 * h, ACC + 32 * h + 16, RD + 12 * h
        for x, (k, slot, dst) in enumerate(((2, 0, P0), (3, 2, P0 + 8), (1, 4, P1 + 8), (2, 1, P0 + 4), (3, 3, P0 + 12), (1, 5, P1 + 12))):
            f(lambda k=k, slot=slot, dst=dst, x=x: a.ds(f"ds_read_b128 v[{dst}:{dst+3}], v{vR+k} offset:{h*6144+slot*1024}", f"rr{h}_{x}"))
        if c.cst and h == 0:
            f.delay(c.dly)
        if h == 1 and c.pk1:
            def pk(op, d, *src):
                f(f"v_pk_{op}_f32 v[{d}:{d+1}], " + ", ".join(x if isinstance(x, str) else f"v[{x}:{x+1}]" for x in src))
            for half in range(2):
                f(lambda half=half: a.dwait(f"rr{h}_{3*half+2}"))
                for r in (4 * half, 4 * half + 2):
                    pk("add", P0 + r, P0 + r, P0 + 8 + r)
                    pk("add", P1 + r, P1 + r, P1 + 8 + r)
                for r in (4 * half, 4 * half + 2):
                    pk("add", P1 + r, P1 + r, P0 + r)
            for r in range(0, 8, 2):
                pk("mul", T + r, P1 + r, P1 + r)
            for r in range(0, 8, 2):
                f(f"v_pk_fma_f32 v[{T+r}:{T+r+1}], v[{T+r}:{T+r+1}], v[{vC1}:{vC1+1}], v[{vC1}:{vC1+1}] op_sel:[0,1,0] op_sel_hi:[1,1,0]")
            for r in range(0, 8, 2):
                pk("mul", T + r, T + r, P1 + r)
            for r in range(8):
                f(f"v_exp_f32 v{T+r}, v{T+r}")
            for r in range(0, 8, 2):
                f(f"v_pk_add_f32 v[{T+r}:{T+r+1}], v[{T+r}:{T+r+1}], 1.0 op_sel_hi:[1,0]")
            for r in range(8):
                f(f"v_rcp_f32 v{T+r}, v{T+r}")
            for r in range(0, 8, 2):
                pk("mul", T + r, T + r, P1 + r)
            for r in range(4):
                f(f"v_cvt_pk_bf16_f32 v{T+8+r}, v{T+2*r}, v{T+2*r+1}")
            f(lambda: a.vm(f"buffer_store_dwordx4 v[{T+8}:{T+11}], v{vU}, s[{RWS}:{RWS+3}], s{sUS1} offen sc1", "ust1"))
            return
        for half in range(2):
            f(lambda half=half: a.dwait(f"rr{h}_{3*half+2}"))
            for r in range(4 * half, 4 * half + 4):
                f(f"v_add_f32 v{P0+r}, v{P0+r}, v{P0+8+r}")
                f(f"v_add_f32 v{P1+r}, v{P1+r}, v{P1+8+r}")
            for r in range(4 * half, 4 * half + 4):
                f(f"v_add_f32 v{P1+r}, v{P1+r}, v{P0+r}")
        for r in range(8):
            f(f"v_mul_f32 v{T+r}, v{P1+r}, v{P1+r}")
        for r in range(8):
            f(f"v_fma_f32 v{T+r}, v{T+r}, v{vC1+1}, v{vC1}")
        for r in range(8):
            f(f"v_mul_f32 v{T+r}, v{T+r}, v{P1+r}")
        for r in range(8):
            f(f"v_exp_f32 v{T+r}, v{T+r}")
        for r in range(8):
            f(f"v_add_f32 v{T+r}, 1.0, v{T+r}")
        for r in range(8):
            f(f"v_rcp_f32 v{T+r}, v{T+r}")
        for r in range(8):
            f(f"v_mul_f32 v{T+r}, v{T+r}, v{P1+r}")
        for r in range(4):
            f(f"v_cvt_pk_bf16_f32 v{T+8+r}, v{T+2*r}, v{T+2*r+1}")
        su = sUS0 if h == 0 else sUS1
        if c.jit:
            f(lambda: jitter(9 + 2 * h))
        f(lambda: a.vm(f"buffer_store_dwordx4 v[{T+8}:{T+11}], v{vU}, s[{RWS}:{RWS+3}], s{su} offen sc1", f"ust{h}"))
    deferred1 = []
    for m in range(N1 // 2):
        p, i = m // 8, 2 * (m % 8)
        stamp(f"g1_{m}")
        if hst_[0] == N1 and w2.n == 4 * c.w2e:
            stamp("t0")
        ops = plan(m, hst_, w1, hissue, N1, c.hd, lambda: [w2.issue] * c.w2_tail)
        if c.ov1 and m == 8:
            assert w1.left() == 0 and w1.rd == 8 * NS1
            w2setup(c.w2e)
        if m % 8 == 1 and p >= 1:
            rest, fl.g = (fl.g, []) if c.cst == 2 else ([], fl.g)
            for aa in (range(4) if p % 2 == 1 else (2, 3)):
                red_write(fl, p - 1, aa)
            fl.g += rest
        a.wait(f"h{2*m+1}")
        if m < 8:
            need_steps(w1, 2 * m + 1)
        if c.al8:
            a(".p2align 3")
        per = spread(c.g1fill)
        order = (2, 3, 0, 1) if m == N1 // 2 - 1 else (0, 1, 2, 3)
        for ti, t in enumerate(order):
            for e0 in range(2):
                e = e0 ^ (ti & 1) if c.serp else e0
                rb = RING + 4 * ((2 * m + e) % NRING)
                cc = ACC + 16 * p + 4 * t
                src = "0" if (i == 0 and e0 == 0 and not (p % 2 == 1 and t < 2)) else f"v[{cc}:{cc+3}]"
                ra = 16 * (i + e) + 4 * t
                ins = f"v_mfma_f32_16x16x32_bf16 v[{cc}:{cc+3}], a[{ra}:{ra+3}], v[{rb}:{rb+3}], {src}"
                if t < 2 and m >= N1 // 2 - c.defer1:
                    deferred1.append(ins)
                elif not (c.fake & 4):
                    a(ins)
                if 2 * ti + e0 in ops:
                    ops[2 * ti + e0]()
                if m < 8:
                    w1.reads(2)
                if c.cst:
                    fl.gap(0 if 2 * ti + e0 in ops else c.gb1)
                else:
                    fl.emit(per[2 * ti + e0])
        if c.gbar and m % c.gbar == c.gbar - 1 and m != c.g1bar and m < 28:
            a("s_barrier")
        if m == c.g1bar:
            fl.g = [x for x in fl.g if not getattr(x, "skip", 0)]
            assert not fl.g
            a.dwait()
            if not (c.fake & 16):
                a("s_barrier")
            red_finish(fl, 0)
            if c.fake & 8:
                fl.g = [x if callable(x) else (lambda: None) for x in fl.g]
    fl.flush()
    stamp(6)
    w2.can_read = True
    if c.defer1:
        for _ in range(6):
            a(deferred1.pop(0) if deferred1 else "s_nop 0")
        red_write(fl, 3, 2)
        fl.flush()
        a(deferred1.pop(0) if deferred1 else "s_nop 0")
        red_write(fl, 3, 3)
        fl.flush()
        for x in deferred1:
            a(x)
    else:
        a("s_nop 3")
        red_write(fl, 3, 2)
        red_write(fl, 3, 3)
        fl.flush()
    w2.issue()
    a.dwait()
    a("s_barrier")
    red_finish(fl, 1)
    fl.emit(6)
    k = 0
    flagged = False
    while fl.g:
        if k == c.fe_pos:
            a.wait("ust0")
            stamp("fe")
            flag_add(1)
            flagged = True
        if k < c.w2_un:
            w2.step(fl, throttle=False)
        else:
            fl.emit(c.fillk)
        k += 1
    stamp(7)
    if not flagged:
        a.wait("ust0")
        stamp("fe")
        flag_add(1)
    if c.ep:
        a.vm(poll_load("a"), "apoll0")
    for _ in range(c.w2_mid):
        w2.step(None, older_than="ust1")
    a.wait("ust1")
    flag_add(2)
    if c.eat:
        a(f"s_or_b32 s{sT0}, s2, s{sW}")
        a("s_cbranch_scc1 L_join")
        a(f"s_atomic_add s{sED}, s[{FB}:{FB+1}], {EP_OFF-FH_OFF}")
    a("L_join:")
    join_n, join_rd = w2.n, w2.rd
    stamp(8)
    fl(f"s_mul_i32 s{sT3}, {0 if c.fake & 2 else 's%d' % sJ}, {(5*49152) << zu}\ns_mul_i32 s{sT1}, s{sW}, {12288 << zu}\ns_add_u32 s{sT3}, s{sT3}, s{sT1}\ns_add_u32 s{sT3}, s{sT3}, {U_OFF}")
    if c.nh:
        for i in range(NS2):
            fl(step_off(sK + i, sT3, i, 10 + zu))
    else:
        fl(f"s_add_u32 s{sUS1}, s{sT3}, {12288 << zu}\ns_lshl_b32 s{sK}, s{sROT2}, {10+zu}\ns_add_u32 s{sK}, s{sK}, s{sT3}")
        for i in range(1, NS2):
            fl(f"s_add_u32 s{sK+i}, s{sK+i-1}, {1024 << zu}\ns_cmp_eq_u32 s{sK+i}, s{sUS1}\ns_cselect_b32 s{sK+i}, s{sT3}, s{sK+i}")
    fl(f"v_lshlrev_b32 v{vB2}, 16, v{vB2}")
    for t in range(5):
        for r in range(4):
            fl(f"v_mov_b32 v{ACC+16*t+r}, v{vB2}")
    for k in range(4):
        fl(f"s_xor_b32 s{sT0}, s{sW}, {k}\ns_mul_i32 s{sT0}, s{sT0}, {WSLOT*4096}\nv_add_u32 v{vR+k}, s{sT0}, v{vL16}")
    if c.omap:
        fl(f"s_lshl_b32 s{sUS0}, s{sJ}, 7\ns_lshl_b32 s{sT3}, s{sJ}, 5\ns_add_u32 s{sT3}, s{sT3}, 1024")
    else:
        fl(f"s_mul_i32 s{sUS0}, s{sJ}, 160\ns_add_u32 s{sT3}, s{sUS0}, 128")
    assert w2.left() >= c.pe2 + c.ov2
    while w2.left() > c.ov2:
        if c.wbar and (w2.left() - c.wbo) % c.wbar == 0:
            a("s_barrier")
        if w2.left() == c.pe2 + c.ov2 + 1 and c.ep:
            assert not a.pending("apoll0")
            poll_test("a")
        if w2.left() == c.pe2 + c.ov2:
            if c.ep:
                a("s_cbranch_vccz L_noa")
                a(poll_load("a"))
                a("L_noa:")
            else:
                a.vm(poll_load("a"), "apoll")
        w2.step(fl)
    if c.pe2 == 0:
        a.vm(poll_load("a"), "apoll")
    fl.flush()
    if c.ep:
        a(f"s_waitcnt vmcnt({c.pe2})")
        a.q = a.q[-c.pe2:]
    a.wait("apoll")
    stamp(9)
    spin("a")
    stamp(10)
    N2 = 60
    def uissue(n):
        if n == 24 - c.pbl:
            a.vm(poll_load("b"), "bpoll")
        if n == 23 and c.pbo:
            a.wait("bpoll")
            poll_test("b")
        if n == 24:
            if c.pbo:
                a("s_cbranch_vccnz L_pb_spin")
                a("L_pb_ok:")
            else:
                a.wait("bpoll")
                spin("b")
            stamp("pb")
        r = RING + 4 * (n % NRING)
        a.vm(f"buffer_load_dwordx4 v[{r}:{r+3}], v{vU+n//12}, s[{RWS}:{RWS+3}], s{sK+n%12} offen sc1", f"u{n}")
    ust_ = [c.d0 if c.ov2 else (c.hi or c.ud)]
    for n in range(ust_[0]):
        pace()
        uissue(n)
        w2.reads(2)
    if not c.ov2:
        w2.drain()
        a.dwait()
    stamp("g2s")
    def fin_reads(f, ts):
        for t in ts:
            for k in range(1, 4):
                cr = ACC + 16 * t + 4 * k
                f(lambda t=t, k=k, cr=cr: a.ds(f"ds_read_b128 v[{cr}:{cr+3}], v{vR+k} offset:{(k-1)*5120+t*1024}", f"fr{t}"))
    def fin(f, t):
        f(lambda: a.dwait(f"fr{t}"))
        cc = ACC + 16 * t
        if t == 4 and c.pkfin:
            for r in (0, 2):
                f(f"v_pk_add_f32 v[{cc+r}:{cc+r+1}], v[{cc+r}:{cc+r+1}], v[{cc+4+r}:{cc+5+r}]")
                f(f"v_pk_add_f32 v[{cc+8+r}:{cc+9+r}], v[{cc+8+r}:{cc+9+r}], v[{cc+12+r}:{cc+13+r}]")
            for r in (0, 2):
                f(f"v_pk_add_f32 v[{cc+r}:{cc+r+1}], v[{cc+r}:{cc+r+1}], v[{cc+8+r}:{cc+9+r}]")
            for r in (0, 2):
                f(f"v_cvt_pk_bf16_f32 v{RD+2*t+r//2}, v{cc+r}, v{cc+r+1}")
            return
        for r in range(4):
            f(f"v_add_f32 v{cc+r}, v{cc+r}, v{cc+4+r}")
            f(f"v_add_f32 v{cc+8+r}, v{cc+8+r}, v{cc+12+r}")
        for r in range(4):
            f(f"v_add_f32 v{cc+r}, v{cc+r}, v{cc+8+r}")
        for r in (0, 2):
            f(f"v_cvt_pk_bf16_f32 v{RD+2*t+r//2}, v{cc+r}, v{cc+r+1}")
    def ostore(pp):
        a.vm(f"buffer_store_dwordx4 v[{RD+4*pp}:{RD+4*pp+3}], v{vO}, s[{ROUT}:{ROUT+3}], s{sUS0} offen offset:{64*pp}{OP[c.opol] if c.osc >> pp & 1 else ''}", "o")
    stored0 = [False]
    deferred = []
    for m in range(N2 // 2):
        t, i = m // 6, 2 * (m % 6)
        stamp(f"g2_{m}")
        def tail2():
            if stored0[0] or c.o0b:
                return []
            stored0[0] = True
            return [lambda: ostore(0)]
        ops = plan(m, ust_, w2, uissue, N2, c.ud, tail2)
        if m % 6 == 1 and t >= 1:
            rest, fl.g = fl.g, []
            for b in range(1, 4):
                cw = ACC + 16 * (t - 1) + 4 * b
                if c.w32 & 8 and t < 4:
                    for r in range(4):
                        fl(costly(lambda cw=cw, b=b, t=t, r=r: a.ds(f"ds_write_b32 v{vR}, v{cw+r} offset:{(b-1)*5120+(t-1)*1024+4*r}", "fw"), 16))
                        if r % 2 == 1:
                            fl.delay(1)
                    continue
                fl(costly(lambda cw=cw, b=b, t=t: a.ds(f"ds_write_b128 v{vR}, v[{cw}:{cw+3}] offset:{(b-1)*5120+(t-1)*1024}", "fw"), 16))
                if c.cst:
                    fl.delay(c.wsk)
            fl.g += rest
        a.wait(f"u{2*m+1}")
        if m < 6:
            need_steps(w2, 2 * m + 1)
        if c.al8:
            a(".p2align 3")
        per = spread(c.g2l if m > c.g2b1 else c.g2f)
        for bi, b in enumerate((1, 2, 3, 0)):
            for e0 in range(2):
                e = e0 ^ (bi & 1) if c.serp else e0
                ra = RING + 4 * ((2 * m + e) % NRING)
                cc = ACC + 16 * t + 4 * b
                src = "0" if (i == 0 and e0 == 0 and b) else f"v[{cc}:{cc+3}]"
                rb = 16 * (i + e) + 4 * b
                ins = f"v_mfma_f32_16x16x32_bf16 v[{cc}:{cc+3}], v[{ra}:{ra+3}], a[{rb}:{rb+3}], {src}"
                if b == 0 and m >= N2 // 2 - c.defer:
                    deferred.append(ins)
                elif not (c.fake & 4):
                    a(ins)
                if 2 * bi + e0 in ops:
                    ops[2 * bi + e0]()
                if m < 6:
                    w2.reads(2)
                if c.cst:
                    gb = c.gb3 if m > c.g2b1 else c.gb2
                    if not (b == 0 and m >= N2 // 2 - c.defer):
                        fl.gap(0 if 2 * bi + e0 in ops else gb)
                else:
                    fl.emit(per[2 * bi + e0])
        if c.gbar and m % c.gbar == c.gbar - 1 and m not in (c.g2b0, c.g2b1) and m < 25:
            a("s_barrier")
        if m in (c.g2b0, c.g2b1):
            fl.g = [x for x in fl.g if not getattr(x, "skip", 0)]
            assert not fl.g
            a.dwait()
            if not (c.fake & 16):
                a("s_barrier")
            nfirst = 3 if c.g2b0 >= 19 else 2
            ts = tuple(range(nfirst)) if m == c.g2b0 else tuple(range(nfirst, 4))
            fin_reads(fl, ts)
            if m == c.g2b1 and c.o0b:
                assert ust_[0] == N2
                fl(lambda: ostore(0))
            if c.cst:
                fl.delay(c.dly if m == c.g2b0 else 2)
            for tt in ts:
                fin(fl, tt)
            if c.fake & 8:
                fl.g = [x if callable(x) else (lambda: None) for x in fl.g]
            if m == c.g2b1:
                fl(lambda: ostore(1))
            elif c.o0e:
                fl(lambda: ostore(0))
                stored0[0] = True
    stamp(11)
    def pad_states(k):
        while k > 0 and deferred:
            a(deferred.pop(0)); k -= 1
        if k > 0:
            a(f"s_nop {k-1}")
    pad_states(4 if c.defer else 2)
    for b in range(1, 4):
        cw = ACC + 64 + 4 * b
        if b > 1:
            pad_states(1)
        a.ds(f"ds_write_b128 v{vR}, v[{cw}:{cw+3}] offset:{(b-1)*5120+4096}")
    late = len(deferred)
    pad_states(late)
    fl.flush()
    a.dwait()
    a("s_barrier")
    stamp("e2")
    fin_reads(fl, (4,))
    fl.flush()
    if c.stamp:
        a.dwait()
    if c.defer:
        a("s_nop 1")
    fin(fl, 4)
    fl.flush()
    a(f"buffer_store_dwordx2 v[{RD+8}:{RD+9}], v{vO+1}, s[{ROUT}:{ROUT+3}], s{sT3} offen{OP[c.opol] if c.osc & 4 else ''}")
    if not c.eat:
        a(f"s_or_b32 s{sT0}, s2, s{sW}")
        a("s_cbranch_scc1 L_noepoch")
        a(f"v_mov_b32 v{t5}, {EP_OFF}")
        flag_store(t5, None, "")
        a("L_noepoch:")
    if c.stamp:
        stamp("e3")
        a("s_waitcnt vmcnt(0)")
        stamp(12)
        a(f"s_lshl_b32 s{sT0}, s2, 3")
        a(f"s_add_u32 s{sT0}, s{sT0}, s{sW}")
        a(f"s_lshl_b32 s{sT0}, s{sT0}, 6")
        a(f"s_add_u32 s{sT0}, s{sT0}, {ST_OFF}")
        a(f"v_mov_b32 v{t0}, s{sT0}")
        a("s_waitcnt lgkmcnt(0)")
        for i in range(13):
            a(f"v_mov_b32 v{t1}, s{STB+2*i}")
            a(f"global_store_dword v{t0}, v{t1}, s[{WS}:{WS+1}] offset:{4*i}")
    if c.pad:
        a("s_waitcnt vmcnt(0)")
        stamp("end")
        a("s_waitcnt lgkmcnt(0)")
        a("s_sub_u32 s64, s98, s100")
        if c.padx == -2:
            a(f"v_mov_b32 v{t0}, {ST_OFF}")
            a(f"global_load_dword v{t1}, v{t0}, s[{WS}:{WS+1}] sc1")
            a("s_waitcnt vmcnt(0)")
            a(f"v_readfirstlane_b32 s100, v{t1}")
            a("s_nop 3")
            a("s_sub_u32 s64, s98, s100")
            a("s_min_u32 s64, s64, 4000")
        if c.padx >= 0:
            a(f"s_cmp_lg_u32 s2, {c.padx}")
            a("s_cbranch_scc1 L_end")
            a(f"v_mov_b32 v{t0}, {ST_OFF}")
            a(f"global_load_dword v{t1}, v{t0}, s[{WS}:{WS+1}] sc1")
            a("s_waitcnt vmcnt(0)")
            a(f"v_readfirstlane_b32 s64, v{t1}")
            a("s_nop 3")
            a("s_sub_u32 s64, s100, s64")
            a("s_add_u32 s64, s64, 100")
            a("s_min_u32 s64, s64, 1000")
        a(f"s_mul_i32 s64, s64, {c.mult}")
        a("s_add_u32 s64, s64, 10000")
        a(f"s_mov_b32 s{sCNT}, 0")
        a("L_pad:")
        a("s_memrealtime s[66:67]")
        a("s_waitcnt lgkmcnt(0)")
        a(f"s_add_u32 s{sCNT}, s{sCNT}, 1")
        a(f"s_cmp_ge_u32 s{sCNT}, 200000\ns_cbranch_scc1 L_end")
        a("s_sub_u32 s66, s66, s100")
        a("s_cmp_lt_u32 s66, s64\ns_cbranch_scc1 L_pad")
    a("s_endpgm")
    if c.pbo:
        a("L_pb_spin:")
        a(f"s_mov_b32 s{sCNT}, 0")
        a("L_pb_l:")
        a(poll_load("b"))
        a(f"s_add_u32 s{sCNT}, s{sCNT}, 1")
        a(f"s_cmp_ge_u32 s{sCNT}, {SPIN_CAP}")
        a("s_cbranch_scc1 L_pb_ok")
        a("s_waitcnt vmcnt(0)")
        poll_test("b")
        a("s_cbranch_vccnz L_pb_l")
        a("s_branch L_pb_ok")
    a("L_idle:")
    if c.hearly:
        srd(a, RW2, W2, S * F * 2)
    else:
        a("s_waitcnt vmcnt(0) lgkmcnt(0)")
    a.q, a.lq = [], []
    if c.pad and c.padat in ("4", "5", "6", "7", "t0", "fe", "g1s"):
        stamp(c.padat)
    if c.stamp:
        for nm in SETS[c.sset]:
            if nm in (4, 5, 6, 7, "t0", "fe", "g1s") or str(nm).startswith(("w1_", "g1_", "w2_22")):
                stamp(nm)
    if c.nh:
        a(f"s_bfe_u32 s{sT1}, s2, 0x10003")
        if (c.nh == 4 or c.irot) and c.iw == 0 and c.irot != 2:
            a(f"s_mul_i32 s{sROT2}, s{sT1}, {c.ird or (12-c.nh)//2}")
            if c.iro:
                a(f"s_add_u32 s{sROT2}, s{sROT2}, {c.iro}")
        if c.nh == 4 and c.iw == 2:
            a(f"s_lshl_b32 s{sT0}, s{sT1}, 2")
            a(f"s_bitcmp0_b32 s{sST}, 2")
            a(f"s_cselect_b32 s{sROT2}, s{sT0}, s{sROT2}")
        a(f"s_lshl_b32 s{sT1}, s{sT1}, 16")
        a(f"s_mul_i32 s{sT0}, s{sW}, {12*32*4096}")
        a(f"s_add_u32 s{sT0}, s{sT0}, s{sT1}")
        a(f"s_lshr_b32 s{sT1}, s{sST}, 2")
        a(f"s_lshl_b32 s{sT1}, s{sT1}, 9")
        a(f"s_add_u32 s{sT3}, s{sT0}, s{sT1}")
        sh = c.hsec + 1
        a(f"v_lshrrev_b32 v{vH}, {sh}, v{vL}")
        a(f"v_lshlrev_b32 v{vH}, 12, v{vH}")
        a(f"v_and_b32 v{t1}, {(1<<sh)-1}, v{vL}")
        a(f"v_lshl_add_u32 v{vH}, v{t1}, {9-sh}, v{vH}")
        for r in range(c.nh * c.hsec):
            a(f"buffer_load_dword v{vH+1}, v{vH}, s[{RW2}:{RW2+3}], s{sT3} offen")
            inc = 32 if c.hsec == 1 else (8 if r % 2 == 0 else 24)
            a(f"s_add_u32 s{sT3}, s{sT3}, {inc*4096}")
            if c.hearly and r == 0:
                setup_common(a)
                setup_g2(a)
                a("s_waitcnt vmcnt(1)")
                stamp(3)
                flag_add(0)
            a(f"s_waitcnt vmcnt({c.hq-1})")
    elif c.helper:
        a(f"s_bfe_u32 s{sT1}, s2, 0x10003")
        a(f"s_mul_i32 s{sROT2}, s{sT1}, 6")
    w2setup(0)
    wi = W(2)
    while wi.n < join_n:
        if c.iw and wi.n == 4 * (c.nh + 1):
            if c.iw == 2:
                a(f"s_bitcmp0_b32 s{sST}, 2")
                a("s_cbranch_scc1 L_iw_ok")
            a(f"s_mov_b32 s{sCNT}, 0")
            a("L_iw:")
            if c.islp:
                a(f"s_sleep {c.islp}")
            a(poll_load("a"))
            a(f"s_add_u32 s{sCNT}, s{sCNT}, 1")
            a(f"s_cmp_ge_u32 s{sCNT}, {SPIN_CAP}")
            a("s_cbranch_scc1 L_iw_ok")
            a("s_waitcnt vmcnt(0)")
            poll_test("a")
            a("s_cbranch_vccnz L_iw")
            a("L_iw_ok:")
        wi.issue()
    if c.ep:
        a(f"v_not_b32 v{vP}, v{vTAG}")
    a("s_waitcnt vmcnt(0)")
    a.q = []
    wi.reads(join_rd - wi.rd)
    assert wi.rd == join_rd, (wi.rd, join_rd)
    a.dwait()
    a("s_branch L_join")
    a("L_end:\ns_endpgm")
    a(f""".section .rodata,"a"
.p2align 6
.amdhsa_kernel {NAME}
  .amdhsa_next_free_vgpr 512
  .amdhsa_next_free_sgpr 102
  .amdhsa_accum_offset 256
  .amdhsa_group_segment_fixed_size 0
  .amdhsa_kernarg_size 64
  .amdhsa_user_sgpr_count 2
  .amdhsa_user_sgpr_kernarg_segment_ptr 1
  .amdhsa_system_sgpr_workgroup_id_x 1
  .amdhsa_float_denorm_mode_32 3
.end_amdhsa_kernel""")
    return a.text()

if __name__ == "__main__":
    c = Cfg()
    out = sys.argv[1]
    for x in sys.argv[2:]:
        k, v = x.split("=")
        assert hasattr(c, k), k
        setattr(c, k, v if k == 'padat' else int(v, 0))
    open(out, "w").write(gen(c))
```
